```python
import torch

def _softmax(x, axis=-1):
    return torch.softmax(x, dim=axis)
def _gelu(x):
    return torch.nn.functional.gelu(x, approximate="tanh")
def _silu(x):
    return torch.nn.functional.silu(x)
def _sigmoid(x):
    return torch.sigmoid(x)
def _layernorm(x, axis=-1, eps=1e-5):
    m = x.mean(dim=axis, keepdim=True)
    v = x.var(dim=axis, keepdim=True, unbiased=False)
    return (x - m) / torch.sqrt(v + eps)
def _scatter_add(tgt, idx, src, axis=0):
    return tgt.clone().index_add_(axis, idx, src)
def _segment_sum(src, seg, n):
    out = torch.zeros((n,) + src.shape[1:], dtype=src.dtype)
    return out.index_add_(0, seg, src)
def _pad(x, pw):
    flat = tuple(v for pair in reversed(pw) for v in pair)
    return torch.nn.functional.pad(x, flat)

kernel_name = 'standalone__edge_featured_mpnn_gatedgcn__graph'

def setup_inputs():

    _w = (lambda a: (lambda t: t.to(torch.bfloat16) if t.is_floating_point() else t)(torch.as_tensor(a)))
    N, deg, D, De = 10000, 64, 64, max(4, 1)
    E = N * deg
    return {
        "x": _w((lambda *s: torch.randn(*s, dtype=torch.bfloat16) * 0.8)(N, D)),
        "e_attr": _w((lambda *s: torch.randn(*s, dtype=torch.bfloat16) * 0.8)(E, De)),
        "src": _w((lambda lo, hi, *s: torch.randint(lo, hi, s))(0, N, E).to(torch.int64)),
        "dst": _w((lambda lo, hi, *s: torch.randint(lo, hi, s))(0, N, E).to(torch.int64)),
        "w_a": _w((lambda *s: torch.randn(*s, dtype=torch.bfloat16) * 0.8)(D, D)),
        "w_b": _w((lambda *s: torch.randn(*s, dtype=torch.bfloat16) * 0.8)(D, D)),
        "w_c": _w((lambda *s: torch.randn(*s, dtype=torch.bfloat16) * 0.8)(De, D)),
        "w_u": _w((lambda *s: torch.randn(*s, dtype=torch.bfloat16) * 0.05)(D, D)),
        "w_v": _w((lambda *s: torch.randn(*s, dtype=torch.bfloat16) * 0.05)(D, D)),
    }

def reference(x, e_attr, src, dst, w_a, w_b, w_c, w_u, w_v):
    N, D = x.shape
    hv = x @ w_v
    g = x[dst] @ w_a + x[src] @ w_b + e_attr @ w_c
    eta = _sigmoid(g)
    denom = _segment_sum(eta, dst, N) + 1e-6
    eta_n = eta / denom[dst]
    agg = _segment_sum(eta_n * hv[src], dst, N)
    z = x @ w_u + agg
    relu_z = torch.where(z > 0, z, 0 * z)
    return x + relu_z
```

```python
import sys, argparse

N, D, E = 10000, 64, 640000
NB, NPB = 250, 40
CH = 2560
G_OFF, OFF_OFF, REC_OFF = 0, 0x280000, 0x2C0000
NLOG2E = 0xBFB8AA3B
BIG = 0x71800000
NBIG = 0xF1800000

class Asm:
    def __init__(self):
        self.l = []
    def __call__(self, s=""):
        for line in s.split("\n"):
            self.l.append(line)
    def text(self):
        return "\n".join(self.l) + "\n"

def dpp_scan(a, v):
    for sh in (1, 2, 4, 8):
        a(f"    s_nop 1")
        a(f"    v_add_u32_dpp v{v}, v{v}, v{v} row_shr:{sh} row_mask:0xf bank_mask:0xf bound_ctrl:0")
    a("    s_nop 1")
    a(f"    v_add_u32_dpp v{v}, v{v}, v{v} row_bcast:15 row_mask:0xa bank_mask:0xf")
    a("    s_nop 1")
    a(f"    v_add_u32_dpp v{v}, v{v}, v{v} row_bcast:31 row_mask:0xc bank_mask:0xf")
    a("    s_nop 1")

K1_HIST, K1_OFFS, K1_REC = 0, 1024, 2048
K1_WB = K1_REC + CH * 12
K1_WV = K1_WB + 64 * 144
K1_X = K1_WV + 64 * 144
K1_G = K1_X + 48 * 144
K1_LDS = K1_G + 48 * 272

def gen_k1(a, opt):
    st = opt.k1_store
    a(f"""
.globl prep_kernel
.p2align 8
.type prep_kernel,@function
prep_kernel:
    s_cmp_ge_u32 s2, {NB}
    s_cbranch_scc1 K1_END
    s_load_dwordx2 s[4:5], s[0:1], 0        ; x
    s_load_dwordx2 s[6:7], s[0:1], 8        ; e_attr
    s_load_dwordx4 s[8:11], s[0:1], 16
    s_load_dwordx2 s[12:13], s[0:1], 40     ; w_b
    s_load_dwordx2 s[14:15], s[0:1], 64     ; w_v
    s_load_dwordx2 s[16:17], s[0:1], 88     ; ws
    v_lshrrev_b32 v1, 6, v0
    v_and_b32 v63, 63, v0                   ; lane
    v_readfirstlane_b32 s3, v1
    s_nop 3
    s_cmp_ge_u32 s3, 10
    s_cbranch_scc1 K1_GEMM
    s_mul_i32 s20, s2, {CH*4}
    v_lshlrev_b32 v2, 4, v0
    v_add_u32 v3, s20, v2
    s_lshl_b32 s21, s20, 1
    v_lshlrev_b32 v4, 5, v0
    v_add_u32 v4, s21, v4
    v_mov_b32 v5, 0
    v_lshlrev_b32 v6, 2, v0
    s_waitcnt lgkmcnt(0)
    global_load_dwordx4 v[8:11], v3, s[10:11]
    global_load_dwordx4 v[12:15], v3, s[8:9]
    global_load_dwordx4 v[16:19], v4, s[6:7]
    global_load_dwordx4 v[20:23], v4, s[6:7] offset:16
    s_cmp_ge_u32 s3, 4
    s_cbranch_scc1 K1_NOZERO
    ds_write_b32 v6, v5 offset:{K1_HIST}
K1_NOZERO:
    s_mov_b32 s22, 52429
    s_movk_i32 s23, 0xffd8                  ; -40
    v_mov_b32 v7, 1
    s_waitcnt lgkmcnt(0)
    s_barrier                               ; #1
    s_waitcnt vmcnt(3)""")
    for j in range(4):
        a(f"    v_mul_u32_u24 v{24+j}, s22, v{8+j}")
        a(f"    v_lshrrev_b32 v{24+j}, 21, v{24+j}          ; bucket")
        a(f"    v_mad_i32_i24 v{8+j}, v{24+j}, s23, v{8+j}")
        a(f"    v_lshlrev_b32 v{24+j}, 2, v{24+j}")
        a(f"    ds_add_rtn_u32 v{28+j}, v{24+j}, v7 offset:{K1_HIST}")
    a("    s_waitcnt vmcnt(2)")
    for j in range(4):
        a(f"    v_lshl_or_b32 v{12+j}, v{8+j}, 16, v{12+j}   ; key")
    a(f"""    s_waitcnt lgkmcnt(0)
    s_barrier                               ; #2
    v_lshlrev_b32 v2, 4, v63
    ds_read_b128 v[32:35], v2 offset:{K1_HIST}
    s_waitcnt lgkmcnt(0)
    v_add_u32 v36, v32, v33
    v_add_u32 v37, v36, v34
    v_add_u32 v38, v37, v35
    v_mov_b32 v39, v38""")
    dpp_scan(a, 39)
    a(f"""    v_sub_u32 v40, v39, v38
    v_add_u32 v41, v40, v32
    v_add_u32 v42, v40, v36
    v_add_u32 v43, v40, v37
    ds_write_b128 v2, v[40:43] offset:{K1_OFFS}
    s_cmp_lg_u32 s3, 0
    s_cbranch_scc1 K1_NOOFF
    s_add_u32 s24, s16, {OFF_OFF}
    s_addc_u32 s25, s17, 0
    s_lshl_b32 s26, s2, 10
    v_add_u32 v3, s26, v2
    global_store_dwordx4 v3, v[40:43], s[24:25] {st}
K1_NOOFF:
    s_waitcnt lgkmcnt(0)""")
    for j in range(4):
        a(f"    ds_read_b32 v{44+j}, v{24+j} offset:{K1_OFFS}")
    a("    s_waitcnt lgkmcnt(0)")
    for j in range(4):
        a(f"    v_add_u32 v{44+j}, v{44+j}, v{28+j}")
        a(f"    v_mul_u32_u24 v{44+j}, 12, v{44+j}")
    a("    s_waitcnt vmcnt(0)")
    for j in range(4):
        a(f"    ds_write_b32 v{44+j}, v{12+j} offset:{K1_REC}")
        a(f"    ds_write2_b32 v{44+j}, v{16+2*j}, v{17+2*j} offset0:{1} offset1:{2}" if False else
          f"    v_add_u32 v{48+j}, {K1_REC}, v{44+j}")
    for j in range(4):
        a(f"    ds_write2_b32 v{48+j}, v{16+2*j}, v{17+2*j} offset0:1 offset1:2")
    a(f"""    s_waitcnt lgkmcnt(0)
    s_barrier                               ; #3
    v_lshlrev_b32 v2, 4, v0""")
    for j in range(3):
        a(f"    ds_read_b128 v[{32+4*j}:{35+4*j}], v2 offset:{K1_REC + j*10240}")
    a(f"""    s_add_u32 s24, s16, {REC_OFF}
    s_addc_u32 s25, s17, 0
    s_mul_i32 s26, s2, {CH*12}
    v_add_u32 v3, s26, v2""")
    for j in range(3):
        a(f"    s_waitcnt lgkmcnt({2-j})")
        a(f"    global_store_dwordx4 v3, v[{32+4*j}:{35+4*j}], s[24:25] {st}")
        if j < 2:
            a(f"    v_add_u32 v3, 10240, v3")
    a("""    s_endpgm
K1_GEMM:
    s_sub_u32 s3, s3, 10
    s_and_b32 s27, s3, 1
    s_add_u32 s27, s27, 6
    v_lshlrev_b32 v2, 4, v63                ; lane*16
    s_lshl_b32 s20, s3, 10
    v_add_u32 v3, s20, v2                   ; piece u
    s_lshl_b32 s21, s27, 10
    v_add_u32 v4, s21, v2                   ; piece 6/7""")
    a(f"""    s_mul_i32 s22, s2, {NPB*128}
    v_add_u32 v5, s22, v3                   ; x offset
    ; LDS staging address: (8*piece + lane/8)*144 + (lane%8)*16
    v_lshrrev_b32 v6, 3, v63
    v_mul_u32_u24 v6, 144, v6
    v_and_b32 v7, 7, v63
    v_lshl_add_u32 v6, v7, 4, v6
    s_mul_i32 s23, s3, {8*144}
    v_add_u32 v24, s23, v6
    s_mul_i32 s23, s27, {8*144}
    v_add_u32 v25, s23, v6
    s_waitcnt lgkmcnt(0)
    global_load_dwordx4 v[8:11], v3, s[12:13]
    global_load_dwordx4 v[12:15], v3, s[14:15]
    global_load_dwordx4 v[16:19], v4, s[12:13]
    global_load_dwordx4 v[20:23], v4, s[14:15]
    s_cmp_eq_u32 s3, 5
    s_cbranch_scc1 K1_NOX
    global_load_dwordx4 v[28:31], v5, s[4:5]
    s_waitcnt vmcnt(0)
    ds_write_b128 v24, v[28:31] offset:{K1_X}
K1_NOX:
    s_waitcnt vmcnt(0)
    ds_write_b128 v24, v[8:11] offset:{K1_WB}
    ds_write_b128 v24, v[12:15] offset:{K1_WV}
    ds_write_b128 v25, v[16:19] offset:{K1_WB}
    ds_write_b128 v25, v[20:23] offset:{K1_WV}
    ; tile job: nt = u/2, mt in {{2*(u%2), 2*(u%2)+1}}
    s_lshr_b32 s20, s3, 1                   ; nt
    s_and_b32 s21, s3, 1
    s_lshl_b32 s21, s21, 1                  ; mt0
    v_lshrrev_b32 v2, 4, v63                ; g
    v_and_b32 v3, 15, v63                   ; j / i
    s_lshl_b32 s22, s20, 4
    v_add_u32 v4, s22, v3
    v_mul_u32_u24 v5, 144, v4
    v_lshl_add_u32 v5, v2, 4, v5
    ; W fragment address: (8g + i/4)*144 + 32*mt + 8*(i%4)
    v_lshrrev_b32 v6, 2, v3
    v_lshl_add_u32 v6, v2, 3, v6
    v_mul_u32_u24 v6, 144, v6
    v_and_b32 v7, 3, v3
    v_lshl_add_u32 v6, v7, 3, v6
    s_lshl_b32 s22, s21, 5
    v_add_u32 v6, s22, v6
    v_mul_u32_u24 v7, 272, v4
    v_lshl_add_u32 v7, v2, 4, v7
    s_lshl_b32 s22, s21, 6
    v_add_u32 v7, s22, v7
    s_waitcnt lgkmcnt(0)
    s_barrier                               ; #1""")
    a(f"    ds_read_b128 v[8:11], v5 offset:{K1_X}")
    a(f"    ds_read_b128 v[12:15], v5 offset:{K1_X + 64}")
    for m in range(2):
        for mat, base in ((0, K1_WB), (1, K1_WV)):
            for ks in range(2):
                r = 16 + ((m * 2 + mat) * 2 + ks) * 4
                for h in range(2):
                    a(f"    ds_read_b64_tr_b16 v[{r+2*h}:{r+2*h+1}], v6 offset:{base + ks*4608 + h*576 + m*32}")
        if m == 0:
            pass
    a("    s_waitcnt lgkmcnt(0)")
    for m in range(2):
        for mat in range(2):
            acc = 64 + (m * 2 + mat) * 4
            r0 = 16 + ((m * 2 + mat) * 2 + 0) * 4
            r1 = 16 + ((m * 2 + mat) * 2 + 1) * 4
            a(f"    v_mfma_f32_16x16x32_bf16 v[{acc}:{acc+3}], v[{r0}:{r0+3}], v[8:11], 0")
            a(f"    v_mfma_f32_16x16x32_bf16 v[{acc}:{acc+3}], v[{r1}:{r1+3}], v[12:15], v[{acc}:{acc+3}]")
    a(f"""    s_barrier                               ; #2
    s_mov_b32 s22, {NLOG2E:#x}
    s_mov_b32 s23, {BIG:#x}
    s_mov_b32 s24, {NBIG:#x}
    s_mov_b32 s25, 0x8000
    s_nop 7""")
    for m in range(2):
        accb = 64 + (m * 2 + 0) * 4
        accv = 64 + (m * 2 + 1) * 4
        a(f"    v_cvt_pk_bf16_f32 v8, v{accv}, v{accv+1}")
        a(f"    v_cvt_pk_bf16_f32 v9, v{accv+2}, v{accv+3}")
        a(f"    v_and_b32 v10, 0xffff, v8")
        a(f"    v_lshrrev_b32 v11, 16, v8")
        a(f"    v_and_b32 v12, 0xffff, v9")
        a(f"    v_lshrrev_b32 v13, 16, v9")
        for r in range(4):
            b = accb + r
            lo = 10 + r
            a(f"    v_mul_f32 v{b}, s22, v{b}")
            a(f"    v_mov_b32 v14, s24")
            a(f"    v_med3_f32 v{b}, v{b}, v14, s23")
            a(f"    v_and_b32 v15, 0x7fffffff, v{b}")
            a(f"    v_and_b32 v{b}, 0x80000000, v{b}         ; sign")
            a(f"    v_sub_u32 v15, v15, v{lo}")
            a(f"    v_add_u32 v15, s25, v15")
            a(f"    v_max_i32 v15, 0, v15")
            a(f"    v_and_b32 v15, 0xffff0000, v15")
            a(f"    v_or3_b32 v{16+r}, v15, v{lo}, v{b}")
        a(f"    ds_write_b128 v7, v[16:19] offset:{K1_G + m*64}")
    a(f"""    s_waitcnt lgkmcnt(0)
    s_barrier                               ; #3
    s_lshl_b32 s20, s3, 6
    v_add_u32 v2, s20, v63                  ; t2
    v_lshrrev_b32 v3, 4, v2
    v_mul_u32_u24 v3, 272, v3
    v_and_b32 v4, 15, v2
    v_lshl_add_u32 v3, v4, 4, v3
    ds_read_b128 v[8:11], v3 offset:{K1_G}
    s_mul_i32 s21, s2, {NPB*256}
    v_lshlrev_b32 v5, 4, v2
    v_add_u32 v5, s21, v5
    s_cmp_ge_u32 s3, 4
    s_cbranch_scc1 K1_G1
    ds_read_b128 v[12:15], v3 offset:{K1_G + 24*272}
    s_waitcnt lgkmcnt(0)
    v_add_u32 v6, {384*16}, v5
    global_store_dwordx4 v6, v[12:15], s[16:17] {st}
K1_G1:
    s_waitcnt lgkmcnt(0)
    global_store_dwordx4 v5, v[8:11], s[16:17] {st}
    s_cmp_lg_u32 s2, {NB-1}
    s_cbranch_scc1 K1_END
    s_cmp_lg_u32 s3, 5
    s_cbranch_scc1 K1_END
    v_mov_b32 v8, 0x7f000000
    v_mov_b32 v9, v8
    v_mov_b32 v10, v8
    v_mov_b32 v11, v8
    v_lshlrev_b32 v5, 4, v63
    v_add_u32 v5, {N*256}, v5
    v_cmp_gt_u32 vcc, 16, v63
    s_and_saveexec_b64 s[30:31], vcc
    s_cbranch_execz K1_END
    global_store_dwordx4 v5, v[8:11], s[16:17] {st}
K1_END:
    s_endpgm
""")

ACC_STR = 528
K2_ACC = 0
K2_CNT = K2_ACC + NPB * ACC_STR
K2_ZREG = K2_CNT + 256
K2_FLAG = K2_ZREG + 512
K2_ZEND = K2_FLAG + 16
K2_AP = 22016
K2_U = K2_AP + 48 * 272
K2_SRC = K2_U + 48 * 272
NSLOT = 250 * 32 + 160 + 64
K2_E = K2_SRC + NSLOT * 4
K2_LDS = K2_E + NSLOT * 8
K2_WA = K2_E
K2_WU = K2_WA + 64 * 144
K2_X = K2_WU + 64 * 144

R = 8

def gen_k2(a, opt):
    a(f"""
.globl main_kernel
.p2align 8
.type main_kernel,@function
main_kernel:
    s_cmp_ge_u32 s2, {NB}
    s_cbranch_scc1 K2_END
    s_load_dwordx2 s[4:5], s[0:1], 0        ; x
    s_load_dwordx2 s[6:7], s[0:1], 32       ; w_a
    s_load_dwordx2 s[8:9], s[0:1], 48       ; w_c
    s_load_dwordx2 s[10:11], s[0:1], 56     ; w_u
    s_load_dwordx2 s[12:13], s[0:1], 72     ; out
    s_load_dwordx2 s[14:15], s[0:1], 88     ; ws
    v_lshrrev_b32 v1, 6, v0
    v_and_b32 v1, 15, v1
    v_and_b32 v127, 63, v0                  ; lane
    v_readfirstlane_b32 s3, v1
    v_lshrrev_b32 v126, 4, v127             ; q = lane/16
    v_and_b32 v125, 15, v127                ; i = lane%16
    s_lshl_b32 s30, s3, 4
    v_add_u32 v2, s30, v126                 ; w0 = 16v + q
    v_lshlrev_b32 v3, 10, v2
    s_lshl_b32 s31, s2, 2
    v_add_u32 v3, s31, v3
    s_movk_i32 s32, 0x1000
    s_movk_i32 s33, 0x2000
    s_movk_i32 s34, 0x3000
    s_waitcnt lgkmcnt(0)
    s_add_u32 s16, s14, {OFF_OFF}
    s_addc_u32 s17, s15, 0
    s_mov_b32 s18, {NB*1024}
    s_mov_b32 s19, 0x20000
    buffer_load_dwordx2 v[8:9], v3, s[16:19], 0 offen
    buffer_load_dwordx2 v[10:11], v3, s[16:19], s32 offen
    buffer_load_dwordx2 v[12:13], v3, s[16:19], s33 offen
    buffer_load_dwordx2 v[14:15], v3, s[16:19], s34 offen
    s_add_u32 s20, s14, {REC_OFF}
    s_addc_u32 s21, s15, 0
    s_mov_b32 s22, {E*12}
    s_mov_b32 s23, 0x20000
    s_mov_b32 s24, s14
    s_or_b32 s25, s15, 0x01000000           ; stride 256
    s_mov_b32 s26, {N+1}
    s_mov_b32 s27, 0x20000
    s_mul_i32 s35, s2, {NPB*128}
    v_lshlrev_b32 v4, 4, v127               ; lane*16
    s_cmp_ge_u32 s3, 5
    s_cbranch_scc1 K2_NOX
    s_lshl_b32 s36, s3, 10
    s_add_u32 s36, s36, s35
    v_add_u32 v5, s36, v4
    global_load_dwordx4 v[16:19], v5, s[4:5]
K2_NOX:
    s_cmp_ge_u32 s3, 10
    s_cbranch_scc1 K2_NOXR
    v_lshlrev_b32 v5, 3, v0
    v_add_u32 v5, s35, v5
    global_load_dwordx2 v[122:123], v5, s[4:5]
K2_NOXR:
    s_cmp_lt_u32 s3, 8
    s_cselect_b32 s28, s6, s10
    s_cselect_b32 s29, s7, s11
    s_and_b32 s36, s3, 7
    s_lshl_b32 s37, s36, 10
    v_add_u32 v5, s37, v4
    global_load_dwordx4 v[20:23], v5, s[28:29]
    ; w_c columns: c = 4*i + q
    v_lshl_add_u32 v6, v125, 2, v126
    v_lshlrev_b32 v6, 1, v6
    global_load_ushort v24, v6, s[8:9]
    global_load_ushort v25, v6, s[8:9] offset:128
    global_load_ushort v26, v6, s[8:9] offset:256
    global_load_ushort v27, v6, s[8:9] offset:384
    v_mov_b32 v28, 0
    v_mov_b32 v29, 0
    v_mov_b32 v30, 0
    v_mov_b32 v31, 0
    v_lshlrev_b32 v7, 4, v0
    ds_write_b128 v7, v[28:31]
    v_cmp_gt_u32 vcc, {K2_ZEND//16 - 1024}, v0
    s_and_saveexec_b64 s[38:39], vcc
    ds_write_b128 v7, v[28:31] offset:16384
    s_mov_b64 exec, s[38:39]
    s_mov_b32 s36, {CH*12}
    v_mul_lo_u32 v32, v2, s36
    v_mul_u32_u24 v33, 12, v125
    v_add_u32 v32, v32, v33
    s_mov_b32 s32, {4*CH*12}
    s_mov_b32 s33, {8*CH*12}
    s_mov_b32 s34, {12*CH*12}
    s_mov_b32 s56, 0
    v_mov_b32 v34, 0x7ffffff0
    s_waitcnt vmcnt(5)""")
    for j in range(4):
        a(f"    v_sub_u32 v{9+2*j}, v{9+2*j}, v{8+2*j}")
    for j in range(8):
        a(f"    v_mov_b32 v{112+j}, v{8+j}")
    a("K2_ROUND:")
    a("    v_add_u32 v35, s56, v125")
    a("    v_add_u32 v36, 16, v35                 ; batch 1")
    soff = ["0", "s32", "s33", "s34"]
    for j in range(4):
        a(f"    v_cmp_gt_u32 s[{40+2*j}:{41+2*j}], v{113+2*j}, v35")
        a(f"    v_cmp_gt_u32 s[{48+2*j}:{49+2*j}], v{113+2*j}, v36")
    for j in range(4):
        r = 64 + j * 4
        a(f"    v_add_u32 v37, s56, v{112+2*j}")
        a(f"    v_mad_u32_u24 v37, v37, 12, v32")
        a(f"    v_cndmask_b32 v{38+j}, v34, v37, s[{40+2*j}:{41+2*j}]")
        a(f"    buffer_load_dwordx3 v[{r}:{r+2}], v{38+j}, s[20:23], {soff[j]} offen")
    a("""    s_or_b64 s[60:61], s[48:49], s[50:51]
    s_or_b64 s[62:63], s[52:53], s[54:55]
    s_or_b64 s[60:61], s[60:61], s[62:63]
    s_cselect_b32 s57, 1, 0
    s_cbranch_scc0 K2_NOB1_LOAD""")
    for j in range(4):
        r = 64 + (4 + j) * 4
        a(f"    v_add_u32 v37, s56, v{112+2*j}")
        a(f"    v_mad_u32_u24 v37, v37, 12, v32")
        a(f"    v_add_u32 v37, 192, v37")
        a(f"    v_cndmask_b32 v{42+j}, v34, v37, s[{48+2*j}:{49+2*j}]")
        a(f"    buffer_load_dwordx3 v[{r}:{r+2}], v{42+j}, s[20:23], {soff[j]} offen")
    a("K2_NOB1_LOAD:")
    a("    v_add_u32 v36, 32, v35")
    a("    v_subrev_u32 v36, v125, v36            ; base + 32")
    a("    v_max_u32 v37, v113, v115")
    a("    v_max3_u32 v37, v37, v117, v119")
    a("    v_cmp_gt_u32 vcc, v37, v36")
    a("    s_nop 1")
    a("    s_cmp_eq_u64 vcc, 0")
    a("    s_cbranch_scc1 K2_NOMORE")
    a(f"    v_mov_b32 v37, {K2_FLAG}")
    a("    v_mov_b32 v36, 1")
    a("    ds_write_b32 v37, v36")
    a("K2_NOMORE:")
    a("    s_cmp_lg_u32 s56, 0")
    a("    s_cbranch_scc1 K2_SKIPGEMM")
    a(f"""    ; stage W piece and X piece
    v_lshrrev_b32 v5, 3, v127
    v_mul_u32_u24 v5, 144, v5
    v_and_b32 v6, 7, v127
    v_lshl_add_u32 v5, v6, 4, v5            ; (lane/8)*144 + (lane%8)*16
    s_and_b32 s36, s3, 7
    s_mul_i32 s36, s36, {8*144}
    s_lshr_b32 s37, s3, 3
    s_mul_i32 s37, s37, {64*144}
    s_add_u32 s36, s36, s37
    s_add_u32 s36, s36, {K2_WA}
    v_add_u32 v6, s36, v5
    s_cmp_lg_u32 s57, 0
    s_cbranch_scc1 K2_W8
    s_waitcnt vmcnt(4)
    s_branch K2_WD
K2_W8:
    s_waitcnt vmcnt(8)
K2_WD:
    ds_write_b128 v6, v[20:23]
    s_cmp_ge_u32 s3, 5
    s_cbranch_scc1 K2_NOXS
    s_mul_i32 s36, s3, {8*144}
    s_add_u32 s36, s36, {K2_X}
    v_add_u32 v6, s36, v5
    ds_write_b128 v6, v[16:19]
K2_NOXS:
    s_mov_b32 s36, {NLOG2E:#x}
    v_lshlrev_b32 v24, 16, v24
    v_lshlrev_b32 v25, 16, v25
    v_lshlrev_b32 v26, 16, v26
    v_lshlrev_b32 v27, 16, v27
    v_mul_f32 v24, s36, v24
    v_mul_f32 v25, s36, v25
    v_mul_f32 v26, s36, v26
    v_mul_f32 v27, s36, v27
    v_cvt_pk_bf16_f32 v120, v24, v25
    v_cvt_pk_bf16_f32 v121, v26, v27
    s_waitcnt lgkmcnt(0)
    s_barrier                               ; #1
    s_cmp_ge_u32 s3, 12
    s_cbranch_scc1 K2_SKIPGEMM
    s_and_b32 s36, s3, 3                    ; mt
    s_lshr_b32 s37, s3, 2                   ; nt
    s_lshl_b32 s38, s37, 4
    v_add_u32 v4, s38, v125
    v_mul_u32_u24 v5, 144, v4
    v_lshl_add_u32 v5, v126, 4, v5
    v_add_u32 v5, {K2_X}, v5
    v_lshrrev_b32 v6, 2, v125
    v_lshl_add_u32 v6, v126, 3, v6
    v_mul_u32_u24 v6, 144, v6
    v_and_b32 v7, 3, v125
    v_lshl_add_u32 v6, v7, 3, v6
    s_lshl_b32 s38, s36, 5
    s_add_u32 s38, s38, {K2_WA}
    v_add_u32 v6, s38, v6
    ds_read_b128 v[8:11], v5
    ds_read_b128 v[12:15], v5 offset:64""")
    for mat in range(2):
        for ks in range(2):
            r = 16 + mat * 8 + ks * 4
            if r + 3 >= 24 and r < 28:
                pass
            for h in range(2):
                a(f"    ds_read_b64_tr_b16 v[{r+2*h}:{r+2*h+1}], v6 offset:{mat*9216 + ks*4608 + h*576}")
    a(f"""    s_waitcnt lgkmcnt(0)
    v_mfma_f32_16x16x32_bf16 v[40:43], v[16:19], v[8:11], 0
    v_mfma_f32_16x16x32_bf16 v[44:47], v[24:27], v[8:11], 0
    v_mfma_f32_16x16x32_bf16 v[40:43], v[20:23], v[12:15], v[40:43]
    v_mfma_f32_16x16x32_bf16 v[44:47], v[28:31], v[12:15], v[44:47]
    v_mul_u32_u24 v7, 272, v4
    v_lshl_add_u32 v5, v126, 4, v7
    s_lshl_b32 s38, s36, 6
    s_add_u32 s38, s38, {K2_U}
    v_add_u32 v5, s38, v5                   ; U addr
    v_lshl_add_u32 v6, v126, 2, v7
    s_lshl_b32 s38, s36, 4
    s_add_u32 s38, s38, {K2_AP}
    v_add_u32 v6, s38, v6
    s_mov_b32 s36, {NLOG2E:#x}
    s_mov_b32 s37, {BIG:#x}
    v_mov_b32 v7, {NBIG:#x}
    s_nop 7
    ds_write_b128 v5, v[44:47]""")
    for r in range(4):
        a(f"    v_mul_f32 v{40+r}, s36, v{40+r}")
        a(f"    v_med3_f32 v{40+r}, v{40+r}, v7, s37")
        a(f"    v_and_b32 v8, 0xffff0000, v{40+r}")
        a(f"    v_sub_f32 v9, v{40+r}, v8")
        a(f"    v_cvt_pk_bf16_f32 v9, v9, v9")
        a(f"    v_and_b32 v9, 0xffff0000, v9")
        a(f"    v_lshrrev_b32 v8, 16, v8")
        a(f"    v_or_b32 v8, v8, v9")
        a(f"    ds_write_b32 v6, v8 offset:{r*64}")
    a("K2_SKIPGEMM:")
    a("""    v_mov_b32 v7, 1
    s_cmp_lg_u32 s57, 0
    s_cbranch_scc1 K2_RW4
    s_waitcnt vmcnt(0)
    s_branch K2_RWD
K2_RW4:
    s_waitcnt vmcnt(4)
K2_RWD:""")
    for j in range(4):
        r = 64 + j * 4
        a(f"    v_lshrrev_b32 v{104+j}, 16, v{r}")
        a(f"    v_lshlrev_b32 v{104+j}, 2, v{104+j}")
        a(f"    s_mov_b64 exec, s[{40+2*j}:{41+2*j}]")
        a(f"    ds_add_rtn_u32 v{96+j}, v{104+j}, v7 offset:{K2_CNT}")
        a(f"    s_mov_b64 exec, -1")
    a("""    s_cmp_eq_u32 s57, 0
    s_cbranch_scc1 K2_NOB1_RANK
    s_waitcnt vmcnt(0)""")
    for j in range(4):
        r = 64 + (4 + j) * 4
        a(f"    v_lshrrev_b32 v{108+j}, 16, v{r}")
        a(f"    v_lshlrev_b32 v{108+j}, 2, v{108+j}")
        a(f"    s_mov_b64 exec, s[{48+2*j}:{49+2*j}]")
        a(f"    ds_add_rtn_u32 v{100+j}, v{108+j}, v7 offset:{K2_CNT}")
        a(f"    s_mov_b64 exec, -1")
    a(f"""K2_NOB1_RANK:
    s_waitcnt lgkmcnt(0)
    s_barrier                               ; #2
    v_lshlrev_b32 v4, 2, v127
    ds_read_b32 v5, v4 offset:{K2_CNT}
    v_mov_b32 v6, {K2_FLAG}
    ds_read_b32 v6, v6
    s_waitcnt lgkmcnt(0)
    v_readfirstlane_b32 s59, v6
    v_add_u32 v7, 3, v5
    v_lshrrev_b32 v7, 2, v7
    v_max_u32 v7, 1, v7
    v_cmp_gt_u32 vcc, {NPB}, v127
    s_nop 1
    v_cndmask_b32 v7, 0, v7, vcc
    v_mov_b32 v124, v7""")
    dpp_scan(a, 124)
    a(f"""    v_sub_u32 v8, v124, v7
    v_lshlrev_b32 v8, 2, v8
    v_readlane_b32 s58, v124, 63            ; Q""")
    for h in range(2):
        if h == 1:
            a("    s_cmp_eq_u32 s57, 0")
            a("    s_cbranch_scc1 K2_NOB1_SCAT")
        for j in range(4):
            a(f"    ds_bpermute_b32 v{40+j}, v{104+4*h+j}, v8")
        a("    s_waitcnt lgkmcnt(0)")
        for j in range(4):
            r = 64 + (4 * h + j) * 4
            a(f"    v_add_u32 v{40+j}, v{40+j}, v{96+4*h+j}     ; slot")
            a(f"    v_and_b32 v{r}, 0xffff, v{r}               ; src")
            a(f"    v_lshlrev_b32 v9, 2, v{40+j}")
            a(f"    v_add_u32 v9, {K2_SRC}, v9")
            a(f"    v_lshlrev_b32 v10, 3, v{40+j}")
            a(f"    v_add_u32 v10, {K2_E}, v10")
            m = 40 + 8 * h + 2 * j
            a(f"    s_mov_b64 exec, s[{m}:{m+1}]")
            a(f"    ds_write_b32 v9, v{r}")
            a(f"    ds_write2_b32 v10, v{r+1}, v{r+2} offset0:0 offset1:1")
            a(f"    s_mov_b64 exec, -1")
    a("K2_NOB1_SCAT:")
    a(f"""    v_mov_b32 v11, {N}
    v_mov_b32 v12, 0
    v_mov_b32 v13, 0
    s_cmp_lg_u32 s3, 0
    s_cbranch_scc1 K2_NOPAD
    v_add_u32 v9, v8, v5
    v_lshlrev_b32 v10, 2, v124""")
    for s_ in range(4):
        a(f"    v_cmp_lt_u32 vcc, v9, v10")
        a(f"    v_lshlrev_b32 v14, 2, v9")
        a(f"    v_add_u32 v14, {K2_SRC}, v14")
        a(f"    v_lshlrev_b32 v15, 3, v9")
        a(f"    v_add_u32 v15, {K2_E}, v15")
        a(f"    s_and_saveexec_b64 s[38:39], vcc")
        a(f"    ds_write_b32 v14, v11")
        a(f"    ds_write_b64 v15, v[12:13]")
        a(f"    s_mov_b64 exec, s[38:39]")
        a(f"    v_add_u32 v9, 1, v9")
    a(f"""K2_NOPAD:
    s_cmp_lg_u32 s3, 1
    s_cbranch_scc1 K2_NOTAIL
    s_lshl_b32 s36, s58, 2
    v_add_u32 v9, s36, v127
    v_lshlrev_b32 v14, 2, v9
    v_add_u32 v14, {K2_SRC}, v14
    v_lshlrev_b32 v15, 3, v9
    v_add_u32 v15, {K2_E}, v15
    ds_write_b32 v14, v11
    ds_write_b64 v15, v[12:13]
K2_NOTAIL:
    s_mul_i32 s60, s58, s3
    s_lshr_b32 s60, s60, 4                  ; ts
    s_add_u32 s36, s3, 1
    s_mul_i32 s61, s58, s36
    s_lshr_b32 s61, s61, 4                  ; te
    v_cmp_ge_u32 vcc, s60, v124
    s_nop 1
    s_bcnt1_i32_b64 s62, vcc                ; n0
    s_nop 0
    v_readlane_b32 s63, v124, s62
    s_nop 3
    s_min_u32 s63, s63, s61
    s_sub_u32 s64, s63, s60
    s_sub_u32 s64, s64, 1                   ; rem
    s_lshl_b32 s36, s60, 4
    s_add_u32 s36, s36, {K2_SRC}
    v_lshl_add_u32 v2, v126, 2, s36
    v_lshrrev_b32 v9, 2, v125               ; e = i/4
    v_and_b32 v10, 3, v125                  ; r = i%4
    v_cmp_eq_u32 vcc, v10, v126
    s_lshl_b32 s36, s60, 5
    s_add_u32 s36, s36, {K2_E}
    v_lshl_add_u32 v9, v9, 3, s36
    v_mov_b32 v10, {K2_ZREG}
    v_cndmask_b32 v3, v10, v9, vcc          ; vAddrE
    v_mov_b32 v10, {32*R}
    v_cndmask_b32 v1, 0, v10, vcc           ; vIncE
    v_mov_b32 v10, 0x3f803f80
    v_cndmask_b32 v10, 0, v10, vcc
    v_mov_b32 v18, v10
    v_mov_b32 v19, 0
    v_mov_b32 v22, v10
    v_mov_b32 v23, 0
    ; B operand v[4:7]
    v_mov_b32 v4, v120
    v_mov_b32 v5, v121
    v_mov_b32 v7, 0
    v_lshlrev_b32 v65, 2, v127
    v_add_u32 v65, {K2_AP}, v65
    s_mul_i32 s36, s62, 272
    v_add_u32 v9, s36, v65
    v_lshlrev_b32 v66, 2, v125
    v_add_u32 v66, {K2_ACC}, v66
    v_lshlrev_b32 v63, 4, v125
    v_mov_b32 v56, 0
    v_mov_b32 v57, 0
    v_mov_b32 v58, 0
    v_mov_b32 v59, 0
    v_mov_b32 v60, 0
    v_mov_b32 v61, 0
    s_waitcnt lgkmcnt(0)
    s_barrier                               ; #3
    ds_read_b32 v6, v9
    ds_read_b32 v64, v9 offset:272""")
    return

def gen_k2_main(a, opt):
    G = lambda k: 24 + 4 * (k % R)
    Dr = lambda k: 8 + 4 * (k % 2)
    Ar = lambda k: 16 + 4 * (k % 2)
    NUM, DEN0, DEN1, H = 56, 60, 68, 70
    a(f"    v_mov_b32 v{DEN1}, 0")
    a(f"    v_mov_b32 v{DEN1+1}, 0")
    for k in range(R):
        a(f"    ds_read_b32 v{80+2*k}, v2 offset:{16*k}")
        a(f"    v_mov_b32 v{81+2*k}, v63")
    a(f"    ds_read_b64 v[{Ar(0)}:{Ar(0)+1}], v3")
    a(f"    ds_read_b64 v[{Ar(1)}:{Ar(1)+1}], v3 offset:32")
    a("    s_waitcnt lgkmcnt(0)")
    for k in range(R):
        a(f"    buffer_load_dwordx4 v[{G(k)}:{G(k)+3}], v[{80+2*k}:{81+2*k}], s[24:27], 0 idxen offen")
    a(f"    s_waitcnt vmcnt({R-1})")
    a(f"    v_mfma_f32_16x16x32_bf16 v[{Dr(0)}:{Dr(0)+3}], v[{Ar(0)}:{Ar(0)+3}], v[4:7], v[{G(0)}:{G(0)+3}]")
    a("    s_nop 7")
    a("K2_LOOP:")
    for k in range(R):
        d, dn = Dr(k), Dr(k + 1)
        g, gn = G(k), G(k + 1)
        a(f"K2_B{k}:")
        a(f"    s_sub_u32 s64, s64, 1")
        a(f"    s_cbranch_scc1 K2_SA{k}")
        a(f"K2_RA{k}:")
        a(f"    s_waitcnt vmcnt({R-2})")
        a(f"    v_mfma_f32_16x16x32_bf16 v[{dn}:{dn+3}], v[{Ar(k+1)}:{Ar(k+1)+3}], v[4:7], v[{gn}:{gn+3}]")
        a(f"    ds_read_b64 v[{Ar(k)}:{Ar(k)+1}], v3 offset:{32*(k+2)}")
        a(f"    ds_read_b32 v62, v2 offset:{16*(k+R)}")
        for i in range(4):
            a(f"    v_exp_f32 v{d+i}, v{d+i}")
        a(f"    v_lshlrev_b32 v{H}, 16, v{g}")
        a(f"    v_pk_add_f32 v[{d}:{d+1}], v[{d}:{d+1}], 1.0")
        a(f"    v_pk_add_f32 v[{d+2}:{d+3}], v[{d+2}:{d+3}], 1.0")
        a(f"    v_lshlrev_b32 v{H+1}, 16, v{g+1}")
        for i in range(4):
            a(f"    v_rcp_f32 v{d+i}, v{d+i}")
        a(f"    v_lshlrev_b32 v{H+2}, 16, v{g+2}")
        a(f"    v_lshlrev_b32 v{H+3}, 16, v{g+3}")
        a(f"    v_pk_fma_f32 v[{NUM}:{NUM+1}], v[{d}:{d+1}], v[{H}:{H+1}], v[{NUM}:{NUM+1}]")
        a(f"    v_pk_add_f32 v[{DEN0}:{DEN0+1}], v[{d}:{d+1}], v[{DEN0}:{DEN0+1}]")
        a(f"    v_pk_fma_f32 v[{NUM+2}:{NUM+3}], v[{d+2}:{d+3}], v[{H+2}:{H+3}], v[{NUM+2}:{NUM+3}]")
        a(f"    v_pk_add_f32 v[{DEN1}:{DEN1+1}], v[{d+2}:{d+3}], v[{DEN1}:{DEN1+1}]")
        a(f"    s_waitcnt lgkmcnt(0)")
        a(f"    buffer_load_dwordx4 v[{g}:{g+3}], v[62:63], s[24:27], 0 idxen offen")
        a(f"    s_cbranch_scc1 K2_SB{k}")
        a(f"K2_RB{k}:")
        if k == R - 1:
            a(f"    v_add_u32 v2, {16*R}, v2")
            a(f"    v_add_u32 v3, v1, v3")
            a(f"    s_branch K2_LOOP")
    for k in range(R):
        a(f"K2_SA{k}:")
        a(f"    v_mov_b32 v6, v64")
        a(f"    s_nop 0")
        a(f"    s_branch K2_RA{k}")
    for k in range(R):
        a(f"K2_SB{k}:")
        a(f"    s_mul_i32 s36, s62, {ACC_STR}")
        a(f"    v_add_u32 v67, s36, v66")
        for r in range(4):
            a(f"    ds_add_f32 v67, v{NUM+r} offset:{r*64}")
        a(f"    ds_add_f32 v67, v{DEN0} offset:256")
        a(f"    ds_add_f32 v67, v{DEN0+1} offset:320")
        a(f"    ds_add_f32 v67, v{DEN1} offset:384")
        a(f"    ds_add_f32 v67, v{DEN1+1} offset:448")
        a(f"    s_cmp_eq_u32 s63, s61")
        a(f"    s_cbranch_scc1 K2_DONE")
        a(f"    s_add_u32 s62, s62, 1")
        a(f"    v_readlane_b32 s65, v124, s62")
        a(f"    s_add_u32 s36, s62, 1")
        a(f"    s_mul_i32 s36, s36, 272")
        a(f"    v_add_u32 v67, s36, v65")
        for r in range(4):
            a(f"    v_mov_b32 v{NUM+r}, 0")
        a(f"    v_mov_b32 v{DEN0}, 0")
        a(f"    v_mov_b32 v{DEN0+1}, 0")
        a(f"    v_mov_b32 v{DEN1}, 0")
        a(f"    v_mov_b32 v{DEN1+1}, 0")
        a(f"    ds_read_b32 v64, v67")
        a(f"    s_min_u32 s65, s65, s61")
        a(f"    s_sub_u32 s64, s65, s63")
        a(f"    s_sub_u32 s64, s64, 1")
        a(f"    s_mov_b32 s63, s65")
        a(f"    s_branch K2_RB{k}")
    a(f"""K2_DONE:
    s_waitcnt vmcnt(0) lgkmcnt(0)
    s_barrier                               ; #4
    s_cmp_eq_u32 s59, 0
    s_cbranch_scc1 K2_EPI
    s_add_u32 s56, s56, 32
    s_mov_b32 s32, {4*CH*12}
    s_mov_b32 s33, {8*CH*12}
    s_mov_b32 s34, {12*CH*12}
    s_cmp_lg_u32 s3, 0
    s_cbranch_scc1 K2_NOCLR
    v_mov_b32 v9, 0
    v_lshlrev_b32 v10, 2, v127
    ds_write_b32 v10, v9 offset:{K2_CNT}
    v_mov_b32 v10, {K2_FLAG}
    ds_write_b32 v10, v9
K2_NOCLR:
    s_lshl_b32 s30, s3, 4
    v_add_u32 v9, s30, v126
    s_mov_b32 s36, {CH*12}
    v_mul_lo_u32 v32, v9, s36
    v_mul_u32_u24 v33, 12, v125
    v_add_u32 v32, v32, v33
    v_mov_b32 v34, 0x7ffffff0
    s_waitcnt lgkmcnt(0)
    s_barrier
    s_branch K2_ROUND
K2_EPI:
    s_cmp_ge_u32 s3, 10
    s_cbranch_scc1 K2_END
    v_lshrrev_b32 v4, 4, v0                 ; node
    v_mul_u32_u24 v5, {ACC_STR}, v4
    v_lshl_add_u32 v5, v125, 2, v5
    v_mul_u32_u24 v6, 272, v4
    v_lshl_add_u32 v6, v125, 4, v6
    v_add_u32 v6, {K2_U}, v6""")
    for r in range(4):
        a(f"    ds_read_b32 v{8+r}, v5 offset:{K2_ACC + r*64}")
        a(f"    ds_read_b32 v{12+r}, v5 offset:{K2_ACC + 256 + r*64}")
    a(f"""    ds_read_b128 v[16:19], v6
    s_mov_b32 s36, 0x358637bd               ; 1e-6
    v_lshlrev_b32 v20, 16, v122
    v_and_b32 v21, 0xffff0000, v122
    v_lshlrev_b32 v22, 16, v123
    v_and_b32 v23, 0xffff0000, v123
    s_waitcnt lgkmcnt(0)""")
    for r in range(4):
        a(f"    v_add_f32 v{12+r}, s36, v{12+r}")
        a(f"    v_rcp_f32 v{12+r}, v{12+r}")
    a("    s_nop 0")
    for r in range(4):
        a(f"    v_fma_f32 v{16+r}, v{8+r}, v{12+r}, v{16+r}    ; z")
        a(f"    v_mul_f32 v{24+r}, 0, v{16+r}")
        a(f"    v_cmp_lt_f32 vcc, 0, v{16+r}")
        a(f"    s_nop 1")
        a(f"    v_cndmask_b32 v{16+r}, v{24+r}, v{16+r}, vcc")
        a(f"    v_add_f32 v{16+r}, v{20+r}, v{16+r}")
    a(f"""    v_cvt_pk_bf16_f32 v16, v16, v17
    v_cvt_pk_bf16_f32 v17, v18, v19
    v_lshlrev_b32 v4, 3, v0
    s_mul_i32 s36, s2, {NPB*128}
    v_add_u32 v4, s36, v4
    global_store_dwordx2 v4, v[16:17], s[12:13]
K2_END:
    s_endpgm
""")

def desc(name, vgpr, sgpr):
    return f""".p2align 6
.amdhsa_kernel {name}
  .amdhsa_next_free_vgpr {vgpr}
  .amdhsa_next_free_sgpr {sgpr}
  .amdhsa_accum_offset {vgpr}
  .amdhsa_group_segment_fixed_size 0
  .amdhsa_kernarg_size 96
  .amdhsa_user_sgpr_count 2
  .amdhsa_user_sgpr_kernarg_segment_ptr 1
  .amdhsa_system_sgpr_workgroup_id_x 1
  .amdhsa_float_denorm_mode_32 3
.end_amdhsa_kernel
"""

HEADER = """; GatedGCN edge-featured MPNN layer, two launches.
"""

def main():
    ap = argparse.ArgumentParser()
    ap.add_argument("-o", default="standalone__edge_featured_mpnn_gatedgcn__graph.s")
    ap.add_argument("--k1_store", default="")
    opt = ap.parse_args()
    a = Asm()
    a(HEADER.rstrip())
    a(f"; @launch kernel=prep_kernel grid=({NB},1,1) block=(1024,1,1) lds={K1_LDS}")
    a(f"; @launch kernel=main_kernel grid=({NB},1,1) block=(1024,1,1) lds={K2_LDS}")
    a('.amdgcn_target "amdgcn-amd-amdhsa--gfx950"')
    a(".text")
    gen_k1(a, opt)
    gen_k2(a, opt)
    gen_k2_main(a, opt)
    a('.section .rodata,"a"')
    a(desc("prep_kernel", 80, 48))
    a(desc("main_kernel", 128, 72))
    open(opt.o, "w").write(a.text())
    print("wrote", opt.o, "K1 lds", K1_LDS, "K2 lds", K2_LDS)

if __name__ == "__main__":
    main()
```

```python
import sys, argparse

N, D, E = 10000, 64, 640000
NB, NPB = 250, 40
CH = 2560
G_OFF, OFF_OFF, REC_OFF, TOT_OFF = 0, 0x280000, 0x2C0000, 0xA20000
NLOG2E = 0xBFB8AA3B
BIG = 0x71800000
NBIG = 0xF1800000
PROF = False
PROF_OFF = 0x1000000

class Asm:
    def __init__(self):
        self.l = []
    def __call__(self, s=""):
        for line in s.split("\n"):
            self.l.append(line)
    def text(self):
        return "\n".join(self.l) + "\n"

def stamp(a, idx, base=80):
    if PROF:
        a(f"    s_memrealtime s[{base+2*idx}:{base+2*idx+1}]")
        a(f"    s_waitcnt lgkmcnt(0)")

def stamp_flush(a, kern, n, wsreg, wavereg, base=80):
    if PROF:
        a(f"    s_waitcnt vmcnt(0) lgkmcnt(0)")
        a(f"    s_memrealtime s[{base+2*n}:{base+2*n+1}]")
        a(f"    s_waitcnt lgkmcnt(0)")
        a(f"    s_mov_b64 exec, 1")
        a(f"    s_lshl_b32 s78, s2, 4")
        a(f"    s_add_u32 s78, s78, {wavereg}")
        a(f"    s_lshl_b32 s78, s78, 7")
        a(f"    s_add_u32 s78, s78, {PROF_OFF + kern*0x100000}")
        a(f"    v_mov_b32 v2, s78")
        for i in range(n + 1):
            a(f"    v_mov_b32 v4, s{base+2*i}")
            a(f"    v_mov_b32 v5, s{base+2*i+1}")
            a(f"    global_store_dwordx2 v2, v[4:5], s[{wsreg}:{wsreg+1}] offset:{8*i}")
            a(f"    s_nop 1")
        a(f"    s_waitcnt vmcnt(0)")

def dpp_scan(a, v):
    for sh in (1, 2, 4, 8):
        a(f"    s_nop 1")
        a(f"    v_add_u32_dpp v{v}, v{v}, v{v} row_shr:{sh} row_mask:0xf bank_mask:0xf bound_ctrl:0")
    a("    s_nop 1")
    a(f"    v_add_u32_dpp v{v}, v{v}, v{v} row_bcast:15 row_mask:0xa bank_mask:0xf")
    a("    s_nop 1")
    a(f"    v_add_u32_dpp v{v}, v{v}, v{v} row_bcast:31 row_mask:0xc bank_mask:0xf")
    a("    s_nop 1")

K1_HIST, K1_OFFS, K1_REC = 0, 1024, 2048
K1_WB = K1_REC + CH * 12
K1_WV = K1_WB + 64 * 144
K1_X = K1_WV + 64 * 144
K1_G = K1_X + 48 * 144
K1_LDS = K1_G + 48 * 272

def gen_k1(a, opt):
    st = opt.k1_store
    a(f"""
.globl prep_kernel
.p2align 8
.type prep_kernel,@function
prep_kernel:
    s_cmp_ge_u32 s2, {NB}
    s_cbranch_scc1 K1_END
    s_load_dwordx2 s[4:5], s[0:1], 0        ; x
    s_load_dwordx2 s[6:7], s[0:1], 8        ; e_attr
    s_load_dwordx4 s[8:11], s[0:1], 16
    s_load_dwordx2 s[12:13], s[0:1], 40     ; w_b
    s_load_dwordx2 s[14:15], s[0:1], 64     ; w_v
    s_load_dwordx2 s[16:17], s[0:1], 88     ; ws
    v_lshrrev_b32 v1, 6, v0
    v_and_b32 v63, 63, v0                   ; lane
    v_readfirstlane_b32 s3, v1
    s_nop 3""")
    if PROF:
        a("    s_mov_b32 s77, s3")
    stamp(a, 0)
    a(f"""    s_cmp_ge_u32 s3, 10
    s_cbranch_scc1 K1_GEMM
    s_mul_i32 s20, s2, {CH*4}
    v_lshlrev_b32 v2, 4, v0
    v_add_u32 v3, s20, v2
    s_lshl_b32 s21, s20, 1
    v_lshlrev_b32 v4, 5, v0
    v_add_u32 v4, s21, v4
    v_mov_b32 v5, 0
    v_lshlrev_b32 v6, 2, v0
    s_waitcnt lgkmcnt(0)
    global_load_dwordx4 v[8:11], v3, s[10:11]
    global_load_dwordx4 v[12:15], v3, s[8:9]
    global_load_dwordx4 v[16:19], v4, s[6:7]
    global_load_dwordx4 v[20:23], v4, s[6:7] offset:16
    s_cmp_ge_u32 s3, 4
    s_cbranch_scc1 K1_NOZERO
    ds_write_b32 v6, v5 offset:{K1_HIST}
K1_NOZERO:
    s_mov_b32 s22, 52429
    s_movk_i32 s23, 0xffd8                  ; -40
    v_mov_b32 v7, 1
    s_waitcnt lgkmcnt(0)
    s_barrier                               ; #1""")
    stamp(a, 1)
    a("    s_waitcnt vmcnt(3)")
    stamp(a, 2)
    for j in range(4):
        a(f"    v_mul_u32_u24 v{24+j}, s22, v{8+j}")
        a(f"    v_lshrrev_b32 v{24+j}, 21, v{24+j}          ; bucket")
        a(f"    v_mad_i32_i24 v{8+j}, v{24+j}, s23, v{8+j}")
        a(f"    v_lshlrev_b32 v{24+j}, 2, v{24+j}")
        a(f"    ds_add_rtn_u32 v{28+j}, v{24+j}, v7 offset:{K1_HIST}")
    a("    s_waitcnt vmcnt(2)")
    for j in range(4):
        a(f"    v_lshl_or_b32 v{12+j}, v{8+j}, 16, v{12+j}   ; key")
    a(f"""    s_waitcnt lgkmcnt(0)
    s_barrier                               ; #2""")
    stamp(a, 3)
    a(f"""    v_lshlrev_b32 v2, 4, v63
    ds_read_b128 v[32:35], v2 offset:{K1_HIST}
    s_waitcnt lgkmcnt(0)
    v_add_u32 v36, v32, v33
    v_add_u32 v37, v36, v34
    v_add_u32 v38, v37, v35
    v_mov_b32 v39, v38""")
    dpp_scan(a, 39)
    a(f"""    v_sub_u32 v40, v39, v38
    v_add_u32 v41, v40, v32
    v_add_u32 v42, v40, v36
    v_add_u32 v43, v40, v37
    ds_write_b128 v2, v[40:43] offset:{K1_OFFS}
    s_waitcnt vmcnt(0)
    s_cmp_ge_u32 s3, 4
    s_cbranch_scc1 K1_NOOFF
    s_add_u32 s24, s16, {OFF_OFF}
    s_addc_u32 s25, s17, 0
    s_lshl_b32 s26, s3, 10
    s_lshl_b32 s27, s2, 2
    s_add_u32 s26, s26, s27
    v_lshlrev_b32 v3, 12, v63
    v_add_u32 v3, s26, v3""")
    for j in range(4):
        a(f"    s_cmp_lg_u32 s3, {j}")
        a(f"    s_cbranch_scc1 K1_OFFJ{j}")
        a(f"    v_lshl_or_b32 v5, v{32+j}, 16, v{40+j}")
        a(f"K1_OFFJ{j}:")
    a(f"""    global_store_dword v3, v5, s[24:25] {st}
K1_NOOFF:
    s_waitcnt lgkmcnt(0)""")
    for j in range(4):
        a(f"    ds_read_b32 v{44+j}, v{24+j} offset:{K1_OFFS}")
    a("    s_waitcnt lgkmcnt(0)")
    for j in range(4):
        a(f"    v_add_u32 v{44+j}, v{44+j}, v{28+j}")
        a(f"    v_mul_u32_u24 v{44+j}, 12, v{44+j}")
        a(f"    v_add_u32 v{48+j}, {K1_REC}, v{44+j}")
    for j in range(4):
        a(f"    ds_write_b32 v{44+j}, v{12+j} offset:{K1_REC}")
        a(f"    ds_write2_b32 v{48+j}, v{16+2*j}, v{17+2*j} offset0:1 offset1:2")
    a(f"""    s_waitcnt lgkmcnt(0)
    s_barrier                               ; #3""")
    stamp(a, 4)
    a("    v_lshlrev_b32 v2, 4, v0")
    for j in range(3):
        a(f"    ds_read_b128 v[{32+4*j}:{35+4*j}], v2 offset:{K1_REC + j*10240}")
    a(f"""    s_add_u32 s24, s16, {REC_OFF}
    s_addc_u32 s25, s17, 0
    s_mul_i32 s26, s2, {CH*12}
    v_add_u32 v3, s26, v2
    v_add_u32 v4, 10240, v3
    v_add_u32 v5, 20480, v3""")
    for j in range(3):
        a(f"    s_waitcnt lgkmcnt({2-j})")
        a(f"    global_store_dwordx4 v{3+j}, v[{32+4*j}:{35+4*j}], s[24:25] {st}")
    stamp_flush(a, 0, 5, 16, "s77")
    a("""    s_endpgm
K1_GEMM:
    s_sub_u32 s3, s3, 10
    s_and_b32 s27, s3, 1
    s_add_u32 s27, s27, 6
    v_lshlrev_b32 v2, 4, v63                ; lane*16
    s_lshl_b32 s20, s3, 10
    v_add_u32 v3, s20, v2                   ; piece u
    s_lshl_b32 s21, s27, 10
    v_add_u32 v4, s21, v2                   ; piece 6/7""")
    a(f"""    s_mul_i32 s22, s2, {NPB*128}
    v_add_u32 v5, s22, v3                   ; x offset
    ; LDS staging address: (8*piece + lane/8)*144 + (lane%8)*16
    v_lshrrev_b32 v6, 3, v63
    v_mul_u32_u24 v6, 144, v6
    v_and_b32 v7, 7, v63
    v_lshl_add_u32 v6, v7, 4, v6
    s_mul_i32 s23, s3, {8*144}
    v_add_u32 v24, s23, v6
    s_mul_i32 s23, s27, {8*144}
    v_add_u32 v25, s23, v6
    s_waitcnt lgkmcnt(0)
    global_load_dwordx4 v[8:11], v3, s[12:13]
    global_load_dwordx4 v[12:15], v3, s[14:15]
    global_load_dwordx4 v[16:19], v4, s[12:13]
    global_load_dwordx4 v[20:23], v4, s[14:15]
    s_cmp_eq_u32 s3, 5
    s_cbranch_scc1 K1_NOX
    global_load_dwordx4 v[28:31], v5, s[4:5]
    s_waitcnt vmcnt(0)
    ds_write_b128 v24, v[28:31] offset:{K1_X}
K1_NOX:
    s_waitcnt vmcnt(0)
    ds_write_b128 v24, v[8:11] offset:{K1_WB}
    ds_write_b128 v24, v[12:15] offset:{K1_WV}
    ds_write_b128 v25, v[16:19] offset:{K1_WB}
    ds_write_b128 v25, v[20:23] offset:{K1_WV}
    ; tile job: nt = u/2, mt in {{2*(u%2), 2*(u%2)+1}}
    s_lshr_b32 s20, s3, 1                   ; nt
    s_and_b32 s21, s3, 1
    s_lshl_b32 s21, s21, 1                  ; mt0
    v_lshrrev_b32 v2, 4, v63                ; g
    v_and_b32 v3, 15, v63                   ; j / i
    s_lshl_b32 s22, s20, 4
    v_add_u32 v4, s22, v3
    v_mul_u32_u24 v5, 144, v4
    v_lshl_add_u32 v5, v2, 4, v5
    ; W fragment address: (8g + i/4)*144 + 32*mt + 8*(i%4)
    v_lshrrev_b32 v6, 2, v3
    v_lshl_add_u32 v6, v2, 3, v6
    v_mul_u32_u24 v6, 144, v6
    v_and_b32 v7, 3, v3
    v_lshl_add_u32 v6, v7, 3, v6
    s_lshl_b32 s22, s21, 5
    v_add_u32 v6, s22, v6
    v_mul_u32_u24 v7, 272, v4
    v_lshl_add_u32 v7, v2, 4, v7
    s_lshl_b32 s22, s21, 6
    v_add_u32 v7, s22, v7
    s_waitcnt lgkmcnt(0)
    s_barrier                               ; #1""")
    a(f"    ds_read_b128 v[8:11], v5 offset:{K1_X}")
    a(f"    ds_read_b128 v[12:15], v5 offset:{K1_X + 64}")
    for m in range(2):
        for mat, base in ((0, K1_WB), (1, K1_WV)):
            for ks in range(2):
                r = 16 + ((m * 2 + mat) * 2 + ks) * 4
                for h in range(2):
                    a(f"    ds_read_b64_tr_b16 v[{r+2*h}:{r+2*h+1}], v6 offset:{base + ks*4608 + h*576 + m*32}")
    a("    s_waitcnt lgkmcnt(0)")
    for m in range(2):
        for mat in range(2):
            acc = 64 + (m * 2 + mat) * 4
            r0 = 16 + ((m * 2 + mat) * 2 + 0) * 4
            r1 = 16 + ((m * 2 + mat) * 2 + 1) * 4
            a(f"    v_mfma_f32_16x16x32_bf16 v[{acc}:{acc+3}], v[{r0}:{r0+3}], v[8:11], 0")
            a(f"    v_mfma_f32_16x16x32_bf16 v[{acc}:{acc+3}], v[{r1}:{r1+3}], v[12:15], v[{acc}:{acc+3}]")
    a(f"""    s_barrier                               ; #2
    s_mov_b32 s22, {NLOG2E:#x}
    s_mov_b32 s23, {BIG:#x}
    s_mov_b32 s24, {NBIG:#x}
    s_mov_b32 s25, 0x8000
    v_mov_b32 v14, s24
    s_nop 7""")
    for m in range(2):
        accb = 64 + (m * 2 + 0) * 4
        accv = 64 + (m * 2 + 1) * 4
        a(f"    v_cvt_pk_bf16_f32 v8, v{accv}, v{accv+1}")
        a(f"    v_cvt_pk_bf16_f32 v9, v{accv+2}, v{accv+3}")
        a(f"    v_and_b32 v10, 0xffff, v8")
        a(f"    v_lshrrev_b32 v11, 16, v8")
        a(f"    v_and_b32 v12, 0xffff, v9")
        a(f"    v_lshrrev_b32 v13, 16, v9")
        for r in range(4):
            b = accb + r
            lo = 10 + r
            a(f"    v_mul_f32 v{b}, s22, v{b}")
            a(f"    v_med3_f32 v{b}, v{b}, v14, s23")
            a(f"    v_and_b32 v15, 0x7fffffff, v{b}")
            a(f"    v_and_b32 v{b}, 0x80000000, v{b}         ; sign")
            a(f"    v_sub_u32 v15, v15, v{lo}")
            a(f"    v_add_u32 v15, s25, v15")
            a(f"    v_max_i32 v15, 0, v15")
            a(f"    v_and_b32 v15, 0xffff0000, v15")
            a(f"    v_or3_b32 v{16+r}, v15, v{lo}, v{b}")
        a(f"    ds_write_b128 v7, v[16:19] offset:{K1_G + m*64}")
    a(f"""    s_waitcnt lgkmcnt(0)
    s_barrier                               ; #3
    s_lshl_b32 s20, s3, 6
    v_add_u32 v2, s20, v63                  ; t2
    v_lshrrev_b32 v3, 4, v2
    v_mul_u32_u24 v3, 272, v3
    v_and_b32 v4, 15, v2
    v_lshl_add_u32 v3, v4, 4, v3
    ds_read_b128 v[8:11], v3 offset:{K1_G}
    s_mul_i32 s21, s2, {NPB*256}
    v_lshlrev_b32 v5, 4, v2
    v_add_u32 v5, s21, v5
    s_cmp_ge_u32 s3, 4
    s_cbranch_scc1 K1_G1
    ds_read_b128 v[12:15], v3 offset:{K1_G + 24*272}
    s_waitcnt lgkmcnt(0)
    v_add_u32 v6, {384*16}, v5
    global_store_dwordx4 v6, v[12:15], s[16:17] {st}
K1_G1:
    s_waitcnt lgkmcnt(0)
    global_store_dwordx4 v5, v[8:11], s[16:17] {st}
    s_cmp_lg_u32 s2, {NB-1}
    s_cbranch_scc1 K1_END
    s_cmp_lg_u32 s3, 5
    s_cbranch_scc1 K1_END
    v_mov_b32 v8, 0x7f000000
    v_mov_b32 v9, v8
    v_mov_b32 v10, v8
    v_mov_b32 v11, v8
    v_lshlrev_b32 v5, 4, v63
    v_add_u32 v5, {N*256}, v5
    v_cmp_gt_u32 vcc, 16, v63
    s_and_saveexec_b64 s[30:31], vcc
    s_cbranch_execz K1_END
    global_store_dwordx4 v5, v[8:11], s[16:17] {st}
K1_END:
    s_endpgm
""")

SLOT_STR = 512
K2_SLOT = 0
NSEG = NPB + 16
K2_CNT = K2_SLOT + NSEG * SLOT_STR
K2_ZREG = K2_CNT + 256
K2_FLAG = K2_ZREG + 512
K2_ZEND = K2_FLAG + 16
K2_AP = K2_ZEND + 112
K2_U = K2_AP + 48 * 272
K2_SRC = K2_U + 48 * 272
NSLOT = 250 * 32 + 160 + 64
K2_E = K2_SRC + NSLOT * 4
K2_LDS = K2_E + NSLOT * 8
K2_WA = K2_E
K2_WU = K2_WA + 64 * 144
K2_X = K2_WU + 64 * 144
assert K2_LDS <= 163840 and K2_E % 16 == 0 and K2_AP % 16 == 0 and K2_U % 16 == 0

def gen_k2(a, opt):
    NWV = opt.nwv
    LOGW = {8: 3, 16: 4}[NWV]
    RPW = 256 // NWV
    NJ = RPW // 4
    NWL = 16 // NWV
    R = opt.ring
    REC0 = 48 if NWV == 16 else 128
    RANK = REC0 + 8 * NJ
    DL = RANK + 2 * NJ
    TOT, XR, WC, SEG, QEND, VI, VQ, VL = 104, 112, 116, 118, 119, 125, 126, 127
    rec = lambda h, j: REC0 + (h * NJ + j) * 4
    msk = lambda h, j: 40 + 2 * (h * NJ + j)
    S_RB, S_N1, S_Q, S_MORE = 72, 73, 74, 75
    S_TS, S_TE, S_N, S_SEGEND, S_REM, S_T = 28, 29, 76, 77, 78, 79
    if PROF:
        S_N, S_SEGEND, S_REM, S_T = 96, 97, 98, 99
    a(f"""
.globl main_kernel
.p2align 8
.type main_kernel,@function
main_kernel:
    s_cmp_ge_u32 s2, {NB}
    s_cbranch_scc1 K2_END
    s_load_dwordx2 s[4:5], s[0:1], 0        ; x
    s_load_dwordx2 s[6:7], s[0:1], 32       ; w_a
    s_load_dwordx2 s[8:9], s[0:1], 48       ; w_c
    s_load_dwordx2 s[10:11], s[0:1], 56     ; w_u
    s_load_dwordx2 s[12:13], s[0:1], 72     ; out
    s_load_dwordx2 s[14:15], s[0:1], 88     ; ws
    v_lshrrev_b32 v1, 6, v0
    v_and_b32 v1, {NWV-1}, v1
    v_and_b32 v{VL}, 63, v0                  ; lane
    v_readfirstlane_b32 s3, v1""")
    stamp(a, 0)
    a(f"""    v_lshrrev_b32 v{VQ}, 4, v{VL}             ; q = lane/16
    v_and_b32 v{VI}, 15, v{VL}                ; i = lane%16
    s_mov_b32 s{S_RB}, 0""")
    a(f"""K2_ROUND:
    s_mul_i32 s30, s3, {RPW}
    v_mad_u32_u24 v2, v{VQ}, {NJ}, s30
    s_lshl_b32 s31, s2, 10
    v_lshl_add_u32 v3, v2, 2, s31
    s_waitcnt lgkmcnt(0)
    s_add_u32 s16, s14, {OFF_OFF}
    s_addc_u32 s17, s15, 0""")
    for k in range(NJ // 4):
        a(f"    global_load_dwordx4 v[{8+4*k}:{11+4*k}], v3, s[16:17] offset:{16*k}")
    a(f"""    s_add_u32 s20, s14, {REC_OFF}
    s_addc_u32 s21, s15, 0
    s_mov_b32 s22, {E*12}
    s_mov_b32 s23, 0x20000
    s_mov_b32 s24, s14
    s_or_b32 s25, s15, 0x01000000           ; stride 256
    s_mov_b32 s26, {N+1}
    s_mov_b32 s27, 0x20000
    s_cmp_eq_u32 s{S_RB}, 0
    s_cbranch_scc1 K2_FIRST
    s_waitcnt vmcnt(0)
    s_branch K2_HAVEOFF
K2_FIRST:
    s_mul_i32 s35, s2, {NPB*128}
    v_lshlrev_b32 v4, 4, v{VL}               ; lane*16
    s_cmp_ge_u32 s3, 5
    s_cbranch_scc1 K2_NOX
    s_lshl_b32 s36, s3, 10
    s_add_u32 s36, s36, s35
    v_add_u32 v5, s36, v4
    global_load_dwordx4 v[16:19], v5, s[4:5]
    global_load_dwordx4 v[{XR}:{XR+3}], v5, s[4:5]
K2_NOX:""")
    if NWV == 16:
        a(f"""    s_cmp_lt_u32 s3, 8
    s_cselect_b32 s18, s6, s10
    s_cselect_b32 s19, s7, s11
    s_and_b32 s36, s3, 7
    s_lshl_b32 s37, s36, 10
    v_add_u32 v5, s37, v4
    global_load_dwordx4 v[20:23], v5, s[18:19]""")
    else:
        a(f"""    s_lshl_b32 s37, s3, 10
    v_add_u32 v5, s37, v4
    global_load_dwordx4 v[20:23], v5, s[6:7]
    global_load_dwordx4 v[24:27], v5, s[10:11]""")
    a(f"""    ; w_c columns: c = 4*i + q
    v_lshl_add_u32 v6, v{VI}, 2, v{VQ}
    v_lshlrev_b32 v6, 1, v6
    global_load_ushort v28, v6, s[8:9]
    global_load_ushort v29, v6, s[8:9] offset:128
    global_load_ushort v30, v6, s[8:9] offset:256
    global_load_ushort v31, v6, s[8:9] offset:384
    s_cmp_lg_u32 s3, 0
    s_cbranch_scc1 K2_NOZ
    v_mov_b32 v32, 0
    v_mov_b32 v33, 0
    v_mov_b32 v34, 0
    v_mov_b32 v35, 0
    v_add_u32 v7, {K2_CNT}, v4
    v_cmp_gt_u32 vcc, {(K2_ZEND-K2_CNT)//16}, v{VL}
    s_and_saveexec_b64 s[38:39], vcc
    ds_write_b128 v7, v[32:35]
    s_mov_b64 exec, s[38:39]
K2_NOZ:
    s_waitcnt vmcnt({NWL + 4})
K2_HAVEOFF:""")
    stamp(a, 1)
    a(f"""    ; run base: w0*30720 + 12*(i + round base)
    s_mov_b32 s36, {CH*12}
    v_mul_lo_u32 v36, v2, s36
    v_add_u32 v37, s{S_RB}, v{VI}
    v_mad_u32_u24 v36, v37, 12, v36
    v_add_u32 v38, 16, v37                  ; batch 1
    v_mov_b32 v39, 0x7ffffff0
    v_sub_u32 v40, {NB}, v2""")
    for j in range(NJ):
        a(f"    v_cmp_lt_i32 vcc, {j}, v40")
        a(f"    v_lshrrev_b32 v41, 16, v{8+j}               ; count")
        a(f"    v_and_b32 v{8+j}, 0xffff, v{8+j}            ; start")
        a(f"    v_mad_u32_u24 v{8+j}, v{8+j}, 12, v36")
        a(f"    v_cndmask_b32 v41, 0, v41, vcc")
        a(f"    v_cmp_gt_u32 s[{msk(0,j)}:{msk(0,j)+1}], v41, v37")
        a(f"    v_cmp_gt_u32 s[{msk(1,j)}:{msk(1,j)+1}], v41, v38")
        if j == 0:
            a(f"    v_mov_b32 v42, v41")
        else:
            a(f"    v_max_u32 v42, v42, v41")
    for j in range(NJ):
        a(f"    s_mov_b32 s36, {j*CH*12}")
        a(f"    v_cndmask_b32 v43, v39, v{8+j}, s[{msk(0,j)}:{msk(0,j)+1}]")
        a(f"    buffer_load_dwordx3 v[{rec(0,j)}:{rec(0,j)+2}], v43, s[20:23], s36 offen")
    a(f"    s_or_b64 s[36:37], s[{msk(1,0)}:{msk(1,0)+1}], s[{msk(1,1)}:{msk(1,1)+1}]")
    for j in range(2, NJ):
        a(f"    s_or_b64 s[36:37], s[36:37], s[{msk(1,j)}:{msk(1,j)+1}]")
    a(f"""    s_cselect_b32 s{S_N1}, 1, 0
    s_cbranch_scc0 K2_NOB1_LOAD""")
    for j in range(NJ):
        a(f"    s_mov_b32 s36, {j*CH*12 + 192}")
        a(f"    v_cndmask_b32 v43, v39, v{8+j}, s[{msk(1,j)}:{msk(1,j)+1}]")
        a(f"    buffer_load_dwordx3 v[{rec(1,j)}:{rec(1,j)+2}], v43, s[20:23], s36 offen")
    a(f"""K2_NOB1_LOAD:
    s_add_u32 s36, s{S_RB}, 32
    v_cmp_lt_u32 vcc, s36, v42
    s_nop 1
    s_cmp_eq_u64 vcc, 0
    s_cbranch_scc1 K2_NOMORE
    v_mov_b32 v43, {K2_FLAG}
    v_mov_b32 v44, 1
    ds_write_b32 v43, v44
K2_NOMORE:
    s_cmp_lg_u32 s{S_RB}, 0
    s_cbranch_scc1 K2_SKIPGEMM
    v_lshrrev_b32 v5, 3, v{VL}
    v_mul_u32_u24 v5, 144, v5
    v_and_b32 v6, 7, v{VL}
    v_lshl_add_u32 v5, v6, 4, v5            ; (lane/8)*144 + (lane%8)*16
    s_and_b32 s36, s3, 7
    s_mul_i32 s36, s36, {8*144}""")
    if NWV == 16:
        a(f"""    s_lshr_b32 s37, s3, 3
    s_mul_i32 s37, s37, {64*144}
    s_add_u32 s36, s36, s37""")
    a(f"""    s_add_u32 s36, s36, {K2_WA}
    v_add_u32 v6, s36, v5
    s_cmp_lg_u32 s{S_N1}, 0
    s_cbranch_scc1 K2_W8
    s_waitcnt vmcnt({NJ})
    s_branch K2_WD
K2_W8:
    s_waitcnt vmcnt({2*NJ})
K2_WD:
    ds_write_b128 v6, v[20:23]""")
    if NWV == 8:
        a(f"    ds_write_b128 v6, v[24:27] offset:{64*144}")
    a(f"""    s_cmp_ge_u32 s3, 5
    s_cbranch_scc1 K2_NOXS
    s_mul_i32 s36, s3, {8*144}
    s_add_u32 s36, s36, {K2_X}
    v_add_u32 v6, s36, v5
    ds_write_b128 v6, v[16:19]
K2_NOXS:
    s_mov_b32 s36, {NLOG2E:#x}
    v_lshlrev_b32 v28, 16, v28
    v_lshlrev_b32 v29, 16, v29
    v_lshlrev_b32 v30, 16, v30
    v_lshlrev_b32 v31, 16, v31
    v_mul_f32 v28, s36, v28
    v_mul_f32 v29, s36, v29
    v_mul_f32 v30, s36, v30
    v_mul_f32 v31, s36, v31
    v_cvt_pk_bf16_f32 v{WC}, v28, v29
    v_cvt_pk_bf16_f32 v{WC+1}, v30, v31
    s_waitcnt lgkmcnt(0)
    s_barrier                               ; #1""")
    stamp(a, 2)
    if NWV == 16:
        a(f"""    s_cmp_ge_u32 s3, 12
    s_cbranch_scc1 K2_SKIPGEMM
    s_and_b32 s36, s3, 3                    ; mt
    s_lshr_b32 s37, s3, 2                   ; nt""")
    else:
        a(f"""    s_and_b32 s36, s3, 3                    ; mt
    s_lshr_b32 s37, s3, 2""")
    a(f"""    v_lshrrev_b32 v6, 2, v{VI}
    v_lshl_add_u32 v6, v{VQ}, 3, v6
    v_mul_u32_u24 v6, 144, v6
    v_and_b32 v7, 3, v{VI}
    v_lshl_add_u32 v6, v7, 3, v6
    s_lshl_b32 s38, s36, 5
    s_add_u32 s38, s38, {K2_WA}
    v_add_u32 v6, s38, v6""")
    for mat in range(2):
        for ks in range(2):
            r = 16 + mat * 8 + ks * 4
            for h in range(2):
                a(f"    ds_read_b64_tr_b16 v[{r+2*h}:{r+2*h+1}], v6 offset:{mat*9216 + ks*4608 + h*576}")
    a(f"""K2_TILE:
    s_lshl_b32 s38, s37, 4
    v_add_u32 v4, s38, v{VI}
    v_mul_u32_u24 v5, 144, v4
    v_lshl_add_u32 v5, v{VQ}, 4, v5
    v_add_u32 v5, {K2_X}, v5
    ds_read_b128 v[8:11], v5
    ds_read_b128 v[12:15], v5 offset:64
    s_waitcnt lgkmcnt(0)
    v_mfma_f32_16x16x32_bf16 v[32:35], v[16:19], v[8:11], 0
    v_mfma_f32_16x16x32_bf16 v[36:39], v[24:27], v[8:11], 0
    v_mfma_f32_16x16x32_bf16 v[32:35], v[20:23], v[12:15], v[32:35]
    v_mfma_f32_16x16x32_bf16 v[36:39], v[28:31], v[12:15], v[36:39]
    v_mul_u32_u24 v7, 272, v4
    v_lshl_add_u32 v5, v{VQ}, 4, v7
    s_lshl_b32 s38, s36, 6
    s_add_u32 s38, s38, {K2_U}
    v_add_u32 v5, s38, v5                   ; U addr
    v_lshl_add_u32 v40, v{VQ}, 2, v7
    s_lshl_b32 s38, s36, 4
    s_add_u32 s38, s38, {K2_AP}
    v_add_u32 v40, s38, v40
    s_mov_b32 s38, {NLOG2E:#x}
    s_mov_b32 s39, {BIG:#x}
    v_mov_b32 v7, {NBIG:#x}
    s_nop 7
    ds_write_b128 v5, v[36:39]""")
    for r in range(4):
        a(f"    v_mul_f32 v{32+r}, s38, v{32+r}")
        a(f"    v_med3_f32 v{32+r}, v{32+r}, v7, s39")
        a(f"    v_and_b32 v8, 0xffff0000, v{32+r}")
        a(f"    v_sub_f32 v9, v{32+r}, v8")
        a(f"    v_cvt_pk_bf16_f32 v9, v9, v9")
        a(f"    v_and_b32 v9, 0xffff0000, v9")
        a(f"    v_lshrrev_b32 v8, 16, v8")
        a(f"    v_or_b32 v8, v8, v9")
        a(f"    ds_write_b32 v40, v8 offset:{r*64}")
    if NWV == 8:
        a(f"""    s_cmp_lg_u32 s37, 0
    s_cbranch_scc1 K2_SKIPGEMM
    s_mov_b32 s37, 2
    s_branch K2_TILE""")
    a("K2_SKIPGEMM:")
    a(f"""    v_mov_b32 v7, 1
    s_cmp_lg_u32 s{S_N1}, 0
    s_cbranch_scc1 K2_RW4
    s_waitcnt vmcnt(0)
    s_branch K2_RWD
K2_RW4:
    s_waitcnt vmcnt({NJ})
K2_RWD:""")
    for h in range(2):
        if h == 1:
            a(f"""    s_cmp_eq_u32 s{S_N1}, 0
    s_cbranch_scc1 K2_NOB1_RANK
    s_waitcnt vmcnt(0)""")
        for j in range(NJ):
            dl = DL + h * NJ + j
            a(f"    v_lshrrev_b32 v{dl}, 16, v{rec(h,j)}")
            a(f"    v_lshlrev_b32 v{dl}, 2, v{dl}")
            a(f"    s_mov_b64 exec, s[{msk(h,j)}:{msk(h,j)+1}]")
            a(f"    ds_add_rtn_u32 v{RANK+h*NJ+j}, v{dl}, v7 offset:{K2_CNT}")
            a(f"    s_mov_b64 exec, -1")
    a(f"""K2_NOB1_RANK:
    s_waitcnt lgkmcnt(0)
    s_barrier                               ; #2""")
    stamp(a, 3)
    a(f"""    v_lshlrev_b32 v4, 2, v{VL}
    ds_read_b32 v5, v4 offset:{K2_CNT}
    v_mov_b32 v6, {K2_FLAG}
    ds_read_b32 v6, v6
    v_cmp_gt_u32 vcc, {NPB}, v{VL}
    s_waitcnt lgkmcnt(0)
    v_readfirstlane_b32 s{S_MORE}, v6
    v_add_u32 v7, 3, v5
    v_lshrrev_b32 v7, 2, v7
    v_max_u32 v7, 1, v7
    v_cndmask_b32 v7, 0, v7, vcc
    v_mov_b32 v{QEND}, v7""")
    dpp_scan(a, QEND)
    a(f"""    v_sub_u32 v8, v{QEND}, v7
    v_readlane_b32 s{S_Q}, v{QEND}, 63            ; Q
    v_lshlrev_b32 v9, 2, v8""")
    for h in range(2):
        if h == 1:
            a(f"    s_cmp_eq_u32 s{S_N1}, 0")
            a("    s_cbranch_scc1 K2_NOB1_SCAT")
        for j0 in range(0, NJ, 4):
            for j in range(j0, j0 + 4):
                a(f"    ds_bpermute_b32 v{10+j-j0}, v{DL+h*NJ+j}, v9")
            a("    s_waitcnt lgkmcnt(0)")
            for j in range(j0, j0 + 4):
                r = rec(h, j)
                a(f"    v_add_u32 v{10+j-j0}, v{10+j-j0}, v{RANK+h*NJ+j}     ; slot")
                a(f"    v_and_b32 v{r}, 0xffff, v{r}               ; src")
                a(f"    v_lshlrev_b32 v14, 2, v{10+j-j0}")
                a(f"    v_add_u32 v14, {K2_SRC}, v14")
                a(f"    v_lshlrev_b32 v15, 3, v{10+j-j0}")
                a(f"    v_add_u32 v15, {K2_E}, v15")
                m = msk(h, j)
                a(f"    s_mov_b64 exec, s[{m}:{m+1}]")
                a(f"    ds_write_b32 v14, v{r}")
                a(f"    ds_write2_b32 v15, v{r+1}, v{r+2} offset0:0 offset1:1")
                a(f"    s_mov_b64 exec, -1")
    a("K2_NOB1_SCAT:")
    a(f"""    v_mov_b32 v11, {N}
    v_mov_b32 v12, 0
    v_mov_b32 v13, 0
    s_cmp_lg_u32 s3, 0
    s_cbranch_scc1 K2_NOPAD
    v_add_u32 v16, v9, v5
    v_lshlrev_b32 v10, 2, v{QEND}""")
    for s_ in range(4):
        a(f"    v_cmp_lt_u32 vcc, v16, v10")
        a(f"    v_lshlrev_b32 v14, 2, v16")
        a(f"    v_add_u32 v14, {K2_SRC}, v14")
        a(f"    v_lshlrev_b32 v15, 3, v16")
        a(f"    v_add_u32 v15, {K2_E}, v15")
        a(f"    s_and_saveexec_b64 s[38:39], vcc")
        a(f"    ds_write_b32 v14, v11")
        a(f"    ds_write_b64 v15, v[12:13]")
        a(f"    s_mov_b64 exec, s[38:39]")
        a(f"    v_add_u32 v16, 1, v16")
    a(f"""K2_NOPAD:
    s_cmp_lg_u32 s3, 1
    s_cbranch_scc1 K2_NOTAIL
    s_lshl_b32 s36, s{S_Q}, 2
    v_add_u32 v16, s36, v{VL}
    v_lshlrev_b32 v14, 2, v16
    v_add_u32 v14, {K2_SRC}, v14
    v_lshlrev_b32 v15, 3, v16
    v_add_u32 v15, {K2_E}, v15
    ds_write_b32 v14, v11
    ds_write_b64 v15, v[12:13]
K2_NOTAIL:
    v_cvt_f32_u32 v16, s{S_Q}
    v_rcp_f32 v16, v16
    v_lshlrev_b32 v17, {LOGW}, v8
    v_add_u32 v17, {NWV}, v17
    v_cvt_f32_u32 v17, v17
    v_lshlrev_b32 v18, {LOGW}, v{QEND}
    v_cvt_f32_u32 v18, v18
    v_add_f32 v17, -0.5, v17
    v_add_f32 v18, -0.5, v18
    v_mul_f32 v17, v17, v16
    v_mul_f32 v18, v18, v16
    v_cvt_u32_f32 v17, v17
    v_cvt_u32_f32 v18, v18
    v_sub_u32 v18, v18, v17
    v_add_u32 v18, 1, v18
    v_add_u32 v17, v17, v{VL}
    v_lshl_or_b32 v{SEG}, v18, 16, v17
    s_mul_i32 s{S_TS}, s{S_Q}, s3
    s_lshr_b32 s{S_TS}, s{S_TS}, {LOGW}                  ; ts
    s_add_u32 s36, s3, 1
    s_mul_i32 s{S_TE}, s{S_Q}, s36
    s_lshr_b32 s{S_TE}, s{S_TE}, {LOGW}                  ; te
    v_cmp_ge_u32 vcc, s{S_TS}, v{QEND}
    s_nop 1
    s_bcnt1_i32_b64 s{S_N}, vcc                ; n0
    s_nop 0
    v_readlane_b32 s{S_SEGEND}, v{QEND}, s{S_N}
    s_nop 3
    s_min_u32 s{S_SEGEND}, s{S_SEGEND}, s{S_TE}
    s_sub_u32 s{S_REM}, s{S_SEGEND}, s{S_TS}
    s_sub_u32 s{S_REM}, s{S_REM}, 1                   ; rem
    s_lshl_b32 s36, s{S_TS}, 4
    s_add_u32 s36, s36, {K2_SRC}
    v_lshl_add_u32 v2, v{VQ}, 2, s36
    v_lshrrev_b32 v9, 2, v{VI}               ; e = i/4
    v_and_b32 v10, 3, v{VI}                  ; r = i%4
    v_cmp_eq_u32 vcc, v10, v{VQ}
    s_lshl_b32 s36, s{S_TS}, 5
    s_add_u32 s36, s36, {K2_E}
    v_lshl_add_u32 v9, v9, 3, s36
    v_mov_b32 v10, {K2_ZREG}
    v_cndmask_b32 v3, v10, v9, vcc          ; vAddrE
    v_mov_b32 v10, {32*R}
    v_cndmask_b32 v1, 0, v10, vcc           ; vIncE
    v_mov_b32 v10, 0x3f803f80
    v_cndmask_b32 v10, 0, v10, vcc
    v_mov_b32 v18, v10
    v_mov_b32 v19, 0
    v_mov_b32 v22, v10
    v_mov_b32 v23, 0
    v_mov_b32 v4, v{WC}
    v_mov_b32 v5, v{WC+1}
    v_mov_b32 v7, 0""")
    G = lambda k: 24 + 4 * (k % R)
    B0 = 24 + 4 * R
    NUM, DEN, H, IDX, ANX, APA, SLA, TMP = B0, B0 + 4, B0 + 8, B0 + 12, B0 + 14, B0 + 15, B0 + 16, B0 + 17
    IT = B0 + 18
    assert IT + 2 * R <= TOT
    Dr = lambda k: 8 + 4 * (k % 2)
    Ar = lambda k: 16 + 4 * (k % 2)
    a(f"""    v_lshlrev_b32 v{APA}, 2, v{VL}
    v_add_u32 v{APA}, {K2_AP}, v{APA}
    s_mul_i32 s36, s{S_N}, 272
    v_add_u32 v9, s36, v{APA}
    s_add_u32 s36, s{S_N}, s3
    s_mul_i32 s36, s36, {SLOT_STR}
    s_add_u32 s36, s36, {K2_SLOT}
    v_lshl_add_u32 v{SLA}, v{VL}, 3, s36
    v_lshlrev_b32 v{IDX+1}, 4, v{VI}""")
    for r in range(8):
        a(f"    v_mov_b32 v{NUM+r}, 0")
    for k in range(R):
        a(f"    v_mov_b32 v{IT+1+2*k}, v{IDX+1}")
    a(f"""    s_waitcnt lgkmcnt(0)
    s_barrier                               ; #3""")
    stamp(a, 4)
    for k in range(R):
        a(f"    ds_read_b32 v{IT+2*k}, v2 offset:{16*k}")
    a(f"""    ds_read_b32 v6, v9
    ds_read_b32 v{ANX}, v9 offset:272
    ds_read_b64 v[{Ar(0)}:{Ar(0)+1}], v3
    ds_read_b64 v[{Ar(1)}:{Ar(1)+1}], v3 offset:32""")
    for k in range(R):
        a(f"    s_waitcnt lgkmcnt({min(15, R - 1 - k + 4)})")
        a(f"    buffer_load_dwordx4 v[{G(k)}:{G(k)+3}], v[{IT+2*k}:{IT+2*k+1}], s[24:27], 0 idxen offen")
    a(f"    s_waitcnt vmcnt({R-1}) lgkmcnt(0)")
    a(f"    v_mfma_f32_16x16x32_bf16 v[{Dr(0)}:{Dr(0)+3}], v[{Ar(0)}:{Ar(0)+3}], v[4:7], v[{G(0)}:{G(0)+3}]")
    a("    s_nop 7")
    a("K2_LOOP:")
    for k in range(R):
        d, dn = Dr(k), Dr(k + 1)
        g, gn = G(k), G(k + 1)
        a(f"    s_sub_u32 s{S_REM}, s{S_REM}, 1")
        a(f"    s_cbranch_scc1 K2_SA{k}")
        a(f"K2_RA{k}:")
        a(f"    s_waitcnt vmcnt({R-2})")
        a(f"    v_mfma_f32_16x16x32_bf16 v[{dn}:{dn+3}], v[{Ar(k+1)}:{Ar(k+1)+3}], v[4:7], v[{gn}:{gn+3}]")
        a(f"    ds_read_b64 v[{Ar(k)}:{Ar(k)+1}], v3 offset:{32*(k+2)}")
        a(f"    ds_read_b32 v{IDX}, v2 offset:{16*(k+R)}")
        for i in range(4):
            a(f"    v_exp_f32 v{d+i}, v{d+i}")
        a(f"    v_lshlrev_b32 v{H}, 16, v{g}")
        a(f"    v_pk_add_f32 v[{d}:{d+1}], v[{d}:{d+1}], 1.0")
        a(f"    v_pk_add_f32 v[{d+2}:{d+3}], v[{d+2}:{d+3}], 1.0")
        a(f"    v_lshlrev_b32 v{H+1}, 16, v{g+1}")
        for i in range(4):
            a(f"    v_rcp_f32 v{d+i}, v{d+i}")
        a(f"    v_lshlrev_b32 v{H+2}, 16, v{g+2}")
        a(f"    v_lshlrev_b32 v{H+3}, 16, v{g+3}")
        a(f"    v_pk_fma_f32 v[{NUM}:{NUM+1}], v[{d}:{d+1}], v[{H}:{H+1}], v[{NUM}:{NUM+1}]")
        a(f"    v_pk_add_f32 v[{DEN}:{DEN+1}], v[{d}:{d+1}], v[{DEN}:{DEN+1}]")
        a(f"    v_pk_fma_f32 v[{NUM+2}:{NUM+3}], v[{d+2}:{d+3}], v[{H+2}:{H+3}], v[{NUM+2}:{NUM+3}]")
        a(f"    v_pk_add_f32 v[{DEN+2}:{DEN+3}], v[{d+2}:{d+3}], v[{DEN+2}:{DEN+3}]")
        a(f"    s_waitcnt lgkmcnt(0)")
        a(f"    buffer_load_dwordx4 v[{g}:{g+3}], v[{IDX}:{IDX+1}], s[24:27], 0 idxen offen")
        a(f"    s_cbranch_scc1 K2_SB{k}")
        a(f"K2_RB{k}:")
        if k == R - 1:
            a(f"    v_add_u32 v2, {16*R}, v2")
            a(f"    v_add_u32 v3, v1, v3")
            a(f"    s_branch K2_LOOP")
    for k in range(R):
        a(f"K2_SA{k}:")
        a(f"    v_mov_b32 v6, v{ANX}")
        a(f"    s_nop 0")
        a(f"    s_branch K2_RA{k}")
    for k in range(R):
        a(f"K2_SB{k}:")
        for r in range(4):
            a(f"    v_permlane32_swap_b32 v{NUM+r}, v{DEN+r}")
        a(f"    v_pk_add_f32 v[{NUM}:{NUM+1}], v[{NUM}:{NUM+1}], v[{DEN}:{DEN+1}]")
        a(f"    v_pk_add_f32 v[{NUM+2}:{NUM+3}], v[{NUM+2}:{NUM+3}], v[{DEN+2}:{DEN+3}]")
        a(f"    s_add_u32 s{S_N}, s{S_N}, 1")
        a(f"    s_add_u32 s36, s{S_N}, 1")
        a(f"    v_permlane16_swap_b32 v{NUM}, v{NUM+2}")
        a(f"    v_permlane16_swap_b32 v{NUM+1}, v{NUM+3}")
        a(f"    v_readlane_b32 s37, v{QEND}, s{S_N}")
        a(f"    s_mul_i32 s36, s36, 272")
        a(f"    v_pk_add_f32 v[{DEN}:{DEN+1}], v[{NUM}:{NUM+1}], v[{NUM+2}:{NUM+3}]")
        a(f"    v_add_u32 v{TMP}, s36, v{APA}")
        a(f"    s_cmp_eq_u32 s{S_SEGEND}, s{S_TE}")
        a(f"    ds_write_b64 v{SLA}, v[{DEN}:{DEN+1}]")
        a(f"    s_cbranch_scc1 K2_DONE")
        a(f"    ds_read_b32 v{ANX}, v{TMP}")
        a(f"    v_add_u32 v{SLA}, {SLOT_STR}, v{SLA}")
        for r in range(8):
            a(f"    v_mov_b32 v{NUM+r}, 0")
        a(f"    s_min_u32 s37, s37, s{S_TE}")
        a(f"    s_sub_u32 s{S_REM}, s37, s{S_SEGEND}")
        a(f"    s_sub_u32 s{S_REM}, s{S_REM}, 1")
        a(f"    s_mov_b32 s{S_SEGEND}, s37")
        a(f"    s_branch K2_RB{k}")
    a("K2_DONE:")
    stamp(a, 5)
    a(f"""    s_waitcnt vmcnt(0) lgkmcnt(0)
    s_barrier                               ; #4""")
    stamp(a, 6)
    a(f"""    s_cmp_ge_u32 s3, 5
    s_cbranch_scc1 K2_MERGED
    v_lshrrev_b32 v4, 3, v0                 ; node
    v_lshlrev_b32 v5, 2, v4
    ds_bpermute_b32 v5, v5, v{SEG}
    v_and_b32 v6, 7, v0
    v_lshlrev_b32 v6, 4, v6                 ; s2*16
    s_mov_b32 s36, 0""")
    for r in range(16):
        a(f"    v_mov_b32 v{24+r}, 0")
    a(f"""    v_mul_u32_u24 v41, 272, v4
    v_lshl_add_u32 v41, v6, 1, v41
    v_add_u32 v41, {K2_U}, v41
    s_waitcnt lgkmcnt(0)
    v_lshrrev_b32 v7, 16, v5
    v_and_b32 v5, 0xffff, v5
    v_lshl_add_u32 v5, v5, 9, v6
K2_MERGE:
    v_cmp_lt_u32 vcc, s36, v7
    s_nop 1
    s_cmp_eq_u64 vcc, 0
    s_cbranch_scc1 K2_MERGE_END
    s_mov_b64 exec, vcc
    ds_read_b128 v[8:11], v5 offset:{K2_SLOT}
    ds_read_b128 v[12:15], v5 offset:{K2_SLOT+128}
    ds_read_b128 v[16:19], v5 offset:{K2_SLOT+256}
    ds_read_b128 v[20:23], v5 offset:{K2_SLOT+384}
    v_add_u32 v5, {SLOT_STR}, v5
    s_add_u32 s36, s36, 1
    s_waitcnt lgkmcnt(0)""")
    for r in range(8):
        a(f"    v_pk_add_f32 v[{24+2*r}:{25+2*r}], v[{24+2*r}:{25+2*r}], v[{8+2*r}:{9+2*r}]")
    a(f"""    s_mov_b64 exec, -1
    s_branch K2_MERGE
K2_MERGE_END:
    s_or_b32 s36, s{S_RB}, s{S_MORE}
    s_cmp_eq_u32 s36, 0
    s_cbranch_scc1 K2_MERGED
    s_mul_i32 s36, s2, {320*64}
    s_add_u32 s36, s36, {TOT_OFF}
    v_lshl_add_u32 v42, v0, 6, s36
    s_cmp_eq_u32 s{S_RB}, 0
    s_cbranch_scc1 K2_NOPREV""")
    for r in range(4):
        a(f"    global_load_dwordx4 v[{8+4*r}:{11+4*r}], v42, s[14:15] offset:{16*r} sc1")
    a("    s_waitcnt vmcnt(0)")
    for r in range(8):
        a(f"    v_pk_add_f32 v[{24+2*r}:{25+2*r}], v[{24+2*r}:{25+2*r}], v[{8+2*r}:{9+2*r}]")
    a(f"""K2_NOPREV:
    s_cmp_eq_u32 s{S_MORE}, 0
    s_cbranch_scc1 K2_MERGED""")
    for r in range(4):
        a(f"    global_store_dwordx4 v42, v[{24+4*r}:{27+4*r}], s[14:15] offset:{16*r} sc1")
    a(f"""    s_waitcnt vmcnt(0)
K2_MERGED:
    s_cmp_eq_u32 s{S_MORE}, 0
    s_cbranch_scc1 K2_EPI
    s_add_u32 s{S_RB}, s{S_RB}, 32
    s_cmp_lg_u32 s3, 0
    s_cbranch_scc1 K2_NOCLR
    v_mov_b32 v9, 0
    v_lshlrev_b32 v10, 2, v{VL}
    ds_write_b32 v10, v9 offset:{K2_CNT}
    v_mov_b32 v10, {K2_FLAG}
    ds_write_b32 v10, v9
K2_NOCLR:
    s_waitcnt lgkmcnt(0)
    s_barrier
    s_branch K2_ROUND
K2_EPI:
    s_cmp_ge_u32 s3, 5
    s_cbranch_scc1 K2_FIN
    ds_read_b128 v[40:43], v41
    ds_read_b128 v[44:47], v41 offset:16
    s_mov_b32 s36, 0x358637bd               ; 1e-6""")
    nreg = [24, 25, 28, 29, 26, 27, 30, 31]
    dreg = [x + 8 for x in nreg]
    for c in range(8):
        a(f"    v_add_f32 v{dreg[c]}, s36, v{dreg[c]}")
        a(f"    v_rcp_f32 v{dreg[c]}, v{dreg[c]}")
    for c in range(8):
        xr = XR + c // 2
        if c % 2 == 0:
            a(f"    v_lshlrev_b32 v{8+c}, 16, v{xr}")
        else:
            a(f"    v_and_b32 v{8+c}, 0xffff0000, v{xr}")
    a("    s_waitcnt lgkmcnt(0)")
    for c in range(8):
        a(f"    v_fma_f32 v{40+c}, v{nreg[c]}, v{dreg[c]}, v{40+c}    ; z")
        a(f"    v_mul_f32 v{16+c}, 0, v{40+c}")
        a(f"    v_cmp_lt_f32 vcc, 0, v{40+c}")
        a(f"    s_nop 1")
        a(f"    v_cndmask_b32 v{40+c}, v{16+c}, v{40+c}, vcc")
        a(f"    v_add_f32 v{40+c}, v{8+c}, v{40+c}")
    for c in range(4):
        a(f"    v_cvt_pk_bf16_f32 v{16+c}, v{40+2*c}, v{41+2*c}")
    a(f"""    v_lshlrev_b32 v4, 4, v0
    s_mul_i32 s36, s2, {NPB*128}
    v_add_u32 v4, s36, v4
    global_store_dwordx4 v4, v[16:19], s[12:13]
K2_FIN:""")
    stamp_flush(a, 1, 7, 14, "s3")
    a("""K2_END:
    s_endpgm
""")

def desc(name, vgpr, sgpr):
    return f""".p2align 6
.amdhsa_kernel {name}
  .amdhsa_next_free_vgpr {vgpr}
  .amdhsa_next_free_sgpr {sgpr}
  .amdhsa_accum_offset {vgpr}
  .amdhsa_group_segment_fixed_size 0
  .amdhsa_kernarg_size 96
  .amdhsa_user_sgpr_count 2
  .amdhsa_user_sgpr_kernarg_segment_ptr 1
  .amdhsa_system_sgpr_workgroup_id_x 1
  .amdhsa_float_denorm_mode_32 3
.end_amdhsa_kernel
"""

HEADER = """; GatedGCN edge-featured MPNN layer, two launches.
"""

def main():
    ap = argparse.ArgumentParser()
    ap.add_argument("-o", default="standalone__edge_featured_mpnn_gatedgcn__graph.s")
    ap.add_argument("--k1_store", default="")
    ap.add_argument("--prof", action="store_true")
    ap.add_argument("--nwv", type=int, default=16)
    ap.add_argument("--ring", type=int, default=8)
    opt = ap.parse_args()
    global PROF
    PROF = opt.prof
    a = Asm()
    a(HEADER.rstrip())
    a(f"; @launch kernel=prep_kernel grid=({NB},1,1) block=(1024,1,1) lds={K1_LDS}")
    a(f"; @launch kernel=main_kernel grid=({NB},1,1) block=({opt.nwv*64},1,1) lds={K2_LDS}")
    a('.amdgcn_target "amdgcn-amd-amdhsa--gfx950"')
    a(".text")
    gen_k1(a, opt)
    gen_k2(a, opt)
    a('.section .rodata,"a"')
    a(desc("prep_kernel", 80, 100 if PROF else 48))
    a(desc("main_kernel", 128 if opt.nwv == 16 else 224, 100 if PROF else 80))
    open(opt.o, "w").write(a.text())
    print("wrote", opt.o, "K1 lds", K1_LDS, "K2 lds", K2_LDS)

if __name__ == "__main__":
    main()
```

```python
import sys, argparse

N, D, E = 10000, 64, 640000
NB, NPB = 250, 40
CH = 2560
G_OFF, OFF_OFF, REC_OFF, TOT_OFF = 0, 0x280000, 0x2C0000, 0xA20000
NLOG2E = 0xBFB8AA3B
BIG = 0x71800000
NBIG = 0xF1800000
PROF = False
PROF_OFF = 0x1000000

class Asm:
    def __init__(self):
        self.l = []
    def __call__(self, s=""):
        for line in s.split("\n"):
            self.l.append(line)
    def text(self):
        return "\n".join(self.l) + "\n"

def stamp(a, idx, base=80):
    if PROF:
        a(f"    s_memrealtime s[{base+2*idx}:{base+2*idx+1}]")
        a(f"    s_waitcnt lgkmcnt(0)")

def stamp_flush(a, kern, n, wsreg, wavereg, base=80):
    if PROF:
        a(f"    s_waitcnt vmcnt(0) lgkmcnt(0)")
        a(f"    s_memrealtime s[{base+2*n}:{base+2*n+1}]")
        a(f"    s_waitcnt lgkmcnt(0)")
        a(f"    s_mov_b64 exec, 1")
        a(f"    s_lshl_b32 s78, s2, 4")
        a(f"    s_add_u32 s78, s78, {wavereg}")
        a(f"    s_lshl_b32 s78, s78, 7")
        a(f"    s_add_u32 s78, s78, {PROF_OFF + kern*0x100000}")
        a(f"    v_mov_b32 v2, s78")
        for i in range(n + 1):
            a(f"    v_mov_b32 v4, s{base+2*i}")
            a(f"    v_mov_b32 v5, s{base+2*i+1}")
            a(f"    global_store_dwordx2 v2, v[4:5], s[{wsreg}:{wsreg+1}] offset:{8*i}")
            a(f"    s_nop 1")
        a(f"    s_waitcnt vmcnt(0)")

def dpp_scan(a, v):
    for sh in (1, 2, 4, 8):
        a(f"    s_nop 1")
        a(f"    v_add_u32_dpp v{v}, v{v}, v{v} row_shr:{sh} row_mask:0xf bank_mask:0xf bound_ctrl:0")
    a("    s_nop 1")
    a(f"    v_add_u32_dpp v{v}, v{v}, v{v} row_bcast:15 row_mask:0xa bank_mask:0xf")
    a("    s_nop 1")
    a(f"    v_add_u32_dpp v{v}, v{v}, v{v} row_bcast:31 row_mask:0xc bank_mask:0xf")
    a("    s_nop 1")

K1_HIST, K1_OFFS, K1_REC = 0, 1024, 2048
K1_WB = K1_REC + CH * 12
K1_WV = K1_WB + 64 * 144
K1_X = K1_WV + 64 * 144
K1_G = K1_X + 48 * 144
K1_LDS = K1_G + 48 * 272

def gen_k1(a, opt):
    st = opt.k1_store
    a(f"""
.globl prep_kernel
.p2align 8
.type prep_kernel,@function
prep_kernel:
    s_cmp_ge_u32 s2, {NB}
    s_cbranch_scc1 K1_END
    s_load_dwordx2 s[4:5], s[0:1], 0        ; x
    s_load_dwordx2 s[6:7], s[0:1], 8        ; e_attr
    s_load_dwordx4 s[8:11], s[0:1], 16
    s_load_dwordx2 s[12:13], s[0:1], 40     ; w_b
    s_load_dwordx2 s[14:15], s[0:1], 64     ; w_v
    s_load_dwordx2 s[16:17], s[0:1], 88     ; ws
    v_lshrrev_b32 v1, 6, v0
    v_and_b32 v63, 63, v0                   ; lane
    v_readfirstlane_b32 s3, v1
    s_nop 3""")
    if PROF:
        a("    s_mov_b32 s77, s3")
    stamp(a, 0)
    a(f"""    s_cmp_ge_u32 s3, 10
    s_cbranch_scc1 K1_GEMM
    s_mul_i32 s20, s2, {CH*4}
    v_lshlrev_b32 v2, 4, v0
    v_add_u32 v3, s20, v2
    s_lshl_b32 s21, s20, 1
    v_lshlrev_b32 v4, 5, v0
    v_add_u32 v4, s21, v4
    v_mov_b32 v5, 0
    v_lshlrev_b32 v6, 2, v0
    s_waitcnt lgkmcnt(0)
    global_load_dwordx4 v[8:11], v3, s[10:11]
    global_load_dwordx4 v[12:15], v3, s[8:9]
    global_load_dwordx4 v[16:19], v4, s[6:7]
    global_load_dwordx4 v[20:23], v4, s[6:7] offset:16
    s_cmp_ge_u32 s3, 4
    s_cbranch_scc1 K1_NOZERO
    ds_write_b32 v6, v5 offset:{K1_HIST}
K1_NOZERO:
    s_mov_b32 s22, 52429
    s_movk_i32 s23, 0xffd8                  ; -40
    v_mov_b32 v7, 1
    s_waitcnt lgkmcnt(0)
    s_barrier                               ; #1""")
    stamp(a, 1)
    a("    s_waitcnt vmcnt(3)")
    stamp(a, 2)
    for j in range(4):
        a(f"    v_mul_u32_u24 v{24+j}, s22, v{8+j}")
        a(f"    v_lshrrev_b32 v{24+j}, 21, v{24+j}          ; bucket")
        a(f"    v_mad_i32_i24 v{8+j}, v{24+j}, s23, v{8+j}")
        a(f"    v_lshlrev_b32 v{24+j}, 2, v{24+j}")
        a(f"    ds_add_rtn_u32 v{28+j}, v{24+j}, v7 offset:{K1_HIST}")
    a("    s_waitcnt vmcnt(2)")
    for j in range(4):
        a(f"    v_lshl_or_b32 v{12+j}, v{8+j}, 16, v{12+j}   ; key")
    a(f"""    s_waitcnt lgkmcnt(0)
    s_barrier                               ; #2""")
    stamp(a, 3)
    a(f"""    v_lshlrev_b32 v2, 4, v63
    ds_read_b128 v[32:35], v2 offset:{K1_HIST}
    s_waitcnt lgkmcnt(0)
    v_add_u32 v36, v32, v33
    v_add_u32 v37, v36, v34
    v_add_u32 v38, v37, v35
    v_mov_b32 v39, v38""")
    dpp_scan(a, 39)
    a(f"""    v_sub_u32 v40, v39, v38
    v_add_u32 v41, v40, v32
    v_add_u32 v42, v40, v36
    v_add_u32 v43, v40, v37
    ds_write_b128 v2, v[40:43] offset:{K1_OFFS}
    s_waitcnt vmcnt(0)
    s_cmp_ge_u32 s3, 4
    s_cbranch_scc1 K1_NOOFF
    s_add_u32 s24, s16, {OFF_OFF}
    s_addc_u32 s25, s17, 0
    s_lshl_b32 s26, s3, 10
    s_lshl_b32 s27, s2, 2
    s_add_u32 s26, s26, s27
    v_lshlrev_b32 v3, 12, v63
    v_add_u32 v3, s26, v3""")
    for j in range(4):
        a(f"    s_cmp_lg_u32 s3, {j}")
        a(f"    s_cbranch_scc1 K1_OFFJ{j}")
        a(f"    v_lshl_or_b32 v5, v{32+j}, 16, v{40+j}")
        a(f"K1_OFFJ{j}:")
    a(f"""    global_store_dword v3, v5, s[24:25] {st}
K1_NOOFF:
    s_waitcnt lgkmcnt(0)""")
    for j in range(4):
        a(f"    ds_read_b32 v{44+j}, v{24+j} offset:{K1_OFFS}")
    a("    s_waitcnt lgkmcnt(0)")
    for j in range(4):
        a(f"    v_add_u32 v{44+j}, v{44+j}, v{28+j}")
        a(f"    v_mul_u32_u24 v{44+j}, 12, v{44+j}")
        a(f"    v_add_u32 v{48+j}, {K1_REC}, v{44+j}")
    for j in range(4):
        a(f"    ds_write_b32 v{44+j}, v{12+j} offset:{K1_REC}")
        a(f"    ds_write2_b32 v{48+j}, v{16+2*j}, v{17+2*j} offset0:1 offset1:2")
    a(f"""    s_waitcnt lgkmcnt(0)
    s_barrier                               ; #3""")
    stamp(a, 4)
    a("    v_lshlrev_b32 v2, 4, v0")
    for j in range(3):
        a(f"    ds_read_b128 v[{32+4*j}:{35+4*j}], v2 offset:{K1_REC + j*10240}")
    a(f"""    s_add_u32 s24, s16, {REC_OFF}
    s_addc_u32 s25, s17, 0
    s_mul_i32 s26, s2, {CH*12}
    v_add_u32 v3, s26, v2
    v_add_u32 v4, 10240, v3
    v_add_u32 v5, 20480, v3""")
    for j in range(3):
        a(f"    s_waitcnt lgkmcnt({2-j})")
        a(f"    global_store_dwordx4 v{3+j}, v[{32+4*j}:{35+4*j}], s[24:25] {st}")
    stamp_flush(a, 0, 5, 16, "s77")
    a("""    s_endpgm
K1_GEMM:
    s_sub_u32 s3, s3, 10
    s_and_b32 s27, s3, 1
    s_add_u32 s27, s27, 6
    v_lshlrev_b32 v2, 4, v63                ; lane*16
    s_lshl_b32 s20, s3, 10
    v_add_u32 v3, s20, v2                   ; piece u
    s_lshl_b32 s21, s27, 10
    v_add_u32 v4, s21, v2                   ; piece 6/7""")
    a(f"""    s_mul_i32 s22, s2, {NPB*128}
    v_add_u32 v5, s22, v3                   ; x offset
    ; LDS staging address: (8*piece + lane/8)*144 + (lane%8)*16
    v_lshrrev_b32 v6, 3, v63
    v_mul_u32_u24 v6, 144, v6
    v_and_b32 v7, 7, v63
    v_lshl_add_u32 v6, v7, 4, v6
    s_mul_i32 s23, s3, {8*144}
    v_add_u32 v24, s23, v6
    s_mul_i32 s23, s27, {8*144}
    v_add_u32 v25, s23, v6
    s_waitcnt lgkmcnt(0)
    global_load_dwordx4 v[8:11], v3, s[12:13]
    global_load_dwordx4 v[12:15], v3, s[14:15]
    global_load_dwordx4 v[16:19], v4, s[12:13]
    global_load_dwordx4 v[20:23], v4, s[14:15]
    s_cmp_eq_u32 s3, 5
    s_cbranch_scc1 K1_NOX
    global_load_dwordx4 v[28:31], v5, s[4:5]
    s_waitcnt vmcnt(0)
    ds_write_b128 v24, v[28:31] offset:{K1_X}
K1_NOX:
    s_waitcnt vmcnt(0)
    ds_write_b128 v24, v[8:11] offset:{K1_WB}
    ds_write_b128 v24, v[12:15] offset:{K1_WV}
    ds_write_b128 v25, v[16:19] offset:{K1_WB}
    ds_write_b128 v25, v[20:23] offset:{K1_WV}
    ; tile job: nt = u/2, mt in {{2*(u%2), 2*(u%2)+1}}
    s_lshr_b32 s20, s3, 1                   ; nt
    s_and_b32 s21, s3, 1
    s_lshl_b32 s21, s21, 1                  ; mt0
    v_lshrrev_b32 v2, 4, v63                ; g
    v_and_b32 v3, 15, v63                   ; j / i
    s_lshl_b32 s22, s20, 4
    v_add_u32 v4, s22, v3
    v_mul_u32_u24 v5, 144, v4
    v_lshl_add_u32 v5, v2, 4, v5
    ; W fragment address: (8g + i/4)*144 + 32*mt + 8*(i%4)
    v_lshrrev_b32 v6, 2, v3
    v_lshl_add_u32 v6, v2, 3, v6
    v_mul_u32_u24 v6, 144, v6
    v_and_b32 v7, 3, v3
    v_lshl_add_u32 v6, v7, 3, v6
    s_lshl_b32 s22, s21, 5
    v_add_u32 v6, s22, v6
    v_mul_u32_u24 v7, 272, v4
    v_lshl_add_u32 v7, v2, 4, v7
    s_lshl_b32 s22, s21, 6
    v_add_u32 v7, s22, v7
    s_waitcnt lgkmcnt(0)
    s_barrier                               ; #1""")
    a(f"    ds_read_b128 v[8:11], v5 offset:{K1_X}")
    a(f"    ds_read_b128 v[12:15], v5 offset:{K1_X + 64}")
    for m in range(2):
        for mat, base in ((0, K1_WB), (1, K1_WV)):
            for ks in range(2):
                r = 16 + ((m * 2 + mat) * 2 + ks) * 4
                for h in range(2):
                    a(f"    ds_read_b64_tr_b16 v[{r+2*h}:{r+2*h+1}], v6 offset:{base + ks*4608 + h*576 + m*32}")
    a("    s_waitcnt lgkmcnt(0)")
    for m in range(2):
        for mat in range(2):
            acc = 64 + (m * 2 + mat) * 4
            r0 = 16 + ((m * 2 + mat) * 2 + 0) * 4
            r1 = 16 + ((m * 2 + mat) * 2 + 1) * 4
            a(f"    v_mfma_f32_16x16x32_bf16 v[{acc}:{acc+3}], v[{r0}:{r0+3}], v[8:11], 0")
            a(f"    v_mfma_f32_16x16x32_bf16 v[{acc}:{acc+3}], v[{r1}:{r1+3}], v[12:15], v[{acc}:{acc+3}]")
    a(f"""    s_barrier                               ; #2
    s_mov_b32 s22, {NLOG2E:#x}
    s_mov_b32 s23, {BIG:#x}
    s_mov_b32 s24, {NBIG:#x}
    s_mov_b32 s25, 0x8000
    v_mov_b32 v14, s24
    s_nop 7""")
    for m in range(2):
        accb = 64 + (m * 2 + 0) * 4
        accv = 64 + (m * 2 + 1) * 4
        a(f"    v_cvt_pk_bf16_f32 v8, v{accv}, v{accv+1}")
        a(f"    v_cvt_pk_bf16_f32 v9, v{accv+2}, v{accv+3}")
        a(f"    v_and_b32 v10, 0xffff, v8")
        a(f"    v_lshrrev_b32 v11, 16, v8")
        a(f"    v_and_b32 v12, 0xffff, v9")
        a(f"    v_lshrrev_b32 v13, 16, v9")
        for r in range(4):
            b = accb + r
            lo = 10 + r
            a(f"    v_mul_f32 v{b}, s22, v{b}")
            a(f"    v_med3_f32 v{b}, v{b}, v14, s23")
            a(f"    v_and_b32 v15, 0x7fffffff, v{b}")
            a(f"    v_and_b32 v{b}, 0x80000000, v{b}         ; sign")
            a(f"    v_sub_u32 v15, v15, v{lo}")
            a(f"    v_add_u32 v15, s25, v15")
            a(f"    v_max_i32 v15, 0, v15")
            a(f"    v_and_b32 v15, 0xffff0000, v15")
            a(f"    v_or3_b32 v{16+r}, v15, v{lo}, v{b}")
        a(f"    ds_write_b128 v7, v[16:19] offset:{K1_G + m*64}")
    a(f"""    s_waitcnt lgkmcnt(0)
    s_barrier                               ; #3
    s_lshl_b32 s20, s3, 6
    v_add_u32 v2, s20, v63                  ; t2
    v_lshrrev_b32 v3, 4, v2
    v_mul_u32_u24 v3, 272, v3
    v_and_b32 v4, 15, v2
    v_lshl_add_u32 v3, v4, 4, v3
    ds_read_b128 v[8:11], v3 offset:{K1_G}
    s_mul_i32 s21, s2, {NPB*256}
    v_lshlrev_b32 v5, 4, v2
    v_add_u32 v5, s21, v5
    s_cmp_ge_u32 s3, 4
    s_cbranch_scc1 K1_G1
    ds_read_b128 v[12:15], v3 offset:{K1_G + 24*272}
    s_waitcnt lgkmcnt(0)
    v_add_u32 v6, {384*16}, v5
    global_store_dwordx4 v6, v[12:15], s[16:17] {st}
K1_G1:
    s_waitcnt lgkmcnt(0)
    global_store_dwordx4 v5, v[8:11], s[16:17] {st}
    s_cmp_lg_u32 s2, {NB-1}
    s_cbranch_scc1 K1_END
    s_cmp_lg_u32 s3, 5
    s_cbranch_scc1 K1_END
    v_mov_b32 v8, 0x7f000000
    v_mov_b32 v9, v8
    v_mov_b32 v10, v8
    v_mov_b32 v11, v8
    v_lshlrev_b32 v5, 4, v63
    v_add_u32 v5, {N*256}, v5
    v_cmp_gt_u32 vcc, 16, v63
    s_and_saveexec_b64 s[30:31], vcc
    s_cbranch_execz K1_END
    global_store_dwordx4 v5, v[8:11], s[16:17] {st}
K1_END:
    s_endpgm
""")

SLOT_STR = 512
K2_SLOT = 0
NSEG = NPB + 16
K2_CNT = K2_SLOT + NSEG * SLOT_STR
K2_ZREG = K2_CNT + 256
K2_FLAG = K2_ZREG + 512
K2_ZEND = K2_FLAG + 16
K2_AP = K2_ZEND + 112
K2_U = K2_AP + 48 * 272
K2_SRC = K2_U + 48 * 272
NSLOT = 250 * 32 + 160 + 64
K2_E = K2_SRC + NSLOT * 4
K2_LDS = K2_E + NSLOT * 8
K2_WA = K2_E
K2_WU = K2_WA + 64 * 144
K2_X = K2_WU + 64 * 144
assert K2_LDS <= 163840 and K2_E % 16 == 0 and K2_AP % 16 == 0 and K2_U % 16 == 0

def gen_k2(a, opt):
    NWV = opt.nwv
    LOGW = {8: 3, 16: 4}[NWV]
    RPW = 256 // NWV
    NJ = RPW // 4
    NWL = 16 // NWV
    R = opt.ring
    REC0 = 48 if NWV == 16 else 128
    RANK = REC0 + 8 * NJ
    DL = RANK + 2 * NJ
    TOT, XR, WC, SEG, QEND, VI, VQ, VL = 104, 112, 116, 118, 119, 125, 126, 127
    rec = lambda h, j: REC0 + (h * NJ + j) * 4
    msk = lambda h, j: 40 + 2 * (h * NJ + j)
    S_RB, S_N1, S_Q, S_MORE = 72, 73, 74, 75
    S_TS, S_TE, S_N, S_SEGEND, S_REM, S_T = 28, 29, 76, 77, 78, 79
    if PROF:
        S_N, S_SEGEND, S_REM, S_T = 96, 97, 98, 99
    a(f"""
.globl main_kernel
.p2align 8
.type main_kernel,@function
main_kernel:
    s_cmp_ge_u32 s2, {NB}
    s_cbranch_scc1 K2_END
    s_load_dwordx2 s[4:5], s[0:1], 0        ; x
    s_load_dwordx2 s[6:7], s[0:1], 32       ; w_a
    s_load_dwordx2 s[8:9], s[0:1], 48       ; w_c
    s_load_dwordx2 s[10:11], s[0:1], 56     ; w_u
    s_load_dwordx2 s[12:13], s[0:1], 72     ; out
    s_load_dwordx2 s[14:15], s[0:1], 88     ; ws
    v_lshrrev_b32 v1, 6, v0
    v_and_b32 v1, {NWV-1}, v1
    v_and_b32 v{VL}, 63, v0                  ; lane
    v_readfirstlane_b32 s3, v1""")
    stamp(a, 0)
    a(f"""    v_lshrrev_b32 v{VQ}, 4, v{VL}             ; q = lane/16
    v_and_b32 v{VI}, 15, v{VL}                ; i = lane%16
    s_mov_b32 s{S_RB}, 0""")
    a(f"""K2_ROUND:
    s_mul_i32 s30, s3, {RPW}
    v_mad_u32_u24 v2, v{VQ}, {NJ}, s30
    s_lshl_b32 s31, s2, 10
    v_lshl_add_u32 v3, v2, 2, s31
    s_waitcnt lgkmcnt(0)
    s_add_u32 s16, s14, {OFF_OFF}
    s_addc_u32 s17, s15, 0""")
    for k in range(NJ // 4):
        a(f"    global_load_dwordx4 v[{8+4*k}:{11+4*k}], v3, s[16:17] offset:{16*k}")
    a(f"""    s_add_u32 s20, s14, {REC_OFF}
    s_addc_u32 s21, s15, 0
    s_mov_b32 s22, {E*12}
    s_mov_b32 s23, 0x20000
    s_mov_b32 s24, s14
    s_or_b32 s25, s15, 0x01000000           ; stride 256
    s_mov_b32 s26, {N+1}
    s_mov_b32 s27, 0x20000
    s_cmp_eq_u32 s{S_RB}, 0
    s_cbranch_scc1 K2_FIRST
    s_waitcnt vmcnt(0)
    s_branch K2_HAVEOFF
K2_FIRST:
    s_mul_i32 s35, s2, {NPB*128}
    v_lshlrev_b32 v4, 4, v{VL}               ; lane*16
    s_cmp_ge_u32 s3, 5
    s_cbranch_scc1 K2_NOX
    s_lshl_b32 s36, s3, 10
    s_add_u32 s36, s36, s35
    v_add_u32 v5, s36, v4
    global_load_dwordx4 v[16:19], v5, s[4:5]
    global_load_dwordx4 v[{XR}:{XR+3}], v5, s[4:5]
K2_NOX:""")
    if NWV == 16:
        a(f"""    s_cmp_lt_u32 s3, 8
    s_cselect_b32 s18, s6, s10
    s_cselect_b32 s19, s7, s11
    s_and_b32 s36, s3, 7
    s_lshl_b32 s37, s36, 10
    v_add_u32 v5, s37, v4
    global_load_dwordx4 v[20:23], v5, s[18:19]""")
    else:
        a(f"""    s_lshl_b32 s37, s3, 10
    v_add_u32 v5, s37, v4
    global_load_dwordx4 v[20:23], v5, s[6:7]
    global_load_dwordx4 v[24:27], v5, s[10:11]""")
    a(f"""    ; w_c columns: c = 4*i + q
    v_lshl_add_u32 v6, v{VI}, 2, v{VQ}
    v_lshlrev_b32 v6, 1, v6
    global_load_ushort v28, v6, s[8:9]
    global_load_ushort v29, v6, s[8:9] offset:128
    global_load_ushort v30, v6, s[8:9] offset:256
    global_load_ushort v31, v6, s[8:9] offset:384
    s_cmp_lg_u32 s3, 0
    s_cbranch_scc1 K2_NOZ
    v_mov_b32 v32, 0
    v_mov_b32 v33, 0
    v_mov_b32 v34, 0
    v_mov_b32 v35, 0
    v_add_u32 v7, {K2_CNT}, v4
    v_cmp_gt_u32 vcc, {(K2_ZEND-K2_CNT)//16}, v{VL}
    s_and_saveexec_b64 s[38:39], vcc
    ds_write_b128 v7, v[32:35]
    s_mov_b64 exec, s[38:39]
K2_NOZ:
    s_waitcnt vmcnt({NWL + 4})
K2_HAVEOFF:""")
    stamp(a, 1)
    a(f"""    ; run base: w0*30720 + 12*(i + round base)
    s_mov_b32 s36, {CH*12}
    v_mul_lo_u32 v36, v2, s36
    v_add_u32 v37, s{S_RB}, v{VI}
    v_mad_u32_u24 v36, v37, 12, v36
    v_add_u32 v38, 16, v37                  ; batch 1
    v_mov_b32 v39, 0x7ffffff0
    v_sub_u32 v40, {NB}, v2""")
    for j in range(NJ):
        a(f"    v_cmp_lt_i32 vcc, {j}, v40")
        a(f"    v_lshrrev_b32 v41, 16, v{8+j}               ; count")
        a(f"    v_and_b32 v{8+j}, 0xffff, v{8+j}            ; start")
        a(f"    v_mad_u32_u24 v{8+j}, v{8+j}, 12, v36")
        a(f"    v_cndmask_b32 v41, 0, v41, vcc")
        a(f"    v_cmp_gt_u32 s[{msk(0,j)}:{msk(0,j)+1}], v41, v37")
        a(f"    v_cmp_gt_u32 s[{msk(1,j)}:{msk(1,j)+1}], v41, v38")
        if j == 0:
            a(f"    v_mov_b32 v42, v41")
        else:
            a(f"    v_max_u32 v42, v42, v41")
    for j in range(NJ):
        a(f"    s_mov_b32 s36, {j*CH*12}")
        a(f"    v_cndmask_b32 v43, v39, v{8+j}, s[{msk(0,j)}:{msk(0,j)+1}]")
        a(f"    buffer_load_dwordx3 v[{rec(0,j)}:{rec(0,j)+2}], v43, s[20:23], s36 offen")
    a(f"    s_or_b64 s[36:37], s[{msk(1,0)}:{msk(1,0)+1}], s[{msk(1,1)}:{msk(1,1)+1}]")
    for j in range(2, NJ):
        a(f"    s_or_b64 s[36:37], s[36:37], s[{msk(1,j)}:{msk(1,j)+1}]")
    a(f"""    s_cselect_b32 s{S_N1}, 1, 0
    s_cbranch_scc0 K2_NOB1_LOAD""")
    for j in range(NJ):
        a(f"    s_mov_b32 s36, {j*CH*12 + 192}")
        a(f"    v_cndmask_b32 v43, v39, v{8+j}, s[{msk(1,j)}:{msk(1,j)+1}]")
        a(f"    buffer_load_dwordx3 v[{rec(1,j)}:{rec(1,j)+2}], v43, s[20:23], s36 offen")
    a(f"""K2_NOB1_LOAD:
    s_add_u32 s36, s{S_RB}, 32
    v_cmp_lt_u32 vcc, s36, v42
    s_nop 1
    s_cmp_eq_u64 vcc, 0
    s_cbranch_scc1 K2_NOMORE
    v_mov_b32 v43, {K2_FLAG}
    v_mov_b32 v44, 1
    ds_write_b32 v43, v44
K2_NOMORE:
    s_cmp_lg_u32 s{S_RB}, 0
    s_cbranch_scc1 K2_SKIPGEMM
    v_lshrrev_b32 v5, 3, v{VL}
    v_mul_u32_u24 v5, 144, v5
    v_and_b32 v6, 7, v{VL}
    v_lshl_add_u32 v5, v6, 4, v5            ; (lane/8)*144 + (lane%8)*16
    s_and_b32 s36, s3, 7
    s_mul_i32 s36, s36, {8*144}""")
    if NWV == 16:
        a(f"""    s_lshr_b32 s37, s3, 3
    s_mul_i32 s37, s37, {64*144}
    s_add_u32 s36, s36, s37""")
    a(f"""    s_add_u32 s36, s36, {K2_WA}
    v_add_u32 v6, s36, v5
    s_cmp_lg_u32 s{S_N1}, 0
    s_cbranch_scc1 K2_W8
    s_waitcnt vmcnt({NJ})
    s_branch K2_WD
K2_W8:
    s_waitcnt vmcnt({2*NJ})
K2_WD:
    ds_write_b128 v6, v[20:23]""")
    if NWV == 8:
        a(f"    ds_write_b128 v6, v[24:27] offset:{64*144}")
    a(f"""    s_cmp_ge_u32 s3, 5
    s_cbranch_scc1 K2_NOXS
    s_mul_i32 s36, s3, {8*144}
    s_add_u32 s36, s36, {K2_X}
    v_add_u32 v6, s36, v5
    ds_write_b128 v6, v[16:19]
K2_NOXS:
    s_mov_b32 s36, {NLOG2E:#x}
    v_lshlrev_b32 v28, 16, v28
    v_lshlrev_b32 v29, 16, v29
    v_lshlrev_b32 v30, 16, v30
    v_lshlrev_b32 v31, 16, v31
    v_mul_f32 v28, s36, v28
    v_mul_f32 v29, s36, v29
    v_mul_f32 v30, s36, v30
    v_mul_f32 v31, s36, v31
    v_cvt_pk_bf16_f32 v{WC}, v28, v29
    v_cvt_pk_bf16_f32 v{WC+1}, v30, v31
    s_waitcnt lgkmcnt(0)
    s_barrier                               ; #1""")
    stamp(a, 2)
    if NWV == 16:
        a(f"""    s_cmp_ge_u32 s3, 12
    s_cbranch_scc1 K2_SKIPGEMM
    s_and_b32 s36, s3, 3                    ; mt
    s_lshr_b32 s37, s3, 2                   ; nt""")
    else:
        a(f"""    s_and_b32 s36, s3, 3                    ; mt
    s_lshr_b32 s37, s3, 2""")
    a(f"""    v_lshrrev_b32 v6, 2, v{VI}
    v_lshl_add_u32 v6, v{VQ}, 3, v6
    v_mul_u32_u24 v6, 144, v6
    v_and_b32 v7, 3, v{VI}
    v_lshl_add_u32 v6, v7, 3, v6
    s_lshl_b32 s38, s36, 5
    s_add_u32 s38, s38, {K2_WA}
    v_add_u32 v6, s38, v6""")
    for mat in range(2):
        for ks in range(2):
            r = 16 + mat * 8 + ks * 4
            for h in range(2):
                a(f"    ds_read_b64_tr_b16 v[{r+2*h}:{r+2*h+1}], v6 offset:{mat*9216 + ks*4608 + h*576}")
    a(f"""K2_TILE:
    s_lshl_b32 s38, s37, 4
    v_add_u32 v4, s38, v{VI}
    v_mul_u32_u24 v5, 144, v4
    v_lshl_add_u32 v5, v{VQ}, 4, v5
    v_add_u32 v5, {K2_X}, v5
    ds_read_b128 v[8:11], v5
    ds_read_b128 v[12:15], v5 offset:64
    s_waitcnt lgkmcnt(0)
    v_mfma_f32_16x16x32_bf16 v[32:35], v[16:19], v[8:11], 0
    v_mfma_f32_16x16x32_bf16 v[36:39], v[24:27], v[8:11], 0
    v_mfma_f32_16x16x32_bf16 v[32:35], v[20:23], v[12:15], v[32:35]
    v_mfma_f32_16x16x32_bf16 v[36:39], v[28:31], v[12:15], v[36:39]
    v_mul_u32_u24 v7, 272, v4
    v_lshl_add_u32 v5, v{VQ}, 4, v7
    s_lshl_b32 s38, s36, 6
    s_add_u32 s38, s38, {K2_U}
    v_add_u32 v5, s38, v5                   ; U addr
    v_lshl_add_u32 v40, v{VQ}, 2, v7
    s_lshl_b32 s38, s36, 4
    s_add_u32 s38, s38, {K2_AP}
    v_add_u32 v40, s38, v40
    s_mov_b32 s38, {NLOG2E:#x}
    s_mov_b32 s39, {BIG:#x}
    v_mov_b32 v7, {NBIG:#x}
    s_nop 7
    ds_write_b128 v5, v[36:39]""")
    for r in range(4):
        a(f"    v_mul_f32 v{32+r}, s38, v{32+r}")
        a(f"    v_med3_f32 v{32+r}, v{32+r}, v7, s39")
        a(f"    v_and_b32 v8, 0xffff0000, v{32+r}")
        a(f"    v_sub_f32 v9, v{32+r}, v8")
        a(f"    v_cvt_pk_bf16_f32 v9, v9, v9")
        a(f"    v_and_b32 v9, 0xffff0000, v9")
        a(f"    v_lshrrev_b32 v8, 16, v8")
        a(f"    v_or_b32 v8, v8, v9")
        a(f"    ds_write_b32 v40, v8 offset:{r*64}")
    if NWV == 8:
        a(f"""    s_cmp_lg_u32 s37, 0
    s_cbranch_scc1 K2_SKIPGEMM
    s_mov_b32 s37, 2
    s_branch K2_TILE""")
    a("K2_SKIPGEMM:")
    a(f"""    v_mov_b32 v7, 1
    s_cmp_lg_u32 s{S_N1}, 0
    s_cbranch_scc1 K2_RW4
    s_waitcnt vmcnt(0)
    s_branch K2_RWD
K2_RW4:
    s_waitcnt vmcnt({NJ})
K2_RWD:""")
    for h in range(2):
        if h == 1:
            a(f"""    s_cmp_eq_u32 s{S_N1}, 0
    s_cbranch_scc1 K2_NOB1_RANK
    s_waitcnt vmcnt(0)""")
        for j in range(NJ):
            dl = DL + h * NJ + j
            a(f"    v_lshrrev_b32 v{dl}, 16, v{rec(h,j)}")
            a(f"    v_lshlrev_b32 v{dl}, 2, v{dl}")
            a(f"    s_mov_b64 exec, s[{msk(h,j)}:{msk(h,j)+1}]")
            a(f"    ds_add_rtn_u32 v{RANK+h*NJ+j}, v{dl}, v7 offset:{K2_CNT}")
            a(f"    s_mov_b64 exec, -1")
    a(f"""K2_NOB1_RANK:
    s_waitcnt lgkmcnt(0)
    s_barrier                               ; #2""")
    stamp(a, 3)
    a(f"""    v_lshlrev_b32 v4, 2, v{VL}
    ds_read_b32 v5, v4 offset:{K2_CNT}
    v_mov_b32 v6, {K2_FLAG}
    ds_read_b32 v6, v6
    v_cmp_gt_u32 vcc, {NPB}, v{VL}
    s_waitcnt lgkmcnt(0)
    v_readfirstlane_b32 s{S_MORE}, v6
    v_add_u32 v7, 3, v5
    v_lshrrev_b32 v7, 2, v7
    v_max_u32 v7, 1, v7
    v_cndmask_b32 v7, 0, v7, vcc
    v_mov_b32 v{QEND}, v7""")
    dpp_scan(a, QEND)
    a(f"""    v_sub_u32 v8, v{QEND}, v7
    v_readlane_b32 s{S_Q}, v{QEND}, 63            ; Q
    v_lshlrev_b32 v9, 2, v8""")
    for h in range(2):
        if h == 1:
            a(f"    s_cmp_eq_u32 s{S_N1}, 0")
            a("    s_cbranch_scc1 K2_NOB1_SCAT")
        for j0 in range(0, NJ, 4):
            for j in range(j0, j0 + 4):
                a(f"    ds_bpermute_b32 v{10+j-j0}, v{DL+h*NJ+j}, v9")
            a("    s_waitcnt lgkmcnt(0)")
            for j in range(j0, j0 + 4):
                r = rec(h, j)
                a(f"    v_add_u32 v{10+j-j0}, v{10+j-j0}, v{RANK+h*NJ+j}     ; slot")
                a(f"    v_and_b32 v{r}, 0xffff, v{r}               ; src")
                a(f"    v_lshlrev_b32 v14, 2, v{10+j-j0}")
                a(f"    v_add_u32 v14, {K2_SRC}, v14")
                a(f"    v_lshlrev_b32 v15, 3, v{10+j-j0}")
                a(f"    v_add_u32 v15, {K2_E}, v15")
                m = msk(h, j)
                a(f"    s_mov_b64 exec, s[{m}:{m+1}]")
                a(f"    ds_write_b32 v14, v{r}")
                a(f"    ds_write2_b32 v15, v{r+1}, v{r+2} offset0:0 offset1:1")
                a(f"    s_mov_b64 exec, -1")
    a("K2_NOB1_SCAT:")
    a(f"""    v_mov_b32 v11, {N}
    v_mov_b32 v12, 0
    v_mov_b32 v13, 0
    s_cmp_lg_u32 s3, 0
    s_cbranch_scc1 K2_NOPAD
    v_add_u32 v16, v9, v5
    v_lshlrev_b32 v10, 2, v{QEND}""")
    for s_ in range(4):
        a(f"    v_cmp_lt_u32 vcc, v16, v10")
        a(f"    v_lshlrev_b32 v14, 2, v16")
        a(f"    v_add_u32 v14, {K2_SRC}, v14")
        a(f"    v_lshlrev_b32 v15, 3, v16")
        a(f"    v_add_u32 v15, {K2_E}, v15")
        a(f"    s_and_saveexec_b64 s[38:39], vcc")
        a(f"    ds_write_b32 v14, v11")
        a(f"    ds_write_b64 v15, v[12:13]")
        a(f"    s_mov_b64 exec, s[38:39]")
        a(f"    v_add_u32 v16, 1, v16")
    a(f"""K2_NOPAD:
    s_cmp_lg_u32 s3, 1
    s_cbranch_scc1 K2_NOTAIL
    s_lshl_b32 s36, s{S_Q}, 2
    v_add_u32 v16, s36, v{VL}
    v_lshlrev_b32 v14, 2, v16
    v_add_u32 v14, {K2_SRC}, v14
    v_lshlrev_b32 v15, 3, v16
    v_add_u32 v15, {K2_E}, v15
    ds_write_b32 v14, v11
    ds_write_b64 v15, v[12:13]
K2_NOTAIL:
    v_cvt_f32_u32 v16, s{S_Q}
    v_rcp_f32 v16, v16
    v_lshlrev_b32 v17, {LOGW}, v8
    v_add_u32 v17, {NWV}, v17
    v_cvt_f32_u32 v17, v17
    v_lshlrev_b32 v18, {LOGW}, v{QEND}
    v_cvt_f32_u32 v18, v18
    v_add_f32 v17, -0.5, v17
    v_add_f32 v18, -0.5, v18
    v_mul_f32 v17, v17, v16
    v_mul_f32 v18, v18, v16
    v_cvt_u32_f32 v17, v17
    v_cvt_u32_f32 v18, v18
    v_sub_u32 v18, v18, v17
    v_add_u32 v18, 1, v18
    v_add_u32 v17, v17, v{VL}
    v_lshl_or_b32 v{SEG}, v18, 16, v17
    s_mul_i32 s{S_TS}, s{S_Q}, s3
    s_lshr_b32 s{S_TS}, s{S_TS}, {LOGW}                  ; ts
    s_add_u32 s36, s3, 1
    s_mul_i32 s{S_TE}, s{S_Q}, s36
    s_lshr_b32 s{S_TE}, s{S_TE}, {LOGW}                  ; te
    v_cmp_ge_u32 vcc, s{S_TS}, v{QEND}
    s_nop 1
    s_bcnt1_i32_b64 s{S_N}, vcc                ; n0
    s_nop 0
    v_readlane_b32 s{S_SEGEND}, v{QEND}, s{S_N}
    s_nop 3
    s_min_u32 s{S_SEGEND}, s{S_SEGEND}, s{S_TE}
    s_sub_u32 s{S_REM}, s{S_SEGEND}, s{S_TS}
    s_sub_u32 s{S_REM}, s{S_REM}, 1                   ; rem
    s_lshl_b32 s36, s{S_TS}, 4
    s_add_u32 s36, s36, {K2_SRC}
    v_lshl_add_u32 v2, v{VQ}, 2, s36
    v_lshrrev_b32 v9, 2, v{VI}               ; e = i/4
    v_and_b32 v10, 3, v{VI}                  ; r = i%4
    v_cmp_eq_u32 vcc, v10, v{VQ}
    s_lshl_b32 s36, s{S_TS}, 5
    s_add_u32 s36, s36, {K2_E}
    v_lshl_add_u32 v9, v9, 3, s36
    v_mov_b32 v10, {K2_ZREG}
    v_cndmask_b32 v3, v10, v9, vcc          ; vAddrE
    v_mov_b32 v10, {32*R}
    v_cndmask_b32 v1, 0, v10, vcc           ; vIncE
    v_mov_b32 v10, 0x3f803f80
    v_cndmask_b32 v10, 0, v10, vcc
    v_mov_b32 v18, v10
    v_mov_b32 v19, 0
    v_mov_b32 v22, v10
    v_mov_b32 v23, 0
    v_mov_b32 v4, v{WC}
    v_mov_b32 v5, v{WC+1}
    v_mov_b32 v7, 0""")
    G = lambda k: 24 + 4 * (k % R)
    B0 = 24 + 4 * R
    NUM, DEN, H, IDX, ANX, APA, SLA, TMP = B0, B0 + 4, B0 + 8, B0 + 12, B0 + 14, B0 + 15, B0 + 16, B0 + 17
    IT = B0 + 18
    assert IT + 2 * R <= TOT
    Dr = lambda k: 8 + 4 * (k % 2)
    Ar = lambda k: 16 + 4 * (k % 2)
    a(f"""    v_lshlrev_b32 v{APA}, 2, v{VL}
    v_add_u32 v{APA}, {K2_AP}, v{APA}
    s_mul_i32 s36, s{S_N}, 272
    v_add_u32 v9, s36, v{APA}
    s_add_u32 s36, s{S_N}, s3
    s_mul_i32 s36, s36, {SLOT_STR}
    s_add_u32 s36, s36, {K2_SLOT}
    v_lshl_add_u32 v{SLA}, v{VL}, 3, s36
    v_lshlrev_b32 v{IDX+1}, 4, v{VI}""")
    for r in range(8):
        a(f"    v_mov_b32 v{NUM+r}, 0")
    for k in range(R):
        a(f"    v_mov_b32 v{IT+1+2*k}, v{IDX+1}")
    if opt.diag == "samerow":
        a(f"    v_mov_b32 v120, v{VQ}")
        a(f"    v_mov_b32 v121, v{IDX+1}")
    a(f"""    s_waitcnt lgkmcnt(0)
    s_barrier                               ; #3""")
    stamp(a, 4)
    if PROF:
        a("    s_memtime s[92:93]")
        a("    s_waitcnt lgkmcnt(0)")
        a("    v_mov_b32 v122, s92")
    for k in range(R):
        a(f"    ds_read_b32 v{IT+2*k}, v2 offset:{16*k}")
    a(f"""    ds_read_b32 v6, v9
    ds_read_b32 v{ANX}, v9 offset:272
    ds_read_b64 v[{Ar(0)}:{Ar(0)+1}], v3
    ds_read_b64 v[{Ar(1)}:{Ar(1)+1}], v3 offset:32""")
    for k in range(R):
        a(f"    s_waitcnt lgkmcnt({min(15, R - 1 - k + 4)})")
        a(f"    buffer_load_dwordx4 v[{G(k)}:{G(k)+3}], v[{IT+2*k}:{IT+2*k+1}], s[24:27], 0 idxen offen")
    a(f"    s_waitcnt vmcnt({R-1}) lgkmcnt(0)")
    a(f"    v_mfma_f32_16x16x32_bf16 v[{Dr(0)}:{Dr(0)+3}], v[{Ar(0)}:{Ar(0)+3}], v[4:7], v[{G(0)}:{G(0)+3}]")
    a("    s_nop 7")
    a("K2_LOOP:")
    for k in range(R):
        d, dn = Dr(k), Dr(k + 1)
        g, gn = G(k), G(k + 1)
        a(f"    s_sub_u32 s{S_REM}, s{S_REM}, 1")
        a(f"    s_cbranch_scc1 K2_SA{k}")
        a(f"K2_RA{k}:")
        a(f"    s_waitcnt vmcnt({R-2})")
        a(f"    v_mfma_f32_16x16x32_bf16 v[{dn}:{dn+3}], v[{Ar(k+1)}:{Ar(k+1)+3}], v[4:7], v[{gn}:{gn+3}]")
        a(f"    ds_read_b64 v[{Ar(k)}:{Ar(k)+1}], v3 offset:{32*(k+2)}")
        a(f"    ds_read_b32 v{IDX}, v2 offset:{16*(k+R)}")
        for i in range(4):
            a(f"    v_exp_f32 v{d+i}, v{d+i}")
        a(f"    v_lshlrev_b32 v{H}, 16, v{g}")
        a(f"    v_pk_add_f32 v[{d}:{d+1}], v[{d}:{d+1}], 1.0")
        a(f"    v_pk_add_f32 v[{d+2}:{d+3}], v[{d+2}:{d+3}], 1.0")
        a(f"    v_lshlrev_b32 v{H+1}, 16, v{g+1}")
        for i in range(4):
            a(f"    v_rcp_f32 v{d+i}, v{d+i}")
        a(f"    v_lshlrev_b32 v{H+2}, 16, v{g+2}")
        a(f"    v_lshlrev_b32 v{H+3}, 16, v{g+3}")
        a(f"    v_pk_fma_f32 v[{NUM}:{NUM+1}], v[{d}:{d+1}], v[{H}:{H+1}], v[{NUM}:{NUM+1}]")
        a(f"    v_pk_add_f32 v[{DEN}:{DEN+1}], v[{d}:{d+1}], v[{DEN}:{DEN+1}]")
        a(f"    v_pk_fma_f32 v[{NUM+2}:{NUM+3}], v[{d+2}:{d+3}], v[{H+2}:{H+3}], v[{NUM+2}:{NUM+3}]")
        a(f"    v_pk_add_f32 v[{DEN+2}:{DEN+3}], v[{d+2}:{d+3}], v[{DEN+2}:{DEN+3}]")
        a(f"    s_waitcnt lgkmcnt(0)")
        if opt.diag == "nogather":
            pass
        elif opt.diag == "samerow":
            a(f"    buffer_load_dwordx4 v[{g}:{g+3}], v[120:121], s[24:27], 0 idxen offen")
        else:
            a(f"    buffer_load_dwordx4 v[{g}:{g+3}], v[{IDX}:{IDX+1}], s[24:27], 0 idxen offen")
        a(f"    s_cbranch_scc1 K2_SB{k}")
        a(f"K2_RB{k}:")
        if k == R - 1:
            a(f"    v_add_u32 v2, {16*R}, v2")
            a(f"    v_add_u32 v3, v1, v3")
            a(f"    s_branch K2_LOOP")
    for k in range(R):
        a(f"K2_SA{k}:")
        a(f"    v_mov_b32 v6, v{ANX}")
        a(f"    s_nop 0")
        a(f"    s_branch K2_RA{k}")
    for k in range(R):
        a(f"K2_SB{k}:")
        for r in range(4):
            a(f"    v_permlane32_swap_b32 v{NUM+r}, v{DEN+r}")
        a(f"    v_pk_add_f32 v[{NUM}:{NUM+1}], v[{NUM}:{NUM+1}], v[{DEN}:{DEN+1}]")
        a(f"    v_pk_add_f32 v[{NUM+2}:{NUM+3}], v[{NUM+2}:{NUM+3}], v[{DEN+2}:{DEN+3}]")
        a(f"    s_add_u32 s{S_N}, s{S_N}, 1")
        a(f"    s_add_u32 s36, s{S_N}, 1")
        a(f"    v_permlane16_swap_b32 v{NUM}, v{NUM+2}")
        a(f"    v_permlane16_swap_b32 v{NUM+1}, v{NUM+3}")
        a(f"    v_readlane_b32 s37, v{QEND}, s{S_N}")
        a(f"    s_mul_i32 s36, s36, 272")
        a(f"    v_pk_add_f32 v[{DEN}:{DEN+1}], v[{NUM}:{NUM+1}], v[{NUM+2}:{NUM+3}]")
        a(f"    v_add_u32 v{TMP}, s36, v{APA}")
        a(f"    s_cmp_eq_u32 s{S_SEGEND}, s{S_TE}")
        a(f"    ds_write_b64 v{SLA}, v[{DEN}:{DEN+1}]")
        a(f"    s_cbranch_scc1 K2_DONE")
        a(f"    ds_read_b32 v{ANX}, v{TMP}")
        a(f"    v_add_u32 v{SLA}, {SLOT_STR}, v{SLA}")
        for r in range(8):
            a(f"    v_mov_b32 v{NUM+r}, 0")
        a(f"    s_min_u32 s37, s37, s{S_TE}")
        a(f"    s_sub_u32 s{S_REM}, s37, s{S_SEGEND}")
        a(f"    s_sub_u32 s{S_REM}, s{S_REM}, 1")
        a(f"    s_mov_b32 s{S_SEGEND}, s37")
        a(f"    s_branch K2_RB{k}")
    a("K2_DONE:")
    stamp(a, 5)
    if PROF:
        a("    s_memtime s[92:93]")
        a("    s_waitcnt lgkmcnt(0)")
        a("    v_mov_b32 v123, s92")
        a("    v_sub_u32 v123, v123, v122")
    a(f"""    s_waitcnt vmcnt(0) lgkmcnt(0)
    s_barrier                               ; #4""")
    stamp(a, 6)
    a(f"""    s_cmp_ge_u32 s3, 5
    s_cbranch_scc1 K2_MERGED
    v_lshrrev_b32 v4, 3, v0                 ; node
    v_lshlrev_b32 v5, 2, v4
    ds_bpermute_b32 v5, v5, v{SEG}
    v_and_b32 v6, 7, v0
    v_lshlrev_b32 v6, 4, v6                 ; s2*16
    s_mov_b32 s36, 0""")
    for r in range(16):
        a(f"    v_mov_b32 v{24+r}, 0")
    a(f"""    v_mul_u32_u24 v41, 272, v4
    v_lshl_add_u32 v41, v6, 1, v41
    v_add_u32 v41, {K2_U}, v41
    s_waitcnt lgkmcnt(0)
    v_lshrrev_b32 v7, 16, v5
    v_and_b32 v5, 0xffff, v5
    v_lshl_add_u32 v5, v5, 9, v6
K2_MERGE:
    v_cmp_lt_u32 vcc, s36, v7
    s_nop 1
    s_cmp_eq_u64 vcc, 0
    s_cbranch_scc1 K2_MERGE_END
    s_mov_b64 exec, vcc
    ds_read_b128 v[8:11], v5 offset:{K2_SLOT}
    ds_read_b128 v[12:15], v5 offset:{K2_SLOT+128}
    ds_read_b128 v[16:19], v5 offset:{K2_SLOT+256}
    ds_read_b128 v[20:23], v5 offset:{K2_SLOT+384}
    v_add_u32 v5, {SLOT_STR}, v5
    s_add_u32 s36, s36, 1
    s_waitcnt lgkmcnt(0)""")
    for r in range(8):
        a(f"    v_pk_add_f32 v[{24+2*r}:{25+2*r}], v[{24+2*r}:{25+2*r}], v[{8+2*r}:{9+2*r}]")
    a(f"""    s_mov_b64 exec, -1
    s_branch K2_MERGE
K2_MERGE_END:
    s_or_b32 s36, s{S_RB}, s{S_MORE}
    s_cmp_eq_u32 s36, 0
    s_cbranch_scc1 K2_MERGED
    s_mul_i32 s36, s2, {320*64}
    s_add_u32 s36, s36, {TOT_OFF}
    v_lshl_add_u32 v42, v0, 6, s36
    s_cmp_eq_u32 s{S_RB}, 0
    s_cbranch_scc1 K2_NOPREV""")
    for r in range(4):
        a(f"    global_load_dwordx4 v[{8+4*r}:{11+4*r}], v42, s[14:15] offset:{16*r} sc1")
    a("    s_waitcnt vmcnt(0)")
    for r in range(8):
        a(f"    v_pk_add_f32 v[{24+2*r}:{25+2*r}], v[{24+2*r}:{25+2*r}], v[{8+2*r}:{9+2*r}]")
    a(f"""K2_NOPREV:
    s_cmp_eq_u32 s{S_MORE}, 0
    s_cbranch_scc1 K2_MERGED""")
    for r in range(4):
        a(f"    global_store_dwordx4 v42, v[{24+4*r}:{27+4*r}], s[14:15] offset:{16*r} sc1")
    a(f"""    s_waitcnt vmcnt(0)
K2_MERGED:
    s_cmp_eq_u32 s{S_MORE}, 0
    s_cbranch_scc1 K2_EPI
    s_add_u32 s{S_RB}, s{S_RB}, 32
    s_cmp_lg_u32 s3, 0
    s_cbranch_scc1 K2_NOCLR
    v_mov_b32 v9, 0
    v_lshlrev_b32 v10, 2, v{VL}
    ds_write_b32 v10, v9 offset:{K2_CNT}
    v_mov_b32 v10, {K2_FLAG}
    ds_write_b32 v10, v9
K2_NOCLR:
    s_waitcnt lgkmcnt(0)
    s_barrier
    s_branch K2_ROUND
K2_EPI:
    s_cmp_ge_u32 s3, 5
    s_cbranch_scc1 K2_FIN
    ds_read_b128 v[40:43], v41
    ds_read_b128 v[44:47], v41 offset:16
    s_mov_b32 s36, 0x358637bd               ; 1e-6""")
    nreg = [24, 25, 28, 29, 26, 27, 30, 31]
    dreg = [x + 8 for x in nreg]
    for c in range(8):
        a(f"    v_add_f32 v{dreg[c]}, s36, v{dreg[c]}")
        a(f"    v_rcp_f32 v{dreg[c]}, v{dreg[c]}")
    for c in range(8):
        xr = XR + c // 2
        if c % 2 == 0:
            a(f"    v_lshlrev_b32 v{8+c}, 16, v{xr}")
        else:
            a(f"    v_and_b32 v{8+c}, 0xffff0000, v{xr}")
    a("    s_waitcnt lgkmcnt(0)")
    for c in range(8):
        a(f"    v_fma_f32 v{40+c}, v{nreg[c]}, v{dreg[c]}, v{40+c}    ; z")
        a(f"    v_mul_f32 v{16+c}, 0, v{40+c}")
        a(f"    v_cmp_lt_f32 vcc, 0, v{40+c}")
        a(f"    s_nop 1")
        a(f"    v_cndmask_b32 v{40+c}, v{16+c}, v{40+c}, vcc")
        a(f"    v_add_f32 v{40+c}, v{8+c}, v{40+c}")
    for c in range(4):
        a(f"    v_cvt_pk_bf16_f32 v{16+c}, v{40+2*c}, v{41+2*c}")
    a(f"""    v_lshlrev_b32 v4, 4, v0
    s_mul_i32 s36, s2, {NPB*128}
    v_add_u32 v4, s36, v4
    global_store_dwordx4 v4, v[16:19], s[12:13]
K2_FIN:""")
    stamp_flush(a, 1, 7, 14, "s3")
    if PROF:
        a("    global_store_dword v2, v123, s[14:15] offset:64")
        a("    s_waitcnt vmcnt(0)")
    a("""K2_END:
    s_endpgm
""")

def desc(name, vgpr, sgpr):
    return f""".p2align 6
.amdhsa_kernel {name}
  .amdhsa_next_free_vgpr {vgpr}
  .amdhsa_next_free_sgpr {sgpr}
  .amdhsa_accum_offset {vgpr}
  .amdhsa_group_segment_fixed_size 0
  .amdhsa_kernarg_size 96
  .amdhsa_user_sgpr_count 2
  .amdhsa_user_sgpr_kernarg_segment_ptr 1
  .amdhsa_system_sgpr_workgroup_id_x 1
  .amdhsa_float_denorm_mode_32 3
.end_amdhsa_kernel
"""

HEADER = """; GatedGCN edge-featured MPNN layer, two launches.
"""

def main():
    ap = argparse.ArgumentParser()
    ap.add_argument("-o", default="standalone__edge_featured_mpnn_gatedgcn__graph.s")
    ap.add_argument("--k1_store", default="")
    ap.add_argument("--prof", action="store_true")
    ap.add_argument("--nwv", type=int, default=16)
    ap.add_argument("--ring", type=int, default=8)
    ap.add_argument("--diag", default="")
    opt = ap.parse_args()
    global PROF
    PROF = opt.prof
    a = Asm()
    a(HEADER.rstrip())
    a(f"; @launch kernel=prep_kernel grid=({NB},1,1) block=(1024,1,1) lds={K1_LDS}")
    a(f"; @launch kernel=main_kernel grid=({NB},1,1) block=({opt.nwv*64},1,1) lds={K2_LDS}")
    a('.amdgcn_target "amdgcn-amd-amdhsa--gfx950"')
    a(".text")
    gen_k1(a, opt)
    gen_k2(a, opt)
    a('.section .rodata,"a"')
    a(desc("prep_kernel", 80, 100 if PROF else 48))
    a(desc("main_kernel", 128 if opt.nwv == 16 else 224, 100 if PROF else 80))
    open(opt.o, "w").write(a.text())
    print("wrote", opt.o, "K1 lds", K1_LDS, "K2 lds", K2_LDS)

if __name__ == "__main__":
    main()
```

```python
import sys, argparse

N, D, E = 10000, 64, 640000
NB, NPB = 250, 40
CH = 2560
G_OFF, OFF_OFF, REC_OFF, TOT_OFF = 0, 0x280000, 0x2C0000, 0xA20000
NLOG2E = 0xBFB8AA3B
BIG = 0x71800000
NBIG = 0xF1800000
PROF = False
PROF_OFF = 0x1000000

class Asm:
    def __init__(self):
        self.l = []
    def __call__(self, s=""):
        for line in s.split("\n"):
            self.l.append(line)
    def text(self):
        return "\n".join(self.l) + "\n"

def stamp(a, idx, base=80):
    if PROF:
        a(f"    s_memrealtime s[{base+2*idx}:{base+2*idx+1}]")
        a(f"    s_waitcnt lgkmcnt(0)")

def stamp_flush(a, kern, n, wsreg, wavereg, base=80):
    if PROF:
        a(f"    s_waitcnt vmcnt(0) lgkmcnt(0)")
        a(f"    s_memrealtime s[{base+2*n}:{base+2*n+1}]")
        a(f"    s_waitcnt lgkmcnt(0)")
        a(f"    s_mov_b64 exec, 1")
        a(f"    s_lshl_b32 s78, s2, 4")
        a(f"    s_add_u32 s78, s78, {wavereg}")
        a(f"    s_lshl_b32 s78, s78, 7")
        a(f"    s_add_u32 s78, s78, {PROF_OFF + kern*0x100000}")
        a(f"    v_mov_b32 v2, s78")
        for i in range(n + 1):
            a(f"    v_mov_b32 v4, s{base+2*i}")
            a(f"    v_mov_b32 v5, s{base+2*i+1}")
            a(f"    global_store_dwordx2 v2, v[4:5], s[{wsreg}:{wsreg+1}] offset:{8*i}")
            a(f"    s_nop 1")
        a(f"    s_waitcnt vmcnt(0)")

DBG = False
def dbgmax(a, word, expr_lo, back, invert=False):
    if not DBG: return
    a(f"    s_load_dwordx2 s[94:95], s[0:1], 80")
    a(f"    s_waitcnt lgkmcnt(0)")
    a(f"    s_sub_u32 s94, s94, {back}")
    a(f"    s_subb_u32 s95, s95, 0")
    a(f"    s_mov_b64 s[92:93], exec")
    a(f"    s_mov_b64 exec, 1")
    a(f"    v_mov_b32 v4, {expr_lo}")
    if invert:
        a(f"    v_not_b32 v4, v4")
    a(f"    v_mov_b32 v5, {4*word}")
    a(f"    global_atomic_umax v5, v4, s[94:95]")
    a(f"    s_waitcnt vmcnt(0)")
    a(f"    s_mov_b64 exec, s[92:93]")

def dpp_scan(a, v):
    for sh in (1, 2, 4, 8):
        a(f"    s_nop 1")
        a(f"    v_add_u32_dpp v{v}, v{v}, v{v} row_shr:{sh} row_mask:0xf bank_mask:0xf bound_ctrl:0")
    a("    s_nop 1")
    a(f"    v_add_u32_dpp v{v}, v{v}, v{v} row_bcast:15 row_mask:0xa bank_mask:0xf")
    a("    s_nop 1")
    a(f"    v_add_u32_dpp v{v}, v{v}, v{v} row_bcast:31 row_mask:0xc bank_mask:0xf")
    a("    s_nop 1")

K1_HIST, K1_OFFS, K1_REC = 0, 1024, 2048
K1_WB = K1_REC + CH * 12
K1_WV = K1_WB + 64 * 144
K1_X = K1_WV + 64 * 144
K1_G = K1_X + 48 * 144
K1_LDS = K1_G + 48 * 272

def gen_k1(a, opt):
    st = opt.k1_store
    a(f"""
.globl prep_kernel
.p2align 8
.type prep_kernel,@function
prep_kernel:
    s_cmp_ge_u32 s2, {NB}
    s_cbranch_scc1 K1_END
    s_load_dwordx2 s[4:5], s[0:1], 0        ; x
    s_load_dwordx2 s[6:7], s[0:1], 8        ; e_attr
    s_load_dwordx4 s[8:11], s[0:1], 16
    s_load_dwordx2 s[12:13], s[0:1], 40     ; w_b
    s_load_dwordx2 s[14:15], s[0:1], 64     ; w_v
    s_load_dwordx2 s[16:17], s[0:1], 88     ; ws
    v_lshrrev_b32 v1, 6, v0
    v_and_b32 v63, 63, v0                   ; lane
    v_readfirstlane_b32 s3, v1
    s_nop 3""")
    if PROF:
        a("    s_mov_b32 s77, s3")
    stamp(a, 0)
    a(f"""    s_cmp_ge_u32 s3, 10
    s_cbranch_scc1 K1_GEMM
    s_mul_i32 s20, s2, {CH*4}
    v_lshlrev_b32 v2, 4, v0
    v_add_u32 v3, s20, v2
    s_lshl_b32 s21, s20, 1
    v_lshlrev_b32 v4, 5, v0
    v_add_u32 v4, s21, v4
    v_mov_b32 v5, 0
    v_lshlrev_b32 v6, 2, v0
    s_waitcnt lgkmcnt(0)
    global_load_dwordx4 v[8:11], v3, s[10:11]
    global_load_dwordx4 v[12:15], v3, s[8:9]
    global_load_dwordx4 v[16:19], v4, s[6:7]
    global_load_dwordx4 v[20:23], v4, s[6:7] offset:16
    s_cmp_ge_u32 s3, 4
    s_cbranch_scc1 K1_NOZERO
    ds_write_b32 v6, v5 offset:{K1_HIST}
K1_NOZERO:
    s_mov_b32 s22, 52429
    s_movk_i32 s23, 0xffd8                  ; -40
    v_mov_b32 v7, 1
    s_waitcnt lgkmcnt(0)
    s_barrier                               ; #1""")
    stamp(a, 1)
    a("    s_waitcnt vmcnt(3)")
    stamp(a, 2)
    for j in range(4):
        a(f"    v_mul_u32_u24 v{24+j}, s22, v{8+j}")
        a(f"    v_lshrrev_b32 v{24+j}, 21, v{24+j}          ; bucket")
        a(f"    v_mad_i32_i24 v{8+j}, v{24+j}, s23, v{8+j}")
        a(f"    v_lshlrev_b32 v{24+j}, 2, v{24+j}")
        a(f"    ds_add_rtn_u32 v{28+j}, v{24+j}, v7 offset:{K1_HIST}")
    a("    s_waitcnt vmcnt(2)")
    for j in range(4):
        a(f"    v_lshl_or_b32 v{12+j}, v{8+j}, 16, v{12+j}   ; key")
    a(f"""    s_waitcnt lgkmcnt(0)
    s_barrier                               ; #2""")
    stamp(a, 3)
    a(f"""    v_lshlrev_b32 v2, 4, v63
    ds_read_b128 v[32:35], v2 offset:{K1_HIST}
    s_waitcnt lgkmcnt(0)
    v_add_u32 v36, v32, v33
    v_add_u32 v37, v36, v34
    v_add_u32 v38, v37, v35
    v_mov_b32 v39, v38""")
    dpp_scan(a, 39)
    a(f"""    v_sub_u32 v40, v39, v38
    v_add_u32 v41, v40, v32
    v_add_u32 v42, v40, v36
    v_add_u32 v43, v40, v37
    ds_write_b128 v2, v[40:43] offset:{K1_OFFS}
    s_waitcnt vmcnt(0)
    s_cmp_ge_u32 s3, 4
    s_cbranch_scc1 K1_NOOFF
    s_add_u32 s24, s16, {OFF_OFF}
    s_addc_u32 s25, s17, 0
    s_lshl_b32 s26, s3, 10
    s_lshl_b32 s27, s2, 2
    s_add_u32 s26, s26, s27
    v_lshlrev_b32 v3, 12, v63
    v_add_u32 v3, s26, v3""")
    for j in range(4):
        a(f"    s_cmp_lg_u32 s3, {j}")
        a(f"    s_cbranch_scc1 K1_OFFJ{j}")
        a(f"    v_lshl_or_b32 v5, v{32+j}, 16, v{40+j}")
        a(f"K1_OFFJ{j}:")
    a(f"""    global_store_dword v3, v5, s[24:25] {st}
K1_NOOFF:
    s_waitcnt lgkmcnt(0)""")
    for j in range(4):
        a(f"    ds_read_b32 v{44+j}, v{24+j} offset:{K1_OFFS}")
    a("    s_waitcnt lgkmcnt(0)")
    for j in range(4):
        a(f"    v_add_u32 v{44+j}, v{44+j}, v{28+j}")
        a(f"    v_mul_u32_u24 v{44+j}, 12, v{44+j}")
        a(f"    v_add_u32 v{48+j}, {K1_REC}, v{44+j}")
    for j in range(4):
        a(f"    ds_write_b32 v{44+j}, v{12+j} offset:{K1_REC}")
        a(f"    ds_write2_b32 v{48+j}, v{16+2*j}, v{17+2*j} offset0:1 offset1:2")
    a(f"""    s_waitcnt lgkmcnt(0)
    s_barrier                               ; #3""")
    stamp(a, 4)
    a("    v_lshlrev_b32 v2, 4, v0")
    for j in range(3):
        a(f"    ds_read_b128 v[{32+4*j}:{35+4*j}], v2 offset:{K1_REC + j*10240}")
    a(f"""    s_add_u32 s24, s16, {REC_OFF}
    s_addc_u32 s25, s17, 0
    s_mul_i32 s26, s2, {CH*12}
    v_add_u32 v3, s26, v2
    v_add_u32 v4, 10240, v3
    v_add_u32 v5, 20480, v3""")
    for j in range(3):
        a(f"    s_waitcnt lgkmcnt({2-j})")
        a(f"    global_store_dwordx4 v{3+j}, v[{32+4*j}:{35+4*j}], s[24:25] {st}")
    stamp_flush(a, 0, 5, 16, "s77")
    if DBG:
        a("    s_cmp_lg_u32 s77, 0")
        a("    s_cbranch_scc1 K1_DBGEND")
    dbgmax(a, 0, "s80", 0, True)
    dbgmax(a, 1, "s84", 0)
    dbgmax(a, 2, "s90", 0)
    if DBG:
        a("K1_DBGEND:")
    a("""    s_endpgm
K1_GEMM:
    s_sub_u32 s3, s3, 10
    s_and_b32 s27, s3, 1
    s_add_u32 s27, s27, 6
    v_lshlrev_b32 v2, 4, v63                ; lane*16
    s_lshl_b32 s20, s3, 10
    v_add_u32 v3, s20, v2                   ; piece u
    s_lshl_b32 s21, s27, 10
    v_add_u32 v4, s21, v2                   ; piece 6/7""")
    a(f"""    s_mul_i32 s22, s2, {NPB*128}
    v_add_u32 v5, s22, v3                   ; x offset
    ; LDS staging address: (8*piece + lane/8)*144 + (lane%8)*16
    v_lshrrev_b32 v6, 3, v63
    v_mul_u32_u24 v6, 144, v6
    v_and_b32 v7, 7, v63
    v_lshl_add_u32 v6, v7, 4, v6
    s_mul_i32 s23, s3, {8*144}
    v_add_u32 v24, s23, v6
    s_mul_i32 s23, s27, {8*144}
    v_add_u32 v25, s23, v6
    s_waitcnt lgkmcnt(0)
    global_load_dwordx4 v[8:11], v3, s[12:13]
    global_load_dwordx4 v[12:15], v3, s[14:15]
    global_load_dwordx4 v[16:19], v4, s[12:13]
    global_load_dwordx4 v[20:23], v4, s[14:15]
    s_cmp_eq_u32 s3, 5
    s_cbranch_scc1 K1_NOX
    global_load_dwordx4 v[28:31], v5, s[4:5]
    s_waitcnt vmcnt(0)
    ds_write_b128 v24, v[28:31] offset:{K1_X}
K1_NOX:
    s_waitcnt vmcnt(0)
    ds_write_b128 v24, v[8:11] offset:{K1_WB}
    ds_write_b128 v24, v[12:15] offset:{K1_WV}
    ds_write_b128 v25, v[16:19] offset:{K1_WB}
    ds_write_b128 v25, v[20:23] offset:{K1_WV}
    ; tile job: nt = u/2, mt in {{2*(u%2), 2*(u%2)+1}}
    s_lshr_b32 s20, s3, 1                   ; nt
    s_and_b32 s21, s3, 1
    s_lshl_b32 s21, s21, 1                  ; mt0
    v_lshrrev_b32 v2, 4, v63                ; g
    v_and_b32 v3, 15, v63                   ; j / i
    s_lshl_b32 s22, s20, 4
    v_add_u32 v4, s22, v3
    v_mul_u32_u24 v5, 144, v4
    v_lshl_add_u32 v5, v2, 4, v5
    ; W fragment address: (8g + i/4)*144 + 32*mt + 8*(i%4)
    v_lshrrev_b32 v6, 2, v3
    v_lshl_add_u32 v6, v2, 3, v6
    v_mul_u32_u24 v6, 144, v6
    v_and_b32 v7, 3, v3
    v_lshl_add_u32 v6, v7, 3, v6
    s_lshl_b32 s22, s21, 5
    v_add_u32 v6, s22, v6
    v_mul_u32_u24 v7, 272, v4
    v_lshl_add_u32 v7, v2, 4, v7
    s_lshl_b32 s22, s21, 6
    v_add_u32 v7, s22, v7
    s_waitcnt lgkmcnt(0)
    s_barrier                               ; #1""")
    a(f"    ds_read_b128 v[8:11], v5 offset:{K1_X}")
    a(f"    ds_read_b128 v[12:15], v5 offset:{K1_X + 64}")
    for m in range(2):
        for mat, base in ((0, K1_WB), (1, K1_WV)):
            for ks in range(2):
                r = 16 + ((m * 2 + mat) * 2 + ks) * 4
                for h in range(2):
                    a(f"    ds_read_b64_tr_b16 v[{r+2*h}:{r+2*h+1}], v6 offset:{base + ks*4608 + h*576 + m*32}")
    a("    s_waitcnt lgkmcnt(0)")
    for m in range(2):
        for mat in range(2):
            acc = 64 + (m * 2 + mat) * 4
            r0 = 16 + ((m * 2 + mat) * 2 + 0) * 4
            r1 = 16 + ((m * 2 + mat) * 2 + 1) * 4
            a(f"    v_mfma_f32_16x16x32_bf16 v[{acc}:{acc+3}], v[{r0}:{r0+3}], v[8:11], 0")
            a(f"    v_mfma_f32_16x16x32_bf16 v[{acc}:{acc+3}], v[{r1}:{r1+3}], v[12:15], v[{acc}:{acc+3}]")
    a(f"""    s_barrier                               ; #2
    s_mov_b32 s22, {NLOG2E:#x}
    s_mov_b32 s23, {BIG:#x}
    s_mov_b32 s24, {NBIG:#x}
    s_mov_b32 s25, 0x8000
    v_mov_b32 v14, s24
    s_nop 7""")
    for m in range(2):
        accb = 64 + (m * 2 + 0) * 4
        accv = 64 + (m * 2 + 1) * 4
        a(f"    v_cvt_pk_bf16_f32 v8, v{accv}, v{accv+1}")
        a(f"    v_cvt_pk_bf16_f32 v9, v{accv+2}, v{accv+3}")
        a(f"    v_and_b32 v10, 0xffff, v8")
        a(f"    v_lshrrev_b32 v11, 16, v8")
        a(f"    v_and_b32 v12, 0xffff, v9")
        a(f"    v_lshrrev_b32 v13, 16, v9")
        for r in range(4):
            b = accb + r
            lo = 10 + r
            a(f"    v_mul_f32 v{b}, s22, v{b}")
            a(f"    v_med3_f32 v{b}, v{b}, v14, s23")
            a(f"    v_and_b32 v15, 0x7fffffff, v{b}")
            a(f"    v_and_b32 v{b}, 0x80000000, v{b}         ; sign")
            a(f"    v_sub_u32 v15, v15, v{lo}")
            a(f"    v_add_u32 v15, s25, v15")
            a(f"    v_max_i32 v15, 0, v15")
            a(f"    v_and_b32 v15, 0xffff0000, v15")
            a(f"    v_or3_b32 v{16+r}, v15, v{lo}, v{b}")
        a(f"    ds_write_b128 v7, v[16:19] offset:{K1_G + m*64}")
    a(f"""    s_waitcnt lgkmcnt(0)
    s_barrier                               ; #3
    s_lshl_b32 s20, s3, 6
    v_add_u32 v2, s20, v63                  ; t2
    v_lshrrev_b32 v3, 4, v2
    v_mul_u32_u24 v3, 272, v3
    v_and_b32 v4, 15, v2
    v_lshl_add_u32 v3, v4, 4, v3
    ds_read_b128 v[8:11], v3 offset:{K1_G}
    s_mul_i32 s21, s2, {NPB*256}
    v_lshlrev_b32 v5, 4, v2
    v_add_u32 v5, s21, v5
    s_cmp_ge_u32 s3, 4
    s_cbranch_scc1 K1_G1
    ds_read_b128 v[12:15], v3 offset:{K1_G + 24*272}
    s_waitcnt lgkmcnt(0)
    v_add_u32 v6, {384*16}, v5
    global_store_dwordx4 v6, v[12:15], s[16:17] {st}
K1_G1:
    s_waitcnt lgkmcnt(0)
    global_store_dwordx4 v5, v[8:11], s[16:17] {st}
    s_cmp_lg_u32 s2, {NB-1}
    s_cbranch_scc1 K1_END
    s_cmp_lg_u32 s3, 5
    s_cbranch_scc1 K1_END
    v_mov_b32 v8, 0x7f000000
    v_mov_b32 v9, v8
    v_mov_b32 v10, v8
    v_mov_b32 v11, v8
    v_lshlrev_b32 v5, 4, v63
    v_add_u32 v5, {N*256}, v5
    v_cmp_gt_u32 vcc, 16, v63
    s_and_saveexec_b64 s[30:31], vcc
    s_cbranch_execz K1_END
    global_store_dwordx4 v5, v[8:11], s[16:17] {st}
K1_END:
    s_endpgm
""")

SLOT_STR = 512
K2_SLOT = 0
NSEG = NPB + 16
K2_CNT = K2_SLOT + NSEG * SLOT_STR
K2_ZREG = K2_CNT + 256
K2_FLAG = K2_ZREG + 512
K2_ZEND = K2_FLAG + 16
K2_AP = K2_ZEND + 112
K2_U = K2_AP + 48 * 272
K2_SRC = K2_U + 48 * 272
NSLOT = 250 * 32 + 160 + 64
K2_E = K2_SRC + NSLOT * 4
K2_LDS = K2_E + NSLOT * 8
K2_WA = K2_E
K2_WU = K2_WA + 64 * 144
K2_X = K2_WU + 64 * 144
assert K2_LDS <= 163840 and K2_E % 16 == 0 and K2_AP % 16 == 0 and K2_U % 16 == 0

def gen_k2(a, opt):
    NWV = opt.nwv
    LOGW = {8: 3, 16: 4}[NWV]
    RPW = 256 // NWV
    NJ = RPW // 4
    NWL = 16 // NWV
    R = opt.ring
    REC0 = 48 if NWV == 16 else 128
    RANK = REC0 + 8 * NJ
    DL = RANK + 2 * NJ
    TOT, XR, WC, SEG, QEND, VI, VQ, VL = 104, 112, 116, 118, 119, 125, 126, 127
    rec = lambda h, j: REC0 + (h * NJ + j) * 4
    msk = lambda h, j: 40 + 2 * (h * NJ + j)
    S_RB, S_N1, S_Q, S_MORE = 72, 73, 74, 75
    S_TS, S_TE, S_N, S_SEGEND, S_REM, S_T = 28, 29, 76, 77, 78, 79
    if PROF:
        S_N, S_SEGEND, S_REM, S_T = 96, 97, 98, 99
    a(f"""
.globl main_kernel
.p2align 8
.type main_kernel,@function
main_kernel:
    s_cmp_ge_u32 s2, {NB}
    s_cbranch_scc1 K2_END
    s_load_dwordx2 s[4:5], s[0:1], 0        ; x
    s_load_dwordx2 s[6:7], s[0:1], 32       ; w_a
    s_load_dwordx2 s[8:9], s[0:1], 48       ; w_c
    s_load_dwordx2 s[10:11], s[0:1], 56     ; w_u
    s_load_dwordx2 s[12:13], s[0:1], 72     ; out
    s_load_dwordx2 s[14:15], s[0:1], 88     ; ws
    v_lshrrev_b32 v1, 6, v0
    v_and_b32 v1, {NWV-1}, v1
    v_and_b32 v{VL}, 63, v0                  ; lane
    v_readfirstlane_b32 s3, v1""")
    stamp(a, 0)
    a(f"""    v_lshrrev_b32 v{VQ}, 4, v{VL}             ; q = lane/16
    v_and_b32 v{VI}, 15, v{VL}                ; i = lane%16
    s_mov_b32 s{S_RB}, 0""")
    a(f"""K2_ROUND:
    s_mul_i32 s30, s3, {RPW}
    v_mad_u32_u24 v2, v{VQ}, {NJ}, s30
    s_lshl_b32 s31, s2, 10
    v_lshl_add_u32 v3, v2, 2, s31
    s_waitcnt lgkmcnt(0)
    s_add_u32 s16, s14, {OFF_OFF}
    s_addc_u32 s17, s15, 0""")
    for k in range(NJ // 4):
        a(f"    global_load_dwordx4 v[{8+4*k}:{11+4*k}], v3, s[16:17] offset:{16*k}")
    a(f"""    s_add_u32 s20, s14, {REC_OFF}
    s_addc_u32 s21, s15, 0
    s_mov_b32 s22, {E*12}
    s_mov_b32 s23, 0x20000
    s_mov_b32 s24, s14
    s_or_b32 s25, s15, 0x01000000           ; stride 256
    s_mov_b32 s26, {N+1}
    s_mov_b32 s27, 0x20000
    s_cmp_eq_u32 s{S_RB}, 0
    s_cbranch_scc1 K2_FIRST
    s_waitcnt vmcnt(0)
    s_branch K2_HAVEOFF
K2_FIRST:
    s_mul_i32 s35, s2, {NPB*128}
    v_lshlrev_b32 v4, 4, v{VL}               ; lane*16
    s_cmp_ge_u32 s3, 5
    s_cbranch_scc1 K2_NOX
    s_lshl_b32 s36, s3, 10
    s_add_u32 s36, s36, s35
    v_add_u32 v5, s36, v4
    global_load_dwordx4 v[16:19], v5, s[4:5]
    global_load_dwordx4 v[{XR}:{XR+3}], v5, s[4:5]
K2_NOX:""")
    if NWV == 16:
        a(f"""    s_cmp_lt_u32 s3, 8
    s_cselect_b32 s18, s6, s10
    s_cselect_b32 s19, s7, s11
    s_and_b32 s36, s3, 7
    s_lshl_b32 s37, s36, 10
    v_add_u32 v5, s37, v4
    global_load_dwordx4 v[20:23], v5, s[18:19]""")
    else:
        a(f"""    s_lshl_b32 s37, s3, 10
    v_add_u32 v5, s37, v4
    global_load_dwordx4 v[20:23], v5, s[6:7]
    global_load_dwordx4 v[24:27], v5, s[10:11]""")
    a(f"""    ; w_c columns: c = 4*i + q
    v_lshl_add_u32 v6, v{VI}, 2, v{VQ}
    v_lshlrev_b32 v6, 1, v6
    global_load_ushort v28, v6, s[8:9]
    global_load_ushort v29, v6, s[8:9] offset:128
    global_load_ushort v30, v6, s[8:9] offset:256
    global_load_ushort v31, v6, s[8:9] offset:384
    s_cmp_lg_u32 s3, 0
    s_cbranch_scc1 K2_NOZ
    v_mov_b32 v32, 0
    v_mov_b32 v33, 0
    v_mov_b32 v34, 0
    v_mov_b32 v35, 0
    v_add_u32 v7, {K2_CNT}, v4
    v_cmp_gt_u32 vcc, {(K2_ZEND-K2_CNT)//16}, v{VL}
    s_and_saveexec_b64 s[38:39], vcc
    ds_write_b128 v7, v[32:35]
    s_mov_b64 exec, s[38:39]
K2_NOZ:
    s_waitcnt vmcnt({NWL + 4})
K2_HAVEOFF:""")
    stamp(a, 1)
    a(f"""    ; run base: w0*30720 + 12*(i + round base)
    s_mov_b32 s36, {CH*12}
    v_mul_lo_u32 v36, v2, s36
    v_add_u32 v37, s{S_RB}, v{VI}
    v_mad_u32_u24 v36, v37, 12, v36
    v_add_u32 v38, 16, v37                  ; batch 1
    v_mov_b32 v39, 0x7ffffff0
    v_sub_u32 v40, {NB}, v2""")
    for j in range(NJ):
        a(f"    v_cmp_lt_i32 vcc, {j}, v40")
        a(f"    v_lshrrev_b32 v41, 16, v{8+j}               ; count")
        a(f"    v_and_b32 v{8+j}, 0xffff, v{8+j}            ; start")
        a(f"    v_mad_u32_u24 v{8+j}, v{8+j}, 12, v36")
        a(f"    v_cndmask_b32 v41, 0, v41, vcc")
        a(f"    v_cmp_gt_u32 s[{msk(0,j)}:{msk(0,j)+1}], v41, v37")
        a(f"    v_cmp_gt_u32 s[{msk(1,j)}:{msk(1,j)+1}], v41, v38")
        if j == 0:
            a(f"    v_mov_b32 v42, v41")
        else:
            a(f"    v_max_u32 v42, v42, v41")
    for j in range(NJ):
        a(f"    s_mov_b32 s36, {j*CH*12}")
        a(f"    v_cndmask_b32 v43, v39, v{8+j}, s[{msk(0,j)}:{msk(0,j)+1}]")
        a(f"    buffer_load_dwordx3 v[{rec(0,j)}:{rec(0,j)+2}], v43, s[20:23], s36 offen")
    a(f"    s_or_b64 s[36:37], s[{msk(1,0)}:{msk(1,0)+1}], s[{msk(1,1)}:{msk(1,1)+1}]")
    for j in range(2, NJ):
        a(f"    s_or_b64 s[36:37], s[36:37], s[{msk(1,j)}:{msk(1,j)+1}]")
    a(f"""    s_cselect_b32 s{S_N1}, 1, 0
    s_cbranch_scc0 K2_NOB1_LOAD""")
    for j in range(NJ):
        a(f"    s_mov_b32 s36, {j*CH*12 + 192}")
        a(f"    v_cndmask_b32 v43, v39, v{8+j}, s[{msk(1,j)}:{msk(1,j)+1}]")
        a(f"    buffer_load_dwordx3 v[{rec(1,j)}:{rec(1,j)+2}], v43, s[20:23], s36 offen")
    a(f"""K2_NOB1_LOAD:
    s_add_u32 s36, s{S_RB}, 32
    v_cmp_lt_u32 vcc, s36, v42
    s_nop 1
    s_cmp_eq_u64 vcc, 0
    s_cbranch_scc1 K2_NOMORE
    v_mov_b32 v43, {K2_FLAG}
    v_mov_b32 v44, 1
    ds_write_b32 v43, v44
K2_NOMORE:
    s_cmp_lg_u32 s{S_RB}, 0
    s_cbranch_scc1 K2_SKIPGEMM
    v_lshrrev_b32 v5, 3, v{VL}
    v_mul_u32_u24 v5, 144, v5
    v_and_b32 v6, 7, v{VL}
    v_lshl_add_u32 v5, v6, 4, v5            ; (lane/8)*144 + (lane%8)*16
    s_and_b32 s36, s3, 7
    s_mul_i32 s36, s36, {8*144}""")
    if NWV == 16:
        a(f"""    s_lshr_b32 s37, s3, 3
    s_mul_i32 s37, s37, {64*144}
    s_add_u32 s36, s36, s37""")
    a(f"""    s_add_u32 s36, s36, {K2_WA}
    v_add_u32 v6, s36, v5
    s_cmp_lg_u32 s{S_N1}, 0
    s_cbranch_scc1 K2_W8
    s_waitcnt vmcnt({NJ})
    s_branch K2_WD
K2_W8:
    s_waitcnt vmcnt({2*NJ})
K2_WD:
    ds_write_b128 v6, v[20:23]""")
    if NWV == 8:
        a(f"    ds_write_b128 v6, v[24:27] offset:{64*144}")
    a(f"""    s_cmp_ge_u32 s3, 5
    s_cbranch_scc1 K2_NOXS
    s_mul_i32 s36, s3, {8*144}
    s_add_u32 s36, s36, {K2_X}
    v_add_u32 v6, s36, v5
    ds_write_b128 v6, v[16:19]
K2_NOXS:
    s_mov_b32 s36, {NLOG2E:#x}
    v_lshlrev_b32 v28, 16, v28
    v_lshlrev_b32 v29, 16, v29
    v_lshlrev_b32 v30, 16, v30
    v_lshlrev_b32 v31, 16, v31
    v_mul_f32 v28, s36, v28
    v_mul_f32 v29, s36, v29
    v_mul_f32 v30, s36, v30
    v_mul_f32 v31, s36, v31
    v_cvt_pk_bf16_f32 v{WC}, v28, v29
    v_cvt_pk_bf16_f32 v{WC+1}, v30, v31
    s_waitcnt lgkmcnt(0)
    s_barrier                               ; #1""")
    stamp(a, 2)
    if NWV == 16:
        a(f"""    s_cmp_ge_u32 s3, 12
    s_cbranch_scc1 K2_SKIPGEMM
    s_and_b32 s36, s3, 3                    ; mt
    s_lshr_b32 s37, s3, 2                   ; nt""")
    else:
        a(f"""    s_and_b32 s36, s3, 3                    ; mt
    s_lshr_b32 s37, s3, 2""")
    a(f"""    v_lshrrev_b32 v6, 2, v{VI}
    v_lshl_add_u32 v6, v{VQ}, 3, v6
    v_mul_u32_u24 v6, 144, v6
    v_and_b32 v7, 3, v{VI}
    v_lshl_add_u32 v6, v7, 3, v6
    s_lshl_b32 s38, s36, 5
    s_add_u32 s38, s38, {K2_WA}
    v_add_u32 v6, s38, v6""")
    for mat in range(2):
        for ks in range(2):
            r = 16 + mat * 8 + ks * 4
            for h in range(2):
                a(f"    ds_read_b64_tr_b16 v[{r+2*h}:{r+2*h+1}], v6 offset:{mat*9216 + ks*4608 + h*576}")
    a(f"""K2_TILE:
    s_lshl_b32 s38, s37, 4
    v_add_u32 v4, s38, v{VI}
    v_mul_u32_u24 v5, 144, v4
    v_lshl_add_u32 v5, v{VQ}, 4, v5
    v_add_u32 v5, {K2_X}, v5
    ds_read_b128 v[8:11], v5
    ds_read_b128 v[12:15], v5 offset:64
    s_waitcnt lgkmcnt(0)
    v_mfma_f32_16x16x32_bf16 v[32:35], v[16:19], v[8:11], 0
    v_mfma_f32_16x16x32_bf16 v[36:39], v[24:27], v[8:11], 0
    v_mfma_f32_16x16x32_bf16 v[32:35], v[20:23], v[12:15], v[32:35]
    v_mfma_f32_16x16x32_bf16 v[36:39], v[28:31], v[12:15], v[36:39]
    v_mul_u32_u24 v7, 272, v4
    v_lshl_add_u32 v5, v{VQ}, 4, v7
    s_lshl_b32 s38, s36, 6
    s_add_u32 s38, s38, {K2_U}
    v_add_u32 v5, s38, v5                   ; U addr
    v_lshl_add_u32 v40, v{VQ}, 2, v7
    s_lshl_b32 s38, s36, 4
    s_add_u32 s38, s38, {K2_AP}
    v_add_u32 v40, s38, v40
    s_mov_b32 s38, {NLOG2E:#x}
    s_mov_b32 s39, {BIG:#x}
    v_mov_b32 v7, {NBIG:#x}
    s_nop 7
    ds_write_b128 v5, v[36:39]""")
    for r in range(4):
        a(f"    v_mul_f32 v{32+r}, s38, v{32+r}")
        a(f"    v_med3_f32 v{32+r}, v{32+r}, v7, s39")
        a(f"    v_and_b32 v8, 0xffff0000, v{32+r}")
        a(f"    v_sub_f32 v9, v{32+r}, v8")
        a(f"    v_cvt_pk_bf16_f32 v9, v9, v9")
        a(f"    v_and_b32 v9, 0xffff0000, v9")
        a(f"    v_lshrrev_b32 v8, 16, v8")
        a(f"    v_or_b32 v8, v8, v9")
        a(f"    ds_write_b32 v40, v8 offset:{r*64}")
    if NWV == 8:
        a(f"""    s_cmp_lg_u32 s37, 0
    s_cbranch_scc1 K2_SKIPGEMM
    s_mov_b32 s37, 2
    s_branch K2_TILE""")
    a("K2_SKIPGEMM:")
    a(f"""    v_mov_b32 v7, 1
    s_cmp_lg_u32 s{S_N1}, 0
    s_cbranch_scc1 K2_RW4
    s_waitcnt vmcnt(0)
    s_branch K2_RWD
K2_RW4:
    s_waitcnt vmcnt({NJ})
K2_RWD:""")
    for h in range(2):
        if h == 1:
            a(f"""    s_cmp_eq_u32 s{S_N1}, 0
    s_cbranch_scc1 K2_NOB1_RANK
    s_waitcnt vmcnt(0)""")
        for j in range(NJ):
            dl = DL + h * NJ + j
            a(f"    v_lshrrev_b32 v{dl}, 16, v{rec(h,j)}")
            a(f"    v_lshlrev_b32 v{dl}, 2, v{dl}")
            a(f"    s_mov_b64 exec, s[{msk(h,j)}:{msk(h,j)+1}]")
            a(f"    ds_add_rtn_u32 v{RANK+h*NJ+j}, v{dl}, v7 offset:{K2_CNT}")
            a(f"    s_mov_b64 exec, -1")
    a(f"""K2_NOB1_RANK:
    s_waitcnt lgkmcnt(0)
    s_barrier                               ; #2""")
    stamp(a, 3)
    a(f"""    v_lshlrev_b32 v4, 2, v{VL}
    ds_read_b32 v5, v4 offset:{K2_CNT}
    v_mov_b32 v6, {K2_FLAG}
    ds_read_b32 v6, v6
    v_cmp_gt_u32 vcc, {NPB}, v{VL}
    s_waitcnt lgkmcnt(0)
    v_readfirstlane_b32 s{S_MORE}, v6
    v_add_u32 v7, 3, v5
    v_lshrrev_b32 v7, 2, v7
    v_max_u32 v7, 1, v7
    v_cndmask_b32 v7, 0, v7, vcc
    v_mov_b32 v{QEND}, v7""")
    dpp_scan(a, QEND)
    a(f"""    v_sub_u32 v8, v{QEND}, v7
    v_readlane_b32 s{S_Q}, v{QEND}, 63            ; Q
    v_lshlrev_b32 v9, 2, v8""")
    for h in range(2):
        if h == 1:
            a(f"    s_cmp_eq_u32 s{S_N1}, 0")
            a("    s_cbranch_scc1 K2_NOB1_SCAT")
        for j0 in range(0, NJ, 4):
            for j in range(j0, j0 + 4):
                a(f"    ds_bpermute_b32 v{10+j-j0}, v{DL+h*NJ+j}, v9")
            a("    s_waitcnt lgkmcnt(0)")
            for j in range(j0, j0 + 4):
                r = rec(h, j)
                a(f"    v_add_u32 v{10+j-j0}, v{10+j-j0}, v{RANK+h*NJ+j}     ; slot")
                a(f"    v_and_b32 v{r}, 0xffff, v{r}               ; src")
                a(f"    v_lshlrev_b32 v14, 2, v{10+j-j0}")
                a(f"    v_add_u32 v14, {K2_SRC}, v14")
                a(f"    v_lshlrev_b32 v15, 3, v{10+j-j0}")
                a(f"    v_add_u32 v15, {K2_E}, v15")
                m = msk(h, j)
                a(f"    s_mov_b64 exec, s[{m}:{m+1}]")
                a(f"    ds_write_b32 v14, v{r}")
                a(f"    ds_write2_b32 v15, v{r+1}, v{r+2} offset0:0 offset1:1")
                a(f"    s_mov_b64 exec, -1")
    a("K2_NOB1_SCAT:")
    a(f"""    v_mov_b32 v11, {N}
    v_mov_b32 v12, 0
    v_mov_b32 v13, 0
    s_cmp_lg_u32 s3, 0
    s_cbranch_scc1 K2_NOPAD
    v_add_u32 v16, v9, v5
    v_lshlrev_b32 v10, 2, v{QEND}""")
    for s_ in range(4):
        a(f"    v_cmp_lt_u32 vcc, v16, v10")
        a(f"    v_lshlrev_b32 v14, 2, v16")
        a(f"    v_add_u32 v14, {K2_SRC}, v14")
        a(f"    v_lshlrev_b32 v15, 3, v16")
        a(f"    v_add_u32 v15, {K2_E}, v15")
        a(f"    s_and_saveexec_b64 s[38:39], vcc")
        a(f"    ds_write_b32 v14, v11")
        a(f"    ds_write_b64 v15, v[12:13]")
        a(f"    s_mov_b64 exec, s[38:39]")
        a(f"    v_add_u32 v16, 1, v16")
    a(f"""K2_NOPAD:
    s_cmp_lg_u32 s3, 1
    s_cbranch_scc1 K2_NOTAIL
    s_lshl_b32 s36, s{S_Q}, 2
    v_add_u32 v16, s36, v{VL}
    v_lshlrev_b32 v14, 2, v16
    v_add_u32 v14, {K2_SRC}, v14
    v_lshlrev_b32 v15, 3, v16
    v_add_u32 v15, {K2_E}, v15
    ds_write_b32 v14, v11
    ds_write_b64 v15, v[12:13]
K2_NOTAIL:
    v_cvt_f32_u32 v16, s{S_Q}
    v_rcp_f32 v16, v16
    v_lshlrev_b32 v17, {LOGW}, v8
    v_add_u32 v17, {NWV}, v17
    v_cvt_f32_u32 v17, v17
    v_lshlrev_b32 v18, {LOGW}, v{QEND}
    v_cvt_f32_u32 v18, v18
    v_add_f32 v17, -0.5, v17
    v_add_f32 v18, -0.5, v18
    v_mul_f32 v17, v17, v16
    v_mul_f32 v18, v18, v16
    v_cvt_u32_f32 v17, v17
    v_cvt_u32_f32 v18, v18
    v_sub_u32 v18, v18, v17
    v_add_u32 v18, 1, v18
    v_add_u32 v17, v17, v{VL}
    v_lshl_or_b32 v{SEG}, v18, 16, v17
    s_mul_i32 s{S_TS}, s{S_Q}, s3
    s_lshr_b32 s{S_TS}, s{S_TS}, {LOGW}                  ; ts
    s_add_u32 s36, s3, 1
    s_mul_i32 s{S_TE}, s{S_Q}, s36
    s_lshr_b32 s{S_TE}, s{S_TE}, {LOGW}                  ; te
    v_cmp_ge_u32 vcc, s{S_TS}, v{QEND}
    s_nop 1
    s_bcnt1_i32_b64 s{S_N}, vcc                ; n0
    s_nop 0
    v_readlane_b32 s{S_SEGEND}, v{QEND}, s{S_N}
    s_nop 3
    s_min_u32 s{S_SEGEND}, s{S_SEGEND}, s{S_TE}
    s_sub_u32 s{S_REM}, s{S_SEGEND}, s{S_TS}
    s_sub_u32 s{S_REM}, s{S_REM}, 1                   ; rem
    s_lshl_b32 s36, s{S_TS}, 4
    s_add_u32 s36, s36, {K2_SRC}
    v_lshl_add_u32 v2, v{VQ}, 2, s36
    v_lshrrev_b32 v9, 2, v{VI}               ; e = i/4
    v_and_b32 v10, 3, v{VI}                  ; r = i%4
    v_cmp_eq_u32 vcc, v10, v{VQ}
    s_lshl_b32 s36, s{S_TS}, 5
    s_add_u32 s36, s36, {K2_E}
    v_lshl_add_u32 v9, v9, 3, s36
    v_mov_b32 v10, {K2_ZREG}
    v_cndmask_b32 v3, v10, v9, vcc          ; vAddrE
    v_mov_b32 v10, {32*R}
    v_cndmask_b32 v1, 0, v10, vcc           ; vIncE
    v_mov_b32 v10, 0x3f803f80
    v_cndmask_b32 v10, 0, v10, vcc
    v_mov_b32 v18, v10
    v_mov_b32 v19, 0
    v_mov_b32 v22, v10
    v_mov_b32 v23, 0
    v_mov_b32 v4, v{WC}
    v_mov_b32 v5, v{WC+1}
    v_mov_b32 v7, 0""")
    G = lambda k: 24 + 4 * (k % R)
    B0 = 24 + 4 * R
    NUM, DEN, H, IDX, ANX, APA, SLA, TMP = B0, B0 + 4, B0 + 8, B0 + 12, B0 + 14, B0 + 15, B0 + 16, B0 + 17
    IT = B0 + 18
    assert IT + 2 * R <= TOT
    Dr = lambda k: 8 + 4 * (k % 2)
    Ar = lambda k: 16 + 4 * (k % 2)
    a(f"""    v_lshlrev_b32 v{APA}, 2, v{VL}
    v_add_u32 v{APA}, {K2_AP}, v{APA}
    s_mul_i32 s36, s{S_N}, 272
    v_add_u32 v9, s36, v{APA}
    s_add_u32 s36, s{S_N}, s3
    s_mul_i32 s36, s36, {SLOT_STR}
    s_add_u32 s36, s36, {K2_SLOT}
    v_lshl_add_u32 v{SLA}, v{VL}, 3, s36
    v_lshlrev_b32 v{IDX+1}, 4, v{VI}""")
    for r in range(8):
        a(f"    v_mov_b32 v{NUM+r}, 0")
    for k in range(R):
        a(f"    v_mov_b32 v{IT+1+2*k}, v{IDX+1}")
    if opt.diag == "samerow":
        a(f"    v_mov_b32 v120, v{VQ}")
        a(f"    v_mov_b32 v121, v{IDX+1}")
    a(f"""    s_waitcnt lgkmcnt(0)
    s_barrier                               ; #3""")
    stamp(a, 4)
    if PROF:
        a("    s_memtime s[92:93]")
        a("    s_waitcnt lgkmcnt(0)")
        a("    v_mov_b32 v122, s92")
    for k in range(R):
        a(f"    ds_read_b32 v{IT+2*k}, v2 offset:{16*k}")
    a(f"""    ds_read_b32 v6, v9
    ds_read_b32 v{ANX}, v9 offset:272
    ds_read_b64 v[{Ar(0)}:{Ar(0)+1}], v3
    ds_read_b64 v[{Ar(1)}:{Ar(1)+1}], v3 offset:32""")
    for k in range(R):
        a(f"    s_waitcnt lgkmcnt({min(15, R - 1 - k + 4)})")
        a(f"    buffer_load_dwordx4 v[{G(k)}:{G(k)+3}], v[{IT+2*k}:{IT+2*k+1}], s[24:27], 0 idxen offen")
    a(f"    s_waitcnt vmcnt({R-1}) lgkmcnt(0)")
    a(f"    v_mfma_f32_16x16x32_bf16 v[{Dr(0)}:{Dr(0)+3}], v[{Ar(0)}:{Ar(0)+3}], v[4:7], v[{G(0)}:{G(0)+3}]")
    a("    s_nop 7")
    a("K2_LOOP:")
    for k in range(R):
        d, dn = Dr(k), Dr(k + 1)
        g, gn = G(k), G(k + 1)
        a(f"    s_sub_u32 s{S_REM}, s{S_REM}, 1")
        a(f"    s_cbranch_scc1 K2_SA{k}")
        a(f"K2_RA{k}:")
        a(f"    s_waitcnt vmcnt({R-2})")
        a(f"    v_mfma_f32_16x16x32_bf16 v[{dn}:{dn+3}], v[{Ar(k+1)}:{Ar(k+1)+3}], v[4:7], v[{gn}:{gn+3}]")
        a(f"    ds_read_b64 v[{Ar(k)}:{Ar(k)+1}], v3 offset:{32*(k+2)}")
        a(f"    ds_read_b32 v{IDX}, v2 offset:{16*(k+R)}")
        for i in range(4):
            a(f"    v_exp_f32 v{d+i}, v{d+i}")
        a(f"    v_lshlrev_b32 v{H}, 16, v{g}")
        a(f"    v_pk_add_f32 v[{d}:{d+1}], v[{d}:{d+1}], 1.0")
        a(f"    v_pk_add_f32 v[{d+2}:{d+3}], v[{d+2}:{d+3}], 1.0")
        a(f"    v_lshlrev_b32 v{H+1}, 16, v{g+1}")
        for i in range(4):
            a(f"    v_rcp_f32 v{d+i}, v{d+i}")
        a(f"    v_lshlrev_b32 v{H+2}, 16, v{g+2}")
        a(f"    v_lshlrev_b32 v{H+3}, 16, v{g+3}")
        a(f"    v_pk_fma_f32 v[{NUM}:{NUM+1}], v[{d}:{d+1}], v[{H}:{H+1}], v[{NUM}:{NUM+1}]")
        a(f"    v_pk_add_f32 v[{DEN}:{DEN+1}], v[{d}:{d+1}], v[{DEN}:{DEN+1}]")
        a(f"    v_pk_fma_f32 v[{NUM+2}:{NUM+3}], v[{d+2}:{d+3}], v[{H+2}:{H+3}], v[{NUM+2}:{NUM+3}]")
        a(f"    v_pk_add_f32 v[{DEN+2}:{DEN+3}], v[{d+2}:{d+3}], v[{DEN+2}:{DEN+3}]")
        a(f"    s_waitcnt lgkmcnt(0)")
        if opt.diag == "nogather":
            pass
        elif opt.diag == "samerow":
            a(f"    buffer_load_dwordx4 v[{g}:{g+3}], v[120:121], s[24:27], 0 idxen offen")
        else:
            a(f"    buffer_load_dwordx4 v[{g}:{g+3}], v[{IDX}:{IDX+1}], s[24:27], 0 idxen offen")
        a(f"    s_cbranch_scc1 K2_SB{k}")
        a(f"K2_RB{k}:")
        if k == R - 1:
            a(f"    v_add_u32 v2, {16*R}, v2")
            a(f"    v_add_u32 v3, v1, v3")
            a(f"    s_branch K2_LOOP")
    for k in range(R):
        a(f"K2_SA{k}:")
        a(f"    v_mov_b32 v6, v{ANX}")
        a(f"    s_nop 0")
        a(f"    s_branch K2_RA{k}")
    for k in range(R):
        a(f"K2_SB{k}:")
        for r in range(4):
            a(f"    v_permlane32_swap_b32 v{NUM+r}, v{DEN+r}")
        a(f"    v_pk_add_f32 v[{NUM}:{NUM+1}], v[{NUM}:{NUM+1}], v[{DEN}:{DEN+1}]")
        a(f"    v_pk_add_f32 v[{NUM+2}:{NUM+3}], v[{NUM+2}:{NUM+3}], v[{DEN+2}:{DEN+3}]")
        a(f"    s_add_u32 s{S_N}, s{S_N}, 1")
        a(f"    s_add_u32 s36, s{S_N}, 1")
        a(f"    v_permlane16_swap_b32 v{NUM}, v{NUM+2}")
        a(f"    v_permlane16_swap_b32 v{NUM+1}, v{NUM+3}")
        a(f"    v_readlane_b32 s37, v{QEND}, s{S_N}")
        a(f"    s_mul_i32 s36, s36, 272")
        a(f"    v_pk_add_f32 v[{DEN}:{DEN+1}], v[{NUM}:{NUM+1}], v[{NUM+2}:{NUM+3}]")
        a(f"    v_add_u32 v{TMP}, s36, v{APA}")
        a(f"    s_cmp_eq_u32 s{S_SEGEND}, s{S_TE}")
        a(f"    ds_write_b64 v{SLA}, v[{DEN}:{DEN+1}]")
        a(f"    s_cbranch_scc1 K2_DONE")
        a(f"    ds_read_b32 v{ANX}, v{TMP}")
        a(f"    v_add_u32 v{SLA}, {SLOT_STR}, v{SLA}")
        for r in range(8):
            a(f"    v_mov_b32 v{NUM+r}, 0")
        a(f"    s_min_u32 s37, s37, s{S_TE}")
        a(f"    s_sub_u32 s{S_REM}, s37, s{S_SEGEND}")
        a(f"    s_sub_u32 s{S_REM}, s{S_REM}, 1")
        a(f"    s_mov_b32 s{S_SEGEND}, s37")
        a(f"    s_branch K2_RB{k}")
    a("K2_DONE:")
    stamp(a, 5)
    if PROF:
        a("    s_memtime s[92:93]")
        a("    s_waitcnt lgkmcnt(0)")
        a("    v_mov_b32 v123, s92")
        a("    v_sub_u32 v123, v123, v122")
    a(f"""    s_waitcnt vmcnt(0) lgkmcnt(0)
    s_barrier                               ; #4""")
    stamp(a, 6)
    a(f"""    s_cmp_ge_u32 s3, 5
    s_cbranch_scc1 K2_MERGED
    v_lshrrev_b32 v4, 3, v0                 ; node
    v_lshlrev_b32 v5, 2, v4
    ds_bpermute_b32 v5, v5, v{SEG}
    v_and_b32 v6, 7, v0
    v_lshlrev_b32 v6, 4, v6                 ; s2*16
    s_mov_b32 s36, 0""")
    for r in range(16):
        a(f"    v_mov_b32 v{24+r}, 0")
    a(f"""    v_mul_u32_u24 v41, 272, v4
    v_lshl_add_u32 v41, v6, 1, v41
    v_add_u32 v41, {K2_U}, v41
    s_waitcnt lgkmcnt(0)
    v_lshrrev_b32 v7, 16, v5
    v_and_b32 v5, 0xffff, v5
    v_lshl_add_u32 v5, v5, 9, v6
K2_MERGE:
    v_cmp_lt_u32 vcc, s36, v7
    s_nop 1
    s_cmp_eq_u64 vcc, 0
    s_cbranch_scc1 K2_MERGE_END
    s_mov_b64 exec, vcc
    ds_read_b128 v[8:11], v5 offset:{K2_SLOT}
    ds_read_b128 v[12:15], v5 offset:{K2_SLOT+128}
    ds_read_b128 v[16:19], v5 offset:{K2_SLOT+256}
    ds_read_b128 v[20:23], v5 offset:{K2_SLOT+384}
    v_add_u32 v5, {SLOT_STR}, v5
    s_add_u32 s36, s36, 1
    s_waitcnt lgkmcnt(0)""")
    for r in range(8):
        a(f"    v_pk_add_f32 v[{24+2*r}:{25+2*r}], v[{24+2*r}:{25+2*r}], v[{8+2*r}:{9+2*r}]")
    a(f"""    s_mov_b64 exec, -1
    s_branch K2_MERGE
K2_MERGE_END:
    s_or_b32 s36, s{S_RB}, s{S_MORE}
    s_cmp_eq_u32 s36, 0
    s_cbranch_scc1 K2_MERGED
    s_mul_i32 s36, s2, {320*64}
    s_add_u32 s36, s36, {TOT_OFF}
    v_lshl_add_u32 v42, v0, 6, s36
    s_cmp_eq_u32 s{S_RB}, 0
    s_cbranch_scc1 K2_NOPREV""")
    for r in range(4):
        a(f"    global_load_dwordx4 v[{8+4*r}:{11+4*r}], v42, s[14:15] offset:{16*r} sc1")
    a("    s_waitcnt vmcnt(0)")
    for r in range(8):
        a(f"    v_pk_add_f32 v[{24+2*r}:{25+2*r}], v[{24+2*r}:{25+2*r}], v[{8+2*r}:{9+2*r}]")
    a(f"""K2_NOPREV:
    s_cmp_eq_u32 s{S_MORE}, 0
    s_cbranch_scc1 K2_MERGED""")
    for r in range(4):
        a(f"    global_store_dwordx4 v42, v[{24+4*r}:{27+4*r}], s[14:15] offset:{16*r} sc1")
    a(f"""    s_waitcnt vmcnt(0)
K2_MERGED:
    s_cmp_eq_u32 s{S_MORE}, 0
    s_cbranch_scc1 K2_EPI
    s_add_u32 s{S_RB}, s{S_RB}, 32
    s_cmp_lg_u32 s3, 0
    s_cbranch_scc1 K2_NOCLR
    v_mov_b32 v9, 0
    v_lshlrev_b32 v10, 2, v{VL}
    ds_write_b32 v10, v9 offset:{K2_CNT}
    v_mov_b32 v10, {K2_FLAG}
    ds_write_b32 v10, v9
K2_NOCLR:
    s_waitcnt lgkmcnt(0)
    s_barrier
    s_branch K2_ROUND
K2_EPI:
    s_cmp_ge_u32 s3, 5
    s_cbranch_scc1 K2_FIN
    ds_read_b128 v[40:43], v41
    ds_read_b128 v[44:47], v41 offset:16
    s_mov_b32 s36, 0x358637bd               ; 1e-6""")
    nreg = [24, 25, 28, 29, 26, 27, 30, 31]
    dreg = [x + 8 for x in nreg]
    for c in range(8):
        a(f"    v_add_f32 v{dreg[c]}, s36, v{dreg[c]}")
        a(f"    v_rcp_f32 v{dreg[c]}, v{dreg[c]}")
    for c in range(8):
        xr = XR + c // 2
        if c % 2 == 0:
            a(f"    v_lshlrev_b32 v{8+c}, 16, v{xr}")
        else:
            a(f"    v_and_b32 v{8+c}, 0xffff0000, v{xr}")
    a("    s_waitcnt lgkmcnt(0)")
    for c in range(8):
        a(f"    v_fma_f32 v{40+c}, v{nreg[c]}, v{dreg[c]}, v{40+c}    ; z")
        a(f"    v_mul_f32 v{16+c}, 0, v{40+c}")
        a(f"    v_cmp_lt_f32 vcc, 0, v{40+c}")
        a(f"    s_nop 1")
        a(f"    v_cndmask_b32 v{40+c}, v{16+c}, v{40+c}, vcc")
        a(f"    v_add_f32 v{40+c}, v{8+c}, v{40+c}")
    for c in range(4):
        a(f"    v_cvt_pk_bf16_f32 v{16+c}, v{40+2*c}, v{41+2*c}")
    a(f"""    v_lshlrev_b32 v4, 4, v0
    s_mul_i32 s36, s2, {NPB*128}
    v_add_u32 v4, s36, v4
    global_store_dwordx4 v4, v[16:19], s[12:13]
K2_FIN:""")
    stamp_flush(a, 1, 7, 14, "s3")
    if DBG:
        a("    s_cmp_lg_u32 s3, 0")
        a("    s_cbranch_scc1 K2_DBGEND")
    dbgmax(a, 3, "s80", 512, True)
    dbgmax(a, 4, "s82", 512)
    dbgmax(a, 5, "s84", 512)
    dbgmax(a, 6, "s86", 512)
    dbgmax(a, 7, "s88", 512)
    dbgmax(a, 8, "s90", 512)
    if DBG:
        a("    v_readfirstlane_b32 s91, v123")
    dbgmax(a, 10, "s91", 512)
    if DBG:
        a("K2_DBGEND:")
    if PROF:
        a("    global_store_dword v2, v123, s[14:15] offset:64")
        a("    s_waitcnt vmcnt(0)")
    a("""K2_END:
    s_endpgm
""")

def desc(name, vgpr, sgpr):
    return f""".p2align 6
.amdhsa_kernel {name}
  .amdhsa_next_free_vgpr {vgpr}
  .amdhsa_next_free_sgpr {sgpr}
  .amdhsa_accum_offset {vgpr}
  .amdhsa_group_segment_fixed_size 0
  .amdhsa_kernarg_size 96
  .amdhsa_user_sgpr_count 2
  .amdhsa_user_sgpr_kernarg_segment_ptr 1
  .amdhsa_system_sgpr_workgroup_id_x 1
  .amdhsa_float_denorm_mode_32 3
.end_amdhsa_kernel
"""

HEADER = """; GatedGCN edge-featured MPNN layer, two launches.
"""

def main():
    ap = argparse.ArgumentParser()
    ap.add_argument("-o", default="standalone__edge_featured_mpnn_gatedgcn__graph.s")
    ap.add_argument("--k1_store", default="")
    ap.add_argument("--prof", action="store_true")
    ap.add_argument("--nwv", type=int, default=16)
    ap.add_argument("--ring", type=int, default=8)
    ap.add_argument("--diag", default="")
    ap.add_argument("--dbg", action="store_true")
    opt = ap.parse_args()
    global PROF
    PROF = opt.prof
    global DBG
    DBG = opt.dbg
    a = Asm()
    a(HEADER.rstrip())
    a(f"; @launch kernel=prep_kernel grid=({NB},1,1) block=(1024,1,1) lds={K1_LDS}")
    a(f"; @launch kernel=main_kernel grid=({NB},1,1) block=({opt.nwv*64},1,1) lds={K2_LDS}")
    a('.amdgcn_target "amdgcn-amd-amdhsa--gfx950"')
    a(".text")
    gen_k1(a, opt)
    gen_k2(a, opt)
    a('.section .rodata,"a"')
    a(desc("prep_kernel", 80, 100 if PROF else 48))
    a(desc("main_kernel", 128 if opt.nwv == 16 else 224, 100 if PROF else 80))
    open(opt.o, "w").write(a.text())
    print("wrote", opt.o, "K1 lds", K1_LDS, "K2 lds", K2_LDS)

if __name__ == "__main__":
    main()
```

```python
import sys, argparse

N, D, E = 10000, 64, 640000
NB, NPB = 250, 40
CH = 2560
G_OFF, OFF_OFF, REC_OFF, TOT_OFF = 0, 0x280000, 0x2C0000, 0xA20000
NLOG2E = 0xBFB8AA3B
BIG = 0x71800000
NBIG = 0xF1800000
PROF = False
PROF_OFF = 0x1000000

class Asm:
    def __init__(self):
        self.l = []
    def __call__(self, s=""):
        for line in s.split("\n"):
            self.l.append(line)
    def text(self):
        return "\n".join(self.l) + "\n"

def stamp(a, idx, base=80):
    if PROF:
        a(f"    s_memrealtime s[{base+2*idx}:{base+2*idx+1}]")
        a(f"    s_waitcnt lgkmcnt(0)")

def stamp_flush(a, kern, n, wsreg, wavereg, base=80):
    if PROF:
        a(f"    s_waitcnt vmcnt(0) lgkmcnt(0)")
        a(f"    s_memrealtime s[{base+2*n}:{base+2*n+1}]")
        a(f"    s_waitcnt lgkmcnt(0)")
        a(f"    s_mov_b64 exec, 1")
        a(f"    s_lshl_b32 s78, s2, 4")
        a(f"    s_add_u32 s78, s78, {wavereg}")
        a(f"    s_lshl_b32 s78, s78, 7")
        a(f"    s_add_u32 s78, s78, {PROF_OFF + kern*0x100000}")
        a(f"    v_mov_b32 v2, s78")
        for i in range(n + 1):
            a(f"    v_mov_b32 v4, s{base+2*i}")
            a(f"    v_mov_b32 v5, s{base+2*i+1}")
            a(f"    global_store_dwordx2 v2, v[4:5], s[{wsreg}:{wsreg+1}] offset:{8*i}")
            a(f"    s_nop 1")
        a(f"    s_waitcnt vmcnt(0)")

DBG = False
def dbgmax(a, word, expr_lo, back, invert=False):
    if not DBG: return
    a(f"    s_load_dwordx2 s[94:95], s[0:1], 80")
    a(f"    s_waitcnt lgkmcnt(0)")
    a(f"    s_sub_u32 s94, s94, {back}")
    a(f"    s_subb_u32 s95, s95, 0")
    a(f"    s_mov_b64 s[92:93], exec")
    a(f"    s_mov_b64 exec, 1")
    a(f"    v_mov_b32 v4, {expr_lo}")
    if invert:
        a(f"    v_not_b32 v4, v4")
    a(f"    v_mov_b32 v5, {4*word}")
    a(f"    global_atomic_umax v5, v4, s[94:95]")
    a(f"    s_waitcnt vmcnt(0)")
    a(f"    s_mov_b64 exec, s[92:93]")

def dpp_scan(a, v):
    for sh in (1, 2, 4, 8):
        a(f"    s_nop 1")
        a(f"    v_add_u32_dpp v{v}, v{v}, v{v} row_shr:{sh} row_mask:0xf bank_mask:0xf bound_ctrl:0")
    a("    s_nop 1")
    a(f"    v_add_u32_dpp v{v}, v{v}, v{v} row_bcast:15 row_mask:0xa bank_mask:0xf")
    a("    s_nop 1")
    a(f"    v_add_u32_dpp v{v}, v{v}, v{v} row_bcast:31 row_mask:0xc bank_mask:0xf")
    a("    s_nop 1")

K1_HIST, K1_OFFS, K1_REC = 0, 1024, 2048
K1_WB = K1_REC + CH * 12
K1_WV = K1_WB + 64 * 144
K1_X = K1_WV + 64 * 144
K1_G = K1_X + 48 * 144
K1_LDS = K1_G + 48 * 272

def gen_k1(a, opt):
    st = opt.k1_store
    a(f"""
.globl prep_kernel
.p2align 8
.type prep_kernel,@function
prep_kernel:
    s_cmp_ge_u32 s2, {NB}
    s_cbranch_scc1 K1_END
    s_load_dwordx2 s[4:5], s[0:1], 0        ; x
    s_load_dwordx2 s[6:7], s[0:1], 8        ; e_attr
    s_load_dwordx4 s[8:11], s[0:1], 16
    s_load_dwordx2 s[12:13], s[0:1], 40     ; w_b
    s_load_dwordx2 s[14:15], s[0:1], 64     ; w_v
    s_load_dwordx2 s[16:17], s[0:1], 88     ; ws
    v_lshrrev_b32 v1, 6, v0
    v_and_b32 v63, 63, v0                   ; lane
    v_readfirstlane_b32 s3, v1
    s_nop 3""")
    if PROF:
        a("    s_mov_b32 s77, s3")
    stamp(a, 0)
    a(f"""    s_cmp_ge_u32 s3, 10
    s_cbranch_scc1 K1_GEMM
    s_mul_i32 s20, s2, {CH*4}
    v_lshlrev_b32 v2, 4, v0
    v_add_u32 v3, s20, v2
    s_lshl_b32 s21, s20, 1
    v_lshlrev_b32 v4, 5, v0
    v_add_u32 v4, s21, v4
    v_mov_b32 v5, 0
    v_lshlrev_b32 v6, 2, v0
    s_waitcnt lgkmcnt(0)
    global_load_dwordx4 v[8:11], v3, s[10:11]
    global_load_dwordx4 v[12:15], v3, s[8:9]
    global_load_dwordx4 v[16:19], v4, s[6:7]
    global_load_dwordx4 v[20:23], v4, s[6:7] offset:16
    s_cmp_ge_u32 s3, 4
    s_cbranch_scc1 K1_NOZERO
    ds_write_b32 v6, v5 offset:{K1_HIST}
K1_NOZERO:
    s_mov_b32 s22, 52429
    s_movk_i32 s23, 0xffd8                  ; -40
    v_mov_b32 v7, 1
    s_waitcnt lgkmcnt(0)
    s_barrier                               ; #1""")
    stamp(a, 1)
    a("    s_waitcnt vmcnt(3)")
    stamp(a, 2)
    for j in range(4):
        a(f"    v_mul_u32_u24 v{24+j}, s22, v{8+j}")
        a(f"    v_lshrrev_b32 v{24+j}, 21, v{24+j}          ; bucket")
        a(f"    v_mad_i32_i24 v{8+j}, v{24+j}, s23, v{8+j}")
        a(f"    v_lshlrev_b32 v{24+j}, 2, v{24+j}")
        a(f"    ds_add_rtn_u32 v{28+j}, v{24+j}, v7 offset:{K1_HIST}")
    a("    s_waitcnt vmcnt(2)")
    for j in range(4):
        a(f"    v_lshl_or_b32 v{12+j}, v{8+j}, 16, v{12+j}   ; key")
    a(f"""    s_waitcnt lgkmcnt(0)
    s_barrier                               ; #2""")
    stamp(a, 3)
    a(f"""    v_lshlrev_b32 v2, 4, v63
    ds_read_b128 v[32:35], v2 offset:{K1_HIST}
    s_waitcnt lgkmcnt(0)
    v_add_u32 v36, v32, v33
    v_add_u32 v37, v36, v34
    v_add_u32 v38, v37, v35
    v_mov_b32 v39, v38""")
    dpp_scan(a, 39)
    a(f"""    v_sub_u32 v40, v39, v38
    v_add_u32 v41, v40, v32
    v_add_u32 v42, v40, v36
    v_add_u32 v43, v40, v37
    ds_write_b128 v2, v[40:43] offset:{K1_OFFS}
    s_waitcnt vmcnt(0)
    s_cmp_ge_u32 s3, 4
    s_cbranch_scc1 K1_NOOFF
    s_add_u32 s24, s16, {OFF_OFF}
    s_addc_u32 s25, s17, 0
    s_lshl_b32 s26, s3, 10
    s_lshl_b32 s27, s2, 2
    s_add_u32 s26, s26, s27
    v_lshlrev_b32 v3, 12, v63
    v_add_u32 v3, s26, v3""")
    for j in range(4):
        a(f"    s_cmp_lg_u32 s3, {j}")
        a(f"    s_cbranch_scc1 K1_OFFJ{j}")
        a(f"    v_lshl_or_b32 v5, v{32+j}, 16, v{40+j}")
        a(f"K1_OFFJ{j}:")
    a(f"""    global_store_dword v3, v5, s[24:25] {st}
K1_NOOFF:
    s_waitcnt lgkmcnt(0)""")
    for j in range(4):
        a(f"    ds_read_b32 v{44+j}, v{24+j} offset:{K1_OFFS}")
    a("    s_waitcnt lgkmcnt(0)")
    for j in range(4):
        a(f"    v_add_u32 v{44+j}, v{44+j}, v{28+j}")
        a(f"    v_mul_u32_u24 v{44+j}, 12, v{44+j}")
        a(f"    v_add_u32 v{48+j}, {K1_REC}, v{44+j}")
    for j in range(4):
        a(f"    ds_write_b32 v{44+j}, v{12+j} offset:{K1_REC}")
        a(f"    ds_write2_b32 v{48+j}, v{16+2*j}, v{17+2*j} offset0:1 offset1:2")
    a(f"""    s_waitcnt lgkmcnt(0)
    s_barrier                               ; #3""")
    stamp(a, 4)
    a("    v_lshlrev_b32 v2, 4, v0")
    for j in range(3):
        a(f"    ds_read_b128 v[{32+4*j}:{35+4*j}], v2 offset:{K1_REC + j*10240}")
    a(f"""    s_add_u32 s24, s16, {REC_OFF}
    s_addc_u32 s25, s17, 0
    s_mul_i32 s26, s2, {CH*12}
    v_add_u32 v3, s26, v2
    v_add_u32 v4, 10240, v3
    v_add_u32 v5, 20480, v3""")
    for j in range(3):
        a(f"    s_waitcnt lgkmcnt({2-j})")
        a(f"    global_store_dwordx4 v{3+j}, v[{32+4*j}:{35+4*j}], s[24:25] {st}")
    stamp_flush(a, 0, 5, 16, "s77")
    if DBG:
        a("    s_cmp_lg_u32 s77, 0")
        a("    s_cbranch_scc1 K1_DBGEND")
    dbgmax(a, 0, "s80", 0, True)
    dbgmax(a, 1, "s84", 0)
    dbgmax(a, 2, "s90", 0)
    if DBG:
        a("K1_DBGEND:")
    a("""    s_endpgm
K1_GEMM:
    s_sub_u32 s3, s3, 10
    s_and_b32 s27, s3, 1
    s_add_u32 s27, s27, 6
    v_lshlrev_b32 v2, 4, v63                ; lane*16
    s_lshl_b32 s20, s3, 10
    v_add_u32 v3, s20, v2                   ; piece u
    s_lshl_b32 s21, s27, 10
    v_add_u32 v4, s21, v2                   ; piece 6/7""")
    a(f"""    s_mul_i32 s22, s2, {NPB*128}
    v_add_u32 v5, s22, v3                   ; x offset
    ; LDS staging address: (8*piece + lane/8)*144 + (lane%8)*16
    v_lshrrev_b32 v6, 3, v63
    v_mul_u32_u24 v6, 144, v6
    v_and_b32 v7, 7, v63
    v_lshl_add_u32 v6, v7, 4, v6
    s_mul_i32 s23, s3, {8*144}
    v_add_u32 v24, s23, v6
    s_mul_i32 s23, s27, {8*144}
    v_add_u32 v25, s23, v6
    s_waitcnt lgkmcnt(0)
    global_load_dwordx4 v[8:11], v3, s[12:13]
    global_load_dwordx4 v[12:15], v3, s[14:15]
    global_load_dwordx4 v[16:19], v4, s[12:13]
    global_load_dwordx4 v[20:23], v4, s[14:15]
    s_cmp_eq_u32 s3, 5
    s_cbranch_scc1 K1_NOX
    global_load_dwordx4 v[28:31], v5, s[4:5]
    s_waitcnt vmcnt(0)
    ds_write_b128 v24, v[28:31] offset:{K1_X}
K1_NOX:
    s_waitcnt vmcnt(0)
    ds_write_b128 v24, v[8:11] offset:{K1_WB}
    ds_write_b128 v24, v[12:15] offset:{K1_WV}
    ds_write_b128 v25, v[16:19] offset:{K1_WB}
    ds_write_b128 v25, v[20:23] offset:{K1_WV}
    ; tile job: nt = u/2, mt in {{2*(u%2), 2*(u%2)+1}}
    s_lshr_b32 s20, s3, 1                   ; nt
    s_and_b32 s21, s3, 1
    s_lshl_b32 s21, s21, 1                  ; mt0
    v_lshrrev_b32 v2, 4, v63                ; g
    v_and_b32 v3, 15, v63                   ; j / i
    s_lshl_b32 s22, s20, 4
    v_add_u32 v4, s22, v3
    v_mul_u32_u24 v5, 144, v4
    v_lshl_add_u32 v5, v2, 4, v5
    ; W fragment address: (8g + i/4)*144 + 32*mt + 8*(i%4)
    v_lshrrev_b32 v6, 2, v3
    v_lshl_add_u32 v6, v2, 3, v6
    v_mul_u32_u24 v6, 144, v6
    v_and_b32 v7, 3, v3
    v_lshl_add_u32 v6, v7, 3, v6
    s_lshl_b32 s22, s21, 5
    v_add_u32 v6, s22, v6
    v_mul_u32_u24 v7, 272, v4
    v_lshl_add_u32 v7, v2, 4, v7
    s_lshl_b32 s22, s21, 6
    v_add_u32 v7, s22, v7
    s_waitcnt lgkmcnt(0)
    s_barrier                               ; #1""")
    a(f"    ds_read_b128 v[8:11], v5 offset:{K1_X}")
    a(f"    ds_read_b128 v[12:15], v5 offset:{K1_X + 64}")
    for m in range(2):
        for mat, base in ((0, K1_WB), (1, K1_WV)):
            for ks in range(2):
                r = 16 + ((m * 2 + mat) * 2 + ks) * 4
                for h in range(2):
                    a(f"    ds_read_b64_tr_b16 v[{r+2*h}:{r+2*h+1}], v6 offset:{base + ks*4608 + h*576 + m*32}")
    a("    s_waitcnt lgkmcnt(0)")
    for m in range(2):
        for mat in range(2):
            acc = 64 + (m * 2 + mat) * 4
            r0 = 16 + ((m * 2 + mat) * 2 + 0) * 4
            r1 = 16 + ((m * 2 + mat) * 2 + 1) * 4
            a(f"    v_mfma_f32_16x16x32_bf16 v[{acc}:{acc+3}], v[{r0}:{r0+3}], v[8:11], 0")
            a(f"    v_mfma_f32_16x16x32_bf16 v[{acc}:{acc+3}], v[{r1}:{r1+3}], v[12:15], v[{acc}:{acc+3}]")
    a(f"""    s_barrier                               ; #2
    s_mov_b32 s22, {NLOG2E:#x}
    s_mov_b32 s23, {BIG:#x}
    s_mov_b32 s24, {NBIG:#x}
    s_mov_b32 s25, 0x8000
    v_mov_b32 v14, s24
    s_nop 7""")
    for m in range(2):
        accb = 64 + (m * 2 + 0) * 4
        accv = 64 + (m * 2 + 1) * 4
        a(f"    v_cvt_pk_bf16_f32 v8, v{accv}, v{accv+1}")
        a(f"    v_cvt_pk_bf16_f32 v9, v{accv+2}, v{accv+3}")
        a(f"    v_and_b32 v10, 0xffff, v8")
        a(f"    v_lshrrev_b32 v11, 16, v8")
        a(f"    v_and_b32 v12, 0xffff, v9")
        a(f"    v_lshrrev_b32 v13, 16, v9")
        for r in range(4):
            b = accb + r
            lo = 10 + r
            a(f"    v_mul_f32 v{b}, s22, v{b}")
            a(f"    v_med3_f32 v{b}, v{b}, v14, s23")
            a(f"    v_and_b32 v15, 0x7fffffff, v{b}")
            a(f"    v_and_b32 v{b}, 0x80000000, v{b}         ; sign")
            a(f"    v_sub_u32 v15, v15, v{lo}")
            a(f"    v_add_u32 v15, s25, v15")
            a(f"    v_max_i32 v15, 0, v15")
            a(f"    v_and_b32 v15, 0xffff0000, v15")
            a(f"    v_or3_b32 v{16+r}, v15, v{lo}, v{b}")
        a(f"    ds_write_b128 v7, v[16:19] offset:{K1_G + m*64}")
    a(f"""    s_waitcnt lgkmcnt(0)
    s_barrier                               ; #3
    s_lshl_b32 s20, s3, 6
    v_add_u32 v2, s20, v63                  ; t2
    v_lshrrev_b32 v3, 4, v2
    v_mul_u32_u24 v3, 272, v3
    v_and_b32 v4, 15, v2
    v_lshl_add_u32 v3, v4, 4, v3
    ds_read_b128 v[8:11], v3 offset:{K1_G}
    s_mul_i32 s21, s2, {NPB*256}
    v_lshlrev_b32 v5, 4, v2
    v_add_u32 v5, s21, v5
    s_cmp_ge_u32 s3, 4
    s_cbranch_scc1 K1_G1
    ds_read_b128 v[12:15], v3 offset:{K1_G + 24*272}
    s_waitcnt lgkmcnt(0)
    v_add_u32 v6, {384*16}, v5
    global_store_dwordx4 v6, v[12:15], s[16:17] {st}
K1_G1:
    s_waitcnt lgkmcnt(0)
    global_store_dwordx4 v5, v[8:11], s[16:17] {st}
    s_cmp_lg_u32 s2, {NB-1}
    s_cbranch_scc1 K1_END
    s_cmp_lg_u32 s3, 5
    s_cbranch_scc1 K1_END
    v_mov_b32 v8, 0x7f000000
    v_mov_b32 v9, v8
    v_mov_b32 v10, v8
    v_mov_b32 v11, v8
    v_lshlrev_b32 v5, 4, v63
    v_add_u32 v5, {N*256}, v5
    v_cmp_gt_u32 vcc, 16, v63
    s_and_saveexec_b64 s[30:31], vcc
    s_cbranch_execz K1_END
    global_store_dwordx4 v5, v[8:11], s[16:17] {st}
K1_END:
    s_endpgm
""")

SLOT_STR = 512
K2_SLOT = 0
NSEG = NPB + 16
K2_CNT = K2_SLOT + NSEG * SLOT_STR
K2_ZREG = K2_CNT + 256
K2_FLAG = K2_ZREG + 512
K2_ZEND = K2_FLAG + 16
K2_AP = K2_ZEND + 112
K2_U = K2_AP + 48 * 272
K2_SRC = K2_U + 48 * 272
NSLOT = 250 * 32 + 160 + 64
K2_E = K2_SRC + NSLOT * 4
K2_LDS = K2_E + NSLOT * 8
K2_WA = K2_E
K2_WU = K2_WA + 64 * 144
K2_X = K2_WU + 64 * 144
assert K2_LDS <= 163840 and K2_E % 16 == 0 and K2_AP % 16 == 0 and K2_U % 16 == 0

def gen_k2(a, opt):
    NWV = opt.nwv
    LOGW = {8: 3, 16: 4}[NWV]
    RPW = 256 // NWV
    NJ = RPW // 4
    NWL = 16 // NWV
    R = opt.ring
    REC0 = 48 if NWV == 16 else 128
    RANK = REC0 + 8 * NJ
    DL = RANK + 2 * NJ
    TOT, XR, WC, SEG, QEND, VI, VQ, VL = 104, 112, 116, 118, 119, 125, 126, 127
    rec = lambda h, j: REC0 + (h * NJ + j) * 4
    msk = lambda h, j: 40 + 2 * (h * NJ + j)
    S_RB, S_N1, S_Q, S_MORE = 72, 73, 74, 75
    S_TS, S_TE, S_N, S_SEGEND, S_REM, S_T = 28, 29, 76, 77, 78, 79
    if PROF:
        S_N, S_SEGEND, S_REM, S_T = 96, 97, 98, 99
    a(f"""
.globl main_kernel
.p2align 8
.type main_kernel,@function
main_kernel:
    s_cmp_ge_u32 s2, {NB}
    s_cbranch_scc1 K2_END
    s_load_dwordx2 s[4:5], s[0:1], 0        ; x
    s_load_dwordx2 s[6:7], s[0:1], 32       ; w_a
    s_load_dwordx2 s[8:9], s[0:1], 48       ; w_c
    s_load_dwordx2 s[10:11], s[0:1], 56     ; w_u
    s_load_dwordx2 s[12:13], s[0:1], 72     ; out
    s_load_dwordx2 s[14:15], s[0:1], 88     ; ws
    v_lshrrev_b32 v1, 6, v0
    v_and_b32 v1, {NWV-1}, v1
    v_and_b32 v{VL}, 63, v0                  ; lane
    v_readfirstlane_b32 s3, v1""")
    stamp(a, 0)
    a(f"""    v_lshrrev_b32 v{VQ}, 4, v{VL}             ; q = lane/16
    v_and_b32 v{VI}, 15, v{VL}                ; i = lane%16
    s_mov_b32 s{S_RB}, 0""")
    a(f"""K2_ROUND:
    s_mul_i32 s30, s3, {RPW}
    v_mad_u32_u24 v2, v{VQ}, {NJ}, s30
    s_lshl_b32 s31, s2, 10
    v_lshl_add_u32 v3, v2, 2, s31
    s_waitcnt lgkmcnt(0)
    s_add_u32 s16, s14, {OFF_OFF}
    s_addc_u32 s17, s15, 0""")
    for k in range(NJ // 4):
        a(f"    global_load_dwordx4 v[{8+4*k}:{11+4*k}], v3, s[16:17] offset:{16*k}")
    a(f"""    s_add_u32 s20, s14, {REC_OFF}
    s_addc_u32 s21, s15, 0
    s_mov_b32 s22, {E*12}
    s_mov_b32 s23, 0x20000
    s_mov_b32 s24, s14
    s_or_b32 s25, s15, 0x01000000           ; stride 256
    s_mov_b32 s26, {N+1}
    s_mov_b32 s27, 0x20000
    s_cmp_eq_u32 s{S_RB}, 0
    s_cbranch_scc1 K2_FIRST
    s_waitcnt vmcnt(0)
    s_branch K2_HAVEOFF
K2_FIRST:
    s_mul_i32 s35, s2, {NPB*128}
    v_lshlrev_b32 v4, 4, v{VL}               ; lane*16
    s_cmp_ge_u32 s3, 5
    s_cbranch_scc1 K2_NOX
    s_lshl_b32 s36, s3, 10
    s_add_u32 s36, s36, s35
    v_add_u32 v5, s36, v4
    global_load_dwordx4 v[16:19], v5, s[4:5]
    global_load_dwordx4 v[{XR}:{XR+3}], v5, s[4:5]
K2_NOX:""")
    if NWV == 16:
        a(f"""    s_cmp_lt_u32 s3, 8
    s_cselect_b32 s18, s6, s10
    s_cselect_b32 s19, s7, s11
    s_and_b32 s36, s3, 7
    s_lshl_b32 s37, s36, 10
    v_add_u32 v5, s37, v4
    global_load_dwordx4 v[20:23], v5, s[18:19]""")
    else:
        a(f"""    s_lshl_b32 s37, s3, 10
    v_add_u32 v5, s37, v4
    global_load_dwordx4 v[20:23], v5, s[6:7]
    global_load_dwordx4 v[24:27], v5, s[10:11]""")
    a(f"""    ; w_c columns: c = 4*i + q
    v_lshl_add_u32 v6, v{VI}, 2, v{VQ}
    v_lshlrev_b32 v6, 1, v6
    global_load_ushort v28, v6, s[8:9]
    global_load_ushort v29, v6, s[8:9] offset:128
    global_load_ushort v30, v6, s[8:9] offset:256
    global_load_ushort v31, v6, s[8:9] offset:384
    s_cmp_lg_u32 s3, 0
    s_cbranch_scc1 K2_NOZ
    v_mov_b32 v32, 0
    v_mov_b32 v33, 0
    v_mov_b32 v34, 0
    v_mov_b32 v35, 0
    v_add_u32 v7, {K2_CNT}, v4
    v_cmp_gt_u32 vcc, {(K2_ZEND-K2_CNT)//16}, v{VL}
    s_and_saveexec_b64 s[38:39], vcc
    ds_write_b128 v7, v[32:35]
    s_mov_b64 exec, s[38:39]
K2_NOZ:
    s_waitcnt vmcnt({NWL + 4})
K2_HAVEOFF:""")
    stamp(a, 1)
    a(f"""    ; run base: w0*30720 + 12*(i + round base)
    s_mov_b32 s36, {CH*12}
    v_mul_lo_u32 v36, v2, s36
    v_add_u32 v37, s{S_RB}, v{VI}
    v_mad_u32_u24 v36, v37, 12, v36
    v_add_u32 v38, 16, v37                  ; batch 1
    v_mov_b32 v39, 0x7ffffff0
    v_sub_u32 v40, {NB}, v2""")
    for j in range(NJ):
        a(f"    v_cmp_lt_i32 vcc, {j}, v40")
        a(f"    v_lshrrev_b32 v41, 16, v{8+j}               ; count")
        a(f"    v_and_b32 v{8+j}, 0xffff, v{8+j}            ; start")
        a(f"    v_mad_u32_u24 v{8+j}, v{8+j}, 12, v36")
        a(f"    v_cndmask_b32 v41, 0, v41, vcc")
        a(f"    v_cmp_gt_u32 s[{msk(0,j)}:{msk(0,j)+1}], v41, v37")
        a(f"    v_cmp_gt_u32 s[{msk(1,j)}:{msk(1,j)+1}], v41, v38")
        if j == 0:
            a(f"    v_mov_b32 v42, v41")
        else:
            a(f"    v_max_u32 v42, v42, v41")
    for j in range(NJ):
        a(f"    s_mov_b32 s36, {j*CH*12}")
        a(f"    v_cndmask_b32 v43, v39, v{8+j}, s[{msk(0,j)}:{msk(0,j)+1}]")
        a(f"    buffer_load_dwordx3 v[{rec(0,j)}:{rec(0,j)+2}], v43, s[20:23], s36 offen")
    a(f"    s_or_b64 s[36:37], s[{msk(1,0)}:{msk(1,0)+1}], s[{msk(1,1)}:{msk(1,1)+1}]")
    for j in range(2, NJ):
        a(f"    s_or_b64 s[36:37], s[36:37], s[{msk(1,j)}:{msk(1,j)+1}]")
    a(f"""    s_cselect_b32 s{S_N1}, 1, 0
    s_cbranch_scc0 K2_NOB1_LOAD""")
    for j in range(NJ):
        a(f"    s_mov_b32 s36, {j*CH*12 + 192}")
        a(f"    v_cndmask_b32 v43, v39, v{8+j}, s[{msk(1,j)}:{msk(1,j)+1}]")
        a(f"    buffer_load_dwordx3 v[{rec(1,j)}:{rec(1,j)+2}], v43, s[20:23], s36 offen")
    a(f"""K2_NOB1_LOAD:
    s_add_u32 s36, s{S_RB}, 32
    v_cmp_lt_u32 vcc, s36, v42
    s_nop 1
    s_cmp_eq_u64 vcc, 0
    s_cbranch_scc1 K2_NOMORE
    v_mov_b32 v43, {K2_FLAG}
    v_mov_b32 v44, 1
    ds_write_b32 v43, v44
K2_NOMORE:
    s_cmp_lg_u32 s{S_RB}, 0
    s_cbranch_scc1 K2_SKIPGEMM
    v_lshrrev_b32 v5, 3, v{VL}
    v_mul_u32_u24 v5, 144, v5
    v_and_b32 v6, 7, v{VL}
    v_lshl_add_u32 v5, v6, 4, v5            ; (lane/8)*144 + (lane%8)*16
    s_and_b32 s36, s3, 7
    s_mul_i32 s36, s36, {8*144}""")
    if NWV == 16:
        a(f"""    s_lshr_b32 s37, s3, 3
    s_mul_i32 s37, s37, {64*144}
    s_add_u32 s36, s36, s37""")
    a(f"""    s_add_u32 s36, s36, {K2_WA}
    v_add_u32 v6, s36, v5
    s_cmp_lg_u32 s{S_N1}, 0
    s_cbranch_scc1 K2_W8
    s_waitcnt vmcnt({NJ})
    s_branch K2_WD
K2_W8:
    s_waitcnt vmcnt({2*NJ})
K2_WD:
    ds_write_b128 v6, v[20:23]""")
    if NWV == 8:
        a(f"    ds_write_b128 v6, v[24:27] offset:{64*144}")
    a(f"""    s_cmp_ge_u32 s3, 5
    s_cbranch_scc1 K2_NOXS
    s_mul_i32 s36, s3, {8*144}
    s_add_u32 s36, s36, {K2_X}
    v_add_u32 v6, s36, v5
    ds_write_b128 v6, v[16:19]
K2_NOXS:
    s_mov_b32 s36, {NLOG2E:#x}
    v_lshlrev_b32 v28, 16, v28
    v_lshlrev_b32 v29, 16, v29
    v_lshlrev_b32 v30, 16, v30
    v_lshlrev_b32 v31, 16, v31
    v_mul_f32 v28, s36, v28
    v_mul_f32 v29, s36, v29
    v_mul_f32 v30, s36, v30
    v_mul_f32 v31, s36, v31
    v_cvt_pk_bf16_f32 v{WC}, v28, v29
    v_cvt_pk_bf16_f32 v{WC+1}, v30, v31
    s_waitcnt lgkmcnt(0)
    s_barrier                               ; #1""")
    stamp(a, 2)
    if NWV == 16:
        a(f"""    s_cmp_ge_u32 s3, 12
    s_cbranch_scc1 K2_SKIPGEMM
    s_and_b32 s36, s3, 3                    ; mt
    s_lshr_b32 s37, s3, 2                   ; nt""")
    else:
        a(f"""    s_and_b32 s36, s3, 3                    ; mt
    s_lshr_b32 s37, s3, 2""")
    a(f"""    v_lshrrev_b32 v6, 2, v{VI}
    v_lshl_add_u32 v6, v{VQ}, 3, v6
    v_mul_u32_u24 v6, 144, v6
    v_and_b32 v7, 3, v{VI}
    v_lshl_add_u32 v6, v7, 3, v6
    s_lshl_b32 s38, s36, 5
    s_add_u32 s38, s38, {K2_WA}
    v_add_u32 v6, s38, v6""")
    for mat in range(2):
        for ks in range(2):
            r = 16 + mat * 8 + ks * 4
            for h in range(2):
                a(f"    ds_read_b64_tr_b16 v[{r+2*h}:{r+2*h+1}], v6 offset:{mat*9216 + ks*4608 + h*576}")
    a(f"""K2_TILE:
    s_lshl_b32 s38, s37, 4
    v_add_u32 v4, s38, v{VI}
    v_mul_u32_u24 v5, 144, v4
    v_lshl_add_u32 v5, v{VQ}, 4, v5
    v_add_u32 v5, {K2_X}, v5
    ds_read_b128 v[8:11], v5
    ds_read_b128 v[12:15], v5 offset:64
    s_waitcnt lgkmcnt(0)
    v_mfma_f32_16x16x32_bf16 v[32:35], v[16:19], v[8:11], 0
    v_mfma_f32_16x16x32_bf16 v[36:39], v[24:27], v[8:11], 0
    v_mfma_f32_16x16x32_bf16 v[32:35], v[20:23], v[12:15], v[32:35]
    v_mfma_f32_16x16x32_bf16 v[36:39], v[28:31], v[12:15], v[36:39]
    v_mul_u32_u24 v7, 272, v4
    v_lshl_add_u32 v5, v{VQ}, 4, v7
    s_lshl_b32 s38, s36, 6
    s_add_u32 s38, s38, {K2_U}
    v_add_u32 v5, s38, v5                   ; U addr
    v_lshl_add_u32 v40, v{VQ}, 2, v7
    s_lshl_b32 s38, s36, 4
    s_add_u32 s38, s38, {K2_AP}
    v_add_u32 v40, s38, v40
    s_mov_b32 s38, {NLOG2E:#x}
    s_mov_b32 s39, {BIG:#x}
    v_mov_b32 v7, {NBIG:#x}
    s_nop 7
    ds_write_b128 v5, v[36:39]""")
    for r in range(4):
        a(f"    v_mul_f32 v{32+r}, s38, v{32+r}")
        a(f"    v_med3_f32 v{32+r}, v{32+r}, v7, s39")
        a(f"    v_and_b32 v8, 0xffff0000, v{32+r}")
        a(f"    v_sub_f32 v9, v{32+r}, v8")
        a(f"    v_cvt_pk_bf16_f32 v9, v9, v9")
        a(f"    v_and_b32 v9, 0xffff0000, v9")
        a(f"    v_lshrrev_b32 v8, 16, v8")
        a(f"    v_or_b32 v8, v8, v9")
        a(f"    ds_write_b32 v40, v8 offset:{r*64}")
    if NWV == 8:
        a(f"""    s_cmp_lg_u32 s37, 0
    s_cbranch_scc1 K2_SKIPGEMM
    s_mov_b32 s37, 2
    s_branch K2_TILE""")
    a("K2_SKIPGEMM:")
    a(f"""    v_mov_b32 v7, 1
    s_cmp_lg_u32 s{S_N1}, 0
    s_cbranch_scc1 K2_RW4
    s_waitcnt vmcnt(0)
    s_branch K2_RWD
K2_RW4:
    s_waitcnt vmcnt({NJ})
K2_RWD:""")
    for h in range(2):
        if h == 1:
            a(f"""    s_cmp_eq_u32 s{S_N1}, 0
    s_cbranch_scc1 K2_NOB1_RANK
    s_waitcnt vmcnt(0)""")
        for j in range(NJ):
            dl = DL + h * NJ + j
            a(f"    v_lshrrev_b32 v{dl}, 16, v{rec(h,j)}")
            a(f"    v_lshlrev_b32 v{dl}, 2, v{dl}")
            a(f"    s_mov_b64 exec, s[{msk(h,j)}:{msk(h,j)+1}]")
            a(f"    ds_add_rtn_u32 v{RANK+h*NJ+j}, v{dl}, v7 offset:{K2_CNT}")
            a(f"    s_mov_b64 exec, -1")
    a(f"""K2_NOB1_RANK:
    s_waitcnt lgkmcnt(0)
    s_barrier                               ; #2""")
    stamp(a, 3)
    a(f"""    v_lshlrev_b32 v4, 2, v{VL}
    ds_read_b32 v5, v4 offset:{K2_CNT}
    v_mov_b32 v6, {K2_FLAG}
    ds_read_b32 v6, v6
    v_cmp_gt_u32 vcc, {NPB}, v{VL}
    s_waitcnt lgkmcnt(0)
    v_readfirstlane_b32 s{S_MORE}, v6
    v_add_u32 v7, 3, v5
    v_lshrrev_b32 v7, 2, v7
    v_max_u32 v7, 1, v7
    v_cndmask_b32 v7, 0, v7, vcc
    v_mov_b32 v{QEND}, v7""")
    dpp_scan(a, QEND)
    a(f"""    v_sub_u32 v8, v{QEND}, v7
    v_readlane_b32 s{S_Q}, v{QEND}, 63            ; Q
    v_lshlrev_b32 v9, 2, v8""")
    for h in range(2):
        if h == 1:
            a(f"    s_cmp_eq_u32 s{S_N1}, 0")
            a("    s_cbranch_scc1 K2_NOB1_SCAT")
        for j0 in range(0, NJ, 4):
            for j in range(j0, j0 + 4):
                a(f"    ds_bpermute_b32 v{10+j-j0}, v{DL+h*NJ+j}, v9")
            a("    s_waitcnt lgkmcnt(0)")
            for j in range(j0, j0 + 4):
                r = rec(h, j)
                a(f"    v_add_u32 v{10+j-j0}, v{10+j-j0}, v{RANK+h*NJ+j}     ; slot")
                a(f"    v_and_b32 v{r}, 0xffff, v{r}               ; src")
                a(f"    v_lshlrev_b32 v14, 2, v{10+j-j0}")
                a(f"    v_add_u32 v14, {K2_SRC}, v14")
                a(f"    v_lshlrev_b32 v15, 3, v{10+j-j0}")
                a(f"    v_add_u32 v15, {K2_E}, v15")
                m = msk(h, j)
                a(f"    s_mov_b64 exec, s[{m}:{m+1}]")
                a(f"    ds_write_b32 v14, v{r}")
                a(f"    ds_write2_b32 v15, v{r+1}, v{r+2} offset0:0 offset1:1")
                a(f"    s_mov_b64 exec, -1")
    a("K2_NOB1_SCAT:")
    a(f"""    v_mov_b32 v11, {N}
    v_mov_b32 v12, 0
    v_mov_b32 v13, 0
    s_cmp_lg_u32 s3, 0
    s_cbranch_scc1 K2_NOPAD
    v_add_u32 v16, v9, v5
    v_lshlrev_b32 v10, 2, v{QEND}""")
    for s_ in range(4):
        a(f"    v_cmp_lt_u32 vcc, v16, v10")
        a(f"    v_lshlrev_b32 v14, 2, v16")
        a(f"    v_add_u32 v14, {K2_SRC}, v14")
        a(f"    v_lshlrev_b32 v15, 3, v16")
        a(f"    v_add_u32 v15, {K2_E}, v15")
        a(f"    s_and_saveexec_b64 s[38:39], vcc")
        a(f"    ds_write_b32 v14, v11")
        a(f"    ds_write_b64 v15, v[12:13]")
        a(f"    s_mov_b64 exec, s[38:39]")
        a(f"    v_add_u32 v16, 1, v16")
    a(f"""K2_NOPAD:
    s_cmp_lg_u32 s3, 1
    s_cbranch_scc1 K2_NOTAIL
    s_lshl_b32 s36, s{S_Q}, 2
    v_add_u32 v16, s36, v{VL}
    v_lshlrev_b32 v14, 2, v16
    v_add_u32 v14, {K2_SRC}, v14
    v_lshlrev_b32 v15, 3, v16
    v_add_u32 v15, {K2_E}, v15
    ds_write_b32 v14, v11
    ds_write_b64 v15, v[12:13]
K2_NOTAIL:
    v_cvt_f32_u32 v16, s{S_Q}
    v_rcp_f32 v16, v16
    v_lshlrev_b32 v17, {LOGW}, v8
    v_add_u32 v17, {NWV}, v17
    v_cvt_f32_u32 v17, v17
    v_lshlrev_b32 v18, {LOGW}, v{QEND}
    v_cvt_f32_u32 v18, v18
    v_add_f32 v17, -0.5, v17
    v_add_f32 v18, -0.5, v18
    v_mul_f32 v17, v17, v16
    v_mul_f32 v18, v18, v16
    v_cvt_u32_f32 v17, v17
    v_cvt_u32_f32 v18, v18
    v_sub_u32 v18, v18, v17
    v_add_u32 v18, 1, v18
    v_add_u32 v17, v17, v{VL}
    v_lshl_or_b32 v{SEG}, v18, 16, v17
    s_mul_i32 s{S_TS}, s{S_Q}, s3
    s_lshr_b32 s{S_TS}, s{S_TS}, {LOGW}                  ; ts
    s_add_u32 s36, s3, 1
    s_mul_i32 s{S_TE}, s{S_Q}, s36
    s_lshr_b32 s{S_TE}, s{S_TE}, {LOGW}                  ; te
    v_cmp_ge_u32 vcc, s{S_TS}, v{QEND}
    s_nop 1
    s_bcnt1_i32_b64 s{S_N}, vcc                ; n0
    s_nop 0
    v_readlane_b32 s{S_SEGEND}, v{QEND}, s{S_N}
    s_nop 3
    s_min_u32 s{S_SEGEND}, s{S_SEGEND}, s{S_TE}
    s_sub_u32 s{S_REM}, s{S_SEGEND}, s{S_TS}
    s_sub_u32 s{S_REM}, s{S_REM}, 1                   ; rem
    s_lshl_b32 s36, s{S_TS}, 4
    s_add_u32 s36, s36, {K2_SRC}
    v_lshl_add_u32 v2, v{VQ}, 2, s36
    v_lshrrev_b32 v9, 2, v{VI}               ; e = i/4
    v_and_b32 v10, 3, v{VI}                  ; r = i%4
    v_cmp_eq_u32 vcc, v10, v{VQ}
    s_lshl_b32 s36, s{S_TS}, 5
    s_add_u32 s36, s36, {K2_E}
    v_lshl_add_u32 v9, v9, 3, s36
    v_mov_b32 v10, {K2_ZREG}
    v_cndmask_b32 v3, v10, v9, vcc          ; vAddrE
    v_mov_b32 v10, {32*R}
    v_cndmask_b32 v1, 0, v10, vcc           ; vIncE
    v_mov_b32 v10, 0x3f803f80
    v_cndmask_b32 v10, 0, v10, vcc
    v_mov_b32 v18, v10
    v_mov_b32 v19, 0
    v_mov_b32 v22, v10
    v_mov_b32 v23, 0
    v_mov_b32 v4, v{WC}
    v_mov_b32 v5, v{WC+1}
    v_mov_b32 v7, 0""")
    G = lambda k: 24 + 4 * (k % R)
    B0 = 24 + 4 * R
    NUM, DEN, H, IDX, ANX, APA, SLA, TMP = B0, B0 + 4, B0 + 8, B0 + 12, B0 + 14, B0 + 15, B0 + 16, B0 + 17
    IT = B0 + 18
    assert IT + 2 * R <= TOT
    Dr = lambda k: 8 + 4 * (k % 2)
    Ar = lambda k: 16 + 4 * (k % 2)
    a(f"""    v_lshlrev_b32 v{APA}, 2, v{VL}
    v_add_u32 v{APA}, {K2_AP}, v{APA}
    s_mul_i32 s36, s{S_N}, 272
    v_add_u32 v9, s36, v{APA}
    s_add_u32 s36, s{S_N}, s3
    s_mul_i32 s36, s36, {SLOT_STR}
    s_add_u32 s36, s36, {K2_SLOT}
    v_lshl_add_u32 v{SLA}, v{VL}, 3, s36
    v_lshlrev_b32 v{IDX+1}, 4, v{VI}""")
    for r in range(8):
        a(f"    v_mov_b32 v{NUM+r}, 0")
    for k in range(R):
        a(f"    v_mov_b32 v{IT+1+2*k}, v{IDX+1}")
    if opt.diag == "samerow":
        a(f"    v_mov_b32 v120, v{VQ}")
        a(f"    v_mov_b32 v121, v{IDX+1}")
    a(f"""    s_waitcnt lgkmcnt(0)
    s_barrier                               ; #3""")
    stamp(a, 4)
    if PROF:
        a("    s_memtime s[92:93]")
        a("    s_waitcnt lgkmcnt(0)")
        a("    v_mov_b32 v122, s92")
    for k in range(R):
        a(f"    ds_read_b32 v{IT+2*k}, v2 offset:{16*k}")
    a(f"""    ds_read_b32 v6, v9
    ds_read_b32 v{ANX}, v9 offset:272
    ds_read_b64 v[{Ar(0)}:{Ar(0)+1}], v3
    ds_read_b64 v[{Ar(1)}:{Ar(1)+1}], v3 offset:32""")
    for k in range(R):
        a(f"    s_waitcnt lgkmcnt({min(15, R - 1 - k + 4)})")
        a(f"    buffer_load_dwordx4 v[{G(k)}:{G(k)+3}], v[{IT+2*k}:{IT+2*k+1}], s[24:27], 0 idxen offen")
    a(f"    s_waitcnt vmcnt({R-1}) lgkmcnt(0)")
    a(f"    v_mfma_f32_16x16x32_bf16 v[{Dr(0)}:{Dr(0)+3}], v[{Ar(0)}:{Ar(0)+3}], v[4:7], v[{G(0)}:{G(0)+3}]")
    a("    s_nop 7")
    a("K2_LOOP:")
    for k in range(R):
        d, dn = Dr(k), Dr(k + 1)
        g, gn = G(k), G(k + 1)
        a(f"    s_sub_u32 s{S_REM}, s{S_REM}, 1")
        a(f"    s_cbranch_scc1 K2_SA{k}")
        a(f"K2_RA{k}:")
        a(f"    s_waitcnt vmcnt({R-2})")
        a(f"    v_mfma_f32_16x16x32_bf16 v[{dn}:{dn+3}], v[{Ar(k+1)}:{Ar(k+1)+3}], v[4:7], v[{gn}:{gn+3}]")
        a(f"    ds_read_b64 v[{Ar(k)}:{Ar(k)+1}], v3 offset:{32*(k+2)}")
        a(f"    ds_read_b32 v{IDX}, v2 offset:{16*(k+R)}")
        for i in range(4):
            a(f"    v_exp_f32 v{d+i}, v{d+i}")
        a(f"    v_lshlrev_b32 v{H}, 16, v{g}")
        a(f"    v_pk_add_f32 v[{d}:{d+1}], v[{d}:{d+1}], 1.0")
        a(f"    v_pk_add_f32 v[{d+2}:{d+3}], v[{d+2}:{d+3}], 1.0")
        a(f"    v_lshlrev_b32 v{H+1}, 16, v{g+1}")
        for i in range(4):
            a(f"    v_rcp_f32 v{d+i}, v{d+i}")
        a(f"    v_lshlrev_b32 v{H+2}, 16, v{g+2}")
        a(f"    v_lshlrev_b32 v{H+3}, 16, v{g+3}")
        a(f"    v_pk_fma_f32 v[{NUM}:{NUM+1}], v[{d}:{d+1}], v[{H}:{H+1}], v[{NUM}:{NUM+1}]")
        a(f"    v_pk_add_f32 v[{DEN}:{DEN+1}], v[{d}:{d+1}], v[{DEN}:{DEN+1}]")
        a(f"    v_pk_fma_f32 v[{NUM+2}:{NUM+3}], v[{d+2}:{d+3}], v[{H+2}:{H+3}], v[{NUM+2}:{NUM+3}]")
        a(f"    v_pk_add_f32 v[{DEN+2}:{DEN+3}], v[{d+2}:{d+3}], v[{DEN+2}:{DEN+3}]")
        a(f"    s_waitcnt lgkmcnt(0)")
        if opt.diag == "nogather":
            pass
        elif opt.diag == "samerow":
            a(f"    buffer_load_dwordx4 v[{g}:{g+3}], v[120:121], s[24:27], 0 idxen offen")
        else:
            a(f"    buffer_load_dwordx4 v[{g}:{g+3}], v[{IDX}:{IDX+1}], s[24:27], 0 idxen offen")
        a(f"    s_cbranch_scc1 K2_SB{k}")
        a(f"K2_RB{k}:")
        if k == R - 1:
            a(f"    v_add_u32 v2, {16*R}, v2")
            a(f"    v_add_u32 v3, v1, v3")
            a(f"    s_branch K2_LOOP")
    for k in range(R):
        a(f"K2_SA{k}:")
        a(f"    v_mov_b32 v6, v{ANX}")
        a(f"    s_nop 0")
        a(f"    s_branch K2_RA{k}")
    for k in range(R):
        a(f"K2_SB{k}:")
        for r in range(4):
            a(f"    v_permlane32_swap_b32 v{NUM+r}, v{DEN+r}")
        a(f"    v_pk_add_f32 v[{NUM}:{NUM+1}], v[{NUM}:{NUM+1}], v[{DEN}:{DEN+1}]")
        a(f"    v_pk_add_f32 v[{NUM+2}:{NUM+3}], v[{NUM+2}:{NUM+3}], v[{DEN+2}:{DEN+3}]")
        a(f"    s_add_u32 s{S_N}, s{S_N}, 1")
        a(f"    s_add_u32 s36, s{S_N}, 1")
        a(f"    v_permlane16_swap_b32 v{NUM}, v{NUM+2}")
        a(f"    v_permlane16_swap_b32 v{NUM+1}, v{NUM+3}")
        a(f"    v_readlane_b32 s37, v{QEND}, s{S_N}")
        a(f"    s_mul_i32 s36, s36, 272")
        a(f"    v_pk_add_f32 v[{DEN}:{DEN+1}], v[{NUM}:{NUM+1}], v[{NUM+2}:{NUM+3}]")
        a(f"    v_add_u32 v{TMP}, s36, v{APA}")
        a(f"    s_cmp_eq_u32 s{S_SEGEND}, s{S_TE}")
        a(f"    ds_write_b64 v{SLA}, v[{DEN}:{DEN+1}]")
        a(f"    s_cbranch_scc1 K2_DONE")
        a(f"    ds_read_b32 v{ANX}, v{TMP}")
        a(f"    v_add_u32 v{SLA}, {SLOT_STR}, v{SLA}")
        for r in range(8):
            a(f"    v_mov_b32 v{NUM+r}, 0")
        a(f"    s_min_u32 s37, s37, s{S_TE}")
        a(f"    s_sub_u32 s{S_REM}, s37, s{S_SEGEND}")
        a(f"    s_sub_u32 s{S_REM}, s{S_REM}, 1")
        a(f"    s_mov_b32 s{S_SEGEND}, s37")
        a(f"    s_branch K2_RB{k}")
    a("K2_DONE:")
    stamp(a, 5)
    if PROF:
        a("    s_memtime s[92:93]")
        a("    s_waitcnt lgkmcnt(0)")
        a("    v_mov_b32 v123, s92")
        a("    v_sub_u32 v123, v123, v122")
    a(f"""    s_waitcnt vmcnt(0) lgkmcnt(0)
    s_barrier                               ; #4""")
    stamp(a, 6)
    a(f"""    s_cmp_ge_u32 s3, 5
    s_cbranch_scc1 K2_MERGED
    v_lshrrev_b32 v4, 3, v0                 ; node
    v_lshlrev_b32 v5, 2, v4
    ds_bpermute_b32 v5, v5, v{SEG}
    v_and_b32 v6, 7, v0
    v_lshlrev_b32 v6, 4, v6                 ; s2*16
    s_mov_b32 s36, 0""")
    for r in range(16):
        a(f"    v_mov_b32 v{24+r}, 0")
    a(f"""    v_mul_u32_u24 v41, 272, v4
    v_lshl_add_u32 v41, v6, 1, v41
    v_add_u32 v41, {K2_U}, v41
    s_waitcnt lgkmcnt(0)
    v_lshrrev_b32 v7, 16, v5
    v_and_b32 v5, 0xffff, v5
    v_lshl_add_u32 v5, v5, 9, v6
K2_MERGE:
    v_cmp_lt_u32 vcc, s36, v7
    s_nop 1
    s_cmp_eq_u64 vcc, 0
    s_cbranch_scc1 K2_MERGE_END
    s_mov_b64 exec, vcc
    ds_read_b128 v[8:11], v5 offset:{K2_SLOT}
    ds_read_b128 v[12:15], v5 offset:{K2_SLOT+128}
    ds_read_b128 v[16:19], v5 offset:{K2_SLOT+256}
    ds_read_b128 v[20:23], v5 offset:{K2_SLOT+384}
    v_add_u32 v5, {SLOT_STR}, v5
    s_add_u32 s36, s36, 1
    s_waitcnt lgkmcnt(0)""")
    for r in range(8):
        a(f"    v_pk_add_f32 v[{24+2*r}:{25+2*r}], v[{24+2*r}:{25+2*r}], v[{8+2*r}:{9+2*r}]")
    a(f"""    s_mov_b64 exec, -1
    s_branch K2_MERGE
K2_MERGE_END:
    s_or_b32 s36, s{S_RB}, s{S_MORE}
    s_cmp_eq_u32 s36, 0
    s_cbranch_scc1 K2_MERGED
    s_mul_i32 s36, s2, {320*64}
    s_add_u32 s36, s36, {TOT_OFF}
    v_lshl_add_u32 v42, v0, 6, s36
    s_cmp_eq_u32 s{S_RB}, 0
    s_cbranch_scc1 K2_NOPREV""")
    for r in range(4):
        a(f"    global_load_dwordx4 v[{8+4*r}:{11+4*r}], v42, s[14:15] offset:{16*r} sc1")
    a("    s_waitcnt vmcnt(0)")
    for r in range(8):
        a(f"    v_pk_add_f32 v[{24+2*r}:{25+2*r}], v[{24+2*r}:{25+2*r}], v[{8+2*r}:{9+2*r}]")
    a(f"""K2_NOPREV:
    s_cmp_eq_u32 s{S_MORE}, 0
    s_cbranch_scc1 K2_MERGED""")
    for r in range(4):
        a(f"    global_store_dwordx4 v42, v[{24+4*r}:{27+4*r}], s[14:15] offset:{16*r} sc1")
    a(f"""    s_waitcnt vmcnt(0)
K2_MERGED:
    s_cmp_eq_u32 s{S_MORE}, 0
    s_cbranch_scc1 K2_EPI
    s_add_u32 s{S_RB}, s{S_RB}, 32
    s_cmp_lg_u32 s3, 0
    s_cbranch_scc1 K2_NOCLR
    v_mov_b32 v9, 0
    v_lshlrev_b32 v10, 2, v{VL}
    ds_write_b32 v10, v9 offset:{K2_CNT}
    v_mov_b32 v10, {K2_FLAG}
    ds_write_b32 v10, v9
K2_NOCLR:
    s_waitcnt lgkmcnt(0)
    s_barrier
    s_branch K2_ROUND
K2_EPI:
    s_cmp_ge_u32 s3, 5
    s_cbranch_scc1 K2_FIN
    ds_read_b128 v[40:43], v41
    ds_read_b128 v[44:47], v41 offset:16
    s_mov_b32 s36, 0x358637bd               ; 1e-6""")
    nreg = [24, 25, 28, 29, 26, 27, 30, 31]
    dreg = [x + 8 for x in nreg]
    for c in range(8):
        a(f"    v_add_f32 v{dreg[c]}, s36, v{dreg[c]}")
        a(f"    v_rcp_f32 v{dreg[c]}, v{dreg[c]}")
    for c in range(8):
        xr = XR + c // 2
        if c % 2 == 0:
            a(f"    v_lshlrev_b32 v{8+c}, 16, v{xr}")
        else:
            a(f"    v_and_b32 v{8+c}, 0xffff0000, v{xr}")
    a("    s_waitcnt lgkmcnt(0)")
    for c in range(8):
        a(f"    v_fma_f32 v{40+c}, v{nreg[c]}, v{dreg[c]}, v{40+c}    ; z")
        a(f"    v_mul_f32 v{16+c}, 0, v{40+c}")
        a(f"    v_cmp_lt_f32 vcc, 0, v{40+c}")
        a(f"    s_nop 1")
        a(f"    v_cndmask_b32 v{40+c}, v{16+c}, v{40+c}, vcc")
        a(f"    v_add_f32 v{40+c}, v{8+c}, v{40+c}")
    for c in range(4):
        a(f"    v_cvt_pk_bf16_f32 v{16+c}, v{40+2*c}, v{41+2*c}")
    a(f"""    v_lshlrev_b32 v4, 4, v0
    s_mul_i32 s36, s2, {NPB*128}
    v_add_u32 v4, s36, v4
    global_store_dwordx4 v4, v[16:19], s[12:13]
K2_FIN:""")
    stamp_flush(a, 1, 7, 14, "s3")
    if DBG:
        a("    s_cmp_lg_u32 s3, 0")
        a("    s_cbranch_scc1 K2_DBGEND")
    dbgmax(a, 3, "s80", 0, True)
    dbgmax(a, 4, "s82", 0)
    dbgmax(a, 5, "s84", 0)
    dbgmax(a, 6, "s86", 0)
    dbgmax(a, 7, "s88", 0)
    dbgmax(a, 8, "s90", 0)
    if DBG:
        a("    v_readfirstlane_b32 s91, v123")
    dbgmax(a, 10, "s91", 0)
    if DBG:
        a("    s_load_dwordx2 s[94:95], s[0:1], 80")
        a("    s_waitcnt lgkmcnt(0)")
        a("    s_sub_u32 s92, s94, 512")
        a("    s_subb_u32 s93, s95, 0")
        a("    s_mov_b64 exec, 1")
        a("    v_mov_b32 v5, 0")
        a("    global_load_dwordx3 v[8:10], v5, s[92:93] sc1")
        a("    s_waitcnt vmcnt(0)")
        a("    global_store_dwordx3 v5, v[8:10], s[94:95]")
        a("    s_waitcnt vmcnt(0)")
        a("K2_DBGEND:")
    if PROF:
        a("    global_store_dword v2, v123, s[14:15] offset:64")
        a("    s_waitcnt vmcnt(0)")
    a("""K2_END:
    s_endpgm
""")

def desc(name, vgpr, sgpr):
    return f""".p2align 6
.amdhsa_kernel {name}
  .amdhsa_next_free_vgpr {vgpr}
  .amdhsa_next_free_sgpr {sgpr}
  .amdhsa_accum_offset {vgpr}
  .amdhsa_group_segment_fixed_size 0
  .amdhsa_kernarg_size 96
  .amdhsa_user_sgpr_count 2
  .amdhsa_user_sgpr_kernarg_segment_ptr 1
  .amdhsa_system_sgpr_workgroup_id_x 1
  .amdhsa_float_denorm_mode_32 3
.end_amdhsa_kernel
"""

HEADER = """; GatedGCN edge-featured MPNN layer, two launches.
"""

def main():
    ap = argparse.ArgumentParser()
    ap.add_argument("-o", default="standalone__edge_featured_mpnn_gatedgcn__graph.s")
    ap.add_argument("--k1_store", default="")
    ap.add_argument("--prof", action="store_true")
    ap.add_argument("--nwv", type=int, default=16)
    ap.add_argument("--ring", type=int, default=8)
    ap.add_argument("--diag", default="")
    ap.add_argument("--dbg", action="store_true")
    opt = ap.parse_args()
    global PROF
    PROF = opt.prof
    global DBG
    DBG = opt.dbg
    a = Asm()
    a(HEADER.rstrip())
    a(f"; @launch kernel=prep_kernel grid=({NB},1,1) block=(1024,1,1) lds={K1_LDS}")
    a(f"; @launch kernel=main_kernel grid=({NB},1,1) block=({opt.nwv*64},1,1) lds={K2_LDS}")
    a('.amdgcn_target "amdgcn-amd-amdhsa--gfx950"')
    a(".text")
    gen_k1(a, opt)
    gen_k2(a, opt)
    a('.section .rodata,"a"')
    a(desc("prep_kernel", 80, 100 if PROF else 48))
    a(desc("main_kernel", 128 if opt.nwv == 16 else 224, 100 if PROF else 80))
    open(opt.o, "w").write(a.text())
    print("wrote", opt.o, "K1 lds", K1_LDS, "K2 lds", K2_LDS)

if __name__ == "__main__":
    main()
```

```python
import argparse

KNAME = "standalone__edge_featured_mpnn_gatedgcn__graph_kernel"
N, D, E = 10000, 64, 640000
NB, NPB = 250, 40
CH = 2560
GEN_OFF, G_OFF, GRAN_OFF, REC_OFF, TOT_OFF = 0, 0x1000, 0x280000, 0x380000, 0xB00000
PROF_OFF = 0x1100000
NLOG2E = 0xBFB8AA3B
BIG, NBIG = 0x71800000, 0xF1800000
NWV = 16
POLL_LIMIT = 1 << 17

SLOT_STR = 512
L_SLOT = 0
L_CNT = L_SLOT + (NPB + NWV) * SLOT_STR
L_ZREG = L_CNT + 256
L_FLAG = L_ZREG + 512
L_ZEND = L_FLAG + 16
L_WCB = 29504
L_AP = 30080
L_U = L_AP + 48 * 272
L_SRC = L_U + 48 * 272
NSLOT = 250 * 32 + 160 + 64
L_E = L_SRC + NSLOT * 4
L_END = L_E + NSLOT * 8
A_HIST = L_SRC
A_OFFS = A_HIST + 1024
A_REC = A_OFFS + 1024
A_W = A_REC + CH * 12
WIMG = 64 * 144
A_X = A_W + 4 * WIMG
A_G = A_X + 48 * 144
assert A_G + 48 * 272 <= L_END <= 163840 and A_REC + 30720 < 65536 + 32768
assert all(x % 16 == 0 for x in (L_WCB, L_AP, L_U, L_SRC, L_E, A_REC, A_W, A_X, A_G))

IT = 72
IDX = 92
INCE, APA = 94, 95
BOP = 96
A0, A1 = 100, 104
SLB, EB, EM, SRB = 108, 109, 110, 111
XR = 112
QEND, QST = 116, 117
VI, VQ, VL = 125, 126, 127
S_TAG = 28
S_REC = 40
S_G = 44
M0, M1 = 48, 56
S_INV = 64
S_RB, S_MORE, S_Q, S_TS, S_TE, S_N, S_SEGEND, S_REM = 68, 69, 70, 71, 72, 73, 74, 75
S_BLK = 76

class Asm:
    def __init__(self): self.l = []
    def __call__(self, s=""):
        self.l.extend(s.split("\n"))
    def text(self): return "\n".join(self.l) + "\n"

PROF = False
PB = 80
def stamp(a, idx):
    if PROF:
        a(f"    s_memrealtime s[{PB+2*idx}:{PB+2*idx+1}]")
        a(f"    s_waitcnt lgkmcnt(0)")

def stamp_flush(a, n):
    if not PROF: return
    a(f"""    s_waitcnt vmcnt(0) lgkmcnt(0)
    s_memrealtime s[{PB+2*n}:{PB+2*n+1}]
    s_waitcnt lgkmcnt(0)
    s_mov_b64 exec, 1
    s_lshl_b32 s30, s2, 4
    s_add_u32 s30, s30, s3
    s_lshl_b32 s30, s30, 7
    s_add_u32 s30, s30, {PROF_OFF}
    v_mov_b32 v2, s30""")
    for i in range(n + 1):
        a(f"    v_mov_b32 v4, s{PB+2*i}")
        a(f"    v_mov_b32 v5, s{PB+2*i+1}")
        a(f"    global_store_dwordx2 v2, v[4:5], s[26:27] offset:{8*i}")
        a(f"    s_nop 1")
    a(f"    global_store_dword v2, v123, s[26:27] offset:{8*(n+1)}")
    a(f"    s_waitcnt vmcnt(0)")

def dpp_scan(a, v):
    for sh in (1, 2, 4, 8):
        a(f"    s_nop 1")
        a(f"    v_add_u32_dpp v{v}, v{v}, v{v} row_shr:{sh} row_mask:0xf bank_mask:0xf bound_ctrl:0")
    a("    s_nop 1")
    a(f"    v_add_u32_dpp v{v}, v{v}, v{v} row_bcast:15 row_mask:0xa bank_mask:0xf")
    a("    s_nop 1")
    a(f"    v_add_u32_dpp v{v}, v{v}, v{v} row_bcast:31 row_mask:0xc bank_mask:0xf")
    a("    s_nop 1")

def entry(a, opt):
    a(f"""
.globl {KNAME}
.p2align 8
.type {KNAME},@function
{KNAME}:
    s_cmp_ge_u32 s2, {NB}
    s_cbranch_scc1 L_END
    s_load_dwordx16 s[4:19], s[0:1], 0
    s_load_dwordx8 s[20:27], s[0:1], 64""")
    if PROF:
        a(f"    s_memrealtime s[{PB}:{PB+1}]")
    a(f"""    v_lshrrev_b32 v1, 6, v0
    v_and_b32 v{VL}, 63, v0
    v_readfirstlane_b32 s3, v1
    v_lshrrev_b32 v{VQ}, 4, v{VL}
    v_and_b32 v{VI}, 15, v{VL}
    v_lshlrev_b32 v{IDX+1}, 4, v{VI}
    v_and_b32 v2, 3, v{VI}
    v_cmp_eq_u32 vcc, v2, v{VQ}
    v_lshrrev_b32 v3, 2, v{VI}
    v_lshlrev_b32 v3, 3, v3
    v_add_u32 v3, {L_E}, v3
    v_mov_b32 v4, {L_ZREG}
    v_cndmask_b32 v{EB}, v4, v3, vcc
    v_mov_b32 v4, 32
    v_cndmask_b32 v{EM}, 0, v4, vcc
    v_lshlrev_b32 v{INCE}, 3, v{EM}
    v_mov_b32 v4, 0x3f803f80
    v_cndmask_b32 v{A0+2}, 0, v4, vcc
    v_mov_b32 v{A1+2}, v{A0+2}
    v_mov_b32 v{A0+3}, 0
    v_mov_b32 v{A1+3}, 0
    v_mov_b32 v{BOP+3}, 0
    v_lshlrev_b32 v{APA}, 2, v{VL}
    v_add_u32 v{APA}, {L_AP}, v{APA}
    v_lshlrev_b32 v{SLB}, 3, v{VL}
    v_lshlrev_b32 v{SRB}, 2, v{VQ}
    v_add_u32 v{SRB}, {L_SRC}, v{SRB}""")
    for k in range(8):
        a(f"    v_mov_b32 v{IT+1+2*k}, v{IDX+1}")
    a(f"""    s_mov_b32 s{S_RB}, 0
    s_cmp_eq_u32 s3, 15
    s_cselect_b32 s{S_INV+1}, 0xffff0000, 0
    s_cselect_b32 s{S_INV+3}, -1, 0
    s_mov_b32 s{S_INV}, 0
    s_mov_b32 s{S_INV+2}, 0
    s_cmp_ge_u32 s3, 10
    s_cbranch_scc1 L_TABLE""")

def phase_a_bin(a, opt):
    st = opt.store
    a(f"""    ; ================= phase A, binning waves (tid < 640)
    s_mul_i32 s30, s2, {CH*4}
    v_lshlrev_b32 v2, 4, v0
    v_add_u32 v3, s30, v2
    s_lshl_b32 s31, s30, 1
    v_lshlrev_b32 v4, 5, v0
    v_add_u32 v4, s31, v4
    s_mul_i32 s32, s2, {NPB*128}
    v_add_u32 v5, s32, v2
    v_mov_b32 v6, 0
    v_lshlrev_b32 v7, 2, v0
    s_waitcnt lgkmcnt(0)""")
    stamp(a, 1)
    a(f"""    s_cmp_ge_u32 s3, 5
    s_cbranch_scc1 L_NOXR
    global_load_dwordx4 v[{XR}:{XR+3}], v5, s[4:5]
    global_load_dword v88, v5, s[22:23]
L_NOXR:
    global_load_dwordx4 v[8:11], v3, s[10:11]
    global_load_dwordx4 v[12:15], v3, s[8:9]
    global_load_dwordx4 v[16:19], v4, s[6:7]
    global_load_dwordx4 v[20:23], v4, s[6:7] offset:16
    s_load_dwordx2 s[{S_TAG}:{S_TAG+1}], s[26:27], {GEN_OFF}
    s_cmp_ge_u32 s3, 4
    s_cbranch_scc1 L_NOZH
    ds_write_b32 v7, v6 offset:{A_HIST}
L_NOZH:
    s_cmp_lg_u32 s3, 4
    s_cbranch_scc1 L_NOZC
    v_mov_b32 v24, 0
    v_mov_b32 v25, 0
    v_mov_b32 v26, 0
    v_mov_b32 v27, 0
    v_lshlrev_b32 v28, 4, v{VL}
    v_cmp_gt_u32 vcc, {(L_ZEND-L_CNT)//16}, v{VL}
    s_and_saveexec_b64 s[34:35], vcc
    ds_write_b128 v28, v[24:27] offset:{L_CNT}
    s_mov_b64 exec, s[34:35]
L_NOZC:
    s_mov_b32 s33, 52429
    s_movk_i32 s34, 0xffd8                  ; -40
    v_mov_b32 v7, 1
    s_waitcnt lgkmcnt(0)
    s_add_u32 s{S_TAG}, s{S_TAG}, 1
    s_addc_u32 s{S_TAG+1}, s{S_TAG+1}, 0
    s_barrier                               ; #1
    s_waitcnt vmcnt(3)""")
    stamp(a, 2)
    for j in range(4):
        a(f"    v_mul_u32_u24 v{24+j}, s33, v{8+j}")
        a(f"    v_lshrrev_b32 v{24+j}, 21, v{24+j}          ; bucket")
        a(f"    v_mad_i32_i24 v{8+j}, v{24+j}, s34, v{8+j}")
        a(f"    v_lshlrev_b32 v{24+j}, 2, v{24+j}")
        a(f"    ds_add_rtn_u32 v{28+j}, v{24+j}, v7 offset:{A_HIST}")
    a("    s_waitcnt vmcnt(2)")
    for j in range(4):
        a(f"    v_lshlrev_b32 v{8+j}, 2, v{8+j}")
        a(f"    v_lshl_or_b32 v{12+j}, v{12+j}, 8, v{8+j}")
    a(f"""    v_lshlrev_b32 v2, 4, v{VL}
    s_waitcnt lgkmcnt(0)
    s_barrier                               ; #2
    ds_read_b128 v[32:35], v2 offset:{A_HIST}
    s_mul_i32 s36, s2, {CH*12}
    s_waitcnt lgkmcnt(0)
    v_add_u32 v36, v32, v33
    v_add_u32 v37, v36, v34
    v_add_u32 v38, v37, v35
    v_mov_b32 v39, v38""")
    dpp_scan(a, 39)
    a(f"""    v_sub_u32 v40, v39, v38
    v_add_u32 v41, v40, v32
    v_add_u32 v42, v40, v36
    v_add_u32 v43, v40, v37
    ds_write_b128 v2, v[40:43] offset:{A_OFFS}
    s_lshl_b32 s37, s3, 12
    s_lshl_b32 s38, s2, 4
    s_add_u32 s37, s37, s38
    s_add_u32 s37, s37, {GRAN_OFF}
    v_lshl_add_u32 v51, v{VL}, 14, s37
    v_mov_b32 v54, s{S_TAG}
    v_mov_b32 v55, s{S_TAG+1}
    v_mov_b32 v52, 0
    v_mov_b32 v53, 0
    s_cmp_ge_u32 s3, 4
    s_cbranch_scc1 L_NOGR""")
    for j in range(4):
        a(f"    s_cmp_lg_u32 s3, {j}")
        a(f"    s_cbranch_scc1 L_GRJ{j}")
        a(f"    v_mad_u32_u24 v52, v{40+j}, 12, s36")
        a(f"    v_mov_b32 v53, v{32+j}")
        a(f"L_GRJ{j}:")
    a(f"""L_NOGR:
    s_waitcnt lgkmcnt(0)""")
    for j in range(4):
        a(f"    ds_read_b32 v{44+j}, v{24+j} offset:{A_OFFS}")
    a(f"    s_mov_b32 s38, {A_REC}")
    a("    s_waitcnt lgkmcnt(0)")
    for j in range(4):
        a(f"    v_add_u32 v{44+j}, v{44+j}, v{28+j}")
        a(f"    v_mad_u32_u24 v{44+j}, v{44+j}, 12, s38")
    a("    s_waitcnt vmcnt(0)")
    for j in range(4):
        a(f"    ds_write_b32 v{44+j}, v{12+j}")
        a(f"    ds_write2_b32 v{44+j}, v{16+2*j}, v{17+2*j} offset0:1 offset1:2")
    a(f"""    v_lshl_add_u32 v2, v0, 4, s38
    s_add_u32 s30, s26, {REC_OFF}
    s_addc_u32 s31, s27, 0
    v_lshl_add_u32 v3, v0, 4, s36
    v_add_u32 v4, 10240, v3
    v_add_u32 v5, 20480, v3
    s_waitcnt lgkmcnt(0)
    s_barrier                               ; #3""")
    stamp(a, 3)
    for j in range(3):
        a(f"    ds_read_b128 v[{32+4*j}:{35+4*j}], v2 offset:{j*10240}")
    for j in range(3):
        a(f"    s_waitcnt lgkmcnt({2-j})")
        a(f"    global_store_dwordx4 v{3+j}, v[{32+4*j}:{35+4*j}], s[30:31] {st}")
    a(f"""    s_waitcnt vmcnt(0)
    s_barrier                               ; #4
    s_cmp_ge_u32 s3, 4
    s_cbranch_scc1 L_PHASEB
    global_store_dwordx4 v51, v[52:55], s[26:27] {st}
    s_branch L_PHASEB""")

def tile_mfma(a, acc0, wreg, xreg):
    for mat in range(2):
        acc = acc0 + 4 * mat
        r0, r1 = wreg + mat * 8, wreg + mat * 8 + 4
        a(f"    v_mfma_f32_16x16x32_bf16 v[{acc}:{acc+3}], v[{r0}:{r0+3}], v[{xreg}:{xreg+3}], 0")
        a(f"    v_mfma_f32_16x16x32_bf16 v[{acc}:{acc+3}], v[{r1}:{r1+3}], v[{xreg+4}:{xreg+7}], v[{acc}:{acc+3}]")

def phase_a_table(a, opt):
    st = opt.store
    wp = [14, 20, 12, 18]
    a(f"""L_TABLE:
    s_sub_u32 s36, s3, 10                   ; u
    s_and_b32 s37, s36, 1
    s_add_u32 s38, s37, 6
    v_lshlrev_b32 v2, 4, v{VL}
    s_lshl_b32 s30, s36, 10
    v_add_u32 v3, s30, v2                   ; piece u
    s_lshl_b32 s31, s38, 10
    v_add_u32 v4, s31, v2                   ; piece 6/7
    s_mul_i32 s32, s2, {NPB*128}
    v_add_u32 v5, s32, v3                   ; x offset
    v_lshrrev_b32 v6, 3, v{VL}
    v_mul_u32_u24 v6, 144, v6
    v_and_b32 v7, 7, v{VL}
    v_lshl_add_u32 v6, v7, 4, v6
    s_mul_i32 s33, s36, {8*144}
    s_add_u32 s33, s33, {A_W}
    v_add_u32 v48, s33, v6
    s_mul_i32 s33, s38, {8*144}
    s_add_u32 s33, s33, {A_W}
    v_add_u32 v49, s33, v6
    v_lshl_add_u32 v50, v{VI}, 2, v{VQ}
    v_lshlrev_b32 v50, 1, v50
    s_waitcnt lgkmcnt(0)""")
    stamp(a, 1)
    for m in range(4):
        a(f"    global_load_dwordx4 v[{8+8*m}:{11+8*m}], v3, s[{wp[m]}:{wp[m]+1}]")
        a(f"    global_load_dwordx4 v[{12+8*m}:{15+8*m}], v4, s[{wp[m]}:{wp[m]+1}]")
    a(f"""    s_load_dwordx2 s[{S_TAG}:{S_TAG+1}], s[26:27], {GEN_OFF}
    s_cmp_eq_u32 s36, 5
    s_cbranch_scc1 L_TWC
    global_load_dwordx4 v[40:43], v5, s[4:5]
    s_waitcnt vmcnt(0)
    ds_write_b128 v48, v[40:43] offset:{A_X - A_W}
    s_branch L_TST
L_TWC:
    global_load_ushort v40, v50, s[16:17]
    global_load_ushort v41, v50, s[16:17] offset:128
    global_load_ushort v42, v50, s[16:17] offset:256
    global_load_ushort v43, v50, s[16:17] offset:384
    s_mov_b32 s33, {NLOG2E:#x}
    v_lshlrev_b32 v44, 3, v{VL}
    s_waitcnt vmcnt(0)
    v_lshlrev_b32 v40, 16, v40
    v_lshlrev_b32 v41, 16, v41
    v_lshlrev_b32 v42, 16, v42
    v_lshlrev_b32 v43, 16, v43
    v_mul_f32 v40, s33, v40
    v_mul_f32 v41, s33, v41
    v_mul_f32 v42, s33, v42
    v_mul_f32 v43, s33, v43
    v_cvt_pk_bf16_f32 v40, v40, v41
    v_cvt_pk_bf16_f32 v41, v42, v43
    ds_write_b64 v44, v[40:41] offset:{L_WCB}
L_TST:""")
    for m in range(4):
        a(f"    ds_write_b128 v48, v[{8+8*m}:{11+8*m}] offset:{m*WIMG}")
        a(f"    ds_write_b128 v49, v[{12+8*m}:{15+8*m}] offset:{m*WIMG}")
    a(f"""    ; tile job: nt = u/2, mt in {{2*(u%2), 2*(u%2)+1}}
    s_lshr_b32 s30, s36, 1                  ; nt
    s_lshl_b32 s31, s37, 1                  ; mt0
    s_lshl_b32 s32, s30, 4
    v_add_u32 v4, s32, v{VI}                ; node
    v_mul_u32_u24 v5, 144, v4
    v_lshl_add_u32 v5, v{VQ}, 4, v5
    v_add_u32 v5, {A_X}, v5
    v_lshrrev_b32 v6, 2, v{VI}
    v_lshl_add_u32 v6, v{VQ}, 3, v6
    v_mul_u32_u24 v6, 144, v6
    v_and_b32 v7, 3, v{VI}
    v_lshl_add_u32 v6, v7, 3, v6
    s_lshl_b32 s32, s31, 5
    s_add_u32 s32, s32, {A_W}
    v_add_u32 v6, s32, v6
    v_mul_u32_u24 v7, 272, v4
    v_lshl_add_u32 v50, v{VQ}, 4, v7
    s_lshl_b32 s32, s31, 6
    v_add_u32 v50, s32, v50
    v_lshl_add_u32 v51, v{VQ}, 2, v7
    s_lshl_b32 s32, s31, 4
    s_add_u32 s32, s32, {L_AP}
    v_add_u32 v51, s32, v51
    v_add_u32 v52, {A_G}, v50
    v_add_u32 v53, {L_U}, v50
    s_waitcnt lgkmcnt(0)
    s_add_u32 s{S_TAG}, s{S_TAG}, 1
    s_addc_u32 s{S_TAG+1}, s{S_TAG+1}, 0
    s_barrier                               ; #1
    ds_read_b128 v[8:11], v5
    ds_read_b128 v[12:15], v5 offset:64""")
    def wfrags(first):
        for m in range(2):
            for mat in range(2):
                for ks in range(2):
                    r = 16 + m * 16 + mat * 8 + ks * 4
                    for h in range(2):
                        a(f"    ds_read_b64_tr_b16 v[{r+2*h}:{r+2*h+1}], v6 offset:{(first+mat)*WIMG + ks*4608 + h*576 + m*32}")
    wfrags(0)
    a("    s_waitcnt lgkmcnt(0)")
    for m in range(2):
        tile_mfma(a, 56 + 8 * m, 16 + 16 * m, 8)
    a(f"""    s_barrier                               ; #2
    s_mov_b32 s32, {NLOG2E:#x}
    s_mov_b32 s33, {BIG:#x}
    s_mov_b32 s34, 0x8000
    v_mov_b32 v54, {NBIG:#x}
    s_nop 4""")
    for m in range(2):
        accb, accv = 56 + 8 * m, 60 + 8 * m
        a(f"    v_cvt_pk_bf16_f32 v16, v{accv}, v{accv+1}")
        a(f"    v_cvt_pk_bf16_f32 v17, v{accv+2}, v{accv+3}")
        a(f"    v_and_b32 v18, 0xffff, v16")
        a(f"    v_lshrrev_b32 v19, 16, v16")
        a(f"    v_and_b32 v20, 0xffff, v17")
        a(f"    v_lshrrev_b32 v21, 16, v17")
        for r in range(4):
            b, lo = accb + r, 18 + r
            a(f"    v_mul_f32 v{b}, s32, v{b}")
            a(f"    v_med3_f32 v{b}, v{b}, v54, s33")
            a(f"    v_and_b32 v22, 0x7fffffff, v{b}")
            a(f"    v_and_b32 v{b}, 0x80000000, v{b}")
            a(f"    v_sub_u32 v22, v22, v{lo}")
            a(f"    v_add_u32 v22, s34, v22")
            a(f"    v_max_i32 v22, 0, v22")
            a(f"    v_and_b32 v22, 0xffff0000, v22")
            a(f"    v_or3_b32 v{24+r}, v22, v{lo}, v{b}")
        a(f"    ds_write_b128 v52, v[24:27] offset:{m*64}")
    a(f"""    s_waitcnt lgkmcnt(0)
    s_barrier                               ; #3
    s_lshl_b32 s30, s36, 6
    v_add_u32 v2, s30, v{VL}                ; t2
    v_lshrrev_b32 v3, 4, v2
    v_mul_u32_u24 v3, 272, v3
    v_lshl_add_u32 v3, v{VI}, 4, v3
    v_add_u32 v3, {A_G}, v3
    ds_read_b128 v[16:19], v3
    s_mul_i32 s31, s2, {NPB*256}
    s_add_u32 s31, s31, {G_OFF}
    v_lshl_add_u32 v4, v2, 4, s31
    s_cmp_ge_u32 s36, 4
    s_cbranch_scc1 L_TG1
    ds_read_b128 v[20:23], v3 offset:{24*272}
    v_add_u32 v7, {384*16}, v4
    s_waitcnt lgkmcnt(0)
    global_store_dwordx4 v7, v[20:23], s[26:27] {st}
L_TG1:
    s_waitcnt lgkmcnt(0)
    global_store_dwordx4 v4, v[16:19], s[26:27] {st}
    s_cmp_lg_u32 s2, {NB-1}
    s_cbranch_scc1 L_TAU
    s_cmp_lg_u32 s36, 5
    s_cbranch_scc1 L_TAU
    v_mov_b32 v20, 0x7f000000
    v_mov_b32 v21, v20
    v_mov_b32 v22, v20
    v_mov_b32 v23, v20
    v_lshlrev_b32 v7, 4, v{VL}
    v_add_u32 v7, {N*256 + G_OFF}, v7
    s_mov_b64 exec, 0xffff
    global_store_dwordx4 v7, v[20:23], s[26:27] {st}
    s_mov_b64 exec, -1
L_TAU:""")
    wfrags(2)
    a("    s_waitcnt lgkmcnt(0)")
    for m in range(2):
        tile_mfma(a, 56 + 8 * m, 16 + 16 * m, 8)
    a(f"""    s_nop 7""")
    for m in range(2):
        acca, accu = 56 + 8 * m, 60 + 8 * m
        a(f"    ds_write_b128 v53, v[{accu}:{accu+3}] offset:{m*64}")
        for r in range(4):
            a(f"    v_mul_f32 v{acca+r}, s32, v{acca+r}")
            a(f"    v_med3_f32 v{acca+r}, v{acca+r}, v54, s33")
            a(f"    v_and_b32 v16, 0xffff0000, v{acca+r}")
            a(f"    v_sub_f32 v17, v{acca+r}, v16")
            a(f"    v_cvt_pk_bf16_f32 v17, v17, v17")
            a(f"    v_lshrrev_b32 v16, 16, v16")
            a(f"    v_and_or_b32 v16, v17, v55, v16" if False else f"    v_and_b32 v17, 0xffff0000, v17")
            a(f"    v_or_b32 v16, v16, v17")
            a(f"    ds_write_b32 v51, v16 offset:{r*64 + m*16}")
    a(f"""    s_waitcnt vmcnt(0) lgkmcnt(0)
    s_barrier                               ; #4""")

def phase_b(a, opt):
    R = 8
    GR = lambda j: 8 + 4 * j
    rec = lambda h, j: 24 + 16 * h + 4 * j
    RANK, DL = 56, 64
    a(f"""L_PHASEB:""")
    stamp(a, 4)
    a(f"""    ; ================= phase B: wait for the run table row of this bucket
    v_lshlrev_b32 v2, 3, v{VL}
    ds_read_b64 v[{BOP}:{BOP+1}], v2 offset:{L_WCB}
    s_lshl_b32 s30, s2, 12
    s_lshl_b32 s31, s3, 8
    s_add_u32 s30, s30, s31
    s_add_u32 s30, s30, {GRAN_OFF}
    v_lshl_add_u32 v2, v{VQ}, 6, s30
    s_add_u32 s{S_REC}, s26, {REC_OFF}
    s_addc_u32 s{S_REC+1}, s27, 0
    s_mov_b32 s{S_REC+2}, {E*12}
    s_mov_b32 s{S_REC+3}, 0x20000
    s_add_u32 s{S_G}, s26, {G_OFF}
    s_addc_u32 s{S_G+1}, s27, 0
    s_or_b32 s{S_G+1}, s{S_G+1}, 0x01000000  ; stride 256
    s_mov_b32 s{S_G+2}, {N+1}
    s_mov_b32 s{S_G+3}, 0x20000
    s_mov_b32 s33, 0
L_POLL:""")
    for j in range(4):
        a(f"    global_load_dwordx4 v[{GR(j)}:{GR(j)+3}], v2, s[26:27] offset:{16*j} sc1")
    a("    s_waitcnt vmcnt(0)")
    for j in range(4):
        a(f"    v_cmp_eq_u64 s[{M0+2*j}:{M0+2*j+1}], v[{GR(j)+2}:{GR(j)+3}], s[{S_TAG}:{S_TAG+1}]")
    a(f"""    s_and_b64 s[34:35], s[{M0}:{M0+1}], s[{M0+2}:{M0+3}]
    s_or_b64 s[34:35], s[34:35], s[{S_INV}:{S_INV+1}]
    s_and_b64 s[36:37], s[{M0+4}:{M0+5}], s[{M0+6}:{M0+7}]
    s_or_b64 s[36:37], s[36:37], s[{S_INV+2}:{S_INV+3}]
    s_and_b64 s[34:35], s[34:35], s[36:37]
    s_cmp_eq_u64 s[34:35], -1
    s_cbranch_scc1 L_READY
    s_add_u32 s33, s33, 1
    s_cmp_ge_u32 s33, {POLL_LIMIT}
    s_cbranch_scc1 L_END
    s_sleep 1
    s_branch L_POLL
L_READY:""")
    stamp(a, 5)
    a(f"""L_ROUND:
    v_add_u32 v2, s{S_RB}, v{VI}
    v_add_u32 v3, 16, v2
    v_mul_u32_u24 v4, 12, v2""")
    for j in range(4):
        inv = S_INV + (2 if j >= 2 else 0)
        a(f"    v_cmp_gt_u32 s[{M0+2*j}:{M0+2*j+1}], v{GR(j)+1}, v2")
        a(f"    v_cmp_gt_u32 s[{M1+2*j}:{M1+2*j+1}], v{GR(j)+1}, v3")
        a(f"    v_add_u32 v{GR(j)+2}, v{GR(j)}, v4")
    for j in range(4):
        inv = S_INV + (2 if j >= 2 else 0)
        a(f"    s_andn2_b64 s[{M0+2*j}:{M0+2*j+1}], s[{M0+2*j}:{M0+2*j+1}], s[{inv}:{inv+1}]")
        a(f"    s_mov_b64 exec, s[{M0+2*j}:{M0+2*j+1}]")
        a(f"    buffer_load_dwordx3 v[{rec(0,j)}:{rec(0,j)+2}], v{GR(j)+2}, s[{S_REC}:{S_REC+3}], 0 offen {opt.hload}")
    a(f"    s_add_u32 s30, s{S_RB}, 32")
    for j in range(4):
        inv = S_INV + (2 if j >= 2 else 0)
        a(f"    s_andn2_b64 s[{M1+2*j}:{M1+2*j+1}], s[{M1+2*j}:{M1+2*j+1}], s[{inv}:{inv+1}]")
        a(f"    s_cbranch_scc0 L_NB1L{j}")
        a(f"    s_mov_b64 exec, s[{M1+2*j}:{M1+2*j+1}]")
        a(f"    buffer_load_dwordx3 v[{rec(1,j)}:{rec(1,j)+2}], v{GR(j)+2}, s[{S_REC}:{S_REC+3}], 0 offen offset:192 {opt.hload}")
        a(f"    v_cmp_lt_u32 vcc, s30, v{GR(j)+1}")
        a(f"    s_nop 1")
        a(f"    s_cmp_eq_u64 vcc, 0")
        a(f"    s_cbranch_scc1 L_NB1L{j}")
        a(f"    v_mov_b32 v5, {L_FLAG}")
        a(f"    v_mov_b32 v6, 1")
        a(f"    ds_write_b32 v5, v6")
        a(f"L_NB1L{j}:")
    a(f"""    s_mov_b64 exec, -1
    v_mov_b32 v7, 1
    s_waitcnt vmcnt(0)""")
    stamp(a, 6)
    for h in range(2):
        for j in range(4):
            m = (M0 if h == 0 else M1) + 2 * j
            if h == 1:
                a(f"    s_cmp_eq_u64 s[{m}:{m+1}], 0")
                a(f"    s_cbranch_scc1 L_NB1R{j}")
            a(f"    s_mov_b64 exec, s[{m}:{m+1}]")
            a(f"    v_and_b32 v{DL+4*h+j}, 0xff, v{rec(h,j)}")
            a(f"    ds_add_rtn_u32 v{RANK+4*h+j}, v{DL+4*h+j}, v7 offset:{L_CNT}")
            if h == 1:
                a(f"L_NB1R{j}:")
    a(f"""    s_mov_b64 exec, -1
    v_lshlrev_b32 v4, 2, v{VL}
    v_mov_b32 v6, {L_FLAG}
    v_cmp_gt_u32 vcc, {NPB}, v{VL}
    s_waitcnt lgkmcnt(0)
    s_barrier                               ; #5
    ds_read_b32 v5, v4 offset:{L_CNT}
    ds_read_b32 v6, v6
    s_waitcnt lgkmcnt(0)
    v_add_u32 v4, 3, v5
    v_lshrrev_b32 v4, 2, v4
    v_max_u32 v4, 1, v4
    v_cndmask_b32 v4, 0, v4, vcc
    v_readfirstlane_b32 s{S_MORE}, v6
    v_mov_b32 v{QEND}, v4""")
    dpp_scan(a, QEND)
    a(f"""    v_sub_u32 v{QST}, v{QEND}, v4
    v_readlane_b32 s{S_Q}, v{QEND}, 63
    v_lshlrev_b32 v3, 2, v{QST}
    s_mov_b32 s30, {L_SRC}
    s_mov_b32 s31, {L_E}""")
    for j in range(4):
        a(f"    ds_bpermute_b32 v{8+j}, v{DL+j}, v3")
    for j in range(4):
        a(f"    s_cmp_eq_u64 s[{M1+2*j}:{M1+2*j+1}], 0")
        a(f"    s_cbranch_scc1 L_NB1P{j}")
        a(f"    ds_bpermute_b32 v{12+j}, v{DL+4+j}, v3")
        a(f"L_NB1P{j}:")
    a(f"""    s_mul_i32 s{S_TS}, s{S_Q}, s3
    s_lshr_b32 s{S_TS}, s{S_TS}, 4
    s_add_u32 s32, s3, 1
    s_mul_i32 s{S_TE}, s{S_Q}, s32
    s_lshr_b32 s{S_TE}, s{S_TE}, 4
    v_cmp_ge_u32 vcc, s{S_TS}, v{QEND}
    s_waitcnt lgkmcnt(0)
    s_bcnt1_i32_b64 s{S_N}, vcc""")
    for h in range(2):
        for j in range(4):
            m = (M0 if h == 0 else M1) + 2 * j
            r = rec(h, j)
            if h == 1:
                a(f"    s_cmp_eq_u64 s[{m}:{m+1}], 0")
                a(f"    s_cbranch_scc1 L_NB1S{j}")
            a(f"    s_mov_b64 exec, s[{m}:{m+1}]")
            a(f"    v_add_u32 v{8+4*h+j}, v{8+4*h+j}, v{RANK+4*h+j}")
            a(f"    v_lshrrev_b32 v{r}, 8, v{r}")
            a(f"    v_lshl_add_u32 v16, v{8+4*h+j}, 2, s30")
            a(f"    v_lshl_add_u32 v17, v{8+4*h+j}, 3, s31")
            a(f"    ds_write_b32 v16, v{r}")
            a(f"    ds_write2_b32 v17, v{r+1}, v{r+2} offset0:0 offset1:1")
            if h == 1:
                a(f"L_NB1S{j}:")
    a(f"""    s_mov_b64 exec, -1
    v_mov_b32 v11, {N}
    v_mov_b32 v12, 0
    v_mov_b32 v13, 0
    s_cmp_lg_u32 s3, 15
    s_cbranch_scc1 L_NOPAD
    v_add_u32 v16, v3, v5
    v_lshlrev_b32 v10, 2, v{QEND}""")
    for s_ in range(4):
        a(f"    v_cmp_lt_u32 vcc, v16, v10")
        a(f"    v_lshl_add_u32 v14, v16, 2, s30")
        a(f"    v_lshl_add_u32 v15, v16, 3, s31")
        a(f"    s_and_saveexec_b64 s[34:35], vcc")
        a(f"    ds_write_b32 v14, v11")
        a(f"    ds_write_b64 v15, v[12:13]")
        a(f"    s_mov_b64 exec, s[34:35]")
        a(f"    v_add_u32 v16, 1, v16")
    a(f"""L_NOPAD:
    s_cmp_lg_u32 s3, 14
    s_cbranch_scc1 L_NOTAIL
    s_lshl_b32 s32, s{S_Q}, 2
    v_add_u32 v16, s32, v{VL}
    v_lshl_add_u32 v14, v16, 2, s30
    v_lshl_add_u32 v15, v16, 3, s31
    ds_write_b32 v14, v11
    ds_write_b64 v15, v[12:13]
L_NOTAIL:
    v_readlane_b32 s{S_SEGEND}, v{QEND}, s{S_N}
    s_lshl_b32 s32, s{S_TS}, 4
    v_add_u32 v2, s32, v{SRB}
    v_mad_u32_u24 v3, v{EM}, s{S_TS}, v{EB}
    s_mul_i32 s32, s{S_N}, 272
    v_add_u32 v9, s32, v{APA}
    s_add_u32 s32, s{S_N}, s3
    s_lshl_b32 s32, s32, 9
    v_add_u32 v65, s32, v{SLB}
    s_min_u32 s{S_SEGEND}, s{S_SEGEND}, s{S_TE}
    s_sub_u32 s{S_REM}, s{S_SEGEND}, s{S_TS}
    s_sub_u32 s{S_REM}, s{S_REM}, 1""")
    G = lambda k: 24 + 4 * (k % R)
    Dr = lambda k: 8 + 4 * (k % 2)
    Ar = lambda k: A0 if k % 2 == 0 else A1
    H, NUM, DEN, ANX, SLA, TMP = 16, 56, 60, 64, 65, 66
    for r in range(0, 8, 2):
        a(f"    v_pk_mov_b32 v[{NUM+r}:{NUM+r+1}], v[{A0+2}:{A0+3}], v[{A0+2}:{A0+3}] op_sel:[1,1]")
    a(f"""    s_waitcnt lgkmcnt(0)
    s_barrier                               ; #6""")
    stamp(a, 7)
    if PROF:
        a("    s_memtime s[30:31]")
        a("    s_waitcnt lgkmcnt(0)")
        a("    v_mov_b32 v122, s30")
    for k in range(R):
        a(f"    ds_read_b32 v{IT+2*k}, v2 offset:{16*k}")
    a(f"""    ds_read_b32 v{BOP+2}, v9
    ds_read_b32 v{ANX}, v9 offset:272
    ds_read_b64 v[{Ar(0)}:{Ar(0)+1}], v3
    ds_read_b64 v[{Ar(1)}:{Ar(1)+1}], v3 offset:32""")
    for k in range(R):
        a(f"    s_waitcnt lgkmcnt({min(15, R - 1 - k + 4)})")
        a(f"    buffer_load_dwordx4 v[{G(k)}:{G(k)+3}], v[{IT+2*k}:{IT+2*k+1}], s[{S_G}:{S_G+3}], 0 idxen offen {opt.gload}")
    if opt.prio:
        a(f"    s_setprio 3")
        a(f"    s_sub_u32 s{S_BLK}, s{S_TE}, s{S_TS}")
    a(f"    s_waitcnt vmcnt({R-1}) lgkmcnt(0)")
    a(f"    v_mfma_f32_16x16x32_bf16 v[{Dr(0)}:{Dr(0)+3}], v[{Ar(0)}:{Ar(0)+3}], v[{BOP}:{BOP+3}], v[{G(0)}:{G(0)+3}]")
    a("    s_nop 7")
    a("L_LOOP:")
    for k in range(R):
        d, dn = Dr(k), Dr(k + 1)
        g, gn = G(k), G(k + 1)
        a(f"    s_sub_u32 s{S_REM}, s{S_REM}, 1")
        a(f"    s_cbranch_scc1 L_SA{k}")
        a(f"L_RA{k}:")
        a(f"    s_waitcnt vmcnt({R-2})")
        a(f"    v_mfma_f32_16x16x32_bf16 v[{dn}:{dn+3}], v[{Ar(k+1)}:{Ar(k+1)+3}], v[{BOP}:{BOP+3}], v[{gn}:{gn+3}]")
        a(f"    ds_read_b64 v[{Ar(k)}:{Ar(k)+1}], v3 offset:{32*(k+2)}")
        a(f"    ds_read_b32 v{IDX}, v2 offset:{16*(k+R)}")
        for i in range(4):
            a(f"    v_exp_f32 v{d+i}, v{d+i}")
        a(f"    v_lshlrev_b32 v{H}, 16, v{g}")
        a(f"    v_pk_add_f32 v[{d}:{d+1}], v[{d}:{d+1}], 1.0")
        a(f"    v_pk_add_f32 v[{d+2}:{d+3}], v[{d+2}:{d+3}], 1.0")
        a(f"    v_lshlrev_b32 v{H+1}, 16, v{g+1}")
        for i in range(4):
            a(f"    v_rcp_f32 v{d+i}, v{d+i}")
        a(f"    v_lshlrev_b32 v{H+2}, 16, v{g+2}")
        a(f"    v_lshlrev_b32 v{H+3}, 16, v{g+3}")
        a(f"    v_pk_fma_f32 v[{NUM}:{NUM+1}], v[{d}:{d+1}], v[{H}:{H+1}], v[{NUM}:{NUM+1}]")
        a(f"    v_pk_add_f32 v[{DEN}:{DEN+1}], v[{d}:{d+1}], v[{DEN}:{DEN+1}]")
        a(f"    v_pk_fma_f32 v[{NUM+2}:{NUM+3}], v[{d+2}:{d+3}], v[{H+2}:{H+3}], v[{NUM+2}:{NUM+3}]")
        a(f"    v_pk_add_f32 v[{DEN+2}:{DEN+3}], v[{d+2}:{d+3}], v[{DEN+2}:{DEN+3}]")
        a(f"    s_waitcnt lgkmcnt(0)")
        a(f"    buffer_load_dwordx4 v[{g}:{g+3}], v[{IDX}:{IDX+1}], s[{S_G}:{S_G+3}], 0 idxen offen {opt.gload}")
        a(f"    s_cbranch_scc1 L_SB{k}")
        a(f"L_RB{k}:")
        if k == R - 1:
            a(f"    v_add_u32 v2, {16*R}, v2")
            a(f"    v_add_u32 v3, v{INCE}, v3")
            if opt.prio:
                a(f"    s_sub_u32 s{S_BLK}, s{S_BLK}, 8")
                a(f"    s_cmp_gt_i32 s{S_BLK}, 30")
                a(f"    s_cbranch_scc1 L_LOOP")
                a(f"    s_setprio 2")
                a(f"    s_cmp_gt_i32 s{S_BLK}, 20")
                a(f"    s_cbranch_scc1 L_LOOP")
                a(f"    s_setprio 1")
                a(f"    s_cmp_gt_i32 s{S_BLK}, 10")
                a(f"    s_cbranch_scc1 L_LOOP")
                a(f"    s_setprio 0")
            a(f"    s_branch L_LOOP")
    for k in range(R):
        a(f"L_SA{k}:")
        a(f"    v_mov_b32 v{BOP+2}, v{ANX}")
        a(f"    s_nop 0")
        a(f"    s_branch L_RA{k}")
    for k in range(R):
        a(f"L_SB{k}:")
        for r in range(4):
            a(f"    v_permlane32_swap_b32 v{NUM+r}, v{DEN+r}")
        a(f"    v_pk_add_f32 v[{NUM}:{NUM+1}], v[{NUM}:{NUM+1}], v[{DEN}:{DEN+1}]")
        a(f"    v_pk_add_f32 v[{NUM+2}:{NUM+3}], v[{NUM+2}:{NUM+3}], v[{DEN+2}:{DEN+3}]")
        a(f"    s_add_u32 s{S_N}, s{S_N}, 1")
        a(f"    s_add_u32 s36, s{S_N}, 1")
        a(f"    v_permlane16_swap_b32 v{NUM}, v{NUM+2}")
        a(f"    v_permlane16_swap_b32 v{NUM+1}, v{NUM+3}")
        a(f"    v_readlane_b32 s37, v{QEND}, s{S_N}")
        a(f"    s_mul_i32 s36, s36, 272")
        a(f"    v_pk_add_f32 v[{DEN}:{DEN+1}], v[{NUM}:{NUM+1}], v[{NUM+2}:{NUM+3}]")
        a(f"    v_add_u32 v{TMP}, s36, v{APA}")
        a(f"    s_cmp_eq_u32 s{S_SEGEND}, s{S_TE}")
        a(f"    ds_write_b64 v{SLA}, v[{DEN}:{DEN+1}]")
        a(f"    s_cbranch_scc1 L_DONE")
        a(f"    ds_read_b32 v{ANX}, v{TMP}")
        a(f"    v_add_u32 v{SLA}, {SLOT_STR}, v{SLA}")
        a(f"    s_min_u32 s37, s37, s{S_TE}")
        for r in range(0, 8, 2):
            a(f"    v_pk_mov_b32 v[{NUM+r}:{NUM+r+1}], v[{A0+2}:{A0+3}], v[{A0+2}:{A0+3}] op_sel:[1,1]")
        a(f"    s_sub_u32 s{S_REM}, s37, s{S_SEGEND}")
        a(f"    s_sub_u32 s{S_REM}, s{S_REM}, 1")
        a(f"    s_mov_b32 s{S_SEGEND}, s37")
        a(f"    s_branch L_RB{k}")
    a("L_DONE:")
    if opt.prio:
        a("    s_setprio 0")
    stamp(a, 8)
    if PROF:
        a("    s_memtime s[30:31]")
        a("    s_waitcnt lgkmcnt(0)")
        a("    v_mov_b32 v123, s30")
        a("    v_sub_u32 v123, v123, v122")
    a(f"""    s_waitcnt vmcnt(0) lgkmcnt(0)
    s_barrier                               ; #7
    s_cmp_ge_u32 s3, 5
    s_cbranch_scc1 L_MERGED
    v_cvt_f32_u32 v16, s{S_Q}
    v_rcp_f32 v16, v16
    v_lshlrev_b32 v17, 4, v{QST}
    v_add_u32 v17, 16, v17
    v_cvt_f32_u32 v17, v17
    v_lshlrev_b32 v18, 4, v{QEND}
    v_cvt_f32_u32 v18, v18
    v_add_f32 v17, -0.5, v17
    v_add_f32 v18, -0.5, v18
    v_mul_f32 v17, v17, v16
    v_mul_f32 v18, v18, v16
    v_cvt_u32_f32 v17, v17
    v_cvt_u32_f32 v18, v18
    v_lshrrev_b32 v4, 3, v0                 ; node
    v_sub_u32 v18, v18, v17
    v_add_u32 v18, 1, v18
    v_add_u32 v17, v17, v{VL}
    v_lshl_or_b32 v17, v18, 16, v17
    v_lshlrev_b32 v5, 2, v4
    ds_bpermute_b32 v5, v5, v17
    v_and_b32 v6, 7, v0
    v_lshlrev_b32 v6, 4, v6
    s_mov_b32 s36, 0""")
    for r in range(0, 16, 2):
        a(f"    v_pk_mov_b32 v[{24+r}:{25+r}], v[{A0+2}:{A0+3}], v[{A0+2}:{A0+3}] op_sel:[1,1]")
    a(f"""    v_mul_u32_u24 v41, 272, v4
    v_lshl_add_u32 v41, v6, 1, v41
    v_add_u32 v41, {L_U}, v41
    s_waitcnt lgkmcnt(0)
    v_lshrrev_b32 v7, 16, v5
    v_and_b32 v5, 0xffff, v5
    v_lshl_add_u32 v5, v5, 9, v6
L_MERGE:
    v_cmp_lt_u32 vcc, s36, v7
    s_nop 1
    s_cmp_eq_u64 vcc, 0
    s_cbranch_scc1 L_MERGE_END
    s_mov_b64 exec, vcc
    ds_read_b128 v[8:11], v5 offset:{L_SLOT}
    ds_read_b128 v[12:15], v5 offset:{L_SLOT+128}
    ds_read_b128 v[16:19], v5 offset:{L_SLOT+256}
    ds_read_b128 v[20:23], v5 offset:{L_SLOT+384}
    v_add_u32 v5, {SLOT_STR}, v5
    s_add_u32 s36, s36, 1
    s_waitcnt lgkmcnt(0)""")
    for r in range(8):
        a(f"    v_pk_add_f32 v[{24+2*r}:{25+2*r}], v[{24+2*r}:{25+2*r}], v[{8+2*r}:{9+2*r}]")
    a(f"""    s_mov_b64 exec, -1
    s_branch L_MERGE
L_MERGE_END:
    s_or_b32 s36, s{S_RB}, s{S_MORE}
    s_cmp_eq_u32 s36, 0
    s_cbranch_scc1 L_MERGED
    s_mul_i32 s36, s2, {320*64}
    s_add_u32 s36, s36, {TOT_OFF}
    v_lshl_add_u32 v42, v0, 6, s36
    s_cmp_eq_u32 s{S_RB}, 0
    s_cbranch_scc1 L_NOPREV""")
    for r in range(4):
        a(f"    global_load_dwordx4 v[{8+4*r}:{11+4*r}], v42, s[26:27] offset:{16*r} sc1")
    a("    s_waitcnt vmcnt(0)")
    for r in range(8):
        a(f"    v_pk_add_f32 v[{24+2*r}:{25+2*r}], v[{24+2*r}:{25+2*r}], v[{8+2*r}:{9+2*r}]")
    a(f"""L_NOPREV:
    s_cmp_eq_u32 s{S_MORE}, 0
    s_cbranch_scc1 L_MERGED""")
    for r in range(4):
        a(f"    global_store_dwordx4 v42, v[{24+4*r}:{27+4*r}], s[26:27] offset:{16*r} sc1")
    a(f"""    s_waitcnt vmcnt(0)
L_MERGED:
    s_cmp_eq_u32 s{S_MORE}, 0
    s_cbranch_scc1 L_EPI
    s_add_u32 s{S_RB}, s{S_RB}, 32
    s_cmp_lg_u32 s3, 0
    s_cbranch_scc1 L_NOCLR
    v_mov_b32 v9, 0
    v_lshlrev_b32 v10, 2, v{VL}
    ds_write_b32 v10, v9 offset:{L_CNT}
    v_mov_b32 v10, {L_FLAG}
    ds_write_b32 v10, v9
L_NOCLR:
    s_lshl_b32 s30, s2, 12
    s_lshl_b32 s31, s3, 8
    s_add_u32 s30, s30, s31
    s_add_u32 s30, s30, {GRAN_OFF}
    v_lshl_add_u32 v2, v{VQ}, 6, s30""")
    for j in range(4):
        a(f"    global_load_dwordx4 v[{GR(j)}:{GR(j)+3}], v2, s[26:27] offset:{16*j} sc1")
    a(f"""    s_waitcnt vmcnt(0) lgkmcnt(0)
    s_barrier
    s_branch L_ROUND
L_EPI:
    s_cmp_ge_u32 s3, 5
    s_cbranch_scc1 L_FIN
    ds_read_b128 v[40:43], v41
    ds_read_b128 v[44:47], v41 offset:16
    s_mov_b32 s36, 0x358637bd               ; 1e-6""")
    nreg = [24, 25, 28, 29, 26, 27, 30, 31]
    dreg = [x + 8 for x in nreg]
    for c in range(8):
        a(f"    v_add_f32 v{dreg[c]}, s36, v{dreg[c]}")
        a(f"    v_rcp_f32 v{dreg[c]}, v{dreg[c]}")
    for c in range(8):
        xr = XR + c // 2
        if c % 2 == 0:
            a(f"    v_lshlrev_b32 v{8+c}, 16, v{xr}")
        else:
            a(f"    v_and_b32 v{8+c}, 0xffff0000, v{xr}")
    a("    s_waitcnt lgkmcnt(0)")
    for c in range(8):
        a(f"    v_fma_f32 v{40+c}, v{nreg[c]}, v{dreg[c]}, v{40+c}")
        a(f"    v_mul_f32 v{16+c}, 0, v{40+c}")
        a(f"    v_cmp_lt_f32 vcc, 0, v{40+c}")
        a(f"    s_nop 1")
        a(f"    v_cndmask_b32 v{40+c}, v{16+c}, v{40+c}, vcc")
        a(f"    v_add_f32 v{40+c}, v{8+c}, v{40+c}")
    for c in range(4):
        a(f"    v_cvt_pk_bf16_f32 v{16+c}, v{40+2*c}, v{41+2*c}")
    a(f"""    v_lshlrev_b32 v4, 4, v0
    s_mul_i32 s36, s2, {NPB*128}
    v_add_u32 v4, s36, v4
    global_store_dwordx4 v4, v[16:19], s[22:23]
    s_or_b32 s36, s2, s3
    s_cmp_lg_u32 s36, 0
    s_cbranch_scc1 L_FIN
    v_mov_b32 v4, {GEN_OFF}
    v_mov_b32 v6, s{S_TAG}
    v_mov_b32 v7, s{S_TAG+1}
    s_mov_b64 exec, 1
    global_store_dwordx2 v4, v[6:7], s[26:27]
L_FIN:""")
    stamp_flush(a, 9)
    a("""L_END:
    s_endpgm
""")

HEADER = """; GatedGCN edge-featured MPNN layer, one launch, one workgroup per 40 destination nodes.
"""

def main():
    global PROF
    ap = argparse.ArgumentParser()
    ap.add_argument("-o", default="standalone__edge_featured_mpnn_gatedgcn__graph.s")
    ap.add_argument("--store", default="sc1")
    ap.add_argument("--hload", default="sc1")
    ap.add_argument("--gload", default="")
    ap.add_argument("--prio", type=int, default=0)
    ap.add_argument("--prof", action="store_true")
    opt = ap.parse_args()
    PROF = opt.prof
    a = Asm()
    a(HEADER.rstrip())
    a(f"; @launch grid=({NB},1,1) block=(1024,1,1) lds={L_END}")
    a('.amdgcn_target "amdgcn-amd-amdhsa--gfx950"')
    a(".text")
    entry(a, opt)
    phase_a_bin(a, opt)
    phase_a_table(a, opt)
    phase_b(a, opt)
    a(f""".section .rodata,"a"
.p2align 6
.amdhsa_kernel {KNAME}
  .amdhsa_next_free_vgpr 128
  .amdhsa_next_free_sgpr {102 if PROF else 80}
  .amdhsa_accum_offset 128
  .amdhsa_group_segment_fixed_size 0
  .amdhsa_kernarg_size 96
  .amdhsa_user_sgpr_count 2
  .amdhsa_user_sgpr_kernarg_segment_ptr 1
  .amdhsa_system_sgpr_workgroup_id_x 1
  .amdhsa_float_denorm_mode_32 3
.end_amdhsa_kernel""")
    open(opt.o, "w").write(a.text())
    print("wrote", opt.o, "lds", L_END)

if __name__ == "__main__":
    main()
```

```python
import argparse, struct

KNAME = "standalone__edge_featured_mpnn_gatedgcn__graph_kernel"
N, D, E = 10000, 64, 640000
NB, NPB = 250, 40
CH = 2560
GEN_OFF, G_OFF, GF_OFF, GRAN_OFF, REC_OFF, TOT_OFF = 0, 0x1000, 0x274000, 0x280000, 0x380000, 0xD80000
PROF_OFF = 0x1300000
NLOG2E = 0xBFB8AA3B
BIG, NBIG = 0x71800000, 0xF1800000
SHIFT = 60
C60 = (127 - SHIFT) << 23
EPS60 = struct.unpack("<I", struct.pack("<f", 1e-6 * 2.0 ** SHIFT))[0]
FSHIFT = struct.unpack("<I", struct.pack("<f", -float(SHIFT)))[0]
NWV = 16
POLL_LIMIT = 1 << 17
CHN = [0, 2, 1, 3]

SLOT_STR = 512
L_SLOT = 0
L_CNT = L_SLOT + (NPB + NWV) * SLOT_STR
L_ZREG = L_CNT + 256
L_FLAG = L_ZREG + 512
L_GCNT = L_FLAG + 4
L_ZEND = L_FLAG + 16
L_WCB = 29504
L_AP = 30080
L_U = L_AP + 48 * 272
L_SRC = L_U + 48 * 272
NSLOT = 250 * 32 + 320 + 64
L_E = L_SRC + NSLOT * 4
L_END = L_E + NSLOT * 8
A_HIST = L_SRC
A_OFFS = A_HIST + 1024
A_REC = A_OFFS + 1024
A_W = A_REC + CH * 16
WIMG = 64 * 144
A_X = A_W + 4 * WIMG
A_G = A_X + 48 * 144
assert A_G + 48 * 272 <= L_END <= 163840
assert all(x % 16 == 0 for x in (L_WCB, L_AP, L_U, L_SRC, L_E, A_REC, A_W, A_X, A_G))

SLA, TMP, INCE, APA = 88, 89, 90, 91
IDXA, IDXB = 92, 94
AC, A0, A1, ANX = 96, 100, 104, 108
XR = 112
QEND, QST = 116, 117
WC = 118
EB, EM, SRB, SLB = 120, 121, 122, 123
VPROF = 124
VI, VQ, VL = 125, 126, 127
S_TAG = 28
S_REC = 40
S_G = 44
M0, M1 = 48, 56
S_INV = 64
S_RB, S_MORE, S_P, S_TS, S_TE, S_N, S_SEGEND, S_REM = 68, 69, 70, 71, 72, 73, 74, 75
S_BLK, S_TAG8 = 76, 77
S_C60 = 78
P0M, P1M = 80, 88

class Asm:
    def __init__(self): self.l = []
    def __call__(self, s=""):
        self.l.extend(s.split("\n"))
    def text(self): return "\n".join(self.l) + "\n"

PROF = False
def stamp(a, idx):
    if PROF:
        a(f"    s_memrealtime s[96:97]")
        a(f"    s_waitcnt lgkmcnt(0)")
        a(f"    v_writelane_b32 v{VPROF}, s96, {idx}")

def cstamp(a, idx):
    if PROF:
        a(f"    s_memtime s[96:97]")
        a(f"    s_waitcnt lgkmcnt(0)")
        a(f"    v_writelane_b32 v{VPROF}, s96, {idx}")

def stamp_flush(a):
    if not PROF: return
    stamp(a, 9)
    a(f"""    s_waitcnt vmcnt(0) lgkmcnt(0)
    s_mov_b64 exec, 0xffff
    s_lshl_b32 s30, s2, 4
    s_add_u32 s30, s30, s3
    s_lshl_b32 s30, s30, 6
    s_add_u32 s30, s30, {PROF_OFF}
    v_lshl_add_u32 v2, v{VL}, 2, s30
    global_store_dword v2, v{VPROF}, s[26:27]
    s_waitcnt vmcnt(0)""")

def dpp_scan(a, v):
    for sh in (1, 2, 4, 8):
        a(f"    s_nop 1")
        a(f"    v_add_u32_dpp v{v}, v{v}, v{v} row_shr:{sh} row_mask:0xf bank_mask:0xf bound_ctrl:0")
    a("    s_nop 1")
    a(f"    v_add_u32_dpp v{v}, v{v}, v{v} row_bcast:15 row_mask:0xa bank_mask:0xf")
    a("    s_nop 1")
    a(f"    v_add_u32_dpp v{v}, v{v}, v{v} row_bcast:31 row_mask:0xc bank_mask:0xf")
    a("    s_nop 1")

def entry(a, opt):
    a(f"""
.globl {KNAME}
.p2align 8
.type {KNAME},@function
{KNAME}:
    s_cmp_ge_u32 s2, {NB}
    s_cbranch_scc1 L_END
    s_load_dwordx16 s[4:19], s[0:1], 0
    s_load_dwordx8 s[20:27], s[0:1], 64
    v_lshrrev_b32 v1, 6, v0
    v_and_b32 v{VL}, 63, v0
    v_readfirstlane_b32 s3, v1
    v_lshrrev_b32 v{VQ}, 4, v{VL}
    v_and_b32 v{VI}, 15, v{VL}
    v_lshlrev_b32 v{IDXA+1}, 4, v{VI}
    v_mov_b32 v{IDXB+1}, v{IDXA+1}
    v_and_b32 v2, 3, v{VI}                  ; r
    v_lshrrev_b32 v3, 2, v{VI}              ; e
    v_cmp_eq_u32 vcc, v2, v{VQ}
    v_lshlrev_b32 v4, 3, v3
    v_add_u32 v4, {L_E}, v4
    v_mov_b32 v5, {L_ZREG}
    v_cndmask_b32 v{EB}, v5, v4, vcc
    v_mov_b32 v5, 32
    v_cndmask_b32 v{EM}, 0, v5, vcc
    v_lshlrev_b32 v{INCE}, 3, v{EM}
    v_cmp_eq_u32 vcc, v3, v{VQ}
    v_mov_b32 v5, 0x3f80
    v_lshrrev_b32 v6, 1, v2
    v_lshlrev_b32 v6, 4, v6
    v_lshlrev_b32 v5, v6, v5
    v_cndmask_b32 v5, 0, v5, vcc
    v_and_b32 v6, 1, v2                     ; r%2: 0 -> first register, 1 -> second
    v_cmp_eq_u32 vcc, 0, v6
    v_lshlrev_b32 v{APA}, 4, v{VI}
    v_add_u32 v{APA}, {L_AP}, v{APA}
    v_cndmask_b32 v{A0+2}, 0, v5, vcc
    v_cndmask_b32 v{A0+3}, v5, 0, vcc
    v_mov_b32 v{A1+2}, v{A0+2}
    v_mov_b32 v{A1+3}, v{A0+3}
    v_lshlrev_b32 v{SLB}, 3, v{VL}
    v_lshlrev_b32 v{SRB}, 2, v{VQ}
    v_add_u32 v{SRB}, {L_SRC}, v{SRB}
    s_mov_b32 s{S_RB}, 0
    s_mov_b32 s{S_C60}, {C60:#x}
    s_mov_b32 s{S_C60+1}, {C60:#x}
    s_cmp_eq_u32 s3, 15
    s_cselect_b32 s{S_INV+1}, 0xffff0000, 0
    s_cselect_b32 s{S_INV+3}, -1, 0
    s_mov_b32 s{S_INV}, 0
    s_mov_b32 s{S_INV+2}, 0""")
    stamp(a, 0)
    a(f"""    s_cmp_ge_u32 s3, 10
    s_cbranch_scc1 L_TABLE""")

def phase_a_bin(a, opt):
    st = opt.store
    KEY = lambda j: 24 + 2 * j
    a(f"""    ; ================= phase A, binning waves (tid < 640)
    s_mul_i32 s30, s2, {CH*4}
    v_lshlrev_b32 v2, 4, v0
    v_add_u32 v3, s30, v2
    s_lshl_b32 s31, s30, 1
    v_lshlrev_b32 v4, 5, v0
    v_add_u32 v4, s31, v4
    s_mul_i32 s32, s2, {NPB*128}
    v_add_u32 v5, s32, v2
    v_mov_b32 v6, 0
    v_lshlrev_b32 v7, 2, v0
    s_waitcnt lgkmcnt(0)""")
    stamp(a, 1)
    a(f"""    s_cmp_ge_u32 s3, 5
    s_cbranch_scc1 L_NOXR
    global_load_dwordx4 v[{XR}:{XR+3}], v5, s[4:5]
    global_load_dword v{TMP}, v5, s[22:23]
L_NOXR:
    global_load_dwordx4 v[8:11], v3, s[10:11]
    global_load_dwordx4 v[12:15], v3, s[8:9]
    global_load_dwordx4 v[16:19], v4, s[6:7]
    global_load_dwordx4 v[20:23], v4, s[6:7] offset:16
    s_load_dwordx2 s[{S_TAG}:{S_TAG+1}], s[26:27], {GEN_OFF}
    s_cmp_ge_u32 s3, 4
    s_cbranch_scc1 L_NOZH
    ds_write_b32 v7, v6 offset:{A_HIST}
L_NOZH:
    s_cmp_lg_u32 s3, 4
    s_cbranch_scc1 L_NOZC
    v_mov_b32 v24, 0
    v_mov_b32 v25, 0
    v_mov_b32 v26, 0
    v_mov_b32 v27, 0
    v_lshlrev_b32 v28, 4, v{VL}
    v_cmp_gt_u32 vcc, {(L_ZEND-L_CNT)//16}, v{VL}
    s_and_saveexec_b64 s[34:35], vcc
    ds_write_b128 v28, v[24:27] offset:{L_CNT}
    s_mov_b64 exec, s[34:35]
L_NOZC:
    s_mov_b32 s33, 52429
    s_movk_i32 s34, 0xffd8                  ; -40
    v_mov_b32 v7, 1
    s_waitcnt lgkmcnt(0)
    s_add_u32 s{S_TAG}, s{S_TAG}, 1
    s_addc_u32 s{S_TAG+1}, s{S_TAG+1}, 0
    s_and_b32 s{S_TAG8}, s{S_TAG+1}, 0xff
    s_lshl_b32 s35, s{S_TAG8}, 24""")
    for j in range(4):
        a(f"    v_mov_b32 v{KEY(j)+1}, s{S_TAG}")
    a(f"""    s_barrier                               ; #1
    s_waitcnt vmcnt(3)""")
    stamp(a, 2)
    for j in range(4):
        a(f"    v_mul_u32_u24 v{32+j}, s33, v{8+j}")
        a(f"    v_lshrrev_b32 v{32+j}, 21, v{32+j}          ; bucket")
        a(f"    v_mad_i32_i24 v{8+j}, v{32+j}, s34, v{8+j}")
        a(f"    v_lshrrev_b32 v{40+j}, 3, v{32+j}")
        a(f"    v_and_b32 v{32+j}, 7, v{32+j}")
        a(f"    v_lshl_or_b32 v{32+j}, v{32+j}, 5, v{40+j}")
        a(f"    v_lshlrev_b32 v{32+j}, 2, v{32+j}")
        a(f"    ds_add_rtn_u32 v{36+j}, v{32+j}, v7 offset:{A_HIST}")
    a("    s_waitcnt vmcnt(2)")
    for j in range(4):
        a(f"    v_lshl_or_b32 v{8+j}, v{8+j}, 2, s35")
        a(f"    v_lshl_or_b32 v{KEY(j)}, v{12+j}, 8, v{8+j}")
    a(f"""    v_lshlrev_b32 v2, 4, v{VL}
    s_waitcnt lgkmcnt(0)
    s_barrier                               ; #2
    ds_read_b128 v[40:43], v2 offset:{A_HIST}
    s_mul_i32 s36, s2, {CH*16}
    s_waitcnt lgkmcnt(0)
    v_add_u32 v44, v40, v41
    v_add_u32 v45, v44, v42
    v_add_u32 v46, v45, v43
    v_mov_b32 v47, v46""")
    dpp_scan(a, 47)
    a(f"""    v_sub_u32 v48, v47, v46
    v_add_u32 v49, v48, v40
    v_add_u32 v50, v48, v44
    v_add_u32 v51, v48, v45
    ds_write_b128 v2, v[48:51] offset:{A_OFFS}
    ; run table entry of bucket b = 64*wave + lane (waves 0..3): {{offset, count, tag}} at [b/8][w][b%8]
    s_and_b32 s37, s3, 3
    s_lshl_b32 s38, s37, 8
    v_lshl_add_u32 v50, v{VL}, 2, s38       ; 4*b
    s_lshl_b32 s37, s37, 18
    s_lshl_b32 s38, s2, 7
    s_add_u32 s37, s37, s38
    s_add_u32 s37, s37, {GRAN_OFF}
    v_lshrrev_b32 v51, 3, v{VL}
    v_lshl_add_u32 v51, v51, 15, s37
    v_and_b32 v52, 7, v{VL}
    v_lshl_add_u32 v51, v52, 4, v51
    v_mov_b32 v54, s{S_TAG}
    v_mov_b32 v55, s{S_TAG+1}
    s_waitcnt lgkmcnt(0)
    ds_read_b32 v52, v50 offset:{A_OFFS}
    ds_read_b32 v53, v50 offset:{A_HIST}""")
    for j in range(4):
        a(f"    ds_read_b32 v{44+j}, v{32+j} offset:{A_OFFS}")
    a(f"    s_mov_b32 s38, {A_REC}")
    a("    s_waitcnt lgkmcnt(0)")
    a("    v_lshl_add_u32 v52, v52, 4, s36")
    for j in range(4):
        a(f"    v_add_u32 v{44+j}, v{44+j}, v{36+j}")
        a(f"    v_lshl_add_u32 v{44+j}, v{44+j}, 4, s38")
    a(f"""    s_waitcnt vmcnt(0)""")
    for j in range(4):
        a(f"    ds_write_b64 v{44+j}, v[{16+2*j}:{17+2*j}]")
        a(f"    ds_write_b64 v{44+j}, v[{KEY(j)}:{KEY(j)+1}] offset:8")
    a(f"""    v_lshl_add_u32 v2, v0, 4, s38
    s_add_u32 s30, s26, {REC_OFF}
    s_addc_u32 s31, s27, 0
    v_lshl_add_u32 v3, v0, 4, s36
    v_add_u32 v4, 10240, v3
    v_add_u32 v5, 20480, v3
    v_add_u32 v6, 30720, v3
    s_waitcnt lgkmcnt(0)
    s_barrier                               ; #3""")
    stamp(a, 3)
    for j in range(4):
        a(f"    ds_read_b128 v[{32+4*j}:{35+4*j}], v2 offset:{j*10240}")
    for j in range(4):
        a(f"    s_waitcnt lgkmcnt({3-j})")
        a(f"    global_store_dwordx4 v{3+j}, v[{32+4*j}:{35+4*j}], s[30:31] {st}")
    a(f"""    s_barrier
    s_cmp_ge_u32 s3, 4
    s_cbranch_scc1 L_PHASEB
    global_store_dwordx4 v51, v[52:55], s[26:27] {st}
    s_branch L_PHASEB""")

def tile_mfma(a, acc0, wreg, xreg):
    for mat in range(2):
        acc = acc0 + 4 * mat
        r0, r1 = wreg + mat * 8, wreg + mat * 8 + 4
        a(f"    v_mfma_f32_16x16x32_bf16 v[{acc}:{acc+3}], v[{r0}:{r0+3}], v[{xreg}:{xreg+3}], 0")
        a(f"    v_mfma_f32_16x16x32_bf16 v[{acc}:{acc+3}], v[{r1}:{r1+3}], v[{xreg+4}:{xreg+7}], v[{acc}:{acc+3}]")

def phase_a_table(a, opt):
    st = opt.store
    wp = [14, 20, 12, 18]
    a(f"""L_TABLE:
    s_sub_u32 s36, s3, 10                   ; u
    s_and_b32 s37, s36, 1
    s_add_u32 s38, s37, 6
    v_lshlrev_b32 v2, 4, v{VL}
    s_lshl_b32 s30, s36, 10
    v_add_u32 v3, s30, v2                   ; piece u
    s_lshl_b32 s31, s38, 10
    v_add_u32 v4, s31, v2                   ; piece 6/7
    s_mul_i32 s32, s2, {NPB*128}
    v_add_u32 v5, s32, v3                   ; x offset
    v_lshrrev_b32 v6, 3, v{VL}
    v_mul_u32_u24 v6, 144, v6
    v_and_b32 v7, 7, v{VL}
    v_lshl_add_u32 v6, v7, 4, v6
    s_mul_i32 s33, s36, {8*144}
    s_add_u32 s33, s33, {A_W}
    v_add_u32 v48, s33, v6
    s_mul_i32 s33, s38, {8*144}
    s_add_u32 s33, s33, {A_W}
    v_add_u32 v49, s33, v6
    v_lshrrev_b32 v50, 1, v{VQ}
    v_and_b32 v51, 1, v{VQ}
    v_lshl_or_b32 v50, v51, 1, v50
    v_lshl_add_u32 v50, v{VI}, 2, v50
    v_lshlrev_b32 v50, 1, v50
    s_waitcnt lgkmcnt(0)""")
    stamp(a, 1)
    for m in range(4):
        a(f"    global_load_dwordx4 v[{8+8*m}:{11+8*m}], v3, s[{wp[m]}:{wp[m]+1}]")
        a(f"    global_load_dwordx4 v[{12+8*m}:{15+8*m}], v4, s[{wp[m]}:{wp[m]+1}]")
    a(f"""    s_load_dwordx2 s[{S_TAG}:{S_TAG+1}], s[26:27], {GEN_OFF}
    s_cmp_eq_u32 s36, 5
    s_cbranch_scc1 L_TWC
    global_load_dwordx4 v[40:43], v5, s[4:5]
    s_waitcnt vmcnt(0)
    ds_write_b128 v48, v[40:43] offset:{A_X - A_W}
    s_branch L_TST
L_TWC:
    global_load_ushort v40, v50, s[16:17]
    global_load_ushort v41, v50, s[16:17] offset:128
    global_load_ushort v42, v50, s[16:17] offset:256
    global_load_ushort v43, v50, s[16:17] offset:384
    s_mov_b32 s33, {NLOG2E:#x}
    v_lshlrev_b32 v44, 3, v{VL}
    s_waitcnt vmcnt(0)
    v_lshlrev_b32 v40, 16, v40
    v_lshlrev_b32 v41, 16, v41
    v_lshlrev_b32 v42, 16, v42
    v_lshlrev_b32 v43, 16, v43
    v_mul_f32 v40, s33, v40
    v_mul_f32 v41, s33, v41
    v_mul_f32 v42, s33, v42
    v_mul_f32 v43, s33, v43
    v_cvt_pk_bf16_f32 v40, v40, v41
    v_cvt_pk_bf16_f32 v41, v42, v43
    ds_write_b64 v44, v[40:41] offset:{L_WCB}
L_TST:""")
    for m in range(4):
        a(f"    ds_write_b128 v48, v[{8+8*m}:{11+8*m}] offset:{m*WIMG}")
        a(f"    ds_write_b128 v49, v[{12+8*m}:{15+8*m}] offset:{m*WIMG}")
    a(f"""    ; tile job: nt = u/2, mt in {{2*(u%2), 2*(u%2)+1}}
    s_lshr_b32 s30, s36, 1                  ; nt
    s_lshl_b32 s31, s37, 1                  ; mt0
    s_lshl_b32 s32, s30, 4
    v_add_u32 v4, s32, v{VI}                ; node
    v_mul_u32_u24 v5, 144, v4
    v_lshl_add_u32 v5, v{VQ}, 4, v5
    v_add_u32 v5, {A_X}, v5
    v_lshrrev_b32 v6, 2, v{VI}
    v_lshl_add_u32 v6, v{VQ}, 3, v6
    v_mul_u32_u24 v6, 144, v6
    v_and_b32 v7, 3, v{VI}
    v_lshl_add_u32 v6, v7, 3, v6
    s_lshl_b32 s32, s31, 5
    s_add_u32 s32, s32, {A_W}
    v_add_u32 v6, s32, v6
    v_mul_u32_u24 v7, 272, v4
    v_lshl_add_u32 v50, v{VQ}, 4, v7
    s_lshl_b32 s32, s31, 6
    v_add_u32 v50, s32, v50
    v_add_u32 v51, {L_AP}, v50
    v_add_u32 v52, {A_G}, v50
    v_add_u32 v53, {L_U}, v50
    s_waitcnt lgkmcnt(0)
    s_add_u32 s{S_TAG}, s{S_TAG}, 1
    s_addc_u32 s{S_TAG+1}, s{S_TAG+1}, 0
    s_and_b32 s{S_TAG8}, s{S_TAG+1}, 0xff
    s_barrier                               ; #1
    ds_read_b128 v[8:11], v5
    ds_read_b128 v[12:15], v5 offset:64""")
    def wfrags(first):
        for m in range(2):
            for mat in range(2):
                for ks in range(2):
                    r = 16 + m * 16 + mat * 8 + ks * 4
                    for h in range(2):
                        a(f"    ds_read_b64_tr_b16 v[{r+2*h}:{r+2*h+1}], v6 offset:{(first+mat)*WIMG + ks*4608 + h*576 + m*32}")
    wfrags(0)
    a("    s_waitcnt lgkmcnt(0)")
    for m in range(2):
        tile_mfma(a, 56 + 8 * m, 16 + 16 * m, 8)
    a(f"""    s_barrier                               ; #2
    s_mov_b32 s32, {NLOG2E:#x}
    s_mov_b32 s33, {BIG:#x}
    s_mov_b32 s34, 0x8000
    v_mov_b32 v54, {NBIG:#x}
    s_nop 4""")
    for m in range(2):
        accb, accv = 56 + 8 * m, 60 + 8 * m
        for r in range(4):
            a(f"    v_mul_f32 v{accb+r}, s32, v{accb+r}")
            a(f"    v_med3_f32 v{accb+r}, v{accb+r}, v54, s33")
        a(f"    v_cvt_pk_bf16_f32 v24, v{accb}, v{accb+1}")
        a(f"    v_cvt_pk_bf16_f32 v25, v{accb+2}, v{accb+3}")
        for p in range(2):
            lo, hi = accv + 2 * p, accv + 2 * p + 1
            a(f"    v_cvt_pk_bf16_f32 v16, v{lo}, v{lo}")
            a(f"    v_and_b32 v16, 0xffff, v16")
            a(f"    v_and_b32 v22, 0x7fffffff, v{hi}")
            a(f"    v_and_b32 v{hi}, 0x80000000, v{hi}")
            a(f"    v_sub_u32 v22, v22, v16")
            a(f"    v_add_u32 v22, s34, v22")
            a(f"    v_max_i32 v22, 0, v22")
            a(f"    v_and_b32 v22, 0xffff0000, v22")
            a(f"    v_or3_b32 v{26+p}, v22, v16, v{hi}")
        a(f"    ds_write_b128 v52, v[24:27] offset:{m*64}")
    wfrags(2)
    a("    s_waitcnt lgkmcnt(0)")
    for m in range(2):
        tile_mfma(a, 56 + 8 * m, 16 + 16 * m, 8)
    a(f"""    s_mov_b32 s34, {FSHIFT:#x}
    s_nop 6""")
    for m in range(2):
        acca, accu = 56 + 8 * m, 60 + 8 * m
        a(f"    ds_write_b128 v53, v[{accu}:{accu+3}] offset:{m*64}")
        for r in range(4):
            a(f"    v_mul_f32 v{acca+CHN[r]}, s32, v{acca+CHN[r]}")
            a(f"    v_med3_f32 v{acca+CHN[r]}, v{acca+CHN[r]}, v54, s33")
            a(f"    v_add_f32 v{16+r}, s34, v{acca+CHN[r]}")
        a(f"    ds_write_b128 v51, v[16:19] offset:{m*64}")
    a(f"""    s_waitcnt lgkmcnt(0)
    s_barrier                               ; #3
    s_lshl_b32 s30, s36, 6
    v_add_u32 v2, s30, v{VL}                ; t2
    v_lshrrev_b32 v3, 4, v2
    v_mul_u32_u24 v3, 272, v3
    v_lshl_add_u32 v3, v{VI}, 4, v3
    v_add_u32 v3, {A_G}, v3
    ds_read_b128 v[16:19], v3
    s_mul_i32 s31, s2, {NPB*256}
    s_add_u32 s31, s31, {G_OFF}
    v_lshl_add_u32 v4, v2, 4, s31
    s_cmp_ge_u32 s36, 4
    s_cbranch_scc1 L_TG1
    ds_read_b128 v[20:23], v3 offset:{24*272}
    v_add_u32 v7, {384*16}, v4
    s_waitcnt lgkmcnt(0)
    global_store_dwordx4 v7, v[20:23], s[26:27] {st}
L_TG1:
    s_waitcnt lgkmcnt(0)
    global_store_dwordx4 v4, v[16:19], s[26:27] {st}
    s_cmp_lg_u32 s2, {NB-1}
    s_cbranch_scc1 L_TAU
    s_cmp_lg_u32 s36, 5
    s_cbranch_scc1 L_TAU
    v_mov_b32 v20, 0x71807180
    v_mov_b32 v21, v20
    v_mov_b32 v22, 0
    v_mov_b32 v23, 0
    v_lshlrev_b32 v7, 4, v{VL}
    v_add_u32 v7, {N*256 + G_OFF}, v7
    s_mov_b64 exec, 0xffff
    global_store_dwordx4 v7, v[20:23], s[26:27] {st}
    s_mov_b64 exec, -1
L_TAU:
    s_barrier                               ; #4""")
    a(f"""    ; the table rows of this workgroup are complete: the last table wave publishes the flag
    v_mov_b32 v16, {L_GCNT}
    v_mov_b32 v17, 1
    s_waitcnt vmcnt(0)
    s_mov_b64 exec, 1
    ds_add_rtn_u32 v18, v16, v17
    s_waitcnt lgkmcnt(0)
    v_readfirstlane_b32 s30, v18
    s_mov_b64 exec, -1
    s_cmp_lg_u32 s30, 5
    s_cbranch_scc1 L_PHASEB
    s_lshl_b32 s30, s2, 4
    s_add_u32 s30, s30, {GF_OFF}
    v_mov_b32 v16, s30
    v_mov_b32 v18, s{S_TAG}
    v_mov_b32 v19, s{S_TAG+1}
    s_mov_b64 exec, 1
    global_store_dwordx2 v16, v[18:19], s[26:27] {st}
    s_mov_b64 exec, -1""")

def gran_addr(a):
    a(f"""    s_and_b32 s30, s2, 7
    s_lshl_b32 s30, s30, 5
    s_lshr_b32 s31, s2, 3
    s_or_b32 s31, s30, s31                  ; h
    s_lshr_b32 s30, s31, 3
    s_lshl_b32 s30, s30, 15
    s_and_b32 s31, s31, 7
    s_lshl_b32 s31, s31, 4
    s_add_u32 s30, s30, s31
    s_lshl_b32 s31, s3, 11
    s_add_u32 s30, s30, s31
    s_add_u32 s30, s30, {GRAN_OFF}
    v_lshl_add_u32 v2, v{VQ}, 9, s30""")

def phase_b(a, opt):
    GR = lambda j: 8 + 4 * j
    rec = lambda h, j: 24 + 16 * h + 4 * j
    RANK, DL = 56, 64
    msk = lambda h, j: (M0 if h == 0 else M1) + 2 * j
    pnd = lambda h, j: (P0M if h == 0 else P1M) + 2 * j
    inv = lambda j: S_INV + (2 if j >= 2 else 0)
    a("L_PHASEB:")
    stamp(a, 4)
    a(f"""    ; ================= phase B: wait for the run table entries of this bucket
    v_lshlrev_b32 v2, 3, v{VL}
    ds_read_b64 v[{WC}:{WC+1}], v2 offset:{L_WCB}""")
    gran_addr(a)
    a(f"""    s_add_u32 s{S_REC}, s26, {REC_OFF}
    s_addc_u32 s{S_REC+1}, s27, 0
    s_mov_b32 s{S_REC+2}, {E*16}
    s_mov_b32 s{S_REC+3}, 0x20000
    s_add_u32 s{S_G}, s26, {G_OFF}
    s_addc_u32 s{S_G+1}, s27, 0
    s_or_b32 s{S_G+1}, s{S_G+1}, 0x01000000  ; stride 256
    s_mov_b32 s{S_G+2}, {N+1}
    s_mov_b32 s{S_G+3}, 0x20000
    s_mov_b32 s33, 0""")
    for j in range(4):
        a(f"    s_not_b64 s[{pnd(0,j)}:{pnd(0,j)+1}], s[{inv(j)}:{inv(j)+1}]")
    a("L_POLL:")
    for j in range(4):
        p = pnd(0, j)
        a(f"    s_mov_b64 exec, s[{p}:{p+1}]")
        a(f"    s_cbranch_execz L_NP{j}")
        a(f"    global_load_dwordx4 v[{GR(j)}:{GR(j)+3}], v2, s[26:27] offset:{128*j} sc1")
        a(f"L_NP{j}:")
    a("    s_waitcnt vmcnt(0)")
    for j in range(4):
        p = pnd(0, j)
        a(f"    s_mov_b64 exec, s[{p}:{p+1}]")
        a(f"    v_cmp_eq_u64 vcc, v[{GR(j)+2}:{GR(j)+3}], s[{S_TAG}:{S_TAG+1}]")
        a(f"    s_nop 0")
        a(f"    s_andn2_b64 s[{p}:{p+1}], s[{p}:{p+1}], vcc")
    a(f"""    s_mov_b64 exec, -1
    s_or_b64 s[34:35], s[{pnd(0,0)}:{pnd(0,0)+1}], s[{pnd(0,1)}:{pnd(0,1)+1}]
    s_or_b64 s[36:37], s[{pnd(0,2)}:{pnd(0,2)+1}], s[{pnd(0,3)}:{pnd(0,3)+1}]
    s_or_b64 s[34:35], s[34:35], s[36:37]
    s_cbranch_scc0 L_READY
    s_add_u32 s33, s33, 1
    s_cmp_ge_u32 s33, {POLL_LIMIT}
    s_cbranch_scc1 L_END
    s_sleep {opt.sleep}
    s_branch L_POLL
L_READY:""")
    stamp(a, 5)
    a(f"""L_ROUND:
    v_add_u32 v2, s{S_RB}, v{VI}
    v_add_u32 v3, 16, v2
    v_lshlrev_b32 v4, 4, v2""")
    for j in range(4):
        a(f"    v_cmp_gt_u32 s[{msk(0,j)}:{msk(0,j)+1}], v{GR(j)+1}, v2")
        a(f"    v_cmp_gt_u32 s[{msk(1,j)}:{msk(1,j)+1}], v{GR(j)+1}, v3")
        a(f"    v_add_u32 v{GR(j)+2}, v{GR(j)}, v4")
    a(f"    s_add_u32 s30, s{S_RB}, 32")
    for j in range(4):
        a(f"    s_andn2_b64 s[{msk(0,j)}:{msk(0,j)+1}], s[{msk(0,j)}:{msk(0,j)+1}], s[{inv(j)}:{inv(j)+1}]")
        a(f"    s_mov_b64 s[{pnd(0,j)}:{pnd(0,j)+1}], s[{msk(0,j)}:{msk(0,j)+1}]")
        a(f"    s_andn2_b64 s[{msk(1,j)}:{msk(1,j)+1}], s[{msk(1,j)}:{msk(1,j)+1}], s[{inv(j)}:{inv(j)+1}]")
        a(f"    s_mov_b64 s[{pnd(1,j)}:{pnd(1,j)+1}], s[{msk(1,j)}:{msk(1,j)+1}]")
        a(f"    s_cbranch_scc0 L_NMORE{j}")
        a(f"    s_mov_b64 exec, s[{msk(1,j)}:{msk(1,j)+1}]")
        a(f"    v_cmp_lt_u32 vcc, s30, v{GR(j)+1}")
        a(f"    s_mov_b64 exec, -1")
        a(f"    s_cmp_eq_u64 vcc, 0")
        a(f"    s_cbranch_scc1 L_NMORE{j}")
        a(f"    v_mov_b32 v5, {L_FLAG}")
        a(f"    v_mov_b32 v6, 1")
        a(f"    ds_write_b32 v5, v6")
        a(f"L_NMORE{j}:")
    a(f"""    s_mov_b32 s33, 0
L_RLOAD:""")
    for h in range(2):
        for j in range(4):
            p = pnd(h, j)
            a(f"    s_cmp_eq_u64 s[{p}:{p+1}], 0")
            a(f"    s_cbranch_scc1 L_NL{h}{j}")
            a(f"    s_mov_b64 exec, s[{p}:{p+1}]")
            off = " offset:256" if h else ""
            a(f"    buffer_load_dwordx4 v[{rec(h,j)}:{rec(h,j)+3}], v{GR(j)+2}, s[{S_REC}:{S_REC+3}], 0 offen{off} {opt.hload}")
            a(f"L_NL{h}{j}:")
    a("    s_waitcnt vmcnt(0)")
    for h in range(2):
        for j in range(4):
            p = pnd(h, j)
            r = rec(h, j)
            a(f"    s_cmp_eq_u64 s[{p}:{p+1}], 0")
            a(f"    s_cbranch_scc1 L_NC{h}{j}")
            a(f"    s_mov_b64 exec, s[{p}:{p+1}]")
            a(f"    v_cmp_eq_u32 vcc, s{S_TAG}, v{r+3}")
            a(f"    v_cmp_eq_u32_sdwa s[34:35], v{r+2}, s{S_TAG8} src0_sel:BYTE_3 src1_sel:DWORD")
            a(f"    s_nop 0")
            a(f"    s_and_b64 s[34:35], s[34:35], vcc")
            a(f"    s_andn2_b64 s[{p}:{p+1}], s[{p}:{p+1}], s[34:35]")
            a(f"L_NC{h}{j}:")
    a(f"    s_mov_b64 exec, -1")
    a(f"    s_or_b64 s[34:35], s[{pnd(0,0)}:{pnd(0,0)+1}], s[{pnd(0,1)}:{pnd(0,1)+1}]")
    for h in range(2):
        for j in range(4):
            if (h, j) in ((0, 0), (0, 1)): continue
            a(f"    s_or_b64 s[34:35], s[34:35], s[{pnd(h,j)}:{pnd(h,j)+1}]")
    a(f"""    s_cbranch_scc0 L_HAVE
    s_add_u32 s33, s33, 1
    s_cmp_ge_u32 s33, {POLL_LIMIT}
    s_cbranch_scc1 L_END
    s_sleep {opt.sleep}
    s_branch L_RLOAD
L_HAVE:""")
    stamp(a, 6)
    a(f"""    ; table-row flags of this wave's 16 producers: loaded now, checked before the first gather
    s_lshl_b32 s30, s3, 8
    s_add_u32 s30, s30, {GF_OFF}
    v_lshl_add_u32 v20, v{VI}, 4, s30
    global_load_dwordx2 v[22:23], v20, s[26:27] sc1
    v_mov_b32 v7, 1""")
    for h in range(2):
        for j in range(4):
            m = msk(h, j)
            if h == 1:
                a(f"    s_cmp_eq_u64 s[{m}:{m+1}], 0")
                a(f"    s_cbranch_scc1 L_NB1R{j}")
            a(f"    s_mov_b64 exec, s[{m}:{m+1}]")
            a(f"    v_and_b32 v{DL+4*h+j}, 0xff, v{rec(h,j)+2}")
            a(f"    ds_add_rtn_u32 v{RANK+4*h+j}, v{DL+4*h+j}, v7 offset:{L_CNT}")
            if h == 1:
                a(f"L_NB1R{j}:")
    a(f"""    s_mov_b64 exec, -1
    v_lshlrev_b32 v4, 2, v{VL}
    v_mov_b32 v6, {L_FLAG}
    v_cmp_gt_u32 vcc, {NPB}, v{VL}
    s_waitcnt lgkmcnt(0)
    s_barrier                               ; #5
    ds_read_b32 v5, v4 offset:{L_CNT}
    ds_read_b32 v6, v6
    s_waitcnt lgkmcnt(0)
    v_add_u32 v4, 7, v5
    v_lshrrev_b32 v4, 3, v4
    v_max_u32 v4, 1, v4
    v_cndmask_b32 v4, 0, v4, vcc
    v_readfirstlane_b32 s{S_MORE}, v6
    v_mov_b32 v{QEND}, v4""")
    dpp_scan(a, QEND)
    a(f"""    v_sub_u32 v{QST}, v{QEND}, v4
    v_readlane_b32 s{S_P}, v{QEND}, 63
    v_lshlrev_b32 v3, 3, v{QST}
    s_mov_b32 s30, {L_SRC}
    s_mov_b32 s31, {L_E}""")
    for j in range(4):
        a(f"    ds_bpermute_b32 v{8+j}, v{DL+j}, v3")
    for j in range(4):
        a(f"    s_cmp_eq_u64 s[{M1+2*j}:{M1+2*j+1}], 0")
        a(f"    s_cbranch_scc1 L_NB1P{j}")
        a(f"    ds_bpermute_b32 v{12+j}, v{DL+4+j}, v3")
        a(f"L_NB1P{j}:")
    a(f"""    ; padding slots: waves 0..4 take 8 nodes each, lane = (node, slot); wave 5 fills the tail
    s_lshl_b32 s32, s3, 3
    v_lshrrev_b32 v16, 3, v{VL}
    v_add_u32 v16, s32, v16
    v_lshlrev_b32 v16, 2, v16               ; 4*node
    v_add_u32 v17, v3, v5
    v_lshlrev_b32 v18, 3, v{QEND}
    ds_bpermute_b32 v17, v16, v17
    ds_bpermute_b32 v18, v16, v18
    s_mul_i32 s{S_TS}, s{S_P}, s3
    s_lshr_b32 s{S_TS}, s{S_TS}, 4
    s_add_u32 s32, s3, 1
    s_mul_i32 s{S_TE}, s{S_P}, s32
    s_lshr_b32 s{S_TE}, s{S_TE}, 4
    v_cmp_ge_u32 vcc, s{S_TS}, v{QEND}
    s_waitcnt lgkmcnt(0)
    s_bcnt1_i32_b64 s{S_N}, vcc""")
    for h in range(2):
        for j in range(4):
            m = msk(h, j)
            r = rec(h, j)
            if h == 1:
                a(f"    s_cmp_eq_u64 s[{m}:{m+1}], 0")
                a(f"    s_cbranch_scc1 L_NB1S{j}")
            a(f"    s_mov_b64 exec, s[{m}:{m+1}]")
            a(f"    v_add_u32 v{8+4*h+j}, v{8+4*h+j}, v{RANK+4*h+j}")
            a(f"    v_bfe_u32 v{r+2}, v{r+2}, 8, 16")
            a(f"    v_lshl_add_u32 v19, v{8+4*h+j}, 2, s30")
            a(f"    v_lshl_add_u32 v21, v{8+4*h+j}, 3, s31")
            a(f"    ds_write_b32 v19, v{r+2}")
            a(f"    ds_write_b64 v21, v[{r}:{r+1}]")
            if h == 1:
                a(f"L_NB1S{j}:")
    a(f"""    s_mov_b64 exec, -1
    v_mov_b32 v11, {N}
    v_mov_b32 v12, 0
    v_mov_b32 v13, 0
    s_cmp_gt_u32 s3, 5
    s_cbranch_scc1 L_NOPAD
    v_and_b32 v16, 7, v{VL}
    v_add_u32 v16, v17, v16
    v_cmp_lt_u32 vcc, v16, v18
    s_cmp_lt_u32 s3, 5
    s_cbranch_scc1 L_PADW
    s_lshl_b32 s32, s{S_P}, 3
    v_add_u32 v16, s32, v{VL}
    s_mov_b64 vcc, -1
L_PADW:
    v_lshl_add_u32 v14, v16, 2, s30
    v_lshl_add_u32 v15, v16, 3, s31
    s_mov_b64 exec, vcc
    ds_write_b32 v14, v11
    ds_write_b64 v15, v[12:13]
    s_mov_b64 exec, -1
L_NOPAD:
    v_readlane_b32 s{S_SEGEND}, v{QEND}, s{S_N}
    s_lshl_b32 s32, s{S_TS}, 5
    v_add_u32 v2, s32, v{SRB}
    s_lshl_b32 s32, s{S_TS}, 1
    v_mad_u32_u24 v3, v{EM}, s32, v{EB}
    s_mul_i32 s32, s{S_N}, 272
    v_add_u32 v{TMP}, s32, v{APA}
    s_add_u32 s32, s{S_N}, s3
    s_lshl_b32 s32, s32, 9
    v_add_u32 v{SLA}, s32, v{SLB}
    s_min_u32 s{S_SEGEND}, s{S_SEGEND}, s{S_TE}
    s_sub_u32 s{S_REM}, s{S_SEGEND}, s{S_TS}
    s_sub_u32 s{S_REM}, s{S_REM}, 1""")
    S = lambda k: 8 + 6 * (k % 8)
    Da, Db, T = 56, 60, 64
    NUM, DEN = 68, 72
    PA, PB_, UA, UB, SA, SB = 76, 78, 80, 82, 84, 86
    a(f"""    s_mov_b32 s33, 0
    s_cmp_eq_u32 s3, 15
    s_cselect_b32 s34, 0xfc00fc00, 0
    s_mov_b32 s35, s34
L_GPOLL:
    s_waitcnt vmcnt(0)
    v_cmp_eq_u64 s[36:37], v[22:23], s[{S_TAG}:{S_TAG+1}]
    s_nop 0
    s_or_b64 s[36:37], s[36:37], s[34:35]
    s_cmp_eq_u64 s[36:37], -1
    s_cbranch_scc1 L_GOK
    s_add_u32 s33, s33, 1
    s_cmp_ge_u32 s33, {POLL_LIMIT}
    s_cbranch_scc1 L_END
    s_sleep {opt.sleep}
    global_load_dwordx2 v[22:23], v20, s[26:27] sc1
    s_branch L_GPOLL
L_GOK:""")
    for k in range(8):
        a(f"    v_pk_mov_b32 v[{S(k)}:{S(k)+1}], v[{WC}:{WC+1}], v[{WC}:{WC+1}] op_sel:[0,1]")
    for r in range(0, 8, 2):
        a(f"    v_pk_mov_b32 v[{NUM+r}:{NUM+r+1}], 0, 0")
    for k in range(4):
        a(f"    v_mov_b32 v{56+2*k+1}, v{IDXA+1}")
    a(f"""    s_waitcnt lgkmcnt(0)
    s_barrier                               ; #6""")
    stamp(a, 7)
    cstamp(a, 10)
    pairs = [IDXA, IDXB, 56, 58, 60, 62]
    for k in range(6):
        a(f"    ds_read_b32 v{pairs[k]}, v2 offset:{16*k}")
    a(f"""    ds_read_b128 v[{AC}:{AC+3}], v{TMP}
    ds_read_b128 v[{ANX}:{ANX+3}], v{TMP} offset:272
    ds_read_b64 v[{A0}:{A0+1}], v3
    ds_read_b64 v[{A1}:{A1+1}], v3 offset:32""")
    for k in range(6):
        a(f"    s_waitcnt lgkmcnt({9-k})")
        a(f"    buffer_load_dwordx4 v[{S(k)+2}:{S(k)+5}], v[{pairs[k]}:{pairs[k]+1}], s[{S_G}:{S_G+3}], 0 idxen offen {opt.gload}")
    if opt.prio:
        a(f"    s_setprio 3")
        a(f"    s_sub_u32 s{S_BLK}, s{S_TE}, s{S_TS}")
    a(f"    s_waitcnt lgkmcnt(0)")
    a("L_LOOP:")
    for k in range(0, 8, 2):
        sa, sb = S(k), S(k + 1)
        pa, pb = S(k - 2), S(k - 1)
        a(f"""    s_waitcnt vmcnt(5)
    v_mfma_f32_16x16x32_bf16 v[{Da}:{Da+3}], v[{A0}:{A0+3}], v[{sa}:{sa+3}], v[{AC}:{AC+3}]
    ds_read_b32 v{IDXA}, v2 offset:{16*(k+6)}
    ds_read_b32 v{IDXB}, v2 offset:{16*(k+7)}
    v_lshlrev_b32 v{T}, 16, v{sa+4}
    v_lshlrev_b32 v{T+1}, 16, v{sa+5}
    s_waitcnt vmcnt(4)
    v_mfma_f32_16x16x32_bf16 v[{Db}:{Db+3}], v[{A1}:{A1+3}], v[{sb}:{sb+3}], v[{AC}:{AC+3}]
    v_lshlrev_b32 v{T+2}, 16, v{sb+4}
    v_lshlrev_b32 v{T+3}, 16, v{sb+5}
    s_sub_u32 s{S_REM}, s{S_REM}, 1
    ds_read_b64 v[{A0}:{A0+1}], v3 offset:{32*(k+2)}
    ds_read_b64 v[{A1}:{A1+1}], v3 offset:{32*(k+3)}""")
        for i in range(4):
            a(f"    v_exp_f32 v{Da+i}, v{Da+i} clamp")
        a(f"""    s_waitcnt lgkmcnt(2)
    buffer_load_dwordx4 v[{pa+2}:{pa+5}], v[{IDXA}:{IDXA+1}], s[{S_G}:{S_G+3}], 0 idxen offen {opt.gload}
    buffer_load_dwordx4 v[{pb+2}:{pb+5}], v[{IDXB}:{IDXB+1}], s[{S_G}:{S_G+3}], 0 idxen offen {opt.gload}""")
        for i in range(4):
            a(f"    v_exp_f32 v{Db+i}, v{Db+i} clamp")
        c = f"s[{S_C60}:{S_C60+1}]"
        a(f"""    v_pk_add_f32 v[{Da}:{Da+1}], v[{Da}:{Da+1}], {c}
    v_pk_add_f32 v[{Da+2}:{Da+3}], v[{Da+2}:{Da+3}], {c}
    v_pk_add_f32 v[{Db}:{Db+1}], v[{Db}:{Db+1}], {c}
    v_pk_add_f32 v[{Db+2}:{Db+3}], v[{Db+2}:{Db+3}], {c}
    v_pk_mul_f32 v[{PA}:{PA+1}], v[{Da}:{Da+1}], v[{Db}:{Db+1}]
    v_pk_mul_f32 v[{PB_}:{PB_+1}], v[{Da+2}:{Da+3}], v[{Db+2}:{Db+3}]
    v_pk_mul_f32 v[{UA}:{UA+1}], v[{T}:{T+1}], v[{Db}:{Db+1}]
    v_rcp_f32 v{PA}, v{PA}
    v_rcp_f32 v{PA+1}, v{PA+1}
    v_pk_mul_f32 v[{UB}:{UB+1}], v[{sa+4}:{sa+5}], v[{Db+2}:{Db+3}]
    v_rcp_f32 v{PB_}, v{PB_}
    v_rcp_f32 v{PB_+1}, v{PB_+1}
    v_pk_fma_f32 v[{UA}:{UA+1}], v[{T+2}:{T+3}], v[{Da}:{Da+1}], v[{UA}:{UA+1}]
    v_pk_fma_f32 v[{UB}:{UB+1}], v[{sb+4}:{sb+5}], v[{Da+2}:{Da+3}], v[{UB}:{UB+1}]
    v_pk_add_f32 v[{SA}:{SA+1}], v[{Da}:{Da+1}], v[{Db}:{Db+1}]
    v_pk_add_f32 v[{SB}:{SB+1}], v[{Da+2}:{Da+3}], v[{Db+2}:{Db+3}]
    v_pk_fma_f32 v[{NUM}:{NUM+1}], v[{PA}:{PA+1}], v[{UA}:{UA+1}], v[{NUM}:{NUM+1}]
    v_pk_fma_f32 v[{NUM+2}:{NUM+3}], v[{PB_}:{PB_+1}], v[{UB}:{UB+1}], v[{NUM+2}:{NUM+3}]
    v_pk_fma_f32 v[{DEN}:{DEN+1}], v[{PA}:{PA+1}], v[{SA}:{SA+1}], v[{DEN}:{DEN+1}]
    v_pk_fma_f32 v[{DEN+2}:{DEN+3}], v[{PB_}:{PB_+1}], v[{SB}:{SB+1}], v[{DEN+2}:{DEN+3}]
    s_waitcnt lgkmcnt(0)
    s_cbranch_scc1 L_SB{k}
L_RB{k}:""")
        if k == 6:
            a(f"    v_add_u32 v2, 128, v2")
            a(f"    v_add_u32 v3, v{INCE}, v3")
            if opt.prio:
                t1, t2, t3 = opt.pth
                a(f"""    s_sub_u32 s{S_BLK}, s{S_BLK}, 4
    s_cmp_gt_i32 s{S_BLK}, {t1}
    s_cbranch_scc1 L_LOOP
    s_setprio 2
    s_cmp_gt_i32 s{S_BLK}, {t2}
    s_cbranch_scc1 L_LOOP
    s_setprio 1
    s_cmp_gt_i32 s{S_BLK}, {t3}
    s_cbranch_scc1 L_LOOP
    s_setprio 0""")
            a(f"    s_branch L_LOOP")
    for k in range(0, 8, 2):
        a(f"L_SB{k}:")
        for r in range(4):
            a(f"    v_permlane32_swap_b32 v{NUM+r}, v{DEN+r}")
        a(f"""    v_pk_add_f32 v[{NUM}:{NUM+1}], v[{NUM}:{NUM+1}], v[{DEN}:{DEN+1}]
    v_pk_add_f32 v[{NUM+2}:{NUM+3}], v[{NUM+2}:{NUM+3}], v[{DEN+2}:{DEN+3}]
    s_add_u32 s{S_N}, s{S_N}, 1
    s_add_u32 s36, s{S_N}, 1
    v_permlane16_swap_b32 v{NUM}, v{NUM+2}
    v_permlane16_swap_b32 v{NUM+1}, v{NUM+3}
    v_readlane_b32 s37, v{QEND}, s{S_N}
    s_mul_i32 s36, s36, 272
    v_pk_add_f32 v[{DEN}:{DEN+1}], v[{NUM}:{NUM+1}], v[{NUM+2}:{NUM+3}]
    v_add_u32 v{TMP}, s36, v{APA}
    s_cmp_eq_u32 s{S_SEGEND}, s{S_TE}
    ds_write_b64 v{SLA}, v[{DEN}:{DEN+1}]
    s_cbranch_scc1 L_DONE
    v_pk_mov_b32 v[{AC}:{AC+1}], v[{ANX}:{ANX+1}], v[{ANX}:{ANX+1}] op_sel:[0,1]
    v_pk_mov_b32 v[{AC+2}:{AC+3}], v[{ANX+2}:{ANX+3}], v[{ANX+2}:{ANX+3}] op_sel:[0,1]
    v_add_u32 v{SLA}, {SLOT_STR}, v{SLA}
    s_min_u32 s37, s37, s{S_TE}
    v_pk_mov_b32 v[{NUM}:{NUM+1}], 0, 0
    v_pk_mov_b32 v[{NUM+2}:{NUM+3}], 0, 0
    ds_read_b128 v[{ANX}:{ANX+3}], v{TMP}
    v_pk_mov_b32 v[{DEN}:{DEN+1}], 0, 0
    v_pk_mov_b32 v[{DEN+2}:{DEN+3}], 0, 0
    s_sub_u32 s{S_REM}, s37, s{S_SEGEND}
    s_sub_u32 s{S_REM}, s{S_REM}, 1
    s_mov_b32 s{S_SEGEND}, s37
    s_branch L_RB{k}""")
    a("L_DONE:")
    if opt.prio:
        a("    s_setprio 0")
    stamp(a, 8)
    cstamp(a, 11)
    a(f"""    s_waitcnt vmcnt(0) lgkmcnt(0)
    s_barrier                               ; #7
    s_cmp_ge_u32 s3, 5
    s_cbranch_scc1 L_MERGED
    v_cvt_f32_u32 v16, s{S_P}
    v_rcp_f32 v16, v16
    v_lshlrev_b32 v17, 4, v{QST}
    v_add_u32 v17, 16, v17
    v_cvt_f32_u32 v17, v17
    v_lshlrev_b32 v18, 4, v{QEND}
    v_cvt_f32_u32 v18, v18
    v_add_f32 v17, -0.5, v17
    v_add_f32 v18, -0.5, v18
    v_mul_f32 v17, v17, v16
    v_mul_f32 v18, v18, v16
    v_cvt_u32_f32 v17, v17
    v_cvt_u32_f32 v18, v18
    v_lshrrev_b32 v4, 3, v0                 ; node
    v_sub_u32 v18, v18, v17
    v_add_u32 v18, 1, v18
    v_add_u32 v17, v17, v{VL}
    v_lshl_or_b32 v17, v18, 16, v17
    v_lshlrev_b32 v5, 2, v4
    ds_bpermute_b32 v5, v5, v17
    v_and_b32 v6, 7, v0
    v_lshlrev_b32 v6, 4, v6
    s_mov_b32 s36, 0""")
    for r in range(0, 16, 2):
        a(f"    v_pk_mov_b32 v[{24+r}:{25+r}], 0, 0")
    a(f"""    v_mul_u32_u24 v41, 272, v4
    v_lshl_add_u32 v41, v6, 1, v41
    v_add_u32 v41, {L_U}, v41
    s_waitcnt lgkmcnt(0)
    v_lshrrev_b32 v7, 16, v5
    v_and_b32 v5, 0xffff, v5
    v_lshl_add_u32 v5, v5, 9, v6
L_MERGE:
    v_cmp_lt_u32 vcc, s36, v7
    s_nop 1
    s_cmp_eq_u64 vcc, 0
    s_cbranch_scc1 L_MERGE_END
    s_mov_b64 exec, vcc
    ds_read_b128 v[8:11], v5 offset:{L_SLOT}
    ds_read_b128 v[12:15], v5 offset:{L_SLOT+128}
    ds_read_b128 v[16:19], v5 offset:{L_SLOT+256}
    ds_read_b128 v[20:23], v5 offset:{L_SLOT+384}
    v_add_u32 v5, {SLOT_STR}, v5
    s_add_u32 s36, s36, 1
    s_waitcnt lgkmcnt(0)""")
    for r in range(8):
        a(f"    v_pk_add_f32 v[{24+2*r}:{25+2*r}], v[{24+2*r}:{25+2*r}], v[{8+2*r}:{9+2*r}]")
    a(f"""    s_mov_b64 exec, -1
    s_branch L_MERGE
L_MERGE_END:
    s_or_b32 s36, s{S_RB}, s{S_MORE}
    s_cmp_eq_u32 s36, 0
    s_cbranch_scc1 L_MERGED
    s_mul_i32 s36, s2, {320*64}
    s_add_u32 s36, s36, {TOT_OFF}
    v_lshl_add_u32 v42, v0, 6, s36
    s_cmp_eq_u32 s{S_RB}, 0
    s_cbranch_scc1 L_NOPREV""")
    for r in range(4):
        a(f"    global_load_dwordx4 v[{8+4*r}:{11+4*r}], v42, s[26:27] offset:{16*r} sc1")
    a("    s_waitcnt vmcnt(0)")
    for r in range(8):
        a(f"    v_pk_add_f32 v[{24+2*r}:{25+2*r}], v[{24+2*r}:{25+2*r}], v[{8+2*r}:{9+2*r}]")
    a(f"""L_NOPREV:
    s_cmp_eq_u32 s{S_MORE}, 0
    s_cbranch_scc1 L_MERGED""")
    for r in range(4):
        a(f"    global_store_dwordx4 v42, v[{24+4*r}:{27+4*r}], s[26:27] offset:{16*r} sc1")
    a(f"""    s_waitcnt vmcnt(0)
L_MERGED:
    s_cmp_eq_u32 s{S_MORE}, 0
    s_cbranch_scc1 L_EPI
    s_add_u32 s{S_RB}, s{S_RB}, 32
    s_cmp_lg_u32 s3, 0
    s_cbranch_scc1 L_NOCLR
    v_mov_b32 v9, 0
    v_lshlrev_b32 v10, 2, v{VL}
    ds_write_b32 v10, v9 offset:{L_CNT}
    v_mov_b32 v10, {L_FLAG}
    ds_write_b32 v10, v9
L_NOCLR:""")
    gran_addr(a)
    for j in range(4):
        a(f"    global_load_dwordx4 v[{GR(j)}:{GR(j)+3}], v2, s[26:27] offset:{128*j} sc1")
    a(f"""    s_waitcnt vmcnt(0) lgkmcnt(0)
    s_barrier
    s_branch L_ROUND
L_EPI:
    s_cmp_ge_u32 s3, 5
    s_cbranch_scc1 L_FIN
    ds_read_b128 v[40:43], v41
    ds_read_b128 v[44:47], v41 offset:16
    s_mov_b32 s36, {EPS60:#x}               ; 1e-6 * 2^60""")
    nreg = [24 + c // 2 + 4 * (c % 2) for c in range(8)]
    dreg = [x + 8 for x in nreg]
    for c in range(8):
        a(f"    v_add_f32 v{dreg[c]}, s36, v{dreg[c]}")
        a(f"    v_rcp_f32 v{dreg[c]}, v{dreg[c]}")
    for c in range(8):
        xr = XR + c // 2
        if c % 2 == 0:
            a(f"    v_lshlrev_b32 v{8+c}, 16, v{xr}")
        else:
            a(f"    v_and_b32 v{8+c}, 0xffff0000, v{xr}")
    a("    s_waitcnt lgkmcnt(0)")
    for c in range(8):
        a(f"    v_fma_f32 v{40+c}, v{nreg[c]}, v{dreg[c]}, v{40+c}")
        a(f"    v_mul_f32 v{16+c}, 0, v{40+c}")
        a(f"    v_cmp_lt_f32 vcc, 0, v{40+c}")
        a(f"    s_nop 1")
        a(f"    v_cndmask_b32 v{40+c}, v{16+c}, v{40+c}, vcc")
        a(f"    v_add_f32 v{40+c}, v{8+c}, v{40+c}")
    for c in range(4):
        a(f"    v_cvt_pk_bf16_f32 v{16+c}, v{40+2*c}, v{41+2*c}")
    a(f"""    v_lshlrev_b32 v4, 4, v0
    s_mul_i32 s36, s2, {NPB*128}
    v_add_u32 v4, s36, v4
    global_store_dwordx4 v4, v[16:19], s[22:23] {opt.ostore}
    s_or_b32 s36, s2, s3
    s_cmp_lg_u32 s36, 0
    s_cbranch_scc1 L_FIN
    v_mov_b32 v4, {GEN_OFF}
    v_mov_b32 v6, s{S_TAG}
    v_mov_b32 v7, s{S_TAG+1}
    s_mov_b64 exec, 1
    global_store_dwordx2 v4, v[6:7], s[26:27]
L_FIN:""")
    stamp_flush(a)
    a("""L_END:
    s_endpgm
""")

HEADER = """; GatedGCN edge-featured MPNN layer, one launch, one workgroup per 40 destination nodes.
"""

def main():
    global PROF
    ap = argparse.ArgumentParser()
    ap.add_argument("-o", default="standalone__edge_featured_mpnn_gatedgcn__graph.s")
    ap.add_argument("--store", default="sc1")
    ap.add_argument("--hload", default="sc1")
    ap.add_argument("--gload", default="")
    ap.add_argument("--ostore", default="")
    ap.add_argument("--prio", type=int, default=1)
    ap.add_argument("--pth", type=int, nargs=3, default=[15, 10, 5])
    ap.add_argument("--sleep", type=int, default=2)
    ap.add_argument("--prof", action="store_true")
    opt = ap.parse_args()
    PROF = opt.prof
    a = Asm()
    a(HEADER.rstrip())
    a(f"; @launch grid=({NB},1,1) block=(1024,1,1) lds={L_END}")
    a('.amdgcn_target "amdgcn-amd-amdhsa--gfx950"')
    a(".text")
    entry(a, opt)
    phase_a_bin(a, opt)
    phase_a_table(a, opt)
    phase_b(a, opt)
    a(f""".section .rodata,"a"
.p2align 6
.amdhsa_kernel {KNAME}
  .amdhsa_next_free_vgpr 128
  .amdhsa_next_free_sgpr {98 if PROF else 96}
  .amdhsa_accum_offset 128
  .amdhsa_group_segment_fixed_size 0
  .amdhsa_kernarg_size 96
  .amdhsa_user_sgpr_count 2
  .amdhsa_user_sgpr_kernarg_segment_ptr 1
  .amdhsa_system_sgpr_workgroup_id_x 1
  .amdhsa_float_denorm_mode_32 3
  .amdhsa_dx10_clamp 0
.end_amdhsa_kernel""")
    open(opt.o, "w").write(a.text())
    print("wrote", opt.o, "lds", L_END)

if __name__ == "__main__":
    main()
```

```python
import argparse, struct

KNAME = "standalone__edge_featured_mpnn_gatedgcn__graph_kernel"
N, D, E = 10000, 64, 640000
NB, NPB = 250, 40
CH = 2560
GEN_OFF, G_OFF, GF_OFF, GRAN_OFF, REC_OFF, TOT_OFF = 0, 0x1000, 0x274000, 0x280000, 0x380000, 0xD80000
PROF_OFF = 0x1300000
NLOG2E = 0xBFB8AA3B
BIG, NBIG = 0x71800000, 0xF1800000
SHIFT = 60
C60 = (127 - SHIFT) << 23
EPS60 = struct.unpack("<I", struct.pack("<f", 1e-6 * 2.0 ** SHIFT))[0]
FSHIFT = struct.unpack("<I", struct.pack("<f", -float(SHIFT)))[0]
NWV = 16
POLL_LIMIT = 1 << 17
CHN = [0, 2, 1, 3]

SLOT_STR = 512
L_SLOT = 0
L_CNT = L_SLOT + (NPB + NWV) * SLOT_STR
L_ZREG = L_CNT + 256
L_FLAG = L_ZREG + 512
L_GCNT = L_FLAG + 4
L_ZEND = L_FLAG + 16
L_WCB = 29504
L_AP = 30080
L_U = L_AP + 48 * 272
L_SRC = L_U + 48 * 272
NSLOT = 250 * 32 + 320 + 64
L_E = L_SRC + NSLOT * 4
L_END = L_E + NSLOT * 8
A_HIST = L_SRC
A_OFFS = A_HIST + 1024
A_REC = A_OFFS + 1024
A_W = A_REC + CH * 16
WIMG = 64 * 144
A_X = A_W + 4 * WIMG
A_G = A_X + 48 * 144
assert A_G + 48 * 272 <= L_END <= 163840
assert all(x % 16 == 0 for x in (L_WCB, L_AP, L_U, L_SRC, L_E, A_REC, A_W, A_X, A_G))

SLA, TMP, INCE, APA = 88, 89, 90, 91
IDXA, IDXB = 92, 94
AC, A0, A1, ANX = 96, 100, 104, 108
XR = 112
QEND, QST = 116, 117
WC = 118
EB, EM, SRB, SLB = 120, 121, 122, 123
VPROF = 124
VI, VQ, VL = 125, 126, 127
S_TAG = 28
S_REC = 40
S_G = 44
M0, M1 = 48, 56
S_INV = 64
S_RB, S_MORE, S_P, S_TS, S_TE, S_N, S_SEGEND, S_REM = 68, 69, 70, 71, 72, 73, 74, 75
S_BLK, S_TAG8 = 76, 77
S_C60 = 78
P0M, P1M = 80, 88

class Asm:
    def __init__(self): self.l = []
    def __call__(self, s=""):
        self.l.extend(s.split("\n"))
    def text(self): return "\n".join(self.l) + "\n"

PROF = False
def stamp(a, idx):
    if PROF:
        a(f"    s_memrealtime s[96:97]")
        a(f"    s_waitcnt lgkmcnt(0)")
        a(f"    v_writelane_b32 v{VPROF}, s96, {idx}")

def cstamp(a, idx):
    if PROF:
        a(f"    s_memtime s[96:97]")
        a(f"    s_waitcnt lgkmcnt(0)")
        a(f"    v_writelane_b32 v{VPROF}, s96, {idx}")

DBG = False
def stamp_flush(a):
    if not PROF: return
    stamp(a, 9)
    if DBG:
        a(f"""    s_waitcnt vmcnt(0) lgkmcnt(0)
    v_readlane_b32 s30, v{VPROF}, 0
    v_readlane_b32 s31, v{VPROF}, 10
    v_readlane_b32 s32, v{VPROF}, 11
    s_nop 3
    s_not_b32 s30, s30
    s_sub_u32 s32, s32, s31
    v_writelane_b32 v{VPROF}, s30, 0
    v_writelane_b32 v{VPROF}, s32, 10
    s_mov_b64 exec, 0x7ff
    v_lshlrev_b32 v2, 2, v{VL}
    global_atomic_umax v2, v{VPROF}, s[24:25]
    s_waitcnt vmcnt(0)""")
        return
    a(f"""    s_waitcnt vmcnt(0) lgkmcnt(0)
    s_mov_b64 exec, 0xffff
    s_lshl_b32 s30, s2, 4
    s_add_u32 s30, s30, s3
    s_lshl_b32 s30, s30, 6
    s_add_u32 s30, s30, {PROF_OFF}
    v_lshl_add_u32 v2, v{VL}, 2, s30
    global_store_dword v2, v{VPROF}, s[26:27]
    s_waitcnt vmcnt(0)""")

def dpp_scan(a, v):
    for sh in (1, 2, 4, 8):
        a(f"    s_nop 1")
        a(f"    v_add_u32_dpp v{v}, v{v}, v{v} row_shr:{sh} row_mask:0xf bank_mask:0xf bound_ctrl:0")
    a("    s_nop 1")
    a(f"    v_add_u32_dpp v{v}, v{v}, v{v} row_bcast:15 row_mask:0xa bank_mask:0xf")
    a("    s_nop 1")
    a(f"    v_add_u32_dpp v{v}, v{v}, v{v} row_bcast:31 row_mask:0xc bank_mask:0xf")
    a("    s_nop 1")

def entry(a, opt):
    a(f"""
.globl {KNAME}
.p2align 8
.type {KNAME},@function
{KNAME}:
    s_cmp_ge_u32 s2, {NB}
    s_cbranch_scc1 L_END
    s_load_dwordx16 s[4:19], s[0:1], 0
    s_load_dwordx8 s[20:27], s[0:1], 64
    v_lshrrev_b32 v1, 6, v0
    v_and_b32 v{VL}, 63, v0
    v_readfirstlane_b32 s3, v1
    v_lshrrev_b32 v{VQ}, 4, v{VL}
    v_and_b32 v{VI}, 15, v{VL}
    v_lshlrev_b32 v{IDXA+1}, 4, v{VI}
    v_mov_b32 v{IDXB+1}, v{IDXA+1}
    v_and_b32 v2, 3, v{VI}                  ; r
    v_lshrrev_b32 v3, 2, v{VI}              ; e
    v_cmp_eq_u32 vcc, v2, v{VQ}
    v_lshlrev_b32 v4, 3, v3
    v_add_u32 v4, {L_E}, v4
    v_mov_b32 v5, {L_ZREG}
    v_cndmask_b32 v{EB}, v5, v4, vcc
    v_mov_b32 v5, 32
    v_cndmask_b32 v{EM}, 0, v5, vcc
    v_lshlrev_b32 v{INCE}, 3, v{EM}
    v_cmp_eq_u32 vcc, v3, v{VQ}
    v_mov_b32 v5, 0x3f80
    v_lshrrev_b32 v6, 1, v2
    v_lshlrev_b32 v6, 4, v6
    v_lshlrev_b32 v5, v6, v5
    v_cndmask_b32 v5, 0, v5, vcc
    v_and_b32 v6, 1, v2                     ; r%2: 0 -> first register, 1 -> second
    v_cmp_eq_u32 vcc, 0, v6
    v_lshlrev_b32 v{APA}, 4, v{VI}
    v_add_u32 v{APA}, {L_AP}, v{APA}
    v_cndmask_b32 v{A0+2}, 0, v5, vcc
    v_cndmask_b32 v{A0+3}, v5, 0, vcc
    v_mov_b32 v{A1+2}, v{A0+2}
    v_mov_b32 v{A1+3}, v{A0+3}
    v_lshlrev_b32 v{SLB}, 3, v{VL}
    v_lshlrev_b32 v{SRB}, 2, v{VQ}
    v_add_u32 v{SRB}, {L_SRC}, v{SRB}
    s_mov_b32 s{S_RB}, 0
    s_mov_b32 s{S_C60}, {C60:#x}
    s_mov_b32 s{S_C60+1}, {C60:#x}
    s_cmp_eq_u32 s3, 15
    s_cselect_b32 s{S_INV+1}, 0xffff0000, 0
    s_cselect_b32 s{S_INV+3}, -1, 0
    s_mov_b32 s{S_INV}, 0
    s_mov_b32 s{S_INV+2}, 0""")
    if PROF:
        a(f"    v_mov_b32 v{VPROF}, 0")
    stamp(a, 0)
    a(f"""    s_cmp_ge_u32 s3, 10
    s_cbranch_scc1 L_TABLE""")

def phase_a_bin(a, opt):
    st = opt.store
    KEY = lambda j: 24 + 2 * j
    a(f"""    ; ================= phase A, binning waves (tid < 640)
    s_mul_i32 s30, s2, {CH*4}
    v_lshlrev_b32 v2, 4, v0
    v_add_u32 v3, s30, v2
    s_lshl_b32 s31, s30, 1
    v_lshlrev_b32 v4, 5, v0
    v_add_u32 v4, s31, v4
    s_mul_i32 s32, s2, {NPB*128}
    v_add_u32 v5, s32, v2
    v_mov_b32 v6, 0
    v_lshlrev_b32 v7, 2, v0
    s_waitcnt lgkmcnt(0)""")
    stamp(a, 1)
    a(f"""    s_cmp_ge_u32 s3, 5
    s_cbranch_scc1 L_NOXR
    global_load_dwordx4 v[{XR}:{XR+3}], v5, s[4:5]
    global_load_dword v{TMP}, v5, s[22:23]
L_NOXR:
    global_load_dwordx4 v[8:11], v3, s[10:11]
    global_load_dwordx4 v[12:15], v3, s[8:9]
    global_load_dwordx4 v[16:19], v4, s[6:7]
    global_load_dwordx4 v[20:23], v4, s[6:7] offset:16
    s_load_dwordx2 s[{S_TAG}:{S_TAG+1}], s[26:27], {GEN_OFF}
    s_cmp_ge_u32 s3, 4
    s_cbranch_scc1 L_NOZH
    ds_write_b32 v7, v6 offset:{A_HIST}
L_NOZH:
    s_cmp_lg_u32 s3, 4
    s_cbranch_scc1 L_NOZC
    v_mov_b32 v24, 0
    v_mov_b32 v25, 0
    v_mov_b32 v26, 0
    v_mov_b32 v27, 0
    v_lshlrev_b32 v28, 4, v{VL}
    v_cmp_gt_u32 vcc, {(L_ZEND-L_CNT)//16}, v{VL}
    s_and_saveexec_b64 s[34:35], vcc
    ds_write_b128 v28, v[24:27] offset:{L_CNT}
    s_mov_b64 exec, s[34:35]
L_NOZC:
    s_mov_b32 s33, 52429
    s_movk_i32 s34, 0xffd8                  ; -40
    v_mov_b32 v7, 1
    s_waitcnt lgkmcnt(0)
    s_add_u32 s{S_TAG}, s{S_TAG}, 1
    s_addc_u32 s{S_TAG+1}, s{S_TAG+1}, 0
    s_and_b32 s{S_TAG8}, s{S_TAG+1}, 0xff
    s_lshl_b32 s35, s{S_TAG8}, 24""")
    for j in range(4):
        a(f"    v_mov_b32 v{KEY(j)+1}, s{S_TAG}")
    a(f"""    s_barrier                               ; #1
    s_waitcnt vmcnt(3)""")
    stamp(a, 2)
    for j in range(4):
        a(f"    v_mul_u32_u24 v{32+j}, s33, v{8+j}")
        a(f"    v_lshrrev_b32 v{32+j}, 21, v{32+j}          ; bucket")
        a(f"    v_mad_i32_i24 v{8+j}, v{32+j}, s34, v{8+j}")
        a(f"    v_lshrrev_b32 v{40+j}, 3, v{32+j}")
        a(f"    v_and_b32 v{32+j}, 7, v{32+j}")
        a(f"    v_lshl_or_b32 v{32+j}, v{32+j}, 5, v{40+j}")
        a(f"    v_lshlrev_b32 v{32+j}, 2, v{32+j}")
        a(f"    ds_add_rtn_u32 v{36+j}, v{32+j}, v7 offset:{A_HIST}")
    a("    s_waitcnt vmcnt(2)")
    for j in range(4):
        a(f"    v_lshl_or_b32 v{8+j}, v{8+j}, 2, s35")
        a(f"    v_lshl_or_b32 v{KEY(j)}, v{12+j}, 8, v{8+j}")
    a(f"""    v_lshlrev_b32 v2, 4, v{VL}
    s_waitcnt lgkmcnt(0)
    s_barrier                               ; #2
    ds_read_b128 v[40:43], v2 offset:{A_HIST}
    s_mul_i32 s36, s2, {CH*16}
    s_waitcnt lgkmcnt(0)
    v_add_u32 v44, v40, v41
    v_add_u32 v45, v44, v42
    v_add_u32 v46, v45, v43
    v_mov_b32 v47, v46""")
    dpp_scan(a, 47)
    a(f"""    v_sub_u32 v48, v47, v46
    v_add_u32 v49, v48, v40
    v_add_u32 v50, v48, v44
    v_add_u32 v51, v48, v45
    ds_write_b128 v2, v[48:51] offset:{A_OFFS}
    ; run table entry of bucket b = 64*wave + lane (waves 0..3): {{offset, count, tag}} at [b/8][w][b%8]
    s_and_b32 s37, s3, 3
    s_lshl_b32 s38, s37, 8
    v_lshl_add_u32 v50, v{VL}, 2, s38       ; 4*b
    s_lshl_b32 s37, s37, 18
    s_lshl_b32 s38, s2, 7
    s_add_u32 s37, s37, s38
    s_add_u32 s37, s37, {GRAN_OFF}
    v_lshrrev_b32 v51, 3, v{VL}
    v_lshl_add_u32 v51, v51, 15, s37
    v_and_b32 v52, 7, v{VL}
    v_lshl_add_u32 v51, v52, 4, v51
    v_mov_b32 v54, s{S_TAG}
    v_mov_b32 v55, s{S_TAG+1}
    s_waitcnt lgkmcnt(0)
    ds_read_b32 v52, v50 offset:{A_OFFS}
    ds_read_b32 v53, v50 offset:{A_HIST}""")
    for j in range(4):
        a(f"    ds_read_b32 v{44+j}, v{32+j} offset:{A_OFFS}")
    a(f"    s_mov_b32 s38, {A_REC}")
    a("    s_waitcnt lgkmcnt(0)")
    a("    v_lshl_add_u32 v52, v52, 4, s36")
    for j in range(4):
        a(f"    v_add_u32 v{44+j}, v{44+j}, v{36+j}")
        a(f"    v_lshl_add_u32 v{44+j}, v{44+j}, 4, s38")
    a(f"""    s_waitcnt vmcnt(0)""")
    for j in range(4):
        a(f"    ds_write_b64 v{44+j}, v[{16+2*j}:{17+2*j}]")
        a(f"    ds_write_b64 v{44+j}, v[{KEY(j)}:{KEY(j)+1}] offset:8")
    a(f"""    v_lshl_add_u32 v2, v0, 4, s38
    s_add_u32 s30, s26, {REC_OFF}
    s_addc_u32 s31, s27, 0
    v_lshl_add_u32 v3, v0, 4, s36
    v_add_u32 v4, 10240, v3
    v_add_u32 v5, 20480, v3
    v_add_u32 v6, 30720, v3
    s_waitcnt lgkmcnt(0)
    s_barrier                               ; #3""")
    stamp(a, 3)
    for j in range(4):
        a(f"    ds_read_b128 v[{32+4*j}:{35+4*j}], v2 offset:{j*10240}")
    for j in range(4):
        a(f"    s_waitcnt lgkmcnt({3-j})")
        a(f"    global_store_dwordx4 v{3+j}, v[{32+4*j}:{35+4*j}], s[30:31] {st}")
    a(f"""    s_barrier
    s_cmp_ge_u32 s3, 4
    s_cbranch_scc1 L_PHASEB
    global_store_dwordx4 v51, v[52:55], s[26:27] {st}
    s_branch L_PHASEB""")

def tile_mfma(a, acc0, wreg, xreg):
    for mat in range(2):
        acc = acc0 + 4 * mat
        r0, r1 = wreg + mat * 8, wreg + mat * 8 + 4
        a(f"    v_mfma_f32_16x16x32_bf16 v[{acc}:{acc+3}], v[{r0}:{r0+3}], v[{xreg}:{xreg+3}], 0")
        a(f"    v_mfma_f32_16x16x32_bf16 v[{acc}:{acc+3}], v[{r1}:{r1+3}], v[{xreg+4}:{xreg+7}], v[{acc}:{acc+3}]")

def phase_a_table(a, opt):
    st = opt.store
    wp = [14, 20, 12, 18]
    a(f"""L_TABLE:
    s_sub_u32 s36, s3, 10                   ; u
    s_and_b32 s37, s36, 1
    s_add_u32 s38, s37, 6
    v_lshlrev_b32 v2, 4, v{VL}
    s_lshl_b32 s30, s36, 10
    v_add_u32 v3, s30, v2                   ; piece u
    s_lshl_b32 s31, s38, 10
    v_add_u32 v4, s31, v2                   ; piece 6/7
    s_mul_i32 s32, s2, {NPB*128}
    v_add_u32 v5, s32, v3                   ; x offset
    v_lshrrev_b32 v6, 3, v{VL}
    v_mul_u32_u24 v6, 144, v6
    v_and_b32 v7, 7, v{VL}
    v_lshl_add_u32 v6, v7, 4, v6
    s_mul_i32 s33, s36, {8*144}
    s_add_u32 s33, s33, {A_W}
    v_add_u32 v48, s33, v6
    s_mul_i32 s33, s38, {8*144}
    s_add_u32 s33, s33, {A_W}
    v_add_u32 v49, s33, v6
    v_lshrrev_b32 v50, 1, v{VQ}
    v_and_b32 v51, 1, v{VQ}
    v_lshl_or_b32 v50, v51, 1, v50
    v_lshl_add_u32 v50, v{VI}, 2, v50
    v_lshlrev_b32 v50, 1, v50
    s_waitcnt lgkmcnt(0)""")
    stamp(a, 1)
    for m in range(4):
        a(f"    global_load_dwordx4 v[{8+8*m}:{11+8*m}], v3, s[{wp[m]}:{wp[m]+1}]")
        a(f"    global_load_dwordx4 v[{12+8*m}:{15+8*m}], v4, s[{wp[m]}:{wp[m]+1}]")
    a(f"""    s_load_dwordx2 s[{S_TAG}:{S_TAG+1}], s[26:27], {GEN_OFF}
    s_cmp_eq_u32 s36, 5
    s_cbranch_scc1 L_TWC
    global_load_dwordx4 v[40:43], v5, s[4:5]
    s_waitcnt vmcnt(0)
    ds_write_b128 v48, v[40:43] offset:{A_X - A_W}
    s_branch L_TST
L_TWC:
    global_load_ushort v40, v50, s[16:17]
    global_load_ushort v41, v50, s[16:17] offset:128
    global_load_ushort v42, v50, s[16:17] offset:256
    global_load_ushort v43, v50, s[16:17] offset:384
    s_mov_b32 s33, {NLOG2E:#x}
    v_lshlrev_b32 v44, 3, v{VL}
    s_waitcnt vmcnt(0)
    v_lshlrev_b32 v40, 16, v40
    v_lshlrev_b32 v41, 16, v41
    v_lshlrev_b32 v42, 16, v42
    v_lshlrev_b32 v43, 16, v43
    v_mul_f32 v40, s33, v40
    v_mul_f32 v41, s33, v41
    v_mul_f32 v42, s33, v42
    v_mul_f32 v43, s33, v43
    v_cvt_pk_bf16_f32 v40, v40, v41
    v_cvt_pk_bf16_f32 v41, v42, v43
    ds_write_b64 v44, v[40:41] offset:{L_WCB}
L_TST:""")
    for m in range(4):
        a(f"    ds_write_b128 v48, v[{8+8*m}:{11+8*m}] offset:{m*WIMG}")
        a(f"    ds_write_b128 v49, v[{12+8*m}:{15+8*m}] offset:{m*WIMG}")
    a(f"""    ; tile job: nt = u/2, mt in {{2*(u%2), 2*(u%2)+1}}
    s_lshr_b32 s30, s36, 1                  ; nt
    s_lshl_b32 s31, s37, 1                  ; mt0
    s_lshl_b32 s32, s30, 4
    v_add_u32 v4, s32, v{VI}                ; node
    v_mul_u32_u24 v5, 144, v4
    v_lshl_add_u32 v5, v{VQ}, 4, v5
    v_add_u32 v5, {A_X}, v5
    v_lshrrev_b32 v6, 2, v{VI}
    v_lshl_add_u32 v6, v{VQ}, 3, v6
    v_mul_u32_u24 v6, 144, v6
    v_and_b32 v7, 3, v{VI}
    v_lshl_add_u32 v6, v7, 3, v6
    s_lshl_b32 s32, s31, 5
    s_add_u32 s32, s32, {A_W}
    v_add_u32 v6, s32, v6
    v_mul_u32_u24 v7, 272, v4
    v_lshl_add_u32 v50, v{VQ}, 4, v7
    s_lshl_b32 s32, s31, 6
    v_add_u32 v50, s32, v50
    v_add_u32 v51, {L_AP}, v50
    v_add_u32 v52, {A_G}, v50
    v_add_u32 v53, {L_U}, v50
    s_waitcnt lgkmcnt(0)
    s_add_u32 s{S_TAG}, s{S_TAG}, 1
    s_addc_u32 s{S_TAG+1}, s{S_TAG+1}, 0
    s_and_b32 s{S_TAG8}, s{S_TAG+1}, 0xff
    s_barrier                               ; #1
    ds_read_b128 v[8:11], v5
    ds_read_b128 v[12:15], v5 offset:64""")
    def wfrags(first):
        for m in range(2):
            for mat in range(2):
                for ks in range(2):
                    r = 16 + m * 16 + mat * 8 + ks * 4
                    for h in range(2):
                        a(f"    ds_read_b64_tr_b16 v[{r+2*h}:{r+2*h+1}], v6 offset:{(first+mat)*WIMG + ks*4608 + h*576 + m*32}")
    wfrags(0)
    a("    s_waitcnt lgkmcnt(0)")
    for m in range(2):
        tile_mfma(a, 56 + 8 * m, 16 + 16 * m, 8)
    a(f"""    s_barrier                               ; #2
    s_mov_b32 s32, {NLOG2E:#x}
    s_mov_b32 s33, {BIG:#x}
    s_mov_b32 s34, 0x8000
    v_mov_b32 v54, {NBIG:#x}
    s_nop 4""")
    for m in range(2):
        accb, accv = 56 + 8 * m, 60 + 8 * m
        for r in range(4):
            a(f"    v_mul_f32 v{accb+r}, s32, v{accb+r}")
            a(f"    v_med3_f32 v{accb+r}, v{accb+r}, v54, s33")
        a(f"    v_cvt_pk_bf16_f32 v24, v{accb}, v{accb+1}")
        a(f"    v_cvt_pk_bf16_f32 v25, v{accb+2}, v{accb+3}")
        for p in range(2):
            lo, hi = accv + 2 * p, accv + 2 * p + 1
            a(f"    v_cvt_pk_bf16_f32 v16, v{lo}, v{lo}")
            a(f"    v_and_b32 v16, 0xffff, v16")
            a(f"    v_and_b32 v22, 0x7fffffff, v{hi}")
            a(f"    v_and_b32 v{hi}, 0x80000000, v{hi}")
            a(f"    v_sub_u32 v22, v22, v16")
            a(f"    v_add_u32 v22, s34, v22")
            a(f"    v_max_i32 v22, 0, v22")
            a(f"    v_and_b32 v22, 0xffff0000, v22")
            a(f"    v_or3_b32 v{26+p}, v22, v16, v{hi}")
        a(f"    ds_write_b128 v52, v[24:27] offset:{m*64}")
    wfrags(2)
    a("    s_waitcnt lgkmcnt(0)")
    for m in range(2):
        tile_mfma(a, 56 + 8 * m, 16 + 16 * m, 8)
    a(f"""    s_mov_b32 s34, {FSHIFT:#x}
    s_nop 6""")
    for m in range(2):
        acca, accu = 56 + 8 * m, 60 + 8 * m
        a(f"    ds_write_b128 v53, v[{accu}:{accu+3}] offset:{m*64}")
        for r in range(4):
            a(f"    v_mul_f32 v{acca+CHN[r]}, s32, v{acca+CHN[r]}")
            a(f"    v_med3_f32 v{acca+CHN[r]}, v{acca+CHN[r]}, v54, s33")
            a(f"    v_add_f32 v{16+r}, s34, v{acca+CHN[r]}")
        a(f"    ds_write_b128 v51, v[16:19] offset:{m*64}")
    a(f"""    s_waitcnt lgkmcnt(0)
    s_barrier                               ; #3
    s_lshl_b32 s30, s36, 6
    v_add_u32 v2, s30, v{VL}                ; t2
    v_lshrrev_b32 v3, 4, v2
    v_mul_u32_u24 v3, 272, v3
    v_lshl_add_u32 v3, v{VI}, 4, v3
    v_add_u32 v3, {A_G}, v3
    ds_read_b128 v[16:19], v3
    s_mul_i32 s31, s2, {NPB*256}
    s_add_u32 s31, s31, {G_OFF}
    v_lshl_add_u32 v4, v2, 4, s31
    s_cmp_ge_u32 s36, 4
    s_cbranch_scc1 L_TG1
    ds_read_b128 v[20:23], v3 offset:{24*272}
    v_add_u32 v7, {384*16}, v4
    s_waitcnt lgkmcnt(0)
    global_store_dwordx4 v7, v[20:23], s[26:27] {st}
L_TG1:
    s_waitcnt lgkmcnt(0)
    global_store_dwordx4 v4, v[16:19], s[26:27] {st}
    s_cmp_lg_u32 s2, {NB-1}
    s_cbranch_scc1 L_TAU
    s_cmp_lg_u32 s36, 5
    s_cbranch_scc1 L_TAU
    v_mov_b32 v20, 0x71807180
    v_mov_b32 v21, v20
    v_mov_b32 v22, 0
    v_mov_b32 v23, 0
    v_lshlrev_b32 v7, 4, v{VL}
    v_add_u32 v7, {N*256 + G_OFF}, v7
    s_mov_b64 exec, 0xffff
    global_store_dwordx4 v7, v[20:23], s[26:27] {st}
    s_mov_b64 exec, -1
L_TAU:
    s_barrier                               ; #4""")
    a(f"""    ; the table rows of this workgroup are complete: the last table wave publishes the flag
    v_mov_b32 v16, {L_GCNT}
    v_mov_b32 v17, 1
    s_waitcnt vmcnt(0)
    s_mov_b64 exec, 1
    ds_add_rtn_u32 v18, v16, v17
    s_waitcnt lgkmcnt(0)
    v_readfirstlane_b32 s30, v18
    s_mov_b64 exec, -1
    s_cmp_lg_u32 s30, 5
    s_cbranch_scc1 L_PHASEB
    s_lshl_b32 s30, s2, 4
    s_add_u32 s30, s30, {GF_OFF}
    v_mov_b32 v16, s30
    v_mov_b32 v18, s{S_TAG}
    v_mov_b32 v19, s{S_TAG+1}
    s_mov_b64 exec, 1
    global_store_dwordx2 v16, v[18:19], s[26:27] {st}
    s_mov_b64 exec, -1""")

def gran_addr(a):
    a(f"""    s_and_b32 s30, s2, 7
    s_lshl_b32 s30, s30, 5
    s_lshr_b32 s31, s2, 3
    s_or_b32 s31, s30, s31                  ; h
    s_lshr_b32 s30, s31, 3
    s_lshl_b32 s30, s30, 15
    s_and_b32 s31, s31, 7
    s_lshl_b32 s31, s31, 4
    s_add_u32 s30, s30, s31
    s_lshl_b32 s31, s3, 11
    s_add_u32 s30, s30, s31
    s_add_u32 s30, s30, {GRAN_OFF}
    v_lshl_add_u32 v2, v{VQ}, 9, s30""")

def phase_b(a, opt):
    GR = lambda j: 8 + 4 * j
    rec = lambda h, j: 24 + 16 * h + 4 * j
    RANK, DL = 56, 64
    msk = lambda h, j: (M0 if h == 0 else M1) + 2 * j
    pnd = lambda h, j: (P0M if h == 0 else P1M) + 2 * j
    inv = lambda j: S_INV + (2 if j >= 2 else 0)
    a("L_PHASEB:")
    stamp(a, 4)
    a(f"""    ; ================= phase B: wait for the run table entries of this bucket
    v_lshlrev_b32 v2, 3, v{VL}
    ds_read_b64 v[{WC}:{WC+1}], v2 offset:{L_WCB}""")
    gran_addr(a)
    a(f"""    s_add_u32 s{S_REC}, s26, {REC_OFF}
    s_addc_u32 s{S_REC+1}, s27, 0
    s_mov_b32 s{S_REC+2}, {E*16}
    s_mov_b32 s{S_REC+3}, 0x20000
    s_add_u32 s{S_G}, s26, {G_OFF}
    s_addc_u32 s{S_G+1}, s27, 0
    s_or_b32 s{S_G+1}, s{S_G+1}, 0x01000000  ; stride 256
    s_mov_b32 s{S_G+2}, {N+1}
    s_mov_b32 s{S_G+3}, 0x20000
    s_mov_b32 s33, 0""")
    for j in range(4):
        a(f"    s_not_b64 s[{pnd(0,j)}:{pnd(0,j)+1}], s[{inv(j)}:{inv(j)+1}]")
    a("L_POLL:")
    for j in range(4):
        p = pnd(0, j)
        a(f"    s_mov_b64 exec, s[{p}:{p+1}]")
        a(f"    s_cbranch_execz L_NP{j}")
        a(f"    global_load_dwordx4 v[{GR(j)}:{GR(j)+3}], v2, s[26:27] offset:{128*j} sc1")
        a(f"L_NP{j}:")
    a("    s_waitcnt vmcnt(0)")
    for j in range(4):
        p = pnd(0, j)
        a(f"    s_mov_b64 exec, s[{p}:{p+1}]")
        a(f"    v_cmp_eq_u64 vcc, v[{GR(j)+2}:{GR(j)+3}], s[{S_TAG}:{S_TAG+1}]")
        a(f"    s_nop 0")
        a(f"    s_andn2_b64 s[{p}:{p+1}], s[{p}:{p+1}], vcc")
    a(f"""    s_mov_b64 exec, -1
    s_or_b64 s[34:35], s[{pnd(0,0)}:{pnd(0,0)+1}], s[{pnd(0,1)}:{pnd(0,1)+1}]
    s_or_b64 s[36:37], s[{pnd(0,2)}:{pnd(0,2)+1}], s[{pnd(0,3)}:{pnd(0,3)+1}]
    s_or_b64 s[34:35], s[34:35], s[36:37]
    s_cbranch_scc0 L_READY
    s_add_u32 s33, s33, 1
    s_cmp_ge_u32 s33, {POLL_LIMIT}
    s_cbranch_scc1 L_END
    s_sleep {opt.sleep}
    s_branch L_POLL
L_READY:""")
    stamp(a, 5)
    a(f"""L_ROUND:
    v_add_u32 v2, s{S_RB}, v{VI}
    v_add_u32 v3, 16, v2
    v_lshlrev_b32 v4, 4, v2""")
    for j in range(4):
        a(f"    v_cmp_gt_u32 s[{msk(0,j)}:{msk(0,j)+1}], v{GR(j)+1}, v2")
        a(f"    v_cmp_gt_u32 s[{msk(1,j)}:{msk(1,j)+1}], v{GR(j)+1}, v3")
        a(f"    v_add_u32 v{GR(j)+2}, v{GR(j)}, v4")
    a(f"    s_add_u32 s30, s{S_RB}, 32")
    for j in range(4):
        a(f"    s_andn2_b64 s[{msk(0,j)}:{msk(0,j)+1}], s[{msk(0,j)}:{msk(0,j)+1}], s[{inv(j)}:{inv(j)+1}]")
        a(f"    s_mov_b64 s[{pnd(0,j)}:{pnd(0,j)+1}], s[{msk(0,j)}:{msk(0,j)+1}]")
        a(f"    s_andn2_b64 s[{msk(1,j)}:{msk(1,j)+1}], s[{msk(1,j)}:{msk(1,j)+1}], s[{inv(j)}:{inv(j)+1}]")
        a(f"    s_mov_b64 s[{pnd(1,j)}:{pnd(1,j)+1}], s[{msk(1,j)}:{msk(1,j)+1}]")
        a(f"    s_cbranch_scc0 L_NMORE{j}")
        a(f"    s_mov_b64 exec, s[{msk(1,j)}:{msk(1,j)+1}]")
        a(f"    v_cmp_lt_u32 vcc, s30, v{GR(j)+1}")
        a(f"    s_mov_b64 exec, -1")
        a(f"    s_cmp_eq_u64 vcc, 0")
        a(f"    s_cbranch_scc1 L_NMORE{j}")
        a(f"    v_mov_b32 v5, {L_FLAG}")
        a(f"    v_mov_b32 v6, 1")
        a(f"    ds_write_b32 v5, v6")
        a(f"L_NMORE{j}:")
    a(f"""    s_mov_b32 s33, 0
L_RLOAD:""")
    for h in range(2):
        for j in range(4):
            p = pnd(h, j)
            a(f"    s_cmp_eq_u64 s[{p}:{p+1}], 0")
            a(f"    s_cbranch_scc1 L_NL{h}{j}")
            a(f"    s_mov_b64 exec, s[{p}:{p+1}]")
            off = " offset:256" if h else ""
            a(f"    buffer_load_dwordx4 v[{rec(h,j)}:{rec(h,j)+3}], v{GR(j)+2}, s[{S_REC}:{S_REC+3}], 0 offen{off} {opt.hload}")
            a(f"L_NL{h}{j}:")
    a("    s_waitcnt vmcnt(0)")
    for h in range(2):
        for j in range(4):
            p = pnd(h, j)
            r = rec(h, j)
            a(f"    s_cmp_eq_u64 s[{p}:{p+1}], 0")
            a(f"    s_cbranch_scc1 L_NC{h}{j}")
            a(f"    s_mov_b64 exec, s[{p}:{p+1}]")
            a(f"    v_cmp_eq_u32 vcc, s{S_TAG}, v{r+3}")
            a(f"    v_cmp_eq_u32_sdwa s[34:35], v{r+2}, s{S_TAG8} src0_sel:BYTE_3 src1_sel:DWORD")
            a(f"    s_nop 0")
            a(f"    s_and_b64 s[34:35], s[34:35], vcc")
            a(f"    s_andn2_b64 s[{p}:{p+1}], s[{p}:{p+1}], s[34:35]")
            a(f"L_NC{h}{j}:")
    a(f"    s_mov_b64 exec, -1")
    a(f"    s_or_b64 s[34:35], s[{pnd(0,0)}:{pnd(0,0)+1}], s[{pnd(0,1)}:{pnd(0,1)+1}]")
    for h in range(2):
        for j in range(4):
            if (h, j) in ((0, 0), (0, 1)): continue
            a(f"    s_or_b64 s[34:35], s[34:35], s[{pnd(h,j)}:{pnd(h,j)+1}]")
    a(f"""    s_cbranch_scc0 L_HAVE
    s_add_u32 s33, s33, 1
    s_cmp_ge_u32 s33, {POLL_LIMIT}
    s_cbranch_scc1 L_END
    s_sleep {opt.sleep}
    s_branch L_RLOAD
L_HAVE:""")
    stamp(a, 6)
    a(f"""    ; table-row flags of this wave's 16 producers: loaded now, checked before the first gather
    s_lshl_b32 s30, s3, 8
    s_add_u32 s30, s30, {GF_OFF}
    v_lshl_add_u32 v20, v{VI}, 4, s30
    global_load_dwordx2 v[22:23], v20, s[26:27] sc1
    v_mov_b32 v7, 1""")
    for h in range(2):
        for j in range(4):
            m = msk(h, j)
            if h == 1:
                a(f"    s_cmp_eq_u64 s[{m}:{m+1}], 0")
                a(f"    s_cbranch_scc1 L_NB1R{j}")
            a(f"    s_mov_b64 exec, s[{m}:{m+1}]")
            a(f"    v_and_b32 v{DL+4*h+j}, 0xff, v{rec(h,j)+2}")
            a(f"    ds_add_rtn_u32 v{RANK+4*h+j}, v{DL+4*h+j}, v7 offset:{L_CNT}")
            if h == 1:
                a(f"L_NB1R{j}:")
    a(f"""    s_mov_b64 exec, -1
    v_lshlrev_b32 v4, 2, v{VL}
    v_mov_b32 v6, {L_FLAG}
    v_cmp_gt_u32 vcc, {NPB}, v{VL}
    s_waitcnt lgkmcnt(0)
    s_barrier                               ; #5
    ds_read_b32 v5, v4 offset:{L_CNT}
    ds_read_b32 v6, v6
    s_waitcnt lgkmcnt(0)
    v_add_u32 v4, 7, v5
    v_lshrrev_b32 v4, 3, v4
    v_max_u32 v4, 1, v4
    v_cndmask_b32 v4, 0, v4, vcc
    v_readfirstlane_b32 s{S_MORE}, v6
    v_mov_b32 v{QEND}, v4""")
    dpp_scan(a, QEND)
    a(f"""    v_sub_u32 v{QST}, v{QEND}, v4
    v_readlane_b32 s{S_P}, v{QEND}, 63
    v_lshlrev_b32 v3, 3, v{QST}
    s_mov_b32 s30, {L_SRC}
    s_mov_b32 s31, {L_E}""")
    for j in range(4):
        a(f"    ds_bpermute_b32 v{8+j}, v{DL+j}, v3")
    for j in range(4):
        a(f"    s_cmp_eq_u64 s[{M1+2*j}:{M1+2*j+1}], 0")
        a(f"    s_cbranch_scc1 L_NB1P{j}")
        a(f"    ds_bpermute_b32 v{12+j}, v{DL+4+j}, v3")
        a(f"L_NB1P{j}:")
    a(f"""    ; padding slots: waves 0..4 take 8 nodes each, lane = (node, slot); wave 5 fills the tail
    s_lshl_b32 s32, s3, 3
    v_lshrrev_b32 v16, 3, v{VL}
    v_add_u32 v16, s32, v16
    v_lshlrev_b32 v16, 2, v16               ; 4*node
    v_add_u32 v17, v3, v5
    v_lshlrev_b32 v18, 3, v{QEND}
    ds_bpermute_b32 v17, v16, v17
    ds_bpermute_b32 v18, v16, v18
    s_mul_i32 s{S_TS}, s{S_P}, s3
    s_lshr_b32 s{S_TS}, s{S_TS}, 4
    s_add_u32 s32, s3, 1
    s_mul_i32 s{S_TE}, s{S_P}, s32
    s_lshr_b32 s{S_TE}, s{S_TE}, 4
    v_cmp_ge_u32 vcc, s{S_TS}, v{QEND}
    s_waitcnt lgkmcnt(0)
    s_bcnt1_i32_b64 s{S_N}, vcc""")
    for h in range(2):
        for j in range(4):
            m = msk(h, j)
            r = rec(h, j)
            if h == 1:
                a(f"    s_cmp_eq_u64 s[{m}:{m+1}], 0")
                a(f"    s_cbranch_scc1 L_NB1S{j}")
            a(f"    s_mov_b64 exec, s[{m}:{m+1}]")
            a(f"    v_add_u32 v{8+4*h+j}, v{8+4*h+j}, v{RANK+4*h+j}")
            a(f"    v_bfe_u32 v{r+2}, v{r+2}, 8, 16")
            a(f"    v_lshl_add_u32 v19, v{8+4*h+j}, 2, s30")
            a(f"    v_lshl_add_u32 v21, v{8+4*h+j}, 3, s31")
            a(f"    ds_write_b32 v19, v{r+2}")
            a(f"    ds_write_b64 v21, v[{r}:{r+1}]")
            if h == 1:
                a(f"L_NB1S{j}:")
    a(f"""    s_mov_b64 exec, -1
    v_mov_b32 v11, {N}
    v_mov_b32 v12, 0
    v_mov_b32 v13, 0
    s_cmp_gt_u32 s3, 5
    s_cbranch_scc1 L_NOPAD
    v_and_b32 v16, 7, v{VL}
    v_add_u32 v16, v17, v16
    v_cmp_lt_u32 vcc, v16, v18
    s_cmp_lt_u32 s3, 5
    s_cbranch_scc1 L_PADW
    s_lshl_b32 s32, s{S_P}, 3
    v_add_u32 v16, s32, v{VL}
    s_mov_b64 vcc, -1
L_PADW:
    v_lshl_add_u32 v14, v16, 2, s30
    v_lshl_add_u32 v15, v16, 3, s31
    s_mov_b64 exec, vcc
    ds_write_b32 v14, v11
    ds_write_b64 v15, v[12:13]
    s_mov_b64 exec, -1
L_NOPAD:
    v_readlane_b32 s{S_SEGEND}, v{QEND}, s{S_N}
    s_lshl_b32 s32, s{S_TS}, 5
    v_add_u32 v2, s32, v{SRB}
    s_lshl_b32 s32, s{S_TS}, 1
    v_mad_u32_u24 v3, v{EM}, s32, v{EB}
    s_mul_i32 s32, s{S_N}, 272
    v_add_u32 v{TMP}, s32, v{APA}
    s_add_u32 s32, s{S_N}, s3
    s_lshl_b32 s32, s32, 9
    v_add_u32 v{SLA}, s32, v{SLB}
    s_min_u32 s{S_SEGEND}, s{S_SEGEND}, s{S_TE}
    s_sub_u32 s{S_REM}, s{S_SEGEND}, s{S_TS}
    s_sub_u32 s{S_REM}, s{S_REM}, 1""")
    S = lambda k: 8 + 6 * (k % 8)
    Da, Db, T = 56, 60, 64
    NUM, DEN = 68, 72
    PA, PB_, UA, UB, SA, SB = 76, 78, 80, 82, 84, 86
    a(f"""    s_mov_b32 s33, 0
    s_cmp_eq_u32 s3, 15
    s_cselect_b32 s34, 0xfc00fc00, 0
    s_mov_b32 s35, s34
L_GPOLL:
    s_waitcnt vmcnt(0)
    v_cmp_eq_u64 s[36:37], v[22:23], s[{S_TAG}:{S_TAG+1}]
    s_nop 0
    s_or_b64 s[36:37], s[36:37], s[34:35]
    s_cmp_eq_u64 s[36:37], -1
    s_cbranch_scc1 L_GOK
    s_add_u32 s33, s33, 1
    s_cmp_ge_u32 s33, {POLL_LIMIT}
    s_cbranch_scc1 L_END
    s_sleep {opt.sleep}
    global_load_dwordx2 v[22:23], v20, s[26:27] sc1
    s_branch L_GPOLL
L_GOK:""")
    for k in range(8):
        a(f"    v_pk_mov_b32 v[{S(k)}:{S(k)+1}], v[{WC}:{WC+1}], v[{WC}:{WC+1}] op_sel:[0,1]")
    for r in range(0, 8, 2):
        a(f"    v_pk_mov_b32 v[{NUM+r}:{NUM+r+1}], 0, 0")
    for k in range(4):
        a(f"    v_mov_b32 v{56+2*k+1}, v{IDXA+1}")
    a(f"""    s_waitcnt lgkmcnt(0)
    s_barrier                               ; #6""")
    stamp(a, 7)
    cstamp(a, 10)
    pairs = [IDXA, IDXB, 56, 58, 60, 62]
    for k in range(6):
        a(f"    ds_read_b32 v{pairs[k]}, v2 offset:{16*k}")
    a(f"""    ds_read_b128 v[{AC}:{AC+3}], v{TMP}
    ds_read_b128 v[{ANX}:{ANX+3}], v{TMP} offset:272
    ds_read_b64 v[{A0}:{A0+1}], v3
    ds_read_b64 v[{A1}:{A1+1}], v3 offset:32""")
    for k in range(6):
        a(f"    s_waitcnt lgkmcnt({9-k})")
        a(f"    buffer_load_dwordx4 v[{S(k)+2}:{S(k)+5}], v[{pairs[k]}:{pairs[k]+1}], s[{S_G}:{S_G+3}], 0 idxen offen {opt.gload}")
    if opt.prio:
        a(f"    s_setprio 3")
        a(f"    s_sub_u32 s{S_BLK}, s{S_TE}, s{S_TS}")
    a(f"    s_waitcnt lgkmcnt(0)")
    a("L_LOOP:")
    for k in range(0, 8, 2):
        sa, sb = S(k), S(k + 1)
        pa, pb = S(k - 2), S(k - 1)
        a(f"""    s_waitcnt vmcnt(5)
    v_mfma_f32_16x16x32_bf16 v[{Da}:{Da+3}], v[{A0}:{A0+3}], v[{sa}:{sa+3}], v[{AC}:{AC+3}]
    ds_read_b32 v{IDXA}, v2 offset:{16*(k+6)}
    ds_read_b32 v{IDXB}, v2 offset:{16*(k+7)}
    v_lshlrev_b32 v{T}, 16, v{sa+4}
    v_lshlrev_b32 v{T+1}, 16, v{sa+5}
    s_waitcnt vmcnt(4)
    v_mfma_f32_16x16x32_bf16 v[{Db}:{Db+3}], v[{A1}:{A1+3}], v[{sb}:{sb+3}], v[{AC}:{AC+3}]
    v_lshlrev_b32 v{T+2}, 16, v{sb+4}
    v_lshlrev_b32 v{T+3}, 16, v{sb+5}
    s_sub_u32 s{S_REM}, s{S_REM}, 1
    ds_read_b64 v[{A0}:{A0+1}], v3 offset:{32*(k+2)}
    ds_read_b64 v[{A1}:{A1+1}], v3 offset:{32*(k+3)}""")
        for i in range(4):
            a(f"    v_exp_f32 v{Da+i}, v{Da+i} clamp")
        a(f"""    s_waitcnt lgkmcnt(2)
    buffer_load_dwordx4 v[{pa+2}:{pa+5}], v[{IDXA}:{IDXA+1}], s[{S_G}:{S_G+3}], 0 idxen offen {opt.gload}
    buffer_load_dwordx4 v[{pb+2}:{pb+5}], v[{IDXB}:{IDXB+1}], s[{S_G}:{S_G+3}], 0 idxen offen {opt.gload}""")
        for i in range(4):
            a(f"    v_exp_f32 v{Db+i}, v{Db+i} clamp")
        c = f"s[{S_C60}:{S_C60+1}]"
        a(f"""    v_pk_add_f32 v[{Da}:{Da+1}], v[{Da}:{Da+1}], {c}
    v_pk_add_f32 v[{Da+2}:{Da+3}], v[{Da+2}:{Da+3}], {c}
    v_pk_add_f32 v[{Db}:{Db+1}], v[{Db}:{Db+1}], {c}
    v_pk_add_f32 v[{Db+2}:{Db+3}], v[{Db+2}:{Db+3}], {c}
    v_pk_mul_f32 v[{PA}:{PA+1}], v[{Da}:{Da+1}], v[{Db}:{Db+1}]
    v_pk_mul_f32 v[{PB_}:{PB_+1}], v[{Da+2}:{Da+3}], v[{Db+2}:{Db+3}]
    v_pk_mul_f32 v[{UA}:{UA+1}], v[{T}:{T+1}], v[{Db}:{Db+1}]
    v_rcp_f32 v{PA}, v{PA}
    v_rcp_f32 v{PA+1}, v{PA+1}
    v_pk_mul_f32 v[{UB}:{UB+1}], v[{sa+4}:{sa+5}], v[{Db+2}:{Db+3}]
    v_rcp_f32 v{PB_}, v{PB_}
    v_rcp_f32 v{PB_+1}, v{PB_+1}
    v_pk_fma_f32 v[{UA}:{UA+1}], v[{T+2}:{T+3}], v[{Da}:{Da+1}], v[{UA}:{UA+1}]
    v_pk_fma_f32 v[{UB}:{UB+1}], v[{sb+4}:{sb+5}], v[{Da+2}:{Da+3}], v[{UB}:{UB+1}]
    v_pk_add_f32 v[{SA}:{SA+1}], v[{Da}:{Da+1}], v[{Db}:{Db+1}]
    v_pk_add_f32 v[{SB}:{SB+1}], v[{Da+2}:{Da+3}], v[{Db+2}:{Db+3}]
    v_pk_fma_f32 v[{NUM}:{NUM+1}], v[{PA}:{PA+1}], v[{UA}:{UA+1}], v[{NUM}:{NUM+1}]
    v_pk_fma_f32 v[{NUM+2}:{NUM+3}], v[{PB_}:{PB_+1}], v[{UB}:{UB+1}], v[{NUM+2}:{NUM+3}]
    v_pk_fma_f32 v[{DEN}:{DEN+1}], v[{PA}:{PA+1}], v[{SA}:{SA+1}], v[{DEN}:{DEN+1}]
    v_pk_fma_f32 v[{DEN+2}:{DEN+3}], v[{PB_}:{PB_+1}], v[{SB}:{SB+1}], v[{DEN+2}:{DEN+3}]
    s_waitcnt lgkmcnt(0)
    s_cbranch_scc1 L_SB{k}
L_RB{k}:""")
        if k == 6:
            a(f"    v_add_u32 v2, 128, v2")
            a(f"    v_add_u32 v3, v{INCE}, v3")
            if opt.prio:
                t1, t2, t3 = opt.pth
                a(f"""    s_sub_u32 s{S_BLK}, s{S_BLK}, 4
    s_cmp_gt_i32 s{S_BLK}, {t1}
    s_cbranch_scc1 L_LOOP
    s_setprio 2
    s_cmp_gt_i32 s{S_BLK}, {t2}
    s_cbranch_scc1 L_LOOP
    s_setprio 1
    s_cmp_gt_i32 s{S_BLK}, {t3}
    s_cbranch_scc1 L_LOOP
    s_setprio 0""")
            a(f"    s_branch L_LOOP")
    for k in range(0, 8, 2):
        a(f"L_SB{k}:")
        for r in range(4):
            a(f"    v_permlane32_swap_b32 v{NUM+r}, v{DEN+r}")
        a(f"""    v_pk_add_f32 v[{NUM}:{NUM+1}], v[{NUM}:{NUM+1}], v[{DEN}:{DEN+1}]
    v_pk_add_f32 v[{NUM+2}:{NUM+3}], v[{NUM+2}:{NUM+3}], v[{DEN+2}:{DEN+3}]
    s_add_u32 s{S_N}, s{S_N}, 1
    s_add_u32 s36, s{S_N}, 1
    v_permlane16_swap_b32 v{NUM}, v{NUM+2}
    v_permlane16_swap_b32 v{NUM+1}, v{NUM+3}
    v_readlane_b32 s37, v{QEND}, s{S_N}
    s_mul_i32 s36, s36, 272
    v_pk_add_f32 v[{DEN}:{DEN+1}], v[{NUM}:{NUM+1}], v[{NUM+2}:{NUM+3}]
    v_add_u32 v{TMP}, s36, v{APA}
    s_cmp_eq_u32 s{S_SEGEND}, s{S_TE}
    ds_write_b64 v{SLA}, v[{DEN}:{DEN+1}]
    s_cbranch_scc1 L_DONE
    v_pk_mov_b32 v[{AC}:{AC+1}], v[{ANX}:{ANX+1}], v[{ANX}:{ANX+1}] op_sel:[0,1]
    v_pk_mov_b32 v[{AC+2}:{AC+3}], v[{ANX+2}:{ANX+3}], v[{ANX+2}:{ANX+3}] op_sel:[0,1]
    v_add_u32 v{SLA}, {SLOT_STR}, v{SLA}
    s_min_u32 s37, s37, s{S_TE}
    v_pk_mov_b32 v[{NUM}:{NUM+1}], 0, 0
    v_pk_mov_b32 v[{NUM+2}:{NUM+3}], 0, 0
    ds_read_b128 v[{ANX}:{ANX+3}], v{TMP}
    v_pk_mov_b32 v[{DEN}:{DEN+1}], 0, 0
    v_pk_mov_b32 v[{DEN+2}:{DEN+3}], 0, 0
    s_sub_u32 s{S_REM}, s37, s{S_SEGEND}
    s_sub_u32 s{S_REM}, s{S_REM}, 1
    s_mov_b32 s{S_SEGEND}, s37
    s_branch L_RB{k}""")
    a("L_DONE:")
    if opt.prio:
        a("    s_setprio 0")
    stamp(a, 8)
    cstamp(a, 11)
    a(f"""    s_waitcnt vmcnt(0) lgkmcnt(0)
    s_barrier                               ; #7
    s_cmp_ge_u32 s3, 5
    s_cbranch_scc1 L_MERGED
    v_cvt_f32_u32 v16, s{S_P}
    v_rcp_f32 v16, v16
    v_lshlrev_b32 v17, 4, v{QST}
    v_add_u32 v17, 16, v17
    v_cvt_f32_u32 v17, v17
    v_lshlrev_b32 v18, 4, v{QEND}
    v_cvt_f32_u32 v18, v18
    v_add_f32 v17, -0.5, v17
    v_add_f32 v18, -0.5, v18
    v_mul_f32 v17, v17, v16
    v_mul_f32 v18, v18, v16
    v_cvt_u32_f32 v17, v17
    v_cvt_u32_f32 v18, v18
    v_lshrrev_b32 v4, 3, v0                 ; node
    v_sub_u32 v18, v18, v17
    v_add_u32 v18, 1, v18
    v_add_u32 v17, v17, v{VL}
    v_lshl_or_b32 v17, v18, 16, v17
    v_lshlrev_b32 v5, 2, v4
    ds_bpermute_b32 v5, v5, v17
    v_and_b32 v6, 7, v0
    v_lshlrev_b32 v6, 4, v6
    s_mov_b32 s36, 0""")
    for r in range(0, 16, 2):
        a(f"    v_pk_mov_b32 v[{24+r}:{25+r}], 0, 0")
    a(f"""    v_mul_u32_u24 v41, 272, v4
    v_lshl_add_u32 v41, v6, 1, v41
    v_add_u32 v41, {L_U}, v41
    s_waitcnt lgkmcnt(0)
    v_lshrrev_b32 v7, 16, v5
    v_and_b32 v5, 0xffff, v5
    v_lshl_add_u32 v5, v5, 9, v6
L_MERGE:
    v_cmp_lt_u32 vcc, s36, v7
    s_nop 1
    s_cmp_eq_u64 vcc, 0
    s_cbranch_scc1 L_MERGE_END
    s_mov_b64 exec, vcc
    ds_read_b128 v[8:11], v5 offset:{L_SLOT}
    ds_read_b128 v[12:15], v5 offset:{L_SLOT+128}
    ds_read_b128 v[16:19], v5 offset:{L_SLOT+256}
    ds_read_b128 v[20:23], v5 offset:{L_SLOT+384}
    v_add_u32 v5, {SLOT_STR}, v5
    s_add_u32 s36, s36, 1
    s_waitcnt lgkmcnt(0)""")
    for r in range(8):
        a(f"    v_pk_add_f32 v[{24+2*r}:{25+2*r}], v[{24+2*r}:{25+2*r}], v[{8+2*r}:{9+2*r}]")
    a(f"""    s_mov_b64 exec, -1
    s_branch L_MERGE
L_MERGE_END:
    s_or_b32 s36, s{S_RB}, s{S_MORE}
    s_cmp_eq_u32 s36, 0
    s_cbranch_scc1 L_MERGED
    s_mul_i32 s36, s2, {320*64}
    s_add_u32 s36, s36, {TOT_OFF}
    v_lshl_add_u32 v42, v0, 6, s36
    s_cmp_eq_u32 s{S_RB}, 0
    s_cbranch_scc1 L_NOPREV""")
    for r in range(4):
        a(f"    global_load_dwordx4 v[{8+4*r}:{11+4*r}], v42, s[26:27] offset:{16*r} sc1")
    a("    s_waitcnt vmcnt(0)")
    for r in range(8):
        a(f"    v_pk_add_f32 v[{24+2*r}:{25+2*r}], v[{24+2*r}:{25+2*r}], v[{8+2*r}:{9+2*r}]")
    a(f"""L_NOPREV:
    s_cmp_eq_u32 s{S_MORE}, 0
    s_cbranch_scc1 L_MERGED""")
    for r in range(4):
        a(f"    global_store_dwordx4 v42, v[{24+4*r}:{27+4*r}], s[26:27] offset:{16*r} sc1")
    a(f"""    s_waitcnt vmcnt(0)
L_MERGED:
    s_cmp_eq_u32 s{S_MORE}, 0
    s_cbranch_scc1 L_EPI
    s_add_u32 s{S_RB}, s{S_RB}, 32
    s_cmp_lg_u32 s3, 0
    s_cbranch_scc1 L_NOCLR
    v_mov_b32 v9, 0
    v_lshlrev_b32 v10, 2, v{VL}
    ds_write_b32 v10, v9 offset:{L_CNT}
    v_mov_b32 v10, {L_FLAG}
    ds_write_b32 v10, v9
L_NOCLR:""")
    gran_addr(a)
    for j in range(4):
        a(f"    global_load_dwordx4 v[{GR(j)}:{GR(j)+3}], v2, s[26:27] offset:{128*j} sc1")
    a(f"""    s_waitcnt vmcnt(0) lgkmcnt(0)
    s_barrier
    s_branch L_ROUND
L_EPI:
    s_cmp_ge_u32 s3, 5
    s_cbranch_scc1 L_FIN
    ds_read_b128 v[40:43], v41
    ds_read_b128 v[44:47], v41 offset:16
    s_mov_b32 s36, {EPS60:#x}               ; 1e-6 * 2^60""")
    nreg = [24 + c // 2 + 4 * (c % 2) for c in range(8)]
    dreg = [x + 8 for x in nreg]
    for c in range(8):
        a(f"    v_add_f32 v{dreg[c]}, s36, v{dreg[c]}")
        a(f"    v_rcp_f32 v{dreg[c]}, v{dreg[c]}")
    for c in range(8):
        xr = XR + c // 2
        if c % 2 == 0:
            a(f"    v_lshlrev_b32 v{8+c}, 16, v{xr}")
        else:
            a(f"    v_and_b32 v{8+c}, 0xffff0000, v{xr}")
    a("    s_waitcnt lgkmcnt(0)")
    for c in range(8):
        a(f"    v_fma_f32 v{40+c}, v{nreg[c]}, v{dreg[c]}, v{40+c}")
        a(f"    v_mul_f32 v{16+c}, 0, v{40+c}")
        a(f"    v_cmp_lt_f32 vcc, 0, v{40+c}")
        a(f"    s_nop 1")
        a(f"    v_cndmask_b32 v{40+c}, v{16+c}, v{40+c}, vcc")
        a(f"    v_add_f32 v{40+c}, v{8+c}, v{40+c}")
    for c in range(4):
        a(f"    v_cvt_pk_bf16_f32 v{16+c}, v{40+2*c}, v{41+2*c}")
    a(f"""    v_lshlrev_b32 v4, 4, v0
    s_mul_i32 s36, s2, {NPB*128}
    v_add_u32 v4, s36, v4
    global_store_dwordx4 v4, v[16:19], s[22:23] {opt.ostore}
    s_or_b32 s36, s2, s3
    s_cmp_lg_u32 s36, 0
    s_cbranch_scc1 L_FIN
    v_mov_b32 v4, {GEN_OFF}
    v_mov_b32 v6, s{S_TAG}
    v_mov_b32 v7, s{S_TAG+1}
    s_mov_b64 exec, 1
    global_store_dwordx2 v4, v[6:7], s[26:27]
L_FIN:""")
    stamp_flush(a)
    a("""L_END:
    s_endpgm
""")

HEADER = """; GatedGCN edge-featured MPNN layer, one launch, one workgroup per 40 destination nodes.
"""

def main():
    global PROF
    ap = argparse.ArgumentParser()
    ap.add_argument("-o", default="standalone__edge_featured_mpnn_gatedgcn__graph.s")
    ap.add_argument("--store", default="sc1")
    ap.add_argument("--hload", default="sc1")
    ap.add_argument("--gload", default="")
    ap.add_argument("--ostore", default="")
    ap.add_argument("--prio", type=int, default=1)
    ap.add_argument("--pth", type=int, nargs=3, default=[15, 10, 5])
    ap.add_argument("--sleep", type=int, default=2)
    ap.add_argument("--prof", action="store_true")
    ap.add_argument("--dbg", action="store_true")
    opt = ap.parse_args()
    PROF = opt.prof or opt.dbg
    global DBG
    DBG = opt.dbg
    a = Asm()
    a(HEADER.rstrip())
    a(f"; @launch grid=({NB},1,1) block=(1024,1,1) lds={L_END}")
    a('.amdgcn_target "amdgcn-amd-amdhsa--gfx950"')
    a(".text")
    entry(a, opt)
    phase_a_bin(a, opt)
    phase_a_table(a, opt)
    phase_b(a, opt)
    a(f""".section .rodata,"a"
.p2align 6
.amdhsa_kernel {KNAME}
  .amdhsa_next_free_vgpr 128
  .amdhsa_next_free_sgpr {98 if PROF else 96}
  .amdhsa_accum_offset 128
  .amdhsa_group_segment_fixed_size 0
  .amdhsa_kernarg_size 96
  .amdhsa_user_sgpr_count 2
  .amdhsa_user_sgpr_kernarg_segment_ptr 1
  .amdhsa_system_sgpr_workgroup_id_x 1
  .amdhsa_float_denorm_mode_32 3
  .amdhsa_dx10_clamp 0
.end_amdhsa_kernel""")
    open(opt.o, "w").write(a.text())
    print("wrote", opt.o, "lds", L_END)

if __name__ == "__main__":
    main()
```

```python
import argparse, struct

KNAME = "standalone__edge_featured_mpnn_gatedgcn__graph_kernel"
N, D, E = 10000, 64, 640000
NB, NPB = 250, 40
CH = 2560
GEN_OFF, G_OFF, GF_OFF, GRAN_OFF, REC_OFF, TOT_OFF = 0, 0x1000, 0x274000, 0x280000, 0x380000, 0xD80000
PROF_OFF = 0x1300000
NLOG2E = 0xBFB8AA3B
BIG, NBIG = 0x71800000, 0xF1800000
SHIFT = 60
C60 = (127 - SHIFT) << 23
EPS60 = struct.unpack("<I", struct.pack("<f", 1e-6 * 2.0 ** SHIFT))[0]
FSHIFT = struct.unpack("<I", struct.pack("<f", -float(SHIFT)))[0]
NWV = 16
POLL_LIMIT = 1 << 17
CHN = [0, 2, 1, 3]

SLOT_STR = 512
L_SLOT = 0
L_CNT = L_SLOT + (NPB + NWV) * SLOT_STR
L_ZREG = L_CNT + 256
L_FLAG = L_ZREG + 512
L_GCNT = L_FLAG + 4
L_ZEND = L_FLAG + 16
L_WCB = 29504
L_AP = 30080
L_U = L_AP + 48 * 272
L_SRC = L_U + 48 * 272
NSLOT = 250 * 32 + 320 + 64
L_E = L_SRC + NSLOT * 4
L_END = L_E + NSLOT * 8
A_HIST = L_SRC
A_OFFS = A_HIST + 1024
A_REC = A_OFFS + 1024
A_W = A_REC + CH * 16
WIMG = 64 * 144
A_X = A_W + 4 * WIMG
A_G = A_X + 48 * 144
assert A_G + 48 * 272 <= L_END <= 163840
assert all(x % 16 == 0 for x in (L_WCB, L_AP, L_U, L_SRC, L_E, A_REC, A_W, A_X, A_G))

SLA, TMP, INCE, APA = 88, 89, 90, 91
IDXA, IDXB = 92, 94
AC, A0, A1, ANX = 96, 100, 104, 108
XR = 112
QEND, QST = 116, 117
WC = 118
EB, EM, SRB, SLB = 120, 121, 122, 123
VPROF = 124
VI, VQ, VL = 125, 126, 127
S_TAG = 28
S_REC = 40
S_G = 44
M0, M1 = 48, 56
S_INV = 64
S_RB, S_MORE, S_P, S_TS, S_TE, S_N, S_SEGEND, S_REM = 68, 69, 70, 71, 72, 73, 74, 75
S_BLK, S_TAG8 = 76, 77
S_C60 = 78
P0M, P1M = 80, 88

class Asm:
    def __init__(self): self.l = []
    def __call__(self, s=""):
        self.l.extend(s.split("\n"))
    def text(self): return "\n".join(self.l) + "\n"

PROF = False
def stamp(a, idx):
    if PROF:
        a(f"    s_memrealtime s[96:97]")
        a(f"    s_waitcnt lgkmcnt(0)")
        a(f"    v_writelane_b32 v{VPROF}, s96, {idx}")

def cstamp(a, idx):
    if PROF:
        a(f"    s_memtime s[96:97]")
        a(f"    s_waitcnt lgkmcnt(0)")
        a(f"    v_writelane_b32 v{VPROF}, s96, {idx}")

DBG = False
def stamp_flush(a):
    if not PROF: return
    stamp(a, 9)
    if DBG:
        a(f"""    s_waitcnt vmcnt(0) lgkmcnt(0)
    v_readlane_b32 s30, v{VPROF}, 0
    v_readlane_b32 s31, v{VPROF}, 10
    v_readlane_b32 s32, v{VPROF}, 11
    s_nop 3
    s_not_b32 s30, s30
    s_sub_u32 s32, s32, s31
    v_writelane_b32 v{VPROF}, s30, 0
    v_writelane_b32 v{VPROF}, s32, 10
    s_mov_b64 exec, 0x7ff
    v_lshlrev_b32 v2, 2, v{VL}
    global_atomic_umax v2, v{VPROF}, s[24:25]
    s_waitcnt vmcnt(0)""")
        return
    a(f"""    s_waitcnt vmcnt(0) lgkmcnt(0)
    s_mov_b64 exec, 0xffff
    s_lshl_b32 s30, s2, 4
    s_add_u32 s30, s30, s3
    s_lshl_b32 s30, s30, 6
    s_add_u32 s30, s30, {PROF_OFF}
    v_lshl_add_u32 v2, v{VL}, 2, s30
    global_store_dword v2, v{VPROF}, s[26:27]
    s_waitcnt vmcnt(0)""")

def dpp_scan(a, v):
    for sh in (1, 2, 4, 8):
        a(f"    s_nop 1")
        a(f"    v_add_u32_dpp v{v}, v{v}, v{v} row_shr:{sh} row_mask:0xf bank_mask:0xf bound_ctrl:0")
    a("    s_nop 1")
    a(f"    v_add_u32_dpp v{v}, v{v}, v{v} row_bcast:15 row_mask:0xa bank_mask:0xf")
    a("    s_nop 1")
    a(f"    v_add_u32_dpp v{v}, v{v}, v{v} row_bcast:31 row_mask:0xc bank_mask:0xf")
    a("    s_nop 1")

def entry(a, opt):
    a(f"""
.globl {KNAME}
.p2align 8
.type {KNAME},@function
{KNAME}:
    s_cmp_ge_u32 s2, {NB}
    s_cbranch_scc1 L_END
    s_load_dwordx16 s[4:19], s[0:1], 0
    s_load_dwordx8 s[20:27], s[0:1], 64
    v_lshrrev_b32 v1, 6, v0
    v_and_b32 v{VL}, 63, v0
    v_readfirstlane_b32 s3, v1
    v_lshrrev_b32 v{VQ}, 4, v{VL}
    v_and_b32 v{VI}, 15, v{VL}
    v_lshlrev_b32 v{IDXA+1}, 4, v{VI}
    v_mov_b32 v{IDXB+1}, v{IDXA+1}
    v_and_b32 v2, 3, v{VI}                  ; r
    v_lshrrev_b32 v3, 2, v{VI}              ; e
    v_cmp_eq_u32 vcc, v2, v{VQ}
    v_lshlrev_b32 v4, 3, v3
    v_add_u32 v4, {L_E}, v4
    v_mov_b32 v5, {L_ZREG}
    v_cndmask_b32 v{EB}, v5, v4, vcc
    v_mov_b32 v5, 32
    v_cndmask_b32 v{EM}, 0, v5, vcc
    v_lshlrev_b32 v{INCE}, 3, v{EM}
    v_cmp_eq_u32 vcc, v3, v{VQ}
    v_mov_b32 v5, 0x3f80
    v_lshrrev_b32 v6, 1, v2
    v_lshlrev_b32 v6, 4, v6
    v_lshlrev_b32 v5, v6, v5
    v_cndmask_b32 v5, 0, v5, vcc
    v_and_b32 v6, 1, v2                     ; r%2: 0 -> first register, 1 -> second
    v_cmp_eq_u32 vcc, 0, v6
    v_lshlrev_b32 v{APA}, 4, v{VI}
    v_add_u32 v{APA}, {L_AP}, v{APA}
    v_cndmask_b32 v{A0+2}, 0, v5, vcc
    v_cndmask_b32 v{A0+3}, v5, 0, vcc
    v_mov_b32 v{A1+2}, v{A0+2}
    v_mov_b32 v{A1+3}, v{A0+3}
    v_lshlrev_b32 v{SLB}, 3, v{VL}
    v_lshlrev_b32 v{SRB}, 2, v{VQ}
    v_add_u32 v{SRB}, {L_SRC}, v{SRB}
    s_mov_b32 s{S_RB}, 0
    s_mov_b32 s{S_C60}, {C60:#x}
    s_mov_b32 s{S_C60+1}, {C60:#x}
    s_cmp_eq_u32 s3, 15
    s_cselect_b32 s{S_INV+1}, 0xffff0000, 0
    s_cselect_b32 s{S_INV+3}, -1, 0
    s_mov_b32 s{S_INV}, 0
    s_mov_b32 s{S_INV+2}, 0""")
    if PROF:
        a(f"    v_mov_b32 v{VPROF}, 0")
    stamp(a, 0)
    a(f"""    s_cmp_ge_u32 s3, 10
    s_cbranch_scc1 L_TABLE""")

def gran_addr(a, dst=2):
    a(f"""    s_and_b32 s30, s2, 7
    s_lshl_b32 s30, s30, 5
    s_lshr_b32 s31, s2, 3
    s_or_b32 s31, s30, s31                  ; h
    s_lshr_b32 s30, s31, 3
    s_lshl_b32 s30, s30, 15
    s_and_b32 s31, s31, 7
    s_lshl_b32 s31, s31, 4
    s_add_u32 s30, s30, s31
    s_lshl_b32 s31, s3, 11
    s_add_u32 s30, s30, s31
    s_add_u32 s30, s30, {GRAN_OFF}
    v_lshl_add_u32 v{dst}, v{VQ}, 9, s30""")

VGA, VGF, VONE, VCA = 96, 97, 98, 99

def late_setup(a, opt):
    a(f"""    s_add_u32 s{S_REC}, s26, {REC_OFF}
    s_addc_u32 s{S_REC+1}, s27, 0
    s_mov_b32 s{S_REC+2}, {E*opt.rec}
    s_mov_b32 s{S_REC+3}, 0x20000
    s_add_u32 s{S_G}, s26, {G_OFF}
    s_addc_u32 s{S_G+1}, s27, 0
    s_or_b32 s{S_G+1}, s{S_G+1}, 0x01000000  ; stride 256
    s_mov_b32 s{S_G+2}, {N+1}
    s_mov_b32 s{S_G+3}, 0x20000""")
    gran_addr(a, VGA)
    a(f"""    s_lshl_b32 s30, s3, 8
    s_add_u32 s30, s30, {GF_OFF}
    v_lshl_add_u32 v{VGF}, v{VI}, 4, s30
    v_mov_b32 v{VONE}, 1
    v_lshlrev_b32 v{VCA}, 2, v{VL}""")

def phase_a_bin(a, opt):
    st = opt.store
    QR = lambda j: 16 + 4 * j
    a(f"""    ; ================= phase A, binning waves (tid < 640)
    s_mul_i32 s30, s2, {CH*4}
    v_lshlrev_b32 v2, 4, v0
    v_add_u32 v3, s30, v2
    s_lshl_b32 s31, s30, 1
    v_lshlrev_b32 v4, 5, v0
    v_add_u32 v4, s31, v4
    s_mul_i32 s32, s2, {NPB*128}
    v_add_u32 v64, s32, v2
    v_mov_b32 v6, 0
    v_lshlrev_b32 v7, 2, v0
    s_waitcnt lgkmcnt(0)""")
    stamp(a, 1)
    a(f"""    global_load_dwordx4 v[8:11], v3, s[10:11]
    global_load_dwordx4 v[12:15], v3, s[8:9]
    global_load_dwordx4 v[16:19], v4, s[6:7]
    global_load_dwordx4 v[24:27], v4, s[6:7] offset:16
    s_load_dwordx2 s[{S_TAG}:{S_TAG+1}], s[26:27], {GEN_OFF}
    s_cmp_ge_u32 s3, 4
    s_cbranch_scc1 L_NOZH
    ds_write_b32 v7, v6 offset:{A_HIST}
L_NOZH:
    s_cmp_lg_u32 s3, 4
    s_cbranch_scc1 L_NOZC
    v_mov_b32 v32, 0
    v_mov_b32 v33, 0
    v_mov_b32 v34, 0
    v_mov_b32 v35, 0
    v_lshlrev_b32 v36, 4, v{VL}
    v_cmp_gt_u32 vcc, {(L_ZEND-L_CNT)//16}, v{VL}
    s_and_saveexec_b64 s[34:35], vcc
    ds_write_b128 v36, v[32:35] offset:{L_CNT}
    s_mov_b64 exec, s[34:35]
L_NOZC:""")
    late_setup(a, opt)
    a(f"""    ; addresses of the copy-out and of the run table entry (bucket slot h = 64*wave + lane, waves 0..3)
    s_mul_i32 s36, s2, {CH*opt.rec}
    s_mov_b32 s38, {A_REC}
    v_lshl_add_u32 v56, v0, 4, s38
    v_mad_u32_u24 v57, v0, {opt.rec}, s36
    v_add_u32 v58, {640*opt.rec}, v57
    v_add_u32 v59, {2*640*opt.rec}, v57
    v_add_u32 v60, {3*640*opt.rec}, v57
    s_and_b32 s37, s3, 3
    s_lshl_b32 s30, s37, 8
    v_lshl_add_u32 v61, v{VL}, 2, s30       ; 4*h
    s_lshl_b32 s37, s37, 18
    s_lshl_b32 s30, s2, 7
    s_add_u32 s37, s37, s30
    s_add_u32 s37, s37, {GRAN_OFF}
    v_lshrrev_b32 v62, 3, v{VL}
    v_lshl_add_u32 v62, v62, 15, s37
    v_and_b32 v63, 7, v{VL}
    v_lshl_add_u32 v62, v63, 4, v62
    v_lshlrev_b32 v63, 4, v{VL}
    s_mul_i32 s39, s2, {CH}
    s_mov_b32 s33, 52429
    s_movk_i32 s34, 0xffd8                  ; -40
    s_movk_i32 s37, 0xfc04                  ; -1020
    s_waitcnt lgkmcnt(0)
    s_add_u32 s{S_TAG}, s{S_TAG}, 1
    s_addc_u32 s{S_TAG+1}, s{S_TAG+1}, 0
    s_and_b32 s{S_TAG8}, s{S_TAG}, 0xff
    s_lshl_b32 s35, s{S_TAG8}, 24
    v_mov_b32 v53, s{S_TAG}
    v_mov_b32 v54, s{S_TAG+1}
    v_mov_b32 v55, s{S_TAG}
    s_barrier                               ; #1
    s_waitcnt vmcnt(3)""")
    stamp(a, 2)
    for j in range(4):
        a(f"    v_mul_u32_u24 v{40+j}, s33, v{8+j}")
        a(f"    v_lshrrev_b32 v{32+j}, 21, v{40+j}          ; bucket b")
        a(f"    v_lshrrev_b32 v{40+j}, 24, v{40+j}          ; b / 8")
        a(f"    v_mad_i32_i24 v{8+j}, v{32+j}, s34, v{8+j}")
        a(f"    v_lshlrev_b32 v{32+j}, 7, v{32+j}")
        a(f"    v_mad_i32_i24 v{32+j}, v{40+j}, s37, v{32+j}  ; 4 * ((b % 8) * 32 + b / 8): buckets of one die are adjacent")
        a(f"    ds_add_rtn_u32 v{36+j}, v{32+j}, v{VONE} offset:{A_HIST}")
    a("    s_waitcnt vmcnt(2)")
    for j in range(4):
        a(f"    v_lshl_or_b32 v{8+j}, v{8+j}, 2, s35")
        a(f"    v_lshl_or_b32 v{12+j}, v{12+j}, 8, v{8+j}")
    a(f"""    s_waitcnt lgkmcnt(0)
    s_barrier                               ; #2
    ds_read_b128 v[40:43], v63 offset:{A_HIST}
    s_waitcnt lgkmcnt(0)
    v_add_u32 v44, v40, v41
    v_add_u32 v45, v44, v42
    v_add_u32 v46, v45, v43
    v_mov_b32 v47, v46""")
    dpp_scan(a, 47)
    a(f"""    v_sub_u32 v48, v47, v46
    v_add_u32 v49, v48, v40
    v_add_u32 v50, v48, v44
    v_add_u32 v51, v48, v45
    ds_write_b128 v63, v[48:51] offset:{A_OFFS}
    s_waitcnt vmcnt(0)""")
    a("    v_pk_mov_b32 v[20:21], v[18:19], v[18:19] op_sel:[0,1]")
    a("    v_pk_mov_b32 v[28:29], v[26:27], v[26:27] op_sel:[0,1]")
    for j in range(4):
        a(f"    v_mov_b32 v{QR(j)+2}, v{12+j}")
        if opt.rec == 16:
            a(f"    v_bitop3_b32 v{QR(j)+3}, v{QR(j)}, v{12+j}, s{S_TAG} bitop3:0x96")
    a("    s_waitcnt lgkmcnt(0)")
    for j in range(4):
        a(f"    ds_read_b32 v{44+j}, v{32+j} offset:{A_OFFS}")
    a(f"""    ds_read_b32 v52, v61 offset:{A_OFFS}
    ds_read_b32 v48, v61 offset:{A_HIST}
    s_waitcnt lgkmcnt(2)""")
    for j in range(4):
        a(f"    v_add_u32 v{44+j}, v{44+j}, v{36+j}")
        a(f"    v_lshl_add_u32 v{44+j}, v{44+j}, 4, s38")
        a(f"    ds_write_b128 v{44+j}, v[{QR(j)}:{QR(j)+3}]")
    a(f"""    s_add_u32 s30, s26, {REC_OFF}
    s_addc_u32 s31, s27, 0
    s_waitcnt lgkmcnt(0)
    s_barrier                               ; #3""")
    stamp(a, 3)
    if opt.rec == 16:
        for j in range(4):
            a(f"    ds_read_b128 v[{32+4*j}:{35+4*j}], v56 offset:{j*10240}")
    else:
        for j in range(4):
            a(f"    ds_read_b96 v[{32+4*j}:{34+4*j}], v56 offset:{j*10240}")
    a(f"""    v_add_u32 v52, s39, v52
    v_lshl_or_b32 v52, v48, 20, v52""")
    for j in range(4):
        a(f"    s_waitcnt lgkmcnt({3-j})")
        if opt.rec == 16:
            a(f"    global_store_dwordx4 v{57+j}, v[{32+4*j}:{35+4*j}], s[30:31] {st}")
        else:
            a(f"    global_store_dwordx3 v{57+j}, v[{32+4*j}:{34+4*j}], s[30:31] {st}")
    a(f"""    s_cmp_ge_u32 s3, 5
    s_cbranch_scc1 L_NOXR
    global_load_dwordx4 v[{XR}:{XR+3}], v64, s[4:5]
    global_load_dword v{TMP}, v64, s[22:23]
L_NOXR:""")
    if opt.rec == 12:
        a("    s_waitcnt vmcnt(0)")
    a(f"""    s_barrier                               ; #4
    s_cmp_ge_u32 s3, 4
    s_cbranch_scc1 L_PHASEB
    global_store_dwordx4 v62, v[52:55], s[26:27] {st}
    s_branch L_PHASEB""")

def tile_mfma(a, acc0, wreg, xreg):
    for mat in range(2):
        acc = acc0 + 4 * mat
        r0, r1 = wreg + mat * 8, wreg + mat * 8 + 4
        a(f"    v_mfma_f32_16x16x32_bf16 v[{acc}:{acc+3}], v[{r0}:{r0+3}], v[{xreg}:{xreg+3}], 0")
        a(f"    v_mfma_f32_16x16x32_bf16 v[{acc}:{acc+3}], v[{r1}:{r1+3}], v[{xreg+4}:{xreg+7}], v[{acc}:{acc+3}]")

def phase_a_table(a, opt):
    st = opt.store
    wp = [14, 20, 12, 18]
    a(f"""L_TABLE:
    s_sub_u32 s36, s3, 10                   ; u
    s_and_b32 s37, s36, 1
    s_add_u32 s38, s37, 6
    v_lshlrev_b32 v2, 4, v{VL}
    s_lshl_b32 s30, s36, 10
    v_add_u32 v3, s30, v2                   ; piece u
    s_lshl_b32 s31, s38, 10
    v_add_u32 v4, s31, v2                   ; piece 6/7
    s_mul_i32 s32, s2, {NPB*128}
    v_add_u32 v5, s32, v3                   ; x offset
    v_lshrrev_b32 v6, 3, v{VL}
    v_mul_u32_u24 v6, 144, v6
    v_and_b32 v7, 7, v{VL}
    v_lshl_add_u32 v6, v7, 4, v6
    s_mul_i32 s33, s36, {8*144}
    s_add_u32 s33, s33, {A_W}
    v_add_u32 v48, s33, v6
    s_mul_i32 s33, s38, {8*144}
    s_add_u32 s33, s33, {A_W}
    v_add_u32 v49, s33, v6
    v_lshrrev_b32 v50, 1, v{VQ}
    v_and_b32 v51, 1, v{VQ}
    v_lshl_or_b32 v50, v51, 1, v50
    v_lshl_add_u32 v50, v{VI}, 2, v50
    v_lshlrev_b32 v50, 1, v50
    s_waitcnt lgkmcnt(0)
    s_load_dwordx2 s[{S_TAG}:{S_TAG+1}], s[26:27], {GEN_OFF}""")
    stamp(a, 1)
    late_setup(a, opt)
    a("    s_barrier")
    for m in range(4):
        a(f"    global_load_dwordx4 v[{8+8*m}:{11+8*m}], v3, s[{wp[m]}:{wp[m]+1}]")
        a(f"    global_load_dwordx4 v[{12+8*m}:{15+8*m}], v4, s[{wp[m]}:{wp[m]+1}]")
    if opt.touch:
        a(f"""    ; touch the workspace pages used later (unused words or tag-checked records only)
    v_lshlrev_b32 v45, 21, v{VL}
    v_add_u32 v45, 0x200000, v45
    v_mov_b32 v46, 0x276000
    v_cmp_eq_u32 vcc, 0, v{VL}
    s_nop 1
    v_cndmask_b32 v45, v45, v46, vcc
    s_mov_b64 exec, 0x3f
    global_load_dword v{TMP}, v45, s[26:27] sc1
    s_mov_b64 exec, -1""")
    a(f"""    s_cmp_eq_u32 s36, 5
    s_cbranch_scc1 L_TWC0
    global_load_dwordx4 v[40:43], v5, s[4:5]
    s_branch L_TB
L_TWC0:
    global_load_ushort v40, v50, s[16:17]
    global_load_ushort v41, v50, s[16:17] offset:128
    global_load_ushort v42, v50, s[16:17] offset:256
    global_load_ushort v43, v50, s[16:17] offset:384
L_TB:
    s_barrier                               ; #2
    s_barrier                               ; #3
    s_cmp_eq_u32 s36, 5
    s_cbranch_scc1 L_TWC
    s_waitcnt vmcnt(0)
    ds_write_b128 v48, v[40:43] offset:{A_X - A_W}
    s_branch L_TST
L_TWC:
    s_mov_b32 s33, {NLOG2E:#x}
    v_lshlrev_b32 v44, 3, v{VL}
    s_waitcnt vmcnt(0)
    v_lshlrev_b32 v40, 16, v40
    v_lshlrev_b32 v41, 16, v41
    v_lshlrev_b32 v42, 16, v42
    v_lshlrev_b32 v43, 16, v43
    v_mul_f32 v40, s33, v40
    v_mul_f32 v41, s33, v41
    v_mul_f32 v42, s33, v42
    v_mul_f32 v43, s33, v43
    v_cvt_pk_bf16_f32 v40, v40, v41
    v_cvt_pk_bf16_f32 v41, v42, v43
    ds_write_b64 v44, v[40:41] offset:{L_WCB}
L_TST:""")
    for m in range(4):
        a(f"    ds_write_b128 v48, v[{8+8*m}:{11+8*m}] offset:{m*WIMG}")
        a(f"    ds_write_b128 v49, v[{12+8*m}:{15+8*m}] offset:{m*WIMG}")
    a(f"""    ; tile job: nt = u/2, mt in {{2*(u%2), 2*(u%2)+1}}
    s_lshr_b32 s30, s36, 1                  ; nt
    s_lshl_b32 s31, s37, 1                  ; mt0
    s_lshl_b32 s32, s30, 4
    v_add_u32 v4, s32, v{VI}                ; node
    v_mul_u32_u24 v5, 144, v4
    v_lshl_add_u32 v5, v{VQ}, 4, v5
    v_add_u32 v5, {A_X}, v5
    v_lshrrev_b32 v6, 2, v{VI}
    v_lshl_add_u32 v6, v{VQ}, 3, v6
    v_mul_u32_u24 v6, 144, v6
    v_and_b32 v7, 3, v{VI}
    v_lshl_add_u32 v6, v7, 3, v6
    s_lshl_b32 s32, s31, 5
    s_add_u32 s32, s32, {A_W}
    v_add_u32 v6, s32, v6
    v_mul_u32_u24 v7, 272, v4
    v_lshl_add_u32 v50, v{VQ}, 4, v7
    s_lshl_b32 s32, s31, 6
    v_add_u32 v50, s32, v50
    v_add_u32 v51, {L_AP}, v50
    v_add_u32 v53, {L_U}, v50
    s_waitcnt lgkmcnt(0)
    s_add_u32 s{S_TAG}, s{S_TAG}, 1
    s_addc_u32 s{S_TAG+1}, s{S_TAG+1}, 0
    s_and_b32 s{S_TAG8}, s{S_TAG}, 0xff
    s_barrier                               ; #4
    ds_read_b128 v[8:11], v5
    ds_read_b128 v[12:15], v5 offset:64""")
    def wfrags(first):
        for m in range(2):
            for mat in range(2):
                for ks in range(2):
                    r = 16 + m * 16 + mat * 8 + ks * 4
                    for h in range(2):
                        a(f"    ds_read_b64_tr_b16 v[{r+2*h}:{r+2*h+1}], v6 offset:{(first+mat)*WIMG + ks*4608 + h*576 + m*32}")
    wfrags(0)
    a(f"""    ; table row address of this lane: (40 w + node)*256 + (16 mt0 + 4 g)*4 ; rows >= 40 of the tile are not stored
    s_mul_i32 s31, s2, {NPB*256}
    s_add_u32 s31, s31, {G_OFF}
    v_lshlrev_b32 v55, 8, v4
    v_add_u32 v55, s31, v55
    v_lshl_add_u32 v55, v{VQ}, 4, v55
    s_and_b32 s30, s36, 1
    s_lshl_b32 s30, s30, 7
    v_add_u32 v55, s30, v55
    v_cmp_gt_u32 s[34:35], {NPB}, v4
    s_mov_b32 s32, {NLOG2E:#x}
    s_mov_b32 s33, {BIG:#x}
    v_mov_b32 v54, {NBIG:#x}
    s_waitcnt lgkmcnt(0)""")
    for m in range(2):
        tile_mfma(a, 56 + 8 * m, 16 + 16 * m, 8)
    wfrags(2)
    a("    s_mov_b32 s30, 0x8000")
    for m in range(2):
        accb, accv = 56 + 8 * m, 60 + 8 * m
        o = 72 + 4 * m
        for r in range(4):
            a(f"    v_mul_f32 v{accb+r}, s32, v{accb+r}")
            a(f"    v_med3_f32 v{accb+r}, v{accb+r}, v54, s33")
        a(f"    v_cvt_pk_bf16_f32 v{o}, v{accb}, v{accb+1}")
        a(f"    v_cvt_pk_bf16_f32 v{o+1}, v{accb+2}, v{accb+3}")
        for p in range(2):
            lo, hi = accv + 2 * p, accv + 2 * p + 1
            a(f"    v_cvt_pk_bf16_f32 v80, v{lo}, v{lo}")
            a(f"    v_and_b32 v80, 0xffff, v80")
            a(f"    v_and_b32 v81, 0x7fffffff, v{hi}")
            a(f"    v_and_b32 v{hi}, 0x80000000, v{hi}")
            a(f"    v_sub_u32 v81, v81, v80")
            a(f"    v_add_u32 v81, s30, v81")
            a(f"    v_max_i32 v81, 0, v81")
            a(f"    v_and_b32 v81, 0xffff0000, v81")
            a(f"    v_or3_b32 v{o+2+p}, v81, v80, v{hi}")
        a(f"    s_mov_b64 exec, s[34:35]")
        a(f"    global_store_dwordx4 v55, v[{o}:{o+3}], s[26:27] offset:{m*64} {st}")
        a(f"    s_mov_b64 exec, -1")
    a(f"""    ; padding row N of the table (gate saturates, value 0): last workgroup, wave u = 5
    s_cmp_lg_u32 s2, {NB-1}
    s_cbranch_scc1 L_TAU
    s_cmp_lg_u32 s36, 5
    s_cbranch_scc1 L_TAU
    v_mov_b32 v80, 0x71807180
    v_mov_b32 v81, v80
    v_mov_b32 v82, 0
    v_mov_b32 v83, 0
    v_lshlrev_b32 v7, 4, v{VL}
    v_add_u32 v7, {N*256 + G_OFF}, v7
    s_mov_b64 exec, 0xffff
    global_store_dwordx4 v7, v[80:83], s[26:27] {st}
    s_mov_b64 exec, -1
L_TAU:
    s_waitcnt lgkmcnt(0)""")
    for m in range(2):
        tile_mfma(a, 56 + 8 * m, 16 + 16 * m, 8)
    a(f"""    s_mov_b32 s34, {FSHIFT:#x}
    s_nop 6""")
    for m in range(2):
        acca, accu = 56 + 8 * m, 60 + 8 * m
        a(f"    ds_write_b128 v53, v[{accu}:{accu+3}] offset:{m*64}")
        for r in range(4):
            a(f"    v_mul_f32 v{acca+CHN[r]}, s32, v{acca+CHN[r]}")
            a(f"    v_med3_f32 v{acca+CHN[r]}, v{acca+CHN[r]}, v54, s33")
            a(f"    v_add_f32 v{16+r}, s34, v{acca+CHN[r]}")
        a(f"    ds_write_b128 v51, v[16:19] offset:{m*64}")
    a(f"""    ; the table rows of this workgroup are complete: the last table wave publishes the flag
    v_mov_b32 v16, {L_GCNT}
    v_mov_b32 v17, 1
    s_waitcnt vmcnt(0)
    s_mov_b64 exec, 1
    ds_add_rtn_u32 v18, v16, v17
    s_waitcnt lgkmcnt(0)
    v_readfirstlane_b32 s30, v18
    s_mov_b64 exec, -1
    s_cmp_lg_u32 s30, 5
    s_cbranch_scc1 L_PHASEB
    s_lshl_b32 s30, s2, 4
    s_add_u32 s30, s30, {GF_OFF}
    v_mov_b32 v16, s30
    v_mov_b32 v18, s{S_TAG}
    v_mov_b32 v19, s{S_TAG+1}
    s_mov_b64 exec, 1
    global_store_dwordx2 v16, v[18:19], s[26:27] {st}
    s_mov_b64 exec, -1""")

def phase_b(a, opt):
    GR = lambda j: 8 + 4 * j
    rec = lambda h, j: 24 + 16 * h + 4 * j
    RANK, DL = 56, 64
    msk = lambda h, j: (M0 if h == 0 else M1) + 2 * j
    pnd = lambda h, j: (P0M if h == 0 else P1M) + 2 * j
    inv = lambda j: S_INV + (2 if j >= 2 else 0)
    a("L_PHASEB:")
    stamp(a, 4)
    a(f"""    ; ================= phase B: wait for the run table entries of this bucket
    v_lshlrev_b32 v2, 3, v{VL}
    ds_read_b64 v[{WC}:{WC+1}], v2 offset:{L_WCB}""")
    a(f"""    s_mov_b32 s33, 0
    s_mov_b32 s38, s{S_TAG+1}
    s_mov_b32 s39, s{S_TAG}""")
    for j in range(4):
        a(f"    s_not_b64 s[{pnd(0,j)}:{pnd(0,j)+1}], s[{inv(j)}:{inv(j)+1}]")
    a("L_POLL:")
    for j in range(4):
        p = pnd(0, j)
        a(f"    s_mov_b64 exec, s[{p}:{p+1}]")
        a(f"    s_cbranch_execz L_NP{j}")
        a(f"    global_load_dwordx4 v[{GR(j)}:{GR(j)+3}], v{VGA}, s[26:27] offset:{128*j} sc1")
        a(f"L_NP{j}:")
    a("    s_waitcnt vmcnt(0)")
    for j in range(4):
        p = pnd(0, j)
        a(f"    s_mov_b64 exec, s[{p}:{p+1}]")
        a(f"    v_cmp_eq_u32 vcc, s{S_TAG}, v{GR(j)+1}")
        a(f"    v_cmp_eq_u64 s[34:35], v[{GR(j)+2}:{GR(j)+3}], s[38:39]")
        a(f"    s_nop 0")
        a(f"    s_and_b64 s[34:35], s[34:35], vcc")
        a(f"    s_andn2_b64 s[{p}:{p+1}], s[{p}:{p+1}], s[34:35]")
    a(f"""    s_mov_b64 exec, -1
    s_or_b64 s[34:35], s[{pnd(0,0)}:{pnd(0,0)+1}], s[{pnd(0,1)}:{pnd(0,1)+1}]
    s_or_b64 s[36:37], s[{pnd(0,2)}:{pnd(0,2)+1}], s[{pnd(0,3)}:{pnd(0,3)+1}]
    s_or_b64 s[34:35], s[34:35], s[36:37]
    s_cbranch_scc0 L_READY
    s_add_u32 s33, s33, 1
    s_cmp_ge_u32 s33, {POLL_LIMIT}
    s_cbranch_scc1 L_END
    s_sleep {opt.sleep}
    s_branch L_POLL
L_READY:""")
    stamp(a, 5)
    a(f"""L_ROUND:
    v_add_u32 v2, s{S_RB}, v{VI}
    v_add_u32 v3, 16, v2
    v_mul_u32_u24 v4, {opt.rec}, v2""")
    for j in range(4):
        a(f"    v_lshrrev_b32 v{GR(j)+1}, 20, v{GR(j)}      ; count")
        a(f"    v_and_b32 v{GR(j)}, 0xfffff, v{GR(j)}")
        a(f"    v_cmp_gt_u32 s[{msk(0,j)}:{msk(0,j)+1}], v{GR(j)+1}, v2")
        a(f"    v_cmp_gt_u32 s[{msk(1,j)}:{msk(1,j)+1}], v{GR(j)+1}, v3")
        if opt.rec == 16:
            a(f"    v_lshl_add_u32 v{GR(j)+2}, v{GR(j)}, 4, v4")
        else:
            a(f"    v_mad_u32_u24 v{GR(j)+2}, v{GR(j)}, 12, v4")
    a(f"    s_add_u32 s30, s{S_RB}, 32")
    for j in range(4):
        a(f"    s_andn2_b64 s[{msk(0,j)}:{msk(0,j)+1}], s[{msk(0,j)}:{msk(0,j)+1}], s[{inv(j)}:{inv(j)+1}]")
        a(f"    s_mov_b64 s[{pnd(0,j)}:{pnd(0,j)+1}], s[{msk(0,j)}:{msk(0,j)+1}]")
        a(f"    s_andn2_b64 s[{msk(1,j)}:{msk(1,j)+1}], s[{msk(1,j)}:{msk(1,j)+1}], s[{inv(j)}:{inv(j)+1}]")
        a(f"    s_mov_b64 s[{pnd(1,j)}:{pnd(1,j)+1}], s[{msk(1,j)}:{msk(1,j)+1}]")
        a(f"    s_cbranch_scc0 L_NMORE{j}")
        a(f"    s_mov_b64 exec, s[{msk(1,j)}:{msk(1,j)+1}]")
        a(f"    v_cmp_lt_u32 vcc, s30, v{GR(j)+1}")
        a(f"    s_mov_b64 exec, -1")
        a(f"    s_cmp_eq_u64 vcc, 0")
        a(f"    s_cbranch_scc1 L_NMORE{j}")
        a(f"    v_mov_b32 v5, {L_FLAG}")
        a(f"    v_mov_b32 v6, 1")
        a(f"    ds_write_b32 v5, v6")
        a(f"L_NMORE{j}:")
    if opt.rec == 16:
        a(f"""    s_mov_b32 s33, 0
L_RLOAD:""")
        for h in range(2):
            for j in range(4):
                p = pnd(h, j)
                a(f"    s_cmp_eq_u64 s[{p}:{p+1}], 0")
                a(f"    s_cbranch_scc1 L_NL{h}{j}")
                a(f"    s_mov_b64 exec, s[{p}:{p+1}]")
                off = " offset:256" if h else ""
                a(f"    buffer_load_dwordx4 v[{rec(h,j)}:{rec(h,j)+3}], v{GR(j)+2}, s[{S_REC}:{S_REC+3}], 0 offen{off} {opt.hload}")
                a(f"L_NL{h}{j}:")
        a("    s_waitcnt vmcnt(0)")
        for h in range(2):
            for j in range(4):
                p = pnd(h, j)
                r = rec(h, j)
                a(f"    s_cmp_eq_u64 s[{p}:{p+1}], 0")
                a(f"    s_cbranch_scc1 L_NC{h}{j}")
                a(f"    s_mov_b64 exec, s[{p}:{p+1}]")
                a(f"    v_bitop3_b32 v5, v{r}, v{r+2}, v{r+3} bitop3:0x96")
                a(f"    v_cmp_eq_u32_sdwa s[34:35], v{r+2}, s{S_TAG8} src0_sel:BYTE_3 src1_sel:DWORD")
                a(f"    v_cmp_eq_u32 vcc, s{S_TAG}, v5")
                a(f"    s_nop 0")
                a(f"    s_and_b64 s[34:35], s[34:35], vcc")
                a(f"    s_andn2_b64 s[{p}:{p+1}], s[{p}:{p+1}], s[34:35]")
                a(f"L_NC{h}{j}:")
        a(f"    s_mov_b64 exec, -1")
        a(f"    s_or_b64 s[34:35], s[{pnd(0,0)}:{pnd(0,0)+1}], s[{pnd(0,1)}:{pnd(0,1)+1}]")
        for h in range(2):
            for j in range(4):
                if (h, j) in ((0, 0), (0, 1)): continue
                a(f"    s_or_b64 s[34:35], s[34:35], s[{pnd(h,j)}:{pnd(h,j)+1}]")
        a(f"""    s_cbranch_scc0 L_HAVE
    s_add_u32 s33, s33, 1
    s_cmp_ge_u32 s33, {POLL_LIMIT}
    s_cbranch_scc1 L_END
    s_sleep {opt.sleep}
    s_branch L_RLOAD
L_HAVE:""")
    else:
        for h in range(2):
            for j in range(4):
                p = msk(h, j)
                if h:
                    a(f"    s_cmp_eq_u64 s[{p}:{p+1}], 0")
                    a(f"    s_cbranch_scc1 L_NL{h}{j}")
                a(f"    s_mov_b64 exec, s[{p}:{p+1}]")
                off = " offset:192" if h else ""
                a(f"    buffer_load_dwordx3 v[{rec(h,j)}:{rec(h,j)+2}], v{GR(j)+2}, s[{S_REC}:{S_REC+3}], 0 offen{off} {opt.hload}")
                if h:
                    a(f"L_NL{h}{j}:")
        a("    s_mov_b64 exec, -1")
        a("    s_waitcnt vmcnt(0)")
    stamp(a, 6)
    a(f"""    ; table-row flags of this wave's 16 producers: loaded now, checked before the first gather
    global_load_dwordx2 v[22:23], v{VGF}, s[26:27] sc1""")
    for h in range(2):
        for j in range(4):
            m = msk(h, j)
            if h == 1:
                a(f"    s_cmp_eq_u64 s[{m}:{m+1}], 0")
                a(f"    s_cbranch_scc1 L_NB1R{j}")
            a(f"    s_mov_b64 exec, s[{m}:{m+1}]")
            a(f"    v_and_b32 v{DL+4*h+j}, 0xff, v{rec(h,j)+2}")
            a(f"    ds_add_rtn_u32 v{RANK+4*h+j}, v{DL+4*h+j}, v{VONE} offset:{L_CNT}")
            if h == 1:
                a(f"L_NB1R{j}:")
    a(f"""    s_mov_b64 exec, -1
    v_mov_b32 v6, {L_FLAG}
    v_cmp_gt_u32 vcc, {NPB}, v{VL}
    s_waitcnt lgkmcnt(0)
    s_barrier                               ; #5""")
    stamp(a, 12)
    a(f"""    ds_read_b32 v5, v{VCA} offset:{L_CNT}
    ds_read_b32 v6, v6
    s_waitcnt lgkmcnt(0)
    v_add_u32 v4, 7, v5
    v_lshrrev_b32 v4, 3, v4
    v_max_u32 v4, 1, v4
    v_cndmask_b32 v4, 0, v4, vcc
    v_readfirstlane_b32 s{S_MORE}, v6
    v_mov_b32 v{QEND}, v4""")
    dpp_scan(a, QEND)
    stamp(a, 13)
    a(f"""    v_sub_u32 v{QST}, v{QEND}, v4
    v_readlane_b32 s{S_P}, v{QEND}, 63
    v_lshlrev_b32 v3, 3, v{QST}
    s_mov_b32 s30, {L_SRC}
    s_mov_b32 s31, {L_E}""")
    for j in range(4):
        a(f"    ds_bpermute_b32 v{8+j}, v{DL+j}, v3")
    for j in range(4):
        a(f"    s_cmp_eq_u64 s[{M1+2*j}:{M1+2*j+1}], 0")
        a(f"    s_cbranch_scc1 L_NB1P{j}")
        a(f"    ds_bpermute_b32 v{12+j}, v{DL+4+j}, v3")
        a(f"L_NB1P{j}:")
    a(f"""    ; padding slots: waves 0..4 take 8 nodes each, lane = (node, slot); wave 5 fills the tail
    s_cmp_ge_u32 s3, 5
    s_cbranch_scc1 L_NOPLK
    s_lshl_b32 s32, s3, 3
    v_lshrrev_b32 v16, 3, v{VL}
    v_add_u32 v16, s32, v16
    v_lshlrev_b32 v16, 2, v16               ; 4*node
    v_add_u32 v17, v3, v5
    v_lshlrev_b32 v18, 3, v{QEND}
    ds_bpermute_b32 v17, v16, v17
    ds_bpermute_b32 v18, v16, v18
L_NOPLK:
    s_mul_i32 s{S_TS}, s{S_P}, s3
    s_lshr_b32 s{S_TS}, s{S_TS}, 4
    s_add_u32 s32, s3, 1
    s_mul_i32 s{S_TE}, s{S_P}, s32
    s_lshr_b32 s{S_TE}, s{S_TE}, 4
    v_cmp_ge_u32 vcc, s{S_TS}, v{QEND}
    s_waitcnt lgkmcnt(0)
    s_bcnt1_i32_b64 s{S_N}, vcc""")
    for h in range(2):
        for j in range(4):
            m = msk(h, j)
            r = rec(h, j)
            if h == 1:
                a(f"    s_cmp_eq_u64 s[{m}:{m+1}], 0")
                a(f"    s_cbranch_scc1 L_NB1S{j}")
            a(f"    s_mov_b64 exec, s[{m}:{m+1}]")
            a(f"    v_add_u32 v{8+4*h+j}, v{8+4*h+j}, v{RANK+4*h+j}")
            a(f"    v_bfe_u32 v{r+2}, v{r+2}, 8, 16")
            a(f"    v_lshl_add_u32 v19, v{8+4*h+j}, 2, s30")
            a(f"    v_lshl_add_u32 v21, v{8+4*h+j}, 3, s31")
            a(f"    ds_write_b32 v19, v{r+2}")
            a(f"    ds_write_b64 v21, v[{r}:{r+1}]")
            if h == 1:
                a(f"L_NB1S{j}:")
    stamp(a, 14)
    a(f"""    s_mov_b64 exec, -1
    v_mov_b32 v11, {N}
    v_mov_b32 v12, 0
    v_mov_b32 v13, 0
    s_cmp_gt_u32 s3, 5
    s_cbranch_scc1 L_NOPAD
    v_and_b32 v16, 7, v{VL}
    v_add_u32 v16, v17, v16
    v_cmp_lt_u32 vcc, v16, v18
    s_cmp_lt_u32 s3, 5
    s_cbranch_scc1 L_PADW
    s_lshl_b32 s32, s{S_P}, 3
    v_add_u32 v16, s32, v{VL}
    s_mov_b64 vcc, -1
L_PADW:
    v_lshl_add_u32 v14, v16, 2, s30
    v_lshl_add_u32 v15, v16, 3, s31
    s_mov_b64 exec, vcc
    ds_write_b32 v14, v11
    ds_write_b64 v15, v[12:13]
    s_mov_b64 exec, -1
L_NOPAD:
    v_readlane_b32 s{S_SEGEND}, v{QEND}, s{S_N}
    s_lshl_b32 s32, s{S_TS}, 5
    v_add_u32 v2, s32, v{SRB}
    s_lshl_b32 s32, s{S_TS}, 1
    v_mad_u32_u24 v3, v{EM}, s32, v{EB}
    s_mul_i32 s32, s{S_N}, 272
    v_add_u32 v{TMP}, s32, v{APA}
    s_add_u32 s32, s{S_N}, s3
    s_lshl_b32 s32, s32, 9
    v_add_u32 v{SLA}, s32, v{SLB}
    s_min_u32 s{S_SEGEND}, s{S_SEGEND}, s{S_TE}
    s_sub_u32 s{S_REM}, s{S_SEGEND}, s{S_TS}
    s_sub_u32 s{S_REM}, s{S_REM}, 1""")
    S = lambda k: 8 + 6 * (k % 8)
    Da, Db, T = 56, 60, 64
    NUM, DEN = 68, 72
    PA, PB_, UA, UB, SA, SB = 76, 78, 80, 82, 84, 86
    a(f"""    s_mov_b32 s33, 0
    s_cmp_eq_u32 s3, 15
    s_cselect_b32 s34, 0xfc00fc00, 0
    s_mov_b32 s35, s34
L_GPOLL:
    s_waitcnt vmcnt(0)
    v_cmp_eq_u64 s[36:37], v[22:23], s[{S_TAG}:{S_TAG+1}]
    s_nop 0
    s_or_b64 s[36:37], s[36:37], s[34:35]
    s_cmp_eq_u64 s[36:37], -1
    s_cbranch_scc1 L_GOK
    s_add_u32 s33, s33, 1
    s_cmp_ge_u32 s33, {POLL_LIMIT}
    s_cbranch_scc1 L_END
    s_sleep {opt.sleep}
    global_load_dwordx2 v[22:23], v{VGF}, s[26:27] sc1
    s_branch L_GPOLL
L_GOK:""")
    stamp(a, 15)
    a(f"""    s_waitcnt lgkmcnt(0)
    s_barrier                               ; #6""")
    stamp(a, 7)
    cstamp(a, 10)
    pairs = [IDXA, IDXB, 56, 58, 60, 62]
    for k in range(6):
        a(f"    ds_read_b32 v{pairs[k]}, v2 offset:{16*k}")
    a(f"""    ds_read_b128 v[{AC}:{AC+3}], v{TMP}
    ds_read_b128 v[{ANX}:{ANX+3}], v{TMP} offset:272
    ds_read_b64 v[{A0}:{A0+1}], v3
    ds_read_b64 v[{A1}:{A1+1}], v3 offset:32""")
    for k in range(4):
        a(f"    v_mov_b32 v{56+2*k+1}, v{IDXA+1}")
    for k in range(8):
        a(f"    v_pk_mov_b32 v[{S(k)}:{S(k)+1}], v[{WC}:{WC+1}], v[{WC}:{WC+1}] op_sel:[0,1]")
    for r in range(0, 8, 2):
        a(f"    v_pk_mov_b32 v[{NUM+r}:{NUM+r+1}], 0, 0")
    for k in range(6):
        a(f"    s_waitcnt lgkmcnt({9-k})")
        a(f"    buffer_load_dwordx4 v[{S(k)+2}:{S(k)+5}], v[{pairs[k]}:{pairs[k]+1}], s[{S_G}:{S_G+3}], 0 idxen offen {opt.gload}")
    a(f"""    s_cmp_ge_u32 s3, 5
    s_cbranch_scc1 L_NOSEG
    v_cvt_f32_u32 v76, s{S_P}
    v_rcp_f32 v76, v76
    v_lshlrev_b32 v77, 4, v{QST}
    v_add_u32 v77, 16, v77
    v_cvt_f32_u32 v77, v77
    v_lshlrev_b32 v78, 4, v{QEND}
    v_cvt_f32_u32 v78, v78
    v_add_f32 v77, -0.5, v77
    v_add_f32 v78, -0.5, v78
    v_mul_f32 v77, v77, v76
    v_mul_f32 v78, v78, v76
    v_cvt_u32_f32 v77, v77
    v_cvt_u32_f32 v78, v78
    v_lshrrev_b32 v4, 3, v0                 ; node
    v_sub_u32 v78, v78, v77
    v_add_u32 v78, 1, v78
    v_add_u32 v77, v77, v{VL}
    v_lshl_or_b32 v77, v78, 16, v77
    v_lshlrev_b32 v5, 2, v4
    ds_bpermute_b32 v5, v5, v77
    v_and_b32 v6, 7, v0
    v_lshlrev_b32 v6, 4, v6
    v_mul_u32_u24 v4, 272, v4
    v_lshl_add_u32 v4, v6, 1, v4
    v_add_u32 v4, {L_U}, v4
    s_waitcnt lgkmcnt(0)
    v_lshrrev_b32 v7, 16, v5
    v_and_b32 v5, 0xffff, v5
    v_lshl_add_u32 v5, v5, 9, v6
L_NOSEG:""")
    if opt.prio:
        a(f"    s_setprio 3")
        a(f"    s_sub_u32 s{S_BLK}, s{S_TE}, s{S_TS}")
    a(f"    s_waitcnt lgkmcnt(0)")
    a("L_LOOP:")
    for k in range(0, 8, 2):
        sa, sb = S(k), S(k + 1)
        pa, pb = S(k - 2), S(k - 1)
        a(f"""    s_waitcnt vmcnt(5)
    v_mfma_f32_16x16x32_bf16 v[{Da}:{Da+3}], v[{A0}:{A0+3}], v[{sa}:{sa+3}], v[{AC}:{AC+3}]
    ds_read_b32 v{IDXA}, v2 offset:{16*(k+6)}
    ds_read_b32 v{IDXB}, v2 offset:{16*(k+7)}
    v_lshlrev_b32 v{T}, 16, v{sa+4}
    v_lshlrev_b32 v{T+1}, 16, v{sa+5}
    s_waitcnt vmcnt(4)
    v_mfma_f32_16x16x32_bf16 v[{Db}:{Db+3}], v[{A1}:{A1+3}], v[{sb}:{sb+3}], v[{AC}:{AC+3}]
    v_lshlrev_b32 v{T+2}, 16, v{sb+4}
    v_lshlrev_b32 v{T+3}, 16, v{sb+5}
    s_sub_u32 s{S_REM}, s{S_REM}, 1
    ds_read_b64 v[{A0}:{A0+1}], v3 offset:{32*(k+2)}
    ds_read_b64 v[{A1}:{A1+1}], v3 offset:{32*(k+3)}""")
        for i in range(4):
            a(f"    v_exp_f32 v{Da+i}, v{Da+i} clamp")
        a(f"""    s_waitcnt lgkmcnt(2)
    buffer_load_dwordx4 v[{pa+2}:{pa+5}], v[{IDXA}:{IDXA+1}], s[{S_G}:{S_G+3}], 0 idxen offen {opt.gload}
    buffer_load_dwordx4 v[{pb+2}:{pb+5}], v[{IDXB}:{IDXB+1}], s[{S_G}:{S_G+3}], 0 idxen offen {opt.gload}""")
        for i in range(4):
            a(f"    v_exp_f32 v{Db+i}, v{Db+i} clamp")
        c = f"s[{S_C60}:{S_C60+1}]"
        a(f"""    v_pk_add_f32 v[{Da}:{Da+1}], v[{Da}:{Da+1}], {c}
    v_pk_add_f32 v[{Da+2}:{Da+3}], v[{Da+2}:{Da+3}], {c}
    v_pk_add_f32 v[{Db}:{Db+1}], v[{Db}:{Db+1}], {c}
    v_pk_add_f32 v[{Db+2}:{Db+3}], v[{Db+2}:{Db+3}], {c}
    v_pk_mul_f32 v[{PA}:{PA+1}], v[{Da}:{Da+1}], v[{Db}:{Db+1}]
    v_pk_mul_f32 v[{PB_}:{PB_+1}], v[{Da+2}:{Da+3}], v[{Db+2}:{Db+3}]
    v_pk_mul_f32 v[{UA}:{UA+1}], v[{T}:{T+1}], v[{Db}:{Db+1}]
    v_rcp_f32 v{PA}, v{PA}
    v_rcp_f32 v{PA+1}, v{PA+1}
    v_pk_mul_f32 v[{UB}:{UB+1}], v[{sa+4}:{sa+5}], v[{Db+2}:{Db+3}]
    v_rcp_f32 v{PB_}, v{PB_}
    v_rcp_f32 v{PB_+1}, v{PB_+1}
    v_pk_fma_f32 v[{UA}:{UA+1}], v[{T+2}:{T+3}], v[{Da}:{Da+1}], v[{UA}:{UA+1}]
    v_pk_fma_f32 v[{UB}:{UB+1}], v[{sb+4}:{sb+5}], v[{Da+2}:{Da+3}], v[{UB}:{UB+1}]
    v_pk_add_f32 v[{SA}:{SA+1}], v[{Da}:{Da+1}], v[{Db}:{Db+1}]
    v_pk_add_f32 v[{SB}:{SB+1}], v[{Da+2}:{Da+3}], v[{Db+2}:{Db+3}]
    v_pk_fma_f32 v[{NUM}:{NUM+1}], v[{PA}:{PA+1}], v[{UA}:{UA+1}], v[{NUM}:{NUM+1}]
    v_pk_fma_f32 v[{NUM+2}:{NUM+3}], v[{PB_}:{PB_+1}], v[{UB}:{UB+1}], v[{NUM+2}:{NUM+3}]
    v_pk_fma_f32 v[{DEN}:{DEN+1}], v[{PA}:{PA+1}], v[{SA}:{SA+1}], v[{DEN}:{DEN+1}]
    v_pk_fma_f32 v[{DEN+2}:{DEN+3}], v[{PB_}:{PB_+1}], v[{SB}:{SB+1}], v[{DEN+2}:{DEN+3}]
    s_waitcnt lgkmcnt(0)
    s_cbranch_scc1 L_SB{k}
L_RB{k}:""")
        if k == 6:
            a(f"    v_add_u32 v2, 128, v2")
            a(f"    v_add_u32 v3, v{INCE}, v3")
            if opt.prio:
                t1, t2, t3 = opt.pth
                a(f"""    s_sub_u32 s{S_BLK}, s{S_BLK}, 4
    s_cmp_gt_i32 s{S_BLK}, {t1}
    s_cbranch_scc1 L_LOOP
    s_setprio 2
    s_cmp_gt_i32 s{S_BLK}, {t2}
    s_cbranch_scc1 L_LOOP
    s_setprio 1
    s_cmp_gt_i32 s{S_BLK}, {t3}
    s_cbranch_scc1 L_LOOP
    s_setprio 0""")
            a(f"    s_branch L_LOOP")
    for k in range(0, 8, 2):
        a(f"L_SB{k}:")
        for r in range(4):
            a(f"    v_permlane32_swap_b32 v{NUM+r}, v{DEN+r}")
        a(f"""    v_pk_add_f32 v[{NUM}:{NUM+1}], v[{NUM}:{NUM+1}], v[{DEN}:{DEN+1}]
    v_pk_add_f32 v[{NUM+2}:{NUM+3}], v[{NUM+2}:{NUM+3}], v[{DEN+2}:{DEN+3}]
    s_add_u32 s{S_N}, s{S_N}, 1
    s_add_u32 s36, s{S_N}, 1
    v_permlane16_swap_b32 v{NUM}, v{NUM+2}
    v_permlane16_swap_b32 v{NUM+1}, v{NUM+3}
    v_readlane_b32 s37, v{QEND}, s{S_N}
    s_mul_i32 s36, s36, 272
    v_pk_add_f32 v[{DEN}:{DEN+1}], v[{NUM}:{NUM+1}], v[{NUM+2}:{NUM+3}]
    v_add_u32 v{TMP}, s36, v{APA}
    s_cmp_eq_u32 s{S_SEGEND}, s{S_TE}
    ds_write_b64 v{SLA}, v[{DEN}:{DEN+1}]
    s_cbranch_scc1 L_DONE
    v_pk_mov_b32 v[{AC}:{AC+1}], v[{ANX}:{ANX+1}], v[{ANX}:{ANX+1}] op_sel:[0,1]
    v_pk_mov_b32 v[{AC+2}:{AC+3}], v[{ANX+2}:{ANX+3}], v[{ANX+2}:{ANX+3}] op_sel:[0,1]
    v_add_u32 v{SLA}, {SLOT_STR}, v{SLA}
    s_min_u32 s37, s37, s{S_TE}
    v_pk_mov_b32 v[{NUM}:{NUM+1}], 0, 0
    v_pk_mov_b32 v[{NUM+2}:{NUM+3}], 0, 0
    ds_read_b128 v[{ANX}:{ANX+3}], v{TMP}
    v_pk_mov_b32 v[{DEN}:{DEN+1}], 0, 0
    v_pk_mov_b32 v[{DEN+2}:{DEN+3}], 0, 0
    s_sub_u32 s{S_REM}, s37, s{S_SEGEND}
    s_sub_u32 s{S_REM}, s{S_REM}, 1
    s_mov_b32 s{S_SEGEND}, s37
    s_branch L_RB{k}""")
    a("L_DONE:")
    if opt.prio:
        a("    s_setprio 0")
    stamp(a, 8)
    cstamp(a, 11)
    a(f"""    s_waitcnt vmcnt(0) lgkmcnt(0)
    s_barrier                               ; #7
    s_cmp_ge_u32 s3, 5
    s_cbranch_scc1 L_MERGED
    ds_read_b128 v[24:27], v5 offset:{L_SLOT}
    ds_read_b128 v[28:31], v5 offset:{L_SLOT+128}
    ds_read_b128 v[32:35], v5 offset:{L_SLOT+256}
    ds_read_b128 v[36:39], v5 offset:{L_SLOT+384}
    ds_read_b128 v[40:43], v4
    ds_read_b128 v[44:47], v4 offset:16
    v_add_u32 v5, {SLOT_STR}, v5
    s_mov_b32 s36, 1
L_MERGE:
    v_cmp_lt_u32 vcc, s36, v7
    s_nop 1
    s_cmp_eq_u64 vcc, 0
    s_cbranch_scc1 L_MERGE_END
    s_mov_b64 exec, vcc
    ds_read_b128 v[8:11], v5 offset:{L_SLOT}
    ds_read_b128 v[12:15], v5 offset:{L_SLOT+128}
    ds_read_b128 v[16:19], v5 offset:{L_SLOT+256}
    ds_read_b128 v[20:23], v5 offset:{L_SLOT+384}
    v_add_u32 v5, {SLOT_STR}, v5
    s_add_u32 s36, s36, 1
    s_waitcnt lgkmcnt(0)""")
    for r in range(8):
        a(f"    v_pk_add_f32 v[{24+2*r}:{25+2*r}], v[{24+2*r}:{25+2*r}], v[{8+2*r}:{9+2*r}]")
    a(f"""    s_mov_b64 exec, -1
    s_branch L_MERGE
L_MERGE_END:
    s_waitcnt lgkmcnt(0)
    s_or_b32 s36, s{S_RB}, s{S_MORE}
    s_cmp_eq_u32 s36, 0
    s_cbranch_scc1 L_MERGED
    s_mul_i32 s36, s2, {320*64}
    s_add_u32 s36, s36, {TOT_OFF}
    v_lshl_add_u32 v48, v0, 6, s36
    s_cmp_eq_u32 s{S_RB}, 0
    s_cbranch_scc1 L_NOPREV""")
    for r in range(4):
        a(f"    global_load_dwordx4 v[{8+4*r}:{11+4*r}], v48, s[26:27] offset:{16*r} sc1")
    a("    s_waitcnt vmcnt(0)")
    for r in range(8):
        a(f"    v_pk_add_f32 v[{24+2*r}:{25+2*r}], v[{24+2*r}:{25+2*r}], v[{8+2*r}:{9+2*r}]")
    a(f"""L_NOPREV:
    s_cmp_eq_u32 s{S_MORE}, 0
    s_cbranch_scc1 L_MERGED""")
    for r in range(4):
        a(f"    global_store_dwordx4 v48, v[{24+4*r}:{27+4*r}], s[26:27] offset:{16*r} sc1")
    a(f"""    s_waitcnt vmcnt(0)
L_MERGED:
    s_cmp_eq_u32 s{S_MORE}, 0
    s_cbranch_scc1 L_EPI
    s_add_u32 s{S_RB}, s{S_RB}, 32
    s_cmp_lg_u32 s3, 0
    s_cbranch_scc1 L_NOCLR
    v_mov_b32 v9, 0
    v_lshlrev_b32 v10, 2, v{VL}
    ds_write_b32 v10, v9 offset:{L_CNT}
    v_mov_b32 v10, {L_FLAG}
    ds_write_b32 v10, v9
L_NOCLR:""")
    gran_addr(a)
    a(f"""    s_lshl_b32 s30, s3, 8
    s_add_u32 s30, s30, {GF_OFF}
    v_lshl_add_u32 v{VGF}, v{VI}, 4, s30
    v_mov_b32 v{VONE}, 1
    v_lshlrev_b32 v{VCA}, 2, v{VL}""")
    for j in range(4):
        a(f"    global_load_dwordx4 v[{GR(j)}:{GR(j)+3}], v2, s[26:27] offset:{128*j} sc1")
    a(f"""    s_waitcnt vmcnt(0) lgkmcnt(0)
    s_barrier
    s_branch L_ROUND
L_EPI:
    s_cmp_ge_u32 s3, 5
    s_cbranch_scc1 L_FIN
    s_mov_b32 s36, {EPS60:#x}               ; 1e-6 * 2^60""")
    nreg = [24 + c // 2 + 4 * (c % 2) for c in range(8)]
    dreg = [x + 8 for x in nreg]
    for c in range(8):
        a(f"    v_add_f32 v{dreg[c]}, s36, v{dreg[c]}")
        a(f"    v_rcp_f32 v{dreg[c]}, v{dreg[c]}")
    for c in range(8):
        xr = XR + c // 2
        if c % 2 == 0:
            a(f"    v_lshlrev_b32 v{8+c}, 16, v{xr}")
        else:
            a(f"    v_and_b32 v{8+c}, 0xffff0000, v{xr}")
    for c in range(8):
        a(f"    v_fma_f32 v{40+c}, v{nreg[c]}, v{dreg[c]}, v{40+c}")
    for c in range(8):
        a(f"    v_cmp_lt_f32 s[{48+2*c}:{49+2*c}], 0, v{40+c}")
        a(f"    v_mul_f32 v{16+c}, 0, v{40+c}")
    for c in range(8):
        a(f"    v_cndmask_b32 v{40+c}, v{16+c}, v{40+c}, s[{48+2*c}:{49+2*c}]")
    for c in range(8):
        a(f"    v_add_f32 v{40+c}, v{8+c}, v{40+c}")
    for c in range(4):
        a(f"    v_cvt_pk_bf16_f32 v{16+c}, v{40+2*c}, v{41+2*c}")
    a(f"""    v_lshlrev_b32 v4, 4, v0
    s_mul_i32 s36, s2, {NPB*128}
    v_add_u32 v4, s36, v4
    global_store_dwordx4 v4, v[16:19], s[22:23] {opt.ostore}
    s_or_b32 s36, s2, s3
    s_cmp_lg_u32 s36, 0
    s_cbranch_scc1 L_FIN
    v_mov_b32 v4, {GEN_OFF}
    v_mov_b32 v6, s{S_TAG}
    v_mov_b32 v7, s{S_TAG+1}
    s_mov_b64 exec, 1
    global_store_dwordx2 v4, v[6:7], s[26:27]
L_FIN:""")
    stamp_flush(a)
    a("""L_END:
    s_endpgm
""")

HEADER = """; GatedGCN edge-featured MPNN layer, one launch, one workgroup per 40 destination nodes.
"""

def main():
    global PROF
    ap = argparse.ArgumentParser()
    ap.add_argument("-o", default="standalone__edge_featured_mpnn_gatedgcn__graph.s")
    ap.add_argument("--store", default="sc1")
    ap.add_argument("--hload", default="sc1")
    ap.add_argument("--gload", default="")
    ap.add_argument("--touch", type=int, default=0)
    ap.add_argument("--rec", type=int, default=12)
    ap.add_argument("--ostore", default="")
    ap.add_argument("--prio", type=int, default=1)
    ap.add_argument("--pth", type=int, nargs=3, default=[15, 10, 5])
    ap.add_argument("--sleep", type=int, default=2)
    ap.add_argument("--prof", action="store_true")
    ap.add_argument("--dbg", action="store_true")
    opt = ap.parse_args()
    PROF = opt.prof or opt.dbg
    global DBG
    DBG = opt.dbg
    a = Asm()
    a(HEADER.rstrip())
    a(f"; @launch grid=({NB},1,1) block=(1024,1,1) lds={L_END}")
    a('.amdgcn_target "amdgcn-amd-amdhsa--gfx950"')
    a(".text")
    entry(a, opt)
    phase_a_bin(a, opt)
    phase_a_table(a, opt)
    phase_b(a, opt)
    a(f""".section .rodata,"a"
.p2align 6
.amdhsa_kernel {KNAME}
  .amdhsa_next_free_vgpr 128
  .amdhsa_next_free_sgpr {98 if PROF else 96}
  .amdhsa_accum_offset 128
  .amdhsa_group_segment_fixed_size 0
  .amdhsa_kernarg_size 96
  .amdhsa_user_sgpr_count 2
  .amdhsa_user_sgpr_kernarg_segment_ptr 1
  .amdhsa_system_sgpr_workgroup_id_x 1
  .amdhsa_float_denorm_mode_32 3
  .amdhsa_dx10_clamp 0
.end_amdhsa_kernel""")
    open(opt.o, "w").write(a.text())
    print("wrote", opt.o, "lds", L_END)

if __name__ == "__main__":
    main()
```

```python
import argparse, struct

KNAME = "standalone__edge_featured_mpnn_gatedgcn__graph_kernel"
N, D, E = 10000, 64, 640000
NB, NPB = 250, 40
CH = 2560
GEN_OFF, G_OFF, GF_OFF, GRAN_OFF, REC_OFF, TOT_OFF = 0, 0x1000, 0x274000, 0x280000, 0x380000, 0xD80000
PROF_OFF = 0x1300000
NLOG2E = 0xBFB8AA3B
BIG, NBIG = 0x71800000, 0xF1800000
SHIFT = 60
C60 = (127 - SHIFT) << 23
EPS60 = struct.unpack("<I", struct.pack("<f", 1e-6 * 2.0 ** SHIFT))[0]
FSHIFT = struct.unpack("<I", struct.pack("<f", -float(SHIFT)))[0]
NWV = 16
POLL_LIMIT = 1 << 17
CHN = [0, 2, 1, 3]

SLOT_STR = 512
L_SLOT = 0
L_CNT = L_SLOT + (NPB + NWV) * SLOT_STR
L_ZREG = L_CNT + 256
L_FLAG = L_ZREG + 512
L_GCNT = L_FLAG + 4
L_ZEND = L_FLAG + 16
L_WCB = 29504
L_AP = 30080
L_U = L_AP + 48 * 272
L_SRC = L_U + 48 * 272
NSLOT = 250 * 32 + 320 + 64
L_E = L_SRC + NSLOT * 4
L_END = L_E + NSLOT * 8
A_HIST = L_SRC
A_OFFS = A_HIST + 1024
A_REC = A_OFFS + 1024
A_W = A_REC + CH * 16
WIMG = 64 * 144
A_X = A_W + 4 * WIMG
A_G = A_X + 48 * 144
assert A_G + 48 * 272 <= L_END <= 163840
assert all(x % 16 == 0 for x in (L_WCB, L_AP, L_U, L_SRC, L_E, A_REC, A_W, A_X, A_G))

SLA, TMP, INCE, APA = 88, 89, 90, 91
IDXA, IDXB = 92, 94
AC, A0, A1, ANX = 96, 100, 104, 108
XR = 112
QEND, QST = 116, 117
WC = 118
EB, EM, SRB, SLB = 120, 121, 122, 123
VPROF = 124
VI, VQ, VL = 125, 126, 127
S_TAG = 28
S_REC = 40
S_G = 44
M0, M1 = 48, 56
S_INV = 64
S_RB, S_MORE, S_P, S_TS, S_TE, S_N, S_SEGEND, S_REM = 68, 69, 70, 71, 72, 73, 74, 75
S_BLK, S_TAG8 = 76, 77
S_C60 = 78
P0M, P1M = 80, 88

class Asm:
    def __init__(self): self.l = []
    def __call__(self, s=""):
        self.l.extend(s.split("\n"))
    def text(self): return "\n".join(self.l) + "\n"

PROF = False
def stamp(a, idx):
    if PROF:
        a(f"    s_memrealtime s[96:97]")
        a(f"    s_waitcnt lgkmcnt(0)")
        a(f"    v_writelane_b32 v{VPROF}, s96, {idx}")

def cstamp(a, idx):
    if PROF:
        a(f"    s_memtime s[96:97]")
        a(f"    s_waitcnt lgkmcnt(0)")
        a(f"    v_writelane_b32 v{VPROF}, s96, {idx}")

DBG = False
def stamp_flush(a):
    if not PROF: return
    stamp(a, 9)
    if DBG:
        a(f"""    s_waitcnt vmcnt(0) lgkmcnt(0)
    v_readlane_b32 s30, v{VPROF}, 0
    v_readlane_b32 s31, v{VPROF}, 10
    v_readlane_b32 s32, v{VPROF}, 11
    s_nop 3
    s_not_b32 s30, s30
    s_sub_u32 s32, s32, s31
    v_writelane_b32 v{VPROF}, s30, 0
    v_writelane_b32 v{VPROF}, s32, 10
    s_mov_b64 exec, 0x7ff
    v_lshlrev_b32 v2, 2, v{VL}
    global_atomic_umax v2, v{VPROF}, s[24:25]
    s_waitcnt vmcnt(0)""")
        return
    a(f"""    s_waitcnt vmcnt(0) lgkmcnt(0)
    s_mov_b64 exec, 0xffff
    s_lshl_b32 s30, s2, 4
    s_add_u32 s30, s30, s3
    s_lshl_b32 s30, s30, 6
    s_add_u32 s30, s30, {PROF_OFF}
    v_lshl_add_u32 v2, v{VL}, 2, s30
    global_store_dword v2, v{VPROF}, s[26:27]
    s_waitcnt vmcnt(0)""")

def dpp_scan(a, v):
    for sh in (1, 2, 4, 8):
        a(f"    s_nop 1")
        a(f"    v_add_u32_dpp v{v}, v{v}, v{v} row_shr:{sh} row_mask:0xf bank_mask:0xf bound_ctrl:0")
    a("    s_nop 1")
    a(f"    v_add_u32_dpp v{v}, v{v}, v{v} row_bcast:15 row_mask:0xa bank_mask:0xf")
    a("    s_nop 1")
    a(f"    v_add_u32_dpp v{v}, v{v}, v{v} row_bcast:31 row_mask:0xc bank_mask:0xf")
    a("    s_nop 1")

def entry(a, opt):
    a(f"""
.globl {KNAME}
.p2align 8
.type {KNAME},@function
{KNAME}:
    s_cmp_ge_u32 s2, {NB}
    s_cbranch_scc1 L_END
    s_load_dwordx16 s[4:19], s[0:1], 0
    s_load_dwordx8 s[20:27], s[0:1], 64
    v_lshrrev_b32 v1, 6, v0
    v_and_b32 v{VL}, 63, v0
    v_readfirstlane_b32 s3, v1
    v_lshrrev_b32 v{VQ}, 4, v{VL}
    v_and_b32 v{VI}, 15, v{VL}
    v_lshlrev_b32 v{IDXA+1}, 4, v{VI}
    v_mov_b32 v{IDXB+1}, v{IDXA+1}
    v_and_b32 v2, 3, v{VI}                  ; r
    v_lshrrev_b32 v3, 2, v{VI}              ; e
    v_cmp_eq_u32 vcc, v2, v{VQ}
    v_lshlrev_b32 v4, 3, v3
    v_add_u32 v4, {L_E}, v4
    v_mov_b32 v5, {L_ZREG}
    v_cndmask_b32 v{EB}, v5, v4, vcc
    v_mov_b32 v5, 32
    v_cndmask_b32 v{EM}, 0, v5, vcc
    v_lshlrev_b32 v{INCE}, 3, v{EM}
    v_cmp_eq_u32 vcc, v3, v{VQ}
    v_mov_b32 v5, 0x3f80
    v_lshrrev_b32 v6, 1, v2
    v_lshlrev_b32 v6, 4, v6
    v_lshlrev_b32 v5, v6, v5
    v_cndmask_b32 v5, 0, v5, vcc
    v_and_b32 v6, 1, v2                     ; r%2: 0 -> first register, 1 -> second
    v_cmp_eq_u32 vcc, 0, v6
    v_lshlrev_b32 v{APA}, 4, v{VI}
    v_add_u32 v{APA}, {L_AP}, v{APA}
    v_cndmask_b32 v{A0+2}, 0, v5, vcc
    v_cndmask_b32 v{A0+3}, v5, 0, vcc
    v_mov_b32 v{A1+2}, v{A0+2}
    v_mov_b32 v{A1+3}, v{A0+3}
    v_lshlrev_b32 v{SLB}, 3, v{VL}
    v_lshlrev_b32 v{SRB}, 2, v{VQ}
    v_add_u32 v{SRB}, {L_SRC}, v{SRB}
    s_mov_b32 s{S_RB}, 0
    s_mov_b32 s{S_C60}, {C60:#x}
    s_mov_b32 s{S_C60+1}, {C60:#x}
    s_cmp_eq_u32 s3, 15
    s_cselect_b32 s{S_INV+1}, 0xffff0000, 0
    s_cselect_b32 s{S_INV+3}, -1, 0
    s_mov_b32 s{S_INV}, 0
    s_mov_b32 s{S_INV+2}, 0""")
    if PROF:
        a(f"    v_mov_b32 v{VPROF}, 0")
    stamp(a, 0)
    a(f"""    s_cmp_ge_u32 s3, 10
    s_cbranch_scc1 L_TABLE""")

def gran_addr(a, dst=2):
    a(f"""    s_and_b32 s30, s2, 7
    s_lshl_b32 s30, s30, 5
    s_lshr_b32 s31, s2, 3
    s_or_b32 s31, s30, s31                  ; h
    s_lshr_b32 s30, s31, 3
    s_lshl_b32 s30, s30, 15
    s_and_b32 s31, s31, 7
    s_lshl_b32 s31, s31, 4
    s_add_u32 s30, s30, s31
    s_lshl_b32 s31, s3, 11
    s_add_u32 s30, s30, s31
    s_add_u32 s30, s30, {GRAN_OFF}
    v_lshl_add_u32 v{dst}, v{VQ}, 9, s30""")

VGA, VGF, VONE, VCA = 96, 97, 98, 99

def late_setup(a, opt):
    a(f"""    s_add_u32 s{S_REC}, s26, {REC_OFF}
    s_addc_u32 s{S_REC+1}, s27, 0
    s_mov_b32 s{S_REC+2}, {E*opt.rec}
    s_mov_b32 s{S_REC+3}, 0x20000
    s_add_u32 s{S_G}, s26, {G_OFF}
    s_addc_u32 s{S_G+1}, s27, 0
    s_or_b32 s{S_G+1}, s{S_G+1}, 0x01000000  ; stride 256
    s_mov_b32 s{S_G+2}, {N+1}
    s_mov_b32 s{S_G+3}, 0x20000""")
    gran_addr(a, VGA)
    a(f"""    s_lshl_b32 s30, s3, 8
    s_add_u32 s30, s30, {GF_OFF}
    v_lshl_add_u32 v{VGF}, v{VI}, 4, s30
    v_mov_b32 v{VONE}, 1
    v_lshlrev_b32 v{VCA}, 2, v{VL}""")

def phase_a_bin(a, opt):
    st = opt.store
    QR = lambda j: 16 + 4 * j
    a(f"""    ; ================= phase A, binning waves (tid < 640)
    s_mul_i32 s30, s2, {CH*4}
    v_lshlrev_b32 v2, 4, v0
    v_add_u32 v3, s30, v2
    s_lshl_b32 s31, s30, 1
    v_lshlrev_b32 v4, 5, v0
    v_add_u32 v4, s31, v4
    s_mul_i32 s32, s2, {NPB*128}
    v_add_u32 v64, s32, v2
    v_mov_b32 v6, 0
    v_lshlrev_b32 v7, 2, v0
    s_waitcnt lgkmcnt(0)""")
    stamp(a, 1)
    a(f"""    global_load_dwordx4 v[8:11], v3, s[10:11]
    s_load_dwordx2 s[{S_TAG}:{S_TAG+1}], s[26:27], {GEN_OFF}
    s_cmp_ge_u32 s3, 4
    s_cbranch_scc1 L_NOZH
    ds_write_b32 v7, v6 offset:{A_HIST}
L_NOZH:
    s_cmp_lg_u32 s3, 4
    s_cbranch_scc1 L_NOZC
    v_mov_b32 v32, 0
    v_mov_b32 v33, 0
    v_mov_b32 v34, 0
    v_mov_b32 v35, 0
    v_lshlrev_b32 v36, 4, v{VL}
    v_cmp_gt_u32 vcc, {(L_ZEND-L_CNT)//16}, v{VL}
    s_and_saveexec_b64 s[34:35], vcc
    ds_write_b128 v36, v[32:35] offset:{L_CNT}
    s_mov_b64 exec, s[34:35]
L_NOZC:""")
    late_setup(a, opt)
    a(f"""    ; addresses of the copy-out and of the run table entry (bucket slot h = 64*wave + lane, waves 0..3)
    s_mul_i32 s36, s2, {CH*opt.rec}
    s_mov_b32 s38, {A_REC}
    v_lshl_add_u32 v56, v0, 4, s38
    v_mad_u32_u24 v57, v0, {opt.rec}, s36
    v_add_u32 v58, {640*opt.rec}, v57
    v_add_u32 v59, {2*640*opt.rec}, v57
    v_add_u32 v60, {3*640*opt.rec}, v57
    s_and_b32 s37, s3, 3
    s_lshl_b32 s30, s37, 8
    v_lshl_add_u32 v61, v{VL}, 2, s30       ; 4*h
    s_lshl_b32 s37, s37, 18
    s_lshl_b32 s30, s2, 7
    s_add_u32 s37, s37, s30
    s_add_u32 s37, s37, {GRAN_OFF}
    v_lshrrev_b32 v62, 3, v{VL}
    v_lshl_add_u32 v62, v62, 15, s37
    v_and_b32 v63, 7, v{VL}
    v_lshl_add_u32 v62, v63, 4, v62
    v_lshlrev_b32 v63, 4, v{VL}
    s_mul_i32 s39, s2, {CH}
    s_mov_b32 s33, 52429
    s_movk_i32 s34, 0xffd8                  ; -40
    s_movk_i32 s37, 0xfc04                  ; -1020
    s_waitcnt lgkmcnt(0)
    s_add_u32 s{S_TAG}, s{S_TAG}, 1
    s_addc_u32 s{S_TAG+1}, s{S_TAG+1}, 0
    s_and_b32 s{S_TAG8}, s{S_TAG}, 0xff
    s_lshl_b32 s35, s{S_TAG8}, 24
    v_mov_b32 v53, s{S_TAG}
    v_mov_b32 v54, s{S_TAG+1}
    v_mov_b32 v55, s{S_TAG}
    s_barrier                               ; #1
    global_load_dwordx4 v[12:15], v3, s[8:9]
    global_load_dwordx4 v[16:19], v4, s[6:7]
    global_load_dwordx4 v[24:27], v4, s[6:7] offset:16
    s_waitcnt vmcnt(3)""")
    stamp(a, 2)
    for j in range(4):
        a(f"    v_mul_u32_u24 v{40+j}, s33, v{8+j}")
        a(f"    v_lshrrev_b32 v{32+j}, 21, v{40+j}          ; bucket b")
        a(f"    v_lshrrev_b32 v{40+j}, 24, v{40+j}          ; b / 8")
        a(f"    v_mad_i32_i24 v{8+j}, v{32+j}, s34, v{8+j}")
        a(f"    v_lshlrev_b32 v{32+j}, 7, v{32+j}")
        a(f"    v_mad_i32_i24 v{32+j}, v{40+j}, s37, v{32+j}  ; 4 * ((b % 8) * 32 + b / 8): buckets of one die are adjacent")
        a(f"    ds_add_rtn_u32 v{36+j}, v{32+j}, v{VONE} offset:{A_HIST}")
    for j in range(4):
        a(f"    v_lshl_or_b32 v{8+j}, v{8+j}, 2, s35")
    a(f"""    s_waitcnt lgkmcnt(0)
    s_barrier                               ; #2
    ds_read_b128 v[40:43], v63 offset:{A_HIST}
    s_waitcnt lgkmcnt(0)
    v_add_u32 v44, v40, v41
    v_add_u32 v45, v44, v42
    v_add_u32 v46, v45, v43
    v_mov_b32 v47, v46""")
    dpp_scan(a, 47)
    a(f"""    v_sub_u32 v48, v47, v46
    v_add_u32 v49, v48, v40
    v_add_u32 v50, v48, v44
    v_add_u32 v51, v48, v45
    ds_write_b128 v63, v[48:51] offset:{A_OFFS}
    s_waitcnt vmcnt(0)""")
    for j in range(4):
        a(f"    v_lshl_or_b32 v{12+j}, v{12+j}, 8, v{8+j}")
    a("    v_pk_mov_b32 v[20:21], v[18:19], v[18:19] op_sel:[0,1]")
    a("    v_pk_mov_b32 v[28:29], v[26:27], v[26:27] op_sel:[0,1]")
    for j in range(4):
        a(f"    v_mov_b32 v{QR(j)+2}, v{12+j}")
        if opt.rec == 16:
            a(f"    v_bitop3_b32 v{QR(j)+3}, v{QR(j)}, v{12+j}, s{S_TAG} bitop3:0x96")
    a("    s_waitcnt lgkmcnt(0)")
    for j in range(4):
        a(f"    ds_read_b32 v{44+j}, v{32+j} offset:{A_OFFS}")
    a(f"""    ds_read_b32 v52, v61 offset:{A_OFFS}
    ds_read_b32 v48, v61 offset:{A_HIST}
    s_waitcnt lgkmcnt(2)""")
    for j in range(4):
        a(f"    v_add_u32 v{44+j}, v{44+j}, v{36+j}")
        a(f"    v_lshl_add_u32 v{44+j}, v{44+j}, 4, s38")
        a(f"    ds_write_b128 v{44+j}, v[{QR(j)}:{QR(j)+3}]")
    a(f"""    s_add_u32 s30, s26, {REC_OFF}
    s_addc_u32 s31, s27, 0
    s_waitcnt lgkmcnt(0)
    s_barrier                               ; #3""")
    stamp(a, 3)
    if opt.rec == 16:
        for j in range(4):
            a(f"    ds_read_b128 v[{32+4*j}:{35+4*j}], v56 offset:{j*10240}")
    else:
        for j in range(4):
            a(f"    ds_read_b96 v[{32+4*j}:{34+4*j}], v56 offset:{j*10240}")
    a(f"""    v_add_u32 v52, s39, v52
    v_lshl_or_b32 v52, v48, 20, v52""")
    for j in range(4):
        a(f"    s_waitcnt lgkmcnt({3-j})")
        if opt.rec == 16:
            a(f"    global_store_dwordx4 v{57+j}, v[{32+4*j}:{35+4*j}], s[30:31] {st}")
        else:
            a(f"    global_store_dwordx3 v{57+j}, v[{32+4*j}:{34+4*j}], s[30:31] {st}")
    a(f"""    s_cmp_ge_u32 s3, 5
    s_cbranch_scc1 L_NOXR
    global_load_dwordx4 v[{XR}:{XR+3}], v64, s[4:5]
    global_load_dword v{TMP}, v64, s[22:23]
L_NOXR:""")
    if opt.rec == 12:
        a("    s_waitcnt vmcnt(0)")
    a(f"""    s_barrier                               ; #4
    s_cmp_ge_u32 s3, 4
    s_cbranch_scc1 L_PHASEB
    global_store_dwordx4 v62, v[52:55], s[26:27] {st}
    s_branch L_PHASEB""")

def tile_mfma(a, acc0, wreg, xreg):
    for mat in range(2):
        acc = acc0 + 4 * mat
        r0, r1 = wreg + mat * 8, wreg + mat * 8 + 4
        a(f"    v_mfma_f32_16x16x32_bf16 v[{acc}:{acc+3}], v[{r0}:{r0+3}], v[{xreg}:{xreg+3}], 0")
        a(f"    v_mfma_f32_16x16x32_bf16 v[{acc}:{acc+3}], v[{r1}:{r1+3}], v[{xreg+4}:{xreg+7}], v[{acc}:{acc+3}]")

def phase_a_table(a, opt):
    st = opt.store
    wp = [14, 20, 12, 18]
    a(f"""L_TABLE:
    s_sub_u32 s36, s3, 10                   ; u
    s_and_b32 s37, s36, 1
    s_add_u32 s38, s37, 6
    v_lshlrev_b32 v2, 4, v{VL}
    s_lshl_b32 s30, s36, 10
    v_add_u32 v3, s30, v2                   ; piece u
    s_lshl_b32 s31, s38, 10
    v_add_u32 v4, s31, v2                   ; piece 6/7
    s_mul_i32 s32, s2, {NPB*128}
    v_add_u32 v5, s32, v3                   ; x offset
    v_lshrrev_b32 v6, 3, v{VL}
    v_mul_u32_u24 v6, 144, v6
    v_and_b32 v7, 7, v{VL}
    v_lshl_add_u32 v6, v7, 4, v6
    s_mul_i32 s33, s36, {8*144}
    s_add_u32 s33, s33, {A_W}
    v_add_u32 v48, s33, v6
    s_mul_i32 s33, s38, {8*144}
    s_add_u32 s33, s33, {A_W}
    v_add_u32 v49, s33, v6
    v_lshrrev_b32 v50, 1, v{VQ}
    v_and_b32 v51, 1, v{VQ}
    v_lshl_or_b32 v50, v51, 1, v50
    v_lshl_add_u32 v50, v{VI}, 2, v50
    v_lshlrev_b32 v50, 1, v50
    s_waitcnt lgkmcnt(0)
    s_load_dwordx2 s[{S_TAG}:{S_TAG+1}], s[26:27], {GEN_OFF}""")
    stamp(a, 1)
    late_setup(a, opt)
    a("    s_barrier")
    if opt.wlate:
        a("    s_barrier                               ; #2")
    for m in range(4):
        a(f"    global_load_dwordx4 v[{8+8*m}:{11+8*m}], v3, s[{wp[m]}:{wp[m]+1}]")
        a(f"    global_load_dwordx4 v[{12+8*m}:{15+8*m}], v4, s[{wp[m]}:{wp[m]+1}]")
    if opt.touch:
        a(f"""    ; touch the workspace pages used later (unused words or tag-checked records only)
    v_lshlrev_b32 v45, 21, v{VL}
    v_add_u32 v45, 0x200000, v45
    v_mov_b32 v46, 0x276000
    v_cmp_eq_u32 vcc, 0, v{VL}
    s_nop 1
    v_cndmask_b32 v45, v45, v46, vcc
    s_mov_b64 exec, 0x3f
    global_load_dword v{TMP}, v45, s[26:27] sc1
    s_mov_b64 exec, -1""")
    a(f"""    s_cmp_eq_u32 s36, 5
    s_cbranch_scc1 L_TWC0
    global_load_dwordx4 v[40:43], v5, s[4:5]
    s_branch L_TB
L_TWC0:
    global_load_ushort v40, v50, s[16:17]
    global_load_ushort v41, v50, s[16:17] offset:128
    global_load_ushort v42, v50, s[16:17] offset:256
    global_load_ushort v43, v50, s[16:17] offset:384
L_TB:""")
    if not opt.wlate:
        a("    s_barrier                               ; #2")
    a(f"""    s_barrier                               ; #3
    s_cmp_eq_u32 s36, 5
    s_cbranch_scc1 L_TWC
    s_waitcnt vmcnt(0)
    ds_write_b128 v48, v[40:43] offset:{A_X - A_W}
    s_branch L_TST
L_TWC:
    s_mov_b32 s33, {NLOG2E:#x}
    v_lshlrev_b32 v44, 3, v{VL}
    s_waitcnt vmcnt(0)
    v_lshlrev_b32 v40, 16, v40
    v_lshlrev_b32 v41, 16, v41
    v_lshlrev_b32 v42, 16, v42
    v_lshlrev_b32 v43, 16, v43
    v_mul_f32 v40, s33, v40
    v_mul_f32 v41, s33, v41
    v_mul_f32 v42, s33, v42
    v_mul_f32 v43, s33, v43
    v_cvt_pk_bf16_f32 v40, v40, v41
    v_cvt_pk_bf16_f32 v41, v42, v43
    ds_write_b64 v44, v[40:41] offset:{L_WCB}
L_TST:""")
    for m in range(4):
        a(f"    ds_write_b128 v48, v[{8+8*m}:{11+8*m}] offset:{m*WIMG}")
        a(f"    ds_write_b128 v49, v[{12+8*m}:{15+8*m}] offset:{m*WIMG}")
    a(f"""    ; tile job: nt = u/2, mt in {{2*(u%2), 2*(u%2)+1}}
    s_lshr_b32 s30, s36, 1                  ; nt
    s_lshl_b32 s31, s37, 1                  ; mt0
    s_lshl_b32 s32, s30, 4
    v_add_u32 v4, s32, v{VI}                ; node
    v_mul_u32_u24 v5, 144, v4
    v_lshl_add_u32 v5, v{VQ}, 4, v5
    v_add_u32 v5, {A_X}, v5
    v_lshrrev_b32 v6, 2, v{VI}
    v_lshl_add_u32 v6, v{VQ}, 3, v6
    v_mul_u32_u24 v6, 144, v6
    v_and_b32 v7, 3, v{VI}
    v_lshl_add_u32 v6, v7, 3, v6
    s_lshl_b32 s32, s31, 5
    s_add_u32 s32, s32, {A_W}
    v_add_u32 v6, s32, v6
    v_mul_u32_u24 v7, 272, v4
    v_lshl_add_u32 v50, v{VQ}, 4, v7
    s_lshl_b32 s32, s31, 6
    v_add_u32 v50, s32, v50
    v_add_u32 v51, {L_AP}, v50
    v_add_u32 v53, {L_U}, v50
    s_waitcnt lgkmcnt(0)
    s_add_u32 s{S_TAG}, s{S_TAG}, 1
    s_addc_u32 s{S_TAG+1}, s{S_TAG+1}, 0
    s_and_b32 s{S_TAG8}, s{S_TAG}, 0xff
    v_mov_b32 v54, {L_GCNT+4}
    v_mov_b32 v55, 1
    s_mov_b64 exec, 1
    ds_add_u32 v54, v55
    s_mov_b64 exec, -1
L_TSYNC:
    ds_read_b32 v55, v54
    s_waitcnt lgkmcnt(0)
    v_readfirstlane_b32 s30, v55
    s_nop 3
    s_cmp_lt_u32 s30, 6
    s_cbranch_scc1 L_TSYNC
    ds_read_b128 v[8:11], v5
    ds_read_b128 v[12:15], v5 offset:64""")
    def wfrags(first):
        for m in range(2):
            for mat in range(2):
                for ks in range(2):
                    r = 16 + m * 16 + mat * 8 + ks * 4
                    for h in range(2):
                        a(f"    ds_read_b64_tr_b16 v[{r+2*h}:{r+2*h+1}], v6 offset:{(first+mat)*WIMG + ks*4608 + h*576 + m*32}")
    wfrags(0)
    a(f"""    ; table row address of this lane: (40 w + node)*256 + (16 mt0 + 4 g)*4 ; rows >= 40 of the tile are not stored
    s_mul_i32 s31, s2, {NPB*256}
    s_add_u32 s31, s31, {G_OFF}
    v_lshlrev_b32 v55, 8, v4
    v_add_u32 v55, s31, v55
    v_lshl_add_u32 v55, v{VQ}, 4, v55
    s_and_b32 s30, s36, 1
    s_lshl_b32 s30, s30, 7
    v_add_u32 v55, s30, v55
    v_cmp_gt_u32 s[34:35], {NPB}, v4
    s_mov_b32 s32, {NLOG2E:#x}
    s_mov_b32 s33, {BIG:#x}
    v_mov_b32 v54, {NBIG:#x}
    s_waitcnt lgkmcnt(0)""")
    for m in range(2):
        tile_mfma(a, 56 + 8 * m, 16 + 16 * m, 8)
    wfrags(2)
    a("    s_mov_b32 s30, 0x8000")
    for m in range(2):
        accb, accv = 56 + 8 * m, 60 + 8 * m
        o = 72 + 4 * m
        for r in range(4):
            a(f"    v_mul_f32 v{accb+r}, s32, v{accb+r}")
            a(f"    v_med3_f32 v{accb+r}, v{accb+r}, v54, s33")
        a(f"    v_cvt_pk_bf16_f32 v{o}, v{accb}, v{accb+1}")
        a(f"    v_cvt_pk_bf16_f32 v{o+1}, v{accb+2}, v{accb+3}")
        for p in range(2):
            lo, hi = accv + 2 * p, accv + 2 * p + 1
            a(f"    v_cvt_pk_bf16_f32 v80, v{lo}, v{lo}")
            a(f"    v_and_b32 v80, 0xffff, v80")
            a(f"    v_and_b32 v81, 0x7fffffff, v{hi}")
            a(f"    v_and_b32 v{hi}, 0x80000000, v{hi}")
            a(f"    v_sub_u32 v81, v81, v80")
            a(f"    v_add_u32 v81, s30, v81")
            a(f"    v_max_i32 v81, 0, v81")
            a(f"    v_and_b32 v81, 0xffff0000, v81")
            a(f"    v_or3_b32 v{o+2+p}, v81, v80, v{hi}")
    a(f"""    s_barrier
    s_mov_b64 exec, s[34:35]
    global_store_dwordx4 v55, v[72:75], s[26:27] offset:0 {st}
    global_store_dwordx4 v55, v[76:79], s[26:27] offset:64 {st}
    s_mov_b64 exec, -1""")
    a(f"""    ; padding row N of the table (gate saturates, value 0): last workgroup, wave u = 5
    s_cmp_lg_u32 s2, {NB-1}
    s_cbranch_scc1 L_TAU
    s_cmp_lg_u32 s36, 5
    s_cbranch_scc1 L_TAU
    v_mov_b32 v80, 0x71807180
    v_mov_b32 v81, v80
    v_mov_b32 v82, 0
    v_mov_b32 v83, 0
    v_lshlrev_b32 v7, 4, v{VL}
    v_add_u32 v7, {N*256 + G_OFF}, v7
    s_mov_b64 exec, 0xffff
    global_store_dwordx4 v7, v[80:83], s[26:27] {st}
    s_mov_b64 exec, -1
L_TAU:
    s_waitcnt lgkmcnt(0)""")
    for m in range(2):
        tile_mfma(a, 56 + 8 * m, 16 + 16 * m, 8)
    a(f"""    s_mov_b32 s34, {FSHIFT:#x}
    s_nop 6""")
    for m in range(2):
        acca, accu = 56 + 8 * m, 60 + 8 * m
        a(f"    ds_write_b128 v53, v[{accu}:{accu+3}] offset:{m*64}")
        for r in range(4):
            a(f"    v_mul_f32 v{acca+CHN[r]}, s32, v{acca+CHN[r]}")
            a(f"    v_med3_f32 v{acca+CHN[r]}, v{acca+CHN[r]}, v54, s33")
            a(f"    v_add_f32 v{16+r}, s34, v{acca+CHN[r]}")
        a(f"    ds_write_b128 v51, v[16:19] offset:{m*64}")
    a(f"""    ; the table rows of this workgroup are complete: the last table wave publishes the flag
    v_mov_b32 v16, {L_GCNT}
    v_mov_b32 v17, 1
    s_waitcnt vmcnt(0)
    s_mov_b64 exec, 1
    ds_add_rtn_u32 v18, v16, v17
    s_waitcnt lgkmcnt(0)
    v_readfirstlane_b32 s30, v18
    s_mov_b64 exec, -1
    s_cmp_lg_u32 s30, 5
    s_cbranch_scc1 L_PHASEB
    s_lshl_b32 s30, s2, 4
    s_add_u32 s30, s30, {GF_OFF}
    v_mov_b32 v16, s30
    v_mov_b32 v18, s{S_TAG}
    v_mov_b32 v19, s{S_TAG+1}
    s_mov_b64 exec, 1
    global_store_dwordx2 v16, v[18:19], s[26:27] {st}
    s_mov_b64 exec, -1""")

def phase_b(a, opt):
    GR = lambda j: 8 + 4 * j
    rec = lambda h, j: 24 + 16 * h + 4 * j
    RANK, DL = 56, 64
    msk = lambda h, j: (M0 if h == 0 else M1) + 2 * j
    pnd = lambda h, j: (P0M if h == 0 else P1M) + 2 * j
    inv = lambda j: S_INV + (2 if j >= 2 else 0)
    a("L_PHASEB:")
    stamp(a, 4)
    a(f"""    ; ================= phase B: wait for the run table entries of this bucket
    v_lshlrev_b32 v2, 3, v{VL}
    ds_read_b64 v[{WC}:{WC+1}], v2 offset:{L_WCB}""")
    a(f"""    s_mov_b32 s33, 0
    s_mov_b32 s38, s{S_TAG+1}
    s_mov_b32 s39, s{S_TAG}""")
    for j in range(4):
        a(f"    s_not_b64 s[{pnd(0,j)}:{pnd(0,j)+1}], s[{inv(j)}:{inv(j)+1}]")
    a("L_POLL:")
    for j in range(4):
        p = pnd(0, j)
        a(f"    s_mov_b64 exec, s[{p}:{p+1}]")
        a(f"    s_cbranch_execz L_NP{j}")
        a(f"    global_load_dwordx4 v[{GR(j)}:{GR(j)+3}], v{VGA}, s[26:27] offset:{128*j} sc1")
        a(f"L_NP{j}:")
    a("    s_waitcnt vmcnt(0)")
    for j in range(4):
        p = pnd(0, j)
        a(f"    s_mov_b64 exec, s[{p}:{p+1}]")
        a(f"    v_cmp_eq_u32 vcc, s{S_TAG}, v{GR(j)+1}")
        a(f"    v_cmp_eq_u64 s[34:35], v[{GR(j)+2}:{GR(j)+3}], s[38:39]")
        a(f"    s_nop 0")
        a(f"    s_and_b64 s[34:35], s[34:35], vcc")
        a(f"    s_andn2_b64 s[{p}:{p+1}], s[{p}:{p+1}], s[34:35]")
    a(f"""    s_mov_b64 exec, -1
    s_or_b64 s[34:35], s[{pnd(0,0)}:{pnd(0,0)+1}], s[{pnd(0,1)}:{pnd(0,1)+1}]
    s_or_b64 s[36:37], s[{pnd(0,2)}:{pnd(0,2)+1}], s[{pnd(0,3)}:{pnd(0,3)+1}]
    s_or_b64 s[34:35], s[34:35], s[36:37]
    s_cbranch_scc0 L_READY
    s_add_u32 s33, s33, 1
    s_cmp_ge_u32 s33, {POLL_LIMIT}
    s_cbranch_scc1 L_END
    s_sleep {opt.sleep}
    s_branch L_POLL
L_READY:""")
    stamp(a, 5)
    a(f"""L_ROUND:
    v_add_u32 v2, s{S_RB}, v{VI}
    v_add_u32 v3, 16, v2
    v_mul_u32_u24 v4, {opt.rec}, v2""")
    for j in range(4):
        a(f"    v_lshrrev_b32 v{GR(j)+1}, 20, v{GR(j)}      ; count")
        a(f"    v_and_b32 v{GR(j)}, 0xfffff, v{GR(j)}")
        a(f"    v_cmp_gt_u32 s[{msk(0,j)}:{msk(0,j)+1}], v{GR(j)+1}, v2")
        a(f"    v_cmp_gt_u32 s[{msk(1,j)}:{msk(1,j)+1}], v{GR(j)+1}, v3")
        if opt.rec == 16:
            a(f"    v_lshl_add_u32 v{GR(j)+2}, v{GR(j)}, 4, v4")
        else:
            a(f"    v_mad_u32_u24 v{GR(j)+2}, v{GR(j)}, 12, v4")
    a(f"    s_add_u32 s30, s{S_RB}, 32")
    for j in range(4):
        a(f"    s_andn2_b64 s[{msk(0,j)}:{msk(0,j)+1}], s[{msk(0,j)}:{msk(0,j)+1}], s[{inv(j)}:{inv(j)+1}]")
        a(f"    s_mov_b64 s[{pnd(0,j)}:{pnd(0,j)+1}], s[{msk(0,j)}:{msk(0,j)+1}]")
        a(f"    s_andn2_b64 s[{msk(1,j)}:{msk(1,j)+1}], s[{msk(1,j)}:{msk(1,j)+1}], s[{inv(j)}:{inv(j)+1}]")
        a(f"    s_mov_b64 s[{pnd(1,j)}:{pnd(1,j)+1}], s[{msk(1,j)}:{msk(1,j)+1}]")
        a(f"    s_cbranch_scc0 L_NMORE{j}")
        a(f"    s_mov_b64 exec, s[{msk(1,j)}:{msk(1,j)+1}]")
        a(f"    v_cmp_lt_u32 vcc, s30, v{GR(j)+1}")
        a(f"    s_mov_b64 exec, -1")
        a(f"    s_cmp_eq_u64 vcc, 0")
        a(f"    s_cbranch_scc1 L_NMORE{j}")
        a(f"    v_mov_b32 v5, {L_FLAG}")
        a(f"    v_mov_b32 v6, 1")
        a(f"    ds_write_b32 v5, v6")
        a(f"L_NMORE{j}:")
    if opt.rec == 16:
        a(f"""    s_mov_b32 s33, 0
L_RLOAD:""")
        for h in range(2):
            for j in range(4):
                p = pnd(h, j)
                a(f"    s_cmp_eq_u64 s[{p}:{p+1}], 0")
                a(f"    s_cbranch_scc1 L_NL{h}{j}")
                a(f"    s_mov_b64 exec, s[{p}:{p+1}]")
                off = " offset:256" if h else ""
                a(f"    buffer_load_dwordx4 v[{rec(h,j)}:{rec(h,j)+3}], v{GR(j)+2}, s[{S_REC}:{S_REC+3}], 0 offen{off} {opt.hload}")
                a(f"L_NL{h}{j}:")
        a("    s_waitcnt vmcnt(0)")
        for h in range(2):
            for j in range(4):
                p = pnd(h, j)
                r = rec(h, j)
                a(f"    s_cmp_eq_u64 s[{p}:{p+1}], 0")
                a(f"    s_cbranch_scc1 L_NC{h}{j}")
                a(f"    s_mov_b64 exec, s[{p}:{p+1}]")
                a(f"    v_bitop3_b32 v5, v{r}, v{r+2}, v{r+3} bitop3:0x96")
                a(f"    v_cmp_eq_u32_sdwa s[34:35], v{r+2}, s{S_TAG8} src0_sel:BYTE_3 src1_sel:DWORD")
                a(f"    v_cmp_eq_u32 vcc, s{S_TAG}, v5")
                a(f"    s_nop 0")
                a(f"    s_and_b64 s[34:35], s[34:35], vcc")
                a(f"    s_andn2_b64 s[{p}:{p+1}], s[{p}:{p+1}], s[34:35]")
                a(f"L_NC{h}{j}:")
        a(f"    s_mov_b64 exec, -1")
        a(f"    s_or_b64 s[34:35], s[{pnd(0,0)}:{pnd(0,0)+1}], s[{pnd(0,1)}:{pnd(0,1)+1}]")
        for h in range(2):
            for j in range(4):
                if (h, j) in ((0, 0), (0, 1)): continue
                a(f"    s_or_b64 s[34:35], s[34:35], s[{pnd(h,j)}:{pnd(h,j)+1}]")
        a(f"""    s_cbranch_scc0 L_HAVE
    s_add_u32 s33, s33, 1
    s_cmp_ge_u32 s33, {POLL_LIMIT}
    s_cbranch_scc1 L_END
    s_sleep {opt.sleep}
    s_branch L_RLOAD
L_HAVE:""")
    else:
        for h in range(2):
            for j in range(4):
                p = msk(h, j)
                if h:
                    a(f"    s_cmp_eq_u64 s[{p}:{p+1}], 0")
                    a(f"    s_cbranch_scc1 L_NL{h}{j}")
                a(f"    s_mov_b64 exec, s[{p}:{p+1}]")
                off = " offset:192" if h else ""
                a(f"    buffer_load_dwordx3 v[{rec(h,j)}:{rec(h,j)+2}], v{GR(j)+2}, s[{S_REC}:{S_REC+3}], 0 offen{off} {opt.hload}")
                if h:
                    a(f"L_NL{h}{j}:")
        a("    s_mov_b64 exec, -1")
        a("    s_waitcnt vmcnt(0)")
    stamp(a, 6)
    a(f"""    ; table-row flags of this wave's 16 producers: loaded now, checked before the first gather
    global_load_dwordx2 v[22:23], v{VGF}, s[26:27] sc1""")
    for h in range(2):
        for j in range(4):
            m = msk(h, j)
            if h == 1:
                a(f"    s_cmp_eq_u64 s[{m}:{m+1}], 0")
                a(f"    s_cbranch_scc1 L_NB1R{j}")
            a(f"    s_mov_b64 exec, s[{m}:{m+1}]")
            a(f"    v_and_b32 v{DL+4*h+j}, 0xff, v{rec(h,j)+2}")
            a(f"    ds_add_rtn_u32 v{RANK+4*h+j}, v{DL+4*h+j}, v{VONE} offset:{L_CNT}")
            if h == 1:
                a(f"L_NB1R{j}:")
    a(f"""    s_mov_b64 exec, -1
    v_mov_b32 v6, {L_FLAG}
    v_cmp_gt_u32 vcc, {NPB}, v{VL}
    s_waitcnt lgkmcnt(0)
    s_barrier                               ; #5""")
    stamp(a, 12)
    a(f"""    ds_read_b32 v5, v{VCA} offset:{L_CNT}
    ds_read_b32 v6, v6
    s_waitcnt lgkmcnt(0)
    v_add_u32 v4, 7, v5
    v_lshrrev_b32 v4, 3, v4
    v_max_u32 v4, 1, v4
    v_cndmask_b32 v4, 0, v4, vcc
    v_readfirstlane_b32 s{S_MORE}, v6
    v_mov_b32 v{QEND}, v4""")
    dpp_scan(a, QEND)
    stamp(a, 13)
    a(f"""    v_sub_u32 v{QST}, v{QEND}, v4
    v_readlane_b32 s{S_P}, v{QEND}, 63
    v_lshlrev_b32 v3, 3, v{QST}
    s_mov_b32 s30, {L_SRC}
    s_mov_b32 s31, {L_E}""")
    for j in range(4):
        a(f"    ds_bpermute_b32 v{8+j}, v{DL+j}, v3")
    for j in range(4):
        a(f"    s_cmp_eq_u64 s[{M1+2*j}:{M1+2*j+1}], 0")
        a(f"    s_cbranch_scc1 L_NB1P{j}")
        a(f"    ds_bpermute_b32 v{12+j}, v{DL+4+j}, v3")
        a(f"L_NB1P{j}:")
    a(f"""    ; padding slots: waves 0..4 take 8 nodes each, lane = (node, slot); wave 5 fills the tail
    s_cmp_ge_u32 s3, 5
    s_cbranch_scc1 L_NOPLK
    s_lshl_b32 s32, s3, 3
    v_lshrrev_b32 v16, 3, v{VL}
    v_add_u32 v16, s32, v16
    v_lshlrev_b32 v16, 2, v16               ; 4*node
    v_add_u32 v17, v3, v5
    v_lshlrev_b32 v18, 3, v{QEND}
    ds_bpermute_b32 v17, v16, v17
    ds_bpermute_b32 v18, v16, v18
L_NOPLK:
    s_mul_i32 s{S_TS}, s{S_P}, s3
    s_lshr_b32 s{S_TS}, s{S_TS}, 4
    s_add_u32 s32, s3, 1
    s_mul_i32 s{S_TE}, s{S_P}, s32
    s_lshr_b32 s{S_TE}, s{S_TE}, 4
    v_cmp_ge_u32 vcc, s{S_TS}, v{QEND}
    s_waitcnt lgkmcnt(0)
    s_bcnt1_i32_b64 s{S_N}, vcc""")
    for h in range(2):
        for j in range(4):
            m = msk(h, j)
            r = rec(h, j)
            if h == 1:
                a(f"    s_cmp_eq_u64 s[{m}:{m+1}], 0")
                a(f"    s_cbranch_scc1 L_NB1S{j}")
            a(f"    s_mov_b64 exec, s[{m}:{m+1}]")
            a(f"    v_add_u32 v{8+4*h+j}, v{8+4*h+j}, v{RANK+4*h+j}")
            a(f"    v_bfe_u32 v{r+2}, v{r+2}, 8, 16")
            a(f"    v_lshl_add_u32 v19, v{8+4*h+j}, 2, s30")
            a(f"    v_lshl_add_u32 v21, v{8+4*h+j}, 3, s31")
            a(f"    ds_write_b32 v19, v{r+2}")
            a(f"    ds_write_b64 v21, v[{r}:{r+1}]")
            if h == 1:
                a(f"L_NB1S{j}:")
    stamp(a, 14)
    a(f"""    s_mov_b64 exec, -1
    v_mov_b32 v11, {N}
    v_mov_b32 v12, 0
    v_mov_b32 v13, 0
    s_cmp_gt_u32 s3, 5
    s_cbranch_scc1 L_NOPAD
    v_and_b32 v16, 7, v{VL}
    v_add_u32 v16, v17, v16
    v_cmp_lt_u32 vcc, v16, v18
    s_cmp_lt_u32 s3, 5
    s_cbranch_scc1 L_PADW
    s_lshl_b32 s32, s{S_P}, 3
    v_add_u32 v16, s32, v{VL}
    s_mov_b64 vcc, -1
L_PADW:
    v_lshl_add_u32 v14, v16, 2, s30
    v_lshl_add_u32 v15, v16, 3, s31
    s_mov_b64 exec, vcc
    ds_write_b32 v14, v11
    ds_write_b64 v15, v[12:13]
    s_mov_b64 exec, -1
L_NOPAD:
    v_readlane_b32 s{S_SEGEND}, v{QEND}, s{S_N}
    s_lshl_b32 s32, s{S_TS}, 5
    v_add_u32 v2, s32, v{SRB}
    s_lshl_b32 s32, s{S_TS}, 1
    v_mad_u32_u24 v3, v{EM}, s32, v{EB}
    s_mul_i32 s32, s{S_N}, 272
    v_add_u32 v{TMP}, s32, v{APA}
    s_add_u32 s32, s{S_N}, s3
    s_lshl_b32 s32, s32, 9
    v_add_u32 v{SLA}, s32, v{SLB}
    s_min_u32 s{S_SEGEND}, s{S_SEGEND}, s{S_TE}
    s_sub_u32 s{S_REM}, s{S_SEGEND}, s{S_TS}
    s_sub_u32 s{S_REM}, s{S_REM}, 1""")
    S = lambda k: 8 + 6 * (k % 8)
    Da, Db, T = 56, 60, 64
    NUM, DEN = 68, 72
    PA, PB_, UA, UB, SA, SB = 76, 78, 80, 82, 84, 86
    a(f"""    s_mov_b32 s33, 0
    s_cmp_eq_u32 s3, 15
    s_cselect_b32 s34, 0xfc00fc00, 0
    s_mov_b32 s35, s34
L_GPOLL:
    s_waitcnt vmcnt(0)
    v_cmp_eq_u64 s[36:37], v[22:23], s[{S_TAG}:{S_TAG+1}]
    s_nop 0
    s_or_b64 s[36:37], s[36:37], s[34:35]
    s_cmp_eq_u64 s[36:37], -1
    s_cbranch_scc1 L_GOK
    s_add_u32 s33, s33, 1
    s_cmp_ge_u32 s33, {POLL_LIMIT}
    s_cbranch_scc1 L_END
    s_sleep {opt.sleep}
    global_load_dwordx2 v[22:23], v{VGF}, s[26:27] sc1
    s_branch L_GPOLL
L_GOK:""")
    stamp(a, 15)
    a(f"""    s_waitcnt lgkmcnt(0)
    s_barrier                               ; #6""")
    stamp(a, 7)
    cstamp(a, 10)
    pairs = [IDXA, IDXB, 56, 58, 60, 62]
    for k in range(6):
        a(f"    ds_read_b32 v{pairs[k]}, v2 offset:{16*k}")
    a(f"""    ds_read_b128 v[{AC}:{AC+3}], v{TMP}
    ds_read_b128 v[{ANX}:{ANX+3}], v{TMP} offset:272
    ds_read_b64 v[{A0}:{A0+1}], v3
    ds_read_b64 v[{A1}:{A1+1}], v3 offset:32""")
    for k in range(4):
        a(f"    v_mov_b32 v{56+2*k+1}, v{IDXA+1}")
    for k in range(8):
        a(f"    v_pk_mov_b32 v[{S(k)}:{S(k)+1}], v[{WC}:{WC+1}], v[{WC}:{WC+1}] op_sel:[0,1]")
    for r in range(0, 8, 2):
        a(f"    v_pk_mov_b32 v[{NUM+r}:{NUM+r+1}], 0, 0")
    for k in range(6):
        a(f"    s_waitcnt lgkmcnt({9-k})")
        a(f"    buffer_load_dwordx4 v[{S(k)+2}:{S(k)+5}], v[{pairs[k]}:{pairs[k]+1}], s[{S_G}:{S_G+3}], 0 idxen offen {opt.gload}")
    a(f"""    s_cmp_ge_u32 s3, 5
    s_cbranch_scc1 L_NOSEG
    v_cvt_f32_u32 v76, s{S_P}
    v_rcp_f32 v76, v76
    v_lshlrev_b32 v77, 4, v{QST}
    v_add_u32 v77, 16, v77
    v_cvt_f32_u32 v77, v77
    v_lshlrev_b32 v78, 4, v{QEND}
    v_cvt_f32_u32 v78, v78
    v_add_f32 v77, -0.5, v77
    v_add_f32 v78, -0.5, v78
    v_mul_f32 v77, v77, v76
    v_mul_f32 v78, v78, v76
    v_cvt_u32_f32 v77, v77
    v_cvt_u32_f32 v78, v78
    v_lshrrev_b32 v4, 3, v0                 ; node
    v_sub_u32 v78, v78, v77
    v_add_u32 v78, 1, v78
    v_add_u32 v77, v77, v{VL}
    v_lshl_or_b32 v77, v78, 16, v77
    v_lshlrev_b32 v5, 2, v4
    ds_bpermute_b32 v5, v5, v77
    v_and_b32 v6, 7, v0
    v_lshlrev_b32 v6, 4, v6
    v_mul_u32_u24 v4, 272, v4
    v_lshl_add_u32 v4, v6, 1, v4
    v_add_u32 v4, {L_U}, v4
    s_waitcnt lgkmcnt(0)
    v_lshrrev_b32 v7, 16, v5
    v_and_b32 v5, 0xffff, v5
    v_lshl_add_u32 v5, v5, 9, v6
L_NOSEG:""")
    if opt.prio:
        a(f"    s_setprio 3")
        a(f"    s_sub_u32 s{S_BLK}, s{S_TE}, s{S_TS}")
    a(f"    s_waitcnt lgkmcnt(0)")
    a("L_LOOP:")
    for k in range(0, 8, 2):
        sa, sb = S(k), S(k + 1)
        pa, pb = S(k - 2), S(k - 1)
        a(f"""    s_waitcnt vmcnt(5)
    v_mfma_f32_16x16x32_bf16 v[{Da}:{Da+3}], v[{A0}:{A0+3}], v[{sa}:{sa+3}], v[{AC}:{AC+3}]
    ds_read_b32 v{IDXA}, v2 offset:{16*(k+6)}
    ds_read_b32 v{IDXB}, v2 offset:{16*(k+7)}
    v_lshlrev_b32 v{T}, 16, v{sa+4}
    v_lshlrev_b32 v{T+1}, 16, v{sa+5}
    s_waitcnt vmcnt(4)
    v_mfma_f32_16x16x32_bf16 v[{Db}:{Db+3}], v[{A1}:{A1+3}], v[{sb}:{sb+3}], v[{AC}:{AC+3}]
    v_lshlrev_b32 v{T+2}, 16, v{sb+4}
    v_lshlrev_b32 v{T+3}, 16, v{sb+5}
    s_sub_u32 s{S_REM}, s{S_REM}, 1
    ds_read_b64 v[{A0}:{A0+1}], v3 offset:{32*(k+2)}
    ds_read_b64 v[{A1}:{A1+1}], v3 offset:{32*(k+3)}""")
        for i in range(4):
            a(f"    v_exp_f32 v{Da+i}, v{Da+i} clamp")
        a(f"""    s_waitcnt lgkmcnt(2)
    buffer_load_dwordx4 v[{pa+2}:{pa+5}], v[{IDXA}:{IDXA+1}], s[{S_G}:{S_G+3}], 0 idxen offen {opt.gload}
    buffer_load_dwordx4 v[{pb+2}:{pb+5}], v[{IDXB}:{IDXB+1}], s[{S_G}:{S_G+3}], 0 idxen offen {opt.gload}""")
        for i in range(4):
            a(f"    v_exp_f32 v{Db+i}, v{Db+i} clamp")
        c = f"s[{S_C60}:{S_C60+1}]"
        a(f"""    v_pk_add_f32 v[{Da}:{Da+1}], v[{Da}:{Da+1}], {c}
    v_pk_add_f32 v[{Da+2}:{Da+3}], v[{Da+2}:{Da+3}], {c}
    v_pk_add_f32 v[{Db}:{Db+1}], v[{Db}:{Db+1}], {c}
    v_pk_add_f32 v[{Db+2}:{Db+3}], v[{Db+2}:{Db+3}], {c}
    v_pk_mul_f32 v[{PA}:{PA+1}], v[{Da}:{Da+1}], v[{Db}:{Db+1}]
    v_pk_mul_f32 v[{PB_}:{PB_+1}], v[{Da+2}:{Da+3}], v[{Db+2}:{Db+3}]
    v_pk_mul_f32 v[{UA}:{UA+1}], v[{T}:{T+1}], v[{Db}:{Db+1}]
    v_rcp_f32 v{PA}, v{PA}
    v_rcp_f32 v{PA+1}, v{PA+1}
    v_pk_mul_f32 v[{UB}:{UB+1}], v[{sa+4}:{sa+5}], v[{Db+2}:{Db+3}]
    v_rcp_f32 v{PB_}, v{PB_}
    v_rcp_f32 v{PB_+1}, v{PB_+1}
    v_pk_fma_f32 v[{UA}:{UA+1}], v[{T+2}:{T+3}], v[{Da}:{Da+1}], v[{UA}:{UA+1}]
    v_pk_fma_f32 v[{UB}:{UB+1}], v[{sb+4}:{sb+5}], v[{Da+2}:{Da+3}], v[{UB}:{UB+1}]
    v_pk_add_f32 v[{SA}:{SA+1}], v[{Da}:{Da+1}], v[{Db}:{Db+1}]
    v_pk_add_f32 v[{SB}:{SB+1}], v[{Da+2}:{Da+3}], v[{Db+2}:{Db+3}]
    v_pk_fma_f32 v[{NUM}:{NUM+1}], v[{PA}:{PA+1}], v[{UA}:{UA+1}], v[{NUM}:{NUM+1}]
    v_pk_fma_f32 v[{NUM+2}:{NUM+3}], v[{PB_}:{PB_+1}], v[{UB}:{UB+1}], v[{NUM+2}:{NUM+3}]
    v_pk_fma_f32 v[{DEN}:{DEN+1}], v[{PA}:{PA+1}], v[{SA}:{SA+1}], v[{DEN}:{DEN+1}]
    v_pk_fma_f32 v[{DEN+2}:{DEN+3}], v[{PB_}:{PB_+1}], v[{SB}:{SB+1}], v[{DEN+2}:{DEN+3}]
    s_waitcnt lgkmcnt(0)
    s_cbranch_scc1 L_SB{k}
L_RB{k}:""")
        if k == 6:
            a(f"    v_add_u32 v2, 128, v2")
            a(f"    v_add_u32 v3, v{INCE}, v3")
            if opt.prio:
                t1, t2, t3 = opt.pth
                a(f"""    s_sub_u32 s{S_BLK}, s{S_BLK}, 4
    s_cmp_gt_i32 s{S_BLK}, {t1}
    s_cbranch_scc1 L_LOOP
    s_setprio 2
    s_cmp_gt_i32 s{S_BLK}, {t2}
    s_cbranch_scc1 L_LOOP
    s_setprio 1
    s_cmp_gt_i32 s{S_BLK}, {t3}
    s_cbranch_scc1 L_LOOP
    s_setprio 0""")
            a(f"    s_branch L_LOOP")
    for k in range(0, 8, 2):
        a(f"L_SB{k}:")
        for r in range(4):
            a(f"    v_permlane32_swap_b32 v{NUM+r}, v{DEN+r}")
        a(f"""    v_pk_add_f32 v[{NUM}:{NUM+1}], v[{NUM}:{NUM+1}], v[{DEN}:{DEN+1}]
    v_pk_add_f32 v[{NUM+2}:{NUM+3}], v[{NUM+2}:{NUM+3}], v[{DEN+2}:{DEN+3}]
    s_add_u32 s{S_N}, s{S_N}, 1
    s_add_u32 s36, s{S_N}, 1
    v_permlane16_swap_b32 v{NUM}, v{NUM+2}
    v_permlane16_swap_b32 v{NUM+1}, v{NUM+3}
    v_readlane_b32 s37, v{QEND}, s{S_N}
    s_mul_i32 s36, s36, 272
    v_pk_add_f32 v[{DEN}:{DEN+1}], v[{NUM}:{NUM+1}], v[{NUM+2}:{NUM+3}]
    v_add_u32 v{TMP}, s36, v{APA}
    s_cmp_eq_u32 s{S_SEGEND}, s{S_TE}
    ds_write_b64 v{SLA}, v[{DEN}:{DEN+1}]
    s_cbranch_scc1 L_DONE
    v_pk_mov_b32 v[{AC}:{AC+1}], v[{ANX}:{ANX+1}], v[{ANX}:{ANX+1}] op_sel:[0,1]
    v_pk_mov_b32 v[{AC+2}:{AC+3}], v[{ANX+2}:{ANX+3}], v[{ANX+2}:{ANX+3}] op_sel:[0,1]
    v_add_u32 v{SLA}, {SLOT_STR}, v{SLA}
    s_min_u32 s37, s37, s{S_TE}
    v_pk_mov_b32 v[{NUM}:{NUM+1}], 0, 0
    v_pk_mov_b32 v[{NUM+2}:{NUM+3}], 0, 0
    ds_read_b128 v[{ANX}:{ANX+3}], v{TMP}
    v_pk_mov_b32 v[{DEN}:{DEN+1}], 0, 0
    v_pk_mov_b32 v[{DEN+2}:{DEN+3}], 0, 0
    s_sub_u32 s{S_REM}, s37, s{S_SEGEND}
    s_sub_u32 s{S_REM}, s{S_REM}, 1
    s_mov_b32 s{S_SEGEND}, s37
    s_branch L_RB{k}""")
    a("L_DONE:")
    if opt.prio:
        a("    s_setprio 0")
    stamp(a, 8)
    cstamp(a, 11)
    a(f"""    s_waitcnt vmcnt(0) lgkmcnt(0)
    s_barrier                               ; #7
    s_cmp_ge_u32 s3, 5
    s_cbranch_scc1 L_MERGED
    ds_read_b128 v[24:27], v5 offset:{L_SLOT}
    ds_read_b128 v[28:31], v5 offset:{L_SLOT+128}
    ds_read_b128 v[32:35], v5 offset:{L_SLOT+256}
    ds_read_b128 v[36:39], v5 offset:{L_SLOT+384}
    ds_read_b128 v[40:43], v4
    ds_read_b128 v[44:47], v4 offset:16
    v_add_u32 v5, {SLOT_STR}, v5
    s_mov_b32 s36, 1
L_MERGE:
    v_cmp_lt_u32 vcc, s36, v7
    s_nop 1
    s_cmp_eq_u64 vcc, 0
    s_cbranch_scc1 L_MERGE_END
    s_mov_b64 exec, vcc
    ds_read_b128 v[8:11], v5 offset:{L_SLOT}
    ds_read_b128 v[12:15], v5 offset:{L_SLOT+128}
    ds_read_b128 v[16:19], v5 offset:{L_SLOT+256}
    ds_read_b128 v[20:23], v5 offset:{L_SLOT+384}
    v_add_u32 v5, {SLOT_STR}, v5
    s_add_u32 s36, s36, 1
    s_waitcnt lgkmcnt(0)""")
    for r in range(8):
        a(f"    v_pk_add_f32 v[{24+2*r}:{25+2*r}], v[{24+2*r}:{25+2*r}], v[{8+2*r}:{9+2*r}]")
    a(f"""    s_mov_b64 exec, -1
    s_branch L_MERGE
L_MERGE_END:
    s_waitcnt lgkmcnt(0)
    s_or_b32 s36, s{S_RB}, s{S_MORE}
    s_cmp_eq_u32 s36, 0
    s_cbranch_scc1 L_MERGED
    s_mul_i32 s36, s2, {320*64}
    s_add_u32 s36, s36, {TOT_OFF}
    v_lshl_add_u32 v48, v0, 6, s36
    s_cmp_eq_u32 s{S_RB}, 0
    s_cbranch_scc1 L_NOPREV""")
    for r in range(4):
        a(f"    global_load_dwordx4 v[{8+4*r}:{11+4*r}], v48, s[26:27] offset:{16*r} sc1")
    a("    s_waitcnt vmcnt(0)")
    for r in range(8):
        a(f"    v_pk_add_f32 v[{24+2*r}:{25+2*r}], v[{24+2*r}:{25+2*r}], v[{8+2*r}:{9+2*r}]")
    a(f"""L_NOPREV:
    s_cmp_eq_u32 s{S_MORE}, 0
    s_cbranch_scc1 L_MERGED""")
    for r in range(4):
        a(f"    global_store_dwordx4 v48, v[{24+4*r}:{27+4*r}], s[26:27] offset:{16*r} sc1")
    a(f"""    s_waitcnt vmcnt(0)
L_MERGED:
    s_cmp_eq_u32 s{S_MORE}, 0
    s_cbranch_scc1 L_EPI
    s_add_u32 s{S_RB}, s{S_RB}, 32
    s_cmp_lg_u32 s3, 0
    s_cbranch_scc1 L_NOCLR
    v_mov_b32 v9, 0
    v_lshlrev_b32 v10, 2, v{VL}
    ds_write_b32 v10, v9 offset:{L_CNT}
    v_mov_b32 v10, {L_FLAG}
    ds_write_b32 v10, v9
L_NOCLR:""")
    gran_addr(a)
    a(f"""    s_lshl_b32 s30, s3, 8
    s_add_u32 s30, s30, {GF_OFF}
    v_lshl_add_u32 v{VGF}, v{VI}, 4, s30
    v_mov_b32 v{VONE}, 1
    v_lshlrev_b32 v{VCA}, 2, v{VL}""")
    for j in range(4):
        a(f"    global_load_dwordx4 v[{GR(j)}:{GR(j)+3}], v2, s[26:27] offset:{128*j} sc1")
    a(f"""    s_waitcnt vmcnt(0) lgkmcnt(0)
    s_barrier
    s_branch L_ROUND
L_EPI:
    s_cmp_ge_u32 s3, 5
    s_cbranch_scc1 L_FIN
    s_mov_b32 s36, {EPS60:#x}               ; 1e-6 * 2^60""")
    nreg = [24 + c // 2 + 4 * (c % 2) for c in range(8)]
    dreg = [x + 8 for x in nreg]
    for c in range(8):
        a(f"    v_add_f32 v{dreg[c]}, s36, v{dreg[c]}")
        a(f"    v_rcp_f32 v{dreg[c]}, v{dreg[c]}")
    for c in range(8):
        xr = XR + c // 2
        if c % 2 == 0:
            a(f"    v_lshlrev_b32 v{8+c}, 16, v{xr}")
        else:
            a(f"    v_and_b32 v{8+c}, 0xffff0000, v{xr}")
    for c in range(8):
        a(f"    v_fma_f32 v{40+c}, v{nreg[c]}, v{dreg[c]}, v{40+c}")
    for c in range(8):
        a(f"    v_cmp_lt_f32 s[{48+2*c}:{49+2*c}], 0, v{40+c}")
        a(f"    v_mul_f32 v{16+c}, 0, v{40+c}")
    for c in range(8):
        a(f"    v_cndmask_b32 v{40+c}, v{16+c}, v{40+c}, s[{48+2*c}:{49+2*c}]")
    for c in range(8):
        a(f"    v_add_f32 v{40+c}, v{8+c}, v{40+c}")
    for c in range(4):
        a(f"    v_cvt_pk_bf16_f32 v{16+c}, v{40+2*c}, v{41+2*c}")
    a(f"""    v_lshlrev_b32 v4, 4, v0
    s_mul_i32 s36, s2, {NPB*128}
    v_add_u32 v4, s36, v4
    global_store_dwordx4 v4, v[16:19], s[22:23] {opt.ostore}
    s_or_b32 s36, s2, s3
    s_cmp_lg_u32 s36, 0
    s_cbranch_scc1 L_FIN
    v_mov_b32 v4, {GEN_OFF}
    v_mov_b32 v6, s{S_TAG}
    v_mov_b32 v7, s{S_TAG+1}
    s_mov_b64 exec, 1
    global_store_dwordx2 v4, v[6:7], s[26:27] sc1
L_FIN:""")
    stamp_flush(a)
    a("""L_END:
    s_endpgm
""")

HEADER = """; GatedGCN edge-featured MPNN layer, one launch, one workgroup per 40 destination nodes.
"""

def main():
    global PROF
    ap = argparse.ArgumentParser()
    ap.add_argument("-o", default="standalone__edge_featured_mpnn_gatedgcn__graph.s")
    ap.add_argument("--store", default="sc1")
    ap.add_argument("--hload", default="sc1")
    ap.add_argument("--gload", default="")
    ap.add_argument("--touch", type=int, default=0)
    ap.add_argument("--wlate", type=int, default=1)
    ap.add_argument("--rec", type=int, default=12)
    ap.add_argument("--ostore", default="sc1")
    ap.add_argument("--prio", type=int, default=1)
    ap.add_argument("--pth", type=int, nargs=3, default=[15, 10, 5])
    ap.add_argument("--sleep", type=int, default=2)
    ap.add_argument("--prof", action="store_true")
    ap.add_argument("--dbg", action="store_true")
    opt = ap.parse_args()
    PROF = opt.prof or opt.dbg
    global DBG
    DBG = opt.dbg
    a = Asm()
    a(HEADER.rstrip())
    a(f"; @launch grid=({NB},1,1) block=(1024,1,1) lds={L_END}")
    a('.amdgcn_target "amdgcn-amd-amdhsa--gfx950"')
    a(".text")
    entry(a, opt)
    phase_a_bin(a, opt)
    phase_a_table(a, opt)
    phase_b(a, opt)
    a(f""".section .rodata,"a"
.p2align 6
.amdhsa_kernel {KNAME}
  .amdhsa_next_free_vgpr 128
  .amdhsa_next_free_sgpr {98 if PROF else 96}
  .amdhsa_accum_offset 128
  .amdhsa_group_segment_fixed_size 0
  .amdhsa_kernarg_size 96
  .amdhsa_user_sgpr_count 2
  .amdhsa_user_sgpr_kernarg_segment_ptr 1
  .amdhsa_system_sgpr_workgroup_id_x 1
  .amdhsa_float_denorm_mode_32 3
  .amdhsa_dx10_clamp 0
.end_amdhsa_kernel""")
    open(opt.o, "w").write(a.text())
    print("wrote", opt.o, "lds", L_END)

if __name__ == "__main__":
    main()
```

```python
import argparse, struct

KNAME = "standalone__edge_featured_mpnn_gatedgcn__graph_kernel"
N, D, E = 10000, 64, 640000
NB, NPB = 250, 40
CH = 2560
GEN_OFF, G_OFF, GF_OFF, GRAN_OFF, REC_OFF, TOT_OFF = 0, 0x1000, 0x274000, 0x280000, 0x380000, 0xD80000
PROF_OFF = 0x1300000
NLOG2E = 0xBFB8AA3B
BIG, NBIG = 0x71800000, 0xF1800000
SHIFT = 60
C60 = (127 - SHIFT) << 23
EPS60 = struct.unpack("<I", struct.pack("<f", 1e-6 * 2.0 ** SHIFT))[0]
FSHIFT = struct.unpack("<I", struct.pack("<f", -float(SHIFT)))[0]
NWV = 16
POLL_LIMIT = 1 << 17
CHN = [0, 2, 1, 3]

SLOT_STR = 512
L_SLOT = 0
L_CNT = L_SLOT + (NPB + NWV) * SLOT_STR
L_ZREG = L_CNT + 256
L_FLAG = L_ZREG + 512
L_GCNT = L_FLAG + 4
L_ZEND = L_FLAG + 16
L_WCB = 29504
L_AP = 30080
L_U = L_AP + 48 * 272
L_SRC = L_U + 48 * 272
NSLOT = 250 * 32 + 320 + 64
L_E = L_SRC + NSLOT * 4
L_END = L_E + NSLOT * 8
A_HIST = L_SRC
A_OFFS = A_HIST + 1024
A_REC = A_OFFS + 1024
A_W = A_REC + CH * 16
WIMG = 64 * 144
A_X = A_W + 4 * WIMG
A_G = A_X + 48 * 144
assert A_G + 48 * 272 <= L_END <= 163840
assert all(x % 16 == 0 for x in (L_WCB, L_AP, L_U, L_SRC, L_E, A_REC, A_W, A_X, A_G))

SLA, TMP, INCE, APA = 88, 89, 90, 91
IDXA, IDXB = 92, 94
AC, A0, A1, ANX = 96, 100, 104, 108
XR = 112
QEND, QST = 116, 117
WC = 118
EB, EM, SRB, SLB = 120, 121, 122, 123
VPROF = 124
VI, VQ, VL = 125, 126, 127
S_TAG = 28
S_REC = 40
S_G = 44
M0, M1 = 48, 56
S_INV = 64
S_RB, S_MORE, S_P, S_TS, S_TE, S_N, S_SEGEND, S_REM = 68, 69, 70, 71, 72, 73, 74, 75
S_BLK, S_TAG8 = 76, 77
S_C60 = 78
P0M, P1M = 80, 88

class Asm:
    def __init__(self): self.l = []
    def __call__(self, s=""):
        self.l.extend(s.split("\n"))
    def text(self): return "\n".join(self.l) + "\n"

PROF = False
def stamp(a, idx):
    if PROF:
        a(f"    s_memrealtime s[96:97]")
        a(f"    s_waitcnt lgkmcnt(0)")
        a(f"    v_writelane_b32 v{VPROF}, s96, {idx}")

def cstamp(a, idx):
    if PROF:
        a(f"    s_memtime s[96:97]")
        a(f"    s_waitcnt lgkmcnt(0)")
        a(f"    v_writelane_b32 v{VPROF}, s96, {idx}")

DBG = False
def stamp_flush(a):
    if not PROF: return
    stamp(a, 9)
    if DBG:
        a(f"""    s_waitcnt vmcnt(0) lgkmcnt(0)
    v_readlane_b32 s30, v{VPROF}, 0
    v_readlane_b32 s31, v{VPROF}, 10
    v_readlane_b32 s32, v{VPROF}, 11
    s_nop 3
    s_not_b32 s30, s30
    s_sub_u32 s32, s32, s31
    v_writelane_b32 v{VPROF}, s30, 0
    v_writelane_b32 v{VPROF}, s32, 10
    s_mov_b64 exec, 0x7ff
    v_lshlrev_b32 v2, 2, v{VL}
    global_atomic_umax v2, v{VPROF}, s[24:25]
    s_waitcnt vmcnt(0)""")
        return
    a(f"""    s_waitcnt vmcnt(0) lgkmcnt(0)
    s_mov_b64 exec, 0xffff
    s_lshl_b32 s30, s2, 4
    s_add_u32 s30, s30, s3
    s_lshl_b32 s30, s30, 6
    s_add_u32 s30, s30, {PROF_OFF}
    v_lshl_add_u32 v2, v{VL}, 2, s30
    global_store_dword v2, v{VPROF}, s[26:27]
    s_waitcnt vmcnt(0)""")

def dpp_scan(a, v):
    for sh in (1, 2, 4, 8):
        a(f"    s_nop 1")
        a(f"    v_add_u32_dpp v{v}, v{v}, v{v} row_shr:{sh} row_mask:0xf bank_mask:0xf bound_ctrl:0")
    a("    s_nop 1")
    a(f"    v_add_u32_dpp v{v}, v{v}, v{v} row_bcast:15 row_mask:0xa bank_mask:0xf")
    a("    s_nop 1")
    a(f"    v_add_u32_dpp v{v}, v{v}, v{v} row_bcast:31 row_mask:0xc bank_mask:0xf")
    a("    s_nop 1")

def entry(a, opt):
    a(f"""
.globl {KNAME}
.p2align 8
.type {KNAME},@function
{KNAME}:
    s_cmp_ge_u32 s2, {NB}
    s_cbranch_scc1 L_END
    s_load_dwordx16 s[4:19], s[0:1], 0
    s_load_dwordx8 s[20:27], s[0:1], 64
    v_lshrrev_b32 v1, 6, v0
    v_and_b32 v{VL}, 63, v0
    v_readfirstlane_b32 s3, v1
    v_lshrrev_b32 v{VQ}, 4, v{VL}
    v_and_b32 v{VI}, 15, v{VL}
    v_lshlrev_b32 v{IDXA+1}, 4, v{VI}
    v_mov_b32 v{IDXB+1}, v{IDXA+1}
    v_and_b32 v2, 3, v{VI}                  ; r
    v_lshrrev_b32 v3, 2, v{VI}              ; e
    v_cmp_eq_u32 vcc, v2, v{VQ}
    v_lshlrev_b32 v4, 3, v3
    v_add_u32 v4, {L_E}, v4
    v_mov_b32 v5, {L_ZREG}
    v_cndmask_b32 v{EB}, v5, v4, vcc
    v_mov_b32 v5, 32
    v_cndmask_b32 v{EM}, 0, v5, vcc
    v_lshlrev_b32 v{INCE}, 3, v{EM}
    v_cmp_eq_u32 vcc, v3, v{VQ}
    v_mov_b32 v5, 0x3f80
    v_lshrrev_b32 v6, 1, v2
    v_lshlrev_b32 v6, 4, v6
    v_lshlrev_b32 v5, v6, v5
    v_cndmask_b32 v5, 0, v5, vcc
    v_and_b32 v6, 1, v2                     ; r%2: 0 -> first register, 1 -> second
    v_cmp_eq_u32 vcc, 0, v6
    v_lshlrev_b32 v{APA}, 4, v{VI}
    v_add_u32 v{APA}, {L_AP}, v{APA}
    v_cndmask_b32 v{A0+2}, 0, v5, vcc
    v_cndmask_b32 v{A0+3}, v5, 0, vcc
    v_mov_b32 v{A1+2}, v{A0+2}
    v_mov_b32 v{A1+3}, v{A0+3}
    v_lshlrev_b32 v{SLB}, 3, v{VL}
    v_lshlrev_b32 v{SRB}, 2, v{VQ}
    v_add_u32 v{SRB}, {L_SRC}, v{SRB}
    s_mov_b32 s{S_RB}, 0
    s_mov_b32 s{S_C60}, {C60:#x}
    s_mov_b32 s{S_C60+1}, {C60:#x}
    s_cmp_eq_u32 s3, 15
    s_cselect_b32 s{S_INV+1}, 0xffff0000, 0
    s_cselect_b32 s{S_INV+3}, -1, 0
    s_mov_b32 s{S_INV}, 0
    s_mov_b32 s{S_INV+2}, 0""")
    if PROF:
        a(f"    v_mov_b32 v{VPROF}, 0")
    stamp(a, 0)
    a(f"""    s_cmp_ge_u32 s3, 10
    s_cbranch_scc1 L_TABLE""")

def gran_addr(a, dst=2):
    a(f"""    s_and_b32 s30, s2, 7
    s_lshl_b32 s30, s30, 5
    s_lshr_b32 s31, s2, 3
    s_or_b32 s31, s30, s31                  ; h
    s_lshr_b32 s30, s31, 3
    s_lshl_b32 s30, s30, 15
    s_and_b32 s31, s31, 7
    s_lshl_b32 s31, s31, 4
    s_add_u32 s30, s30, s31
    s_lshl_b32 s31, s3, 11
    s_add_u32 s30, s30, s31
    s_add_u32 s30, s30, {GRAN_OFF}
    v_lshl_add_u32 v{dst}, v{VQ}, 9, s30""")

VGA, VGF, VONE, VCA = 96, 97, 98, 99

def late_setup(a, opt):
    a(f"""    s_add_u32 s{S_REC}, s26, {REC_OFF}
    s_addc_u32 s{S_REC+1}, s27, 0
    s_mov_b32 s{S_REC+2}, {E*opt.rec}
    s_mov_b32 s{S_REC+3}, 0x20000
    s_add_u32 s{S_G}, s26, {G_OFF}
    s_addc_u32 s{S_G+1}, s27, 0
    s_or_b32 s{S_G+1}, s{S_G+1}, 0x01000000  ; stride 256
    s_mov_b32 s{S_G+2}, {N+1}
    s_mov_b32 s{S_G+3}, 0x20000""")
    gran_addr(a, VGA)
    a(f"""    s_lshl_b32 s30, s3, 8
    s_add_u32 s30, s30, {GF_OFF}
    v_lshl_add_u32 v{VGF}, v{VI}, 4, s30
    v_mov_b32 v{VONE}, 1
    v_lshlrev_b32 v{VCA}, 2, v{VL}""")

def phase_a_bin(a, opt):
    st = opt.store
    QR = lambda j: 16 + 4 * j
    a(f"""    ; ================= phase A, binning waves (tid < 640)
    s_mul_i32 s30, s2, {CH*4}
    v_lshlrev_b32 v2, 4, v0
    v_add_u32 v3, s30, v2
    s_lshl_b32 s31, s30, 1
    v_lshlrev_b32 v4, 5, v0
    v_add_u32 v4, s31, v4
    s_mul_i32 s32, s2, {NPB*128}
    v_add_u32 v64, s32, v2
    v_mov_b32 v6, 0
    v_lshlrev_b32 v7, 2, v0
    s_waitcnt lgkmcnt(0)""")
    if opt.wsbase:
        a(f"    s_add_u32 s26, s26, {opt.wsbase}")
        a(f"    s_addc_u32 s27, s27, 0")
    stamp(a, 1)
    a(f"""    global_load_dwordx4 v[8:11], v3, s[10:11]
    s_load_dwordx2 s[{S_TAG}:{S_TAG+1}], s[26:27], {GEN_OFF}
    s_cmp_ge_u32 s3, 4
    s_cbranch_scc1 L_NOZH
    ds_write_b32 v7, v6 offset:{A_HIST}
L_NOZH:
    s_cmp_lg_u32 s3, 4
    s_cbranch_scc1 L_NOZC
    v_mov_b32 v32, 0
    v_mov_b32 v33, 0
    v_mov_b32 v34, 0
    v_mov_b32 v35, 0
    v_lshlrev_b32 v36, 4, v{VL}
    v_cmp_gt_u32 vcc, {(L_ZEND-L_CNT)//16}, v{VL}
    s_and_saveexec_b64 s[34:35], vcc
    ds_write_b128 v36, v[32:35] offset:{L_CNT}
    s_mov_b64 exec, s[34:35]
L_NOZC:""")
    late_setup(a, opt)
    a(f"""    ; addresses of the copy-out and of the run table entry (bucket slot h = 64*wave + lane, waves 0..3)
    s_mul_i32 s36, s2, {CH*opt.rec}
    s_mov_b32 s38, {A_REC}
    v_lshl_add_u32 v56, v0, 4, s38
    v_mad_u32_u24 v57, v0, {opt.rec}, s36
    v_add_u32 v58, {640*opt.rec}, v57
    v_add_u32 v59, {2*640*opt.rec}, v57
    v_add_u32 v60, {3*640*opt.rec}, v57
    s_and_b32 s37, s3, 3
    s_lshl_b32 s30, s37, 8
    v_lshl_add_u32 v61, v{VL}, 2, s30       ; 4*h
    s_lshl_b32 s37, s37, 18
    s_lshl_b32 s30, s2, 7
    s_add_u32 s37, s37, s30
    s_add_u32 s37, s37, {GRAN_OFF}
    v_lshrrev_b32 v62, 3, v{VL}
    v_lshl_add_u32 v62, v62, 15, s37
    v_and_b32 v63, 7, v{VL}
    v_lshl_add_u32 v62, v63, 4, v62
    v_lshlrev_b32 v63, 4, v{VL}
    s_mul_i32 s39, s2, {CH}
    s_mov_b32 s33, 52429
    s_movk_i32 s34, 0xffd8                  ; -40
    s_movk_i32 s37, 0xfc04                  ; -1020
    s_waitcnt lgkmcnt(0)
    s_add_u32 s{S_TAG}, s{S_TAG}, 1
    s_addc_u32 s{S_TAG+1}, s{S_TAG+1}, 0
    s_and_b32 s{S_TAG8}, s{S_TAG}, 0xff
    s_lshl_b32 s35, s{S_TAG8}, 24
    v_mov_b32 v53, s{S_TAG}
    v_mov_b32 v54, s{S_TAG+1}
    v_mov_b32 v55, s{S_TAG}
    s_barrier                               ; #1
    global_load_dwordx4 v[12:15], v3, s[8:9]
    global_load_dwordx4 v[16:19], v4, s[6:7]
    global_load_dwordx4 v[24:27], v4, s[6:7] offset:16
    s_waitcnt vmcnt(3)""")
    stamp(a, 2)
    for j in range(4):
        a(f"    v_mul_u32_u24 v{40+j}, s33, v{8+j}")
        a(f"    v_lshrrev_b32 v{32+j}, 21, v{40+j}          ; bucket b")
        a(f"    v_lshrrev_b32 v{40+j}, 24, v{40+j}          ; b / 8")
        a(f"    v_mad_i32_i24 v{8+j}, v{32+j}, s34, v{8+j}")
        a(f"    v_lshlrev_b32 v{32+j}, 7, v{32+j}")
        a(f"    v_mad_i32_i24 v{32+j}, v{40+j}, s37, v{32+j}  ; 4 * ((b % 8) * 32 + b / 8): buckets of one die are adjacent")
        a(f"    ds_add_rtn_u32 v{36+j}, v{32+j}, v{VONE} offset:{A_HIST}")
    for j in range(4):
        a(f"    v_lshl_or_b32 v{8+j}, v{8+j}, 2, s35")
    a(f"""    s_waitcnt lgkmcnt(0)
    s_barrier                               ; #2
    ds_read_b128 v[40:43], v63 offset:{A_HIST}
    s_waitcnt lgkmcnt(0)
    v_add_u32 v44, v40, v41
    v_add_u32 v45, v44, v42
    v_add_u32 v46, v45, v43
    v_mov_b32 v47, v46""")
    dpp_scan(a, 47)
    a(f"""    v_sub_u32 v48, v47, v46
    v_add_u32 v49, v48, v40
    v_add_u32 v50, v48, v44
    v_add_u32 v51, v48, v45
    ds_write_b128 v63, v[48:51] offset:{A_OFFS}
    s_waitcnt vmcnt(0)""")
    for j in range(4):
        a(f"    v_lshl_or_b32 v{12+j}, v{12+j}, 8, v{8+j}")
    a("    v_pk_mov_b32 v[20:21], v[18:19], v[18:19] op_sel:[0,1]")
    a("    v_pk_mov_b32 v[28:29], v[26:27], v[26:27] op_sel:[0,1]")
    for j in range(4):
        a(f"    v_mov_b32 v{QR(j)+2}, v{12+j}")
        if opt.rec == 16:
            a(f"    v_bitop3_b32 v{QR(j)+3}, v{QR(j)}, v{12+j}, s{S_TAG} bitop3:0x96")
    a("    s_waitcnt lgkmcnt(0)")
    for j in range(4):
        a(f"    ds_read_b32 v{44+j}, v{32+j} offset:{A_OFFS}")
    a(f"""    ds_read_b32 v52, v61 offset:{A_OFFS}
    ds_read_b32 v48, v61 offset:{A_HIST}
    s_waitcnt lgkmcnt(2)""")
    for j in range(4):
        a(f"    v_add_u32 v{44+j}, v{44+j}, v{36+j}")
        a(f"    v_lshl_add_u32 v{44+j}, v{44+j}, 4, s38")
        a(f"    ds_write_b128 v{44+j}, v[{QR(j)}:{QR(j)+3}]")
    a(f"""    s_add_u32 s30, s26, {REC_OFF}
    s_addc_u32 s31, s27, 0
    s_waitcnt lgkmcnt(0)
    s_barrier                               ; #3""")
    stamp(a, 3)
    if opt.rec == 16:
        for j in range(4):
            a(f"    ds_read_b128 v[{32+4*j}:{35+4*j}], v56 offset:{j*10240}")
    else:
        for j in range(4):
            a(f"    ds_read_b96 v[{32+4*j}:{34+4*j}], v56 offset:{j*10240}")
    a(f"""    v_add_u32 v52, s39, v52
    v_lshl_or_b32 v52, v48, 20, v52""")
    for j in range(4):
        a(f"    s_waitcnt lgkmcnt({3-j})")
        if opt.rec == 16:
            a(f"    global_store_dwordx4 v{57+j}, v[{32+4*j}:{35+4*j}], s[30:31] {st}")
        else:
            a(f"    global_store_dwordx3 v{57+j}, v[{32+4*j}:{34+4*j}], s[30:31] {st}")
    a(f"""    s_cmp_ge_u32 s3, 5
    s_cbranch_scc1 L_NOXR
    global_load_dwordx4 v[{XR}:{XR+3}], v64, s[4:5]
""" + (f"    global_load_dword v{TMP}, v64, s[22:23]    ; touches the output page early\n" if opt.otouch else "") + "L_NOXR:")
    if opt.rec == 12:
        a("    s_waitcnt vmcnt(0)")
    a(f"""    s_barrier                               ; #4
    s_cmp_ge_u32 s3, 4
    s_cbranch_scc1 L_PHASEB
    global_store_dwordx4 v62, v[52:55], s[26:27] {st}
    s_branch L_PHASEB""")

def tile_mfma(a, acc0, wreg, xreg):
    for mat in range(2):
        acc = acc0 + 4 * mat
        r0, r1 = wreg + mat * 8, wreg + mat * 8 + 4
        a(f"    v_mfma_f32_16x16x32_bf16 v[{acc}:{acc+3}], v[{r0}:{r0+3}], v[{xreg}:{xreg+3}], 0")
        a(f"    v_mfma_f32_16x16x32_bf16 v[{acc}:{acc+3}], v[{r1}:{r1+3}], v[{xreg+4}:{xreg+7}], v[{acc}:{acc+3}]")

def phase_a_table(a, opt):
    st = opt.store
    wp = [14, 20, 12, 18]
    a(f"""L_TABLE:
    s_sub_u32 s36, s3, 10                   ; u
    s_and_b32 s37, s36, 1
    s_add_u32 s38, s37, 6
    v_lshlrev_b32 v2, 4, v{VL}
    s_lshl_b32 s30, s36, 10
    v_add_u32 v3, s30, v2                   ; piece u
    s_lshl_b32 s31, s38, 10
    v_add_u32 v4, s31, v2                   ; piece 6/7
    s_mul_i32 s32, s2, {NPB*128}
    v_add_u32 v5, s32, v3                   ; x offset
    v_lshrrev_b32 v6, 3, v{VL}
    v_mul_u32_u24 v6, 144, v6
    v_and_b32 v7, 7, v{VL}
    v_lshl_add_u32 v6, v7, 4, v6
    s_mul_i32 s33, s36, {8*144}
    s_add_u32 s33, s33, {A_W}
    v_add_u32 v48, s33, v6
    s_mul_i32 s33, s38, {8*144}
    s_add_u32 s33, s33, {A_W}
    v_add_u32 v49, s33, v6
    v_lshrrev_b32 v50, 1, v{VQ}
    v_and_b32 v51, 1, v{VQ}
    v_lshl_or_b32 v50, v51, 1, v50
    v_lshl_add_u32 v50, v{VI}, 2, v50
    v_lshlrev_b32 v50, 1, v50
    s_waitcnt lgkmcnt(0)""")
    if opt.wsbase:
        a(f"    s_add_u32 s26, s26, {opt.wsbase}")
        a(f"    s_addc_u32 s27, s27, 0")
    a(f"""    s_load_dwordx2 s[{S_TAG}:{S_TAG+1}], s[26:27], {GEN_OFF}""")
    stamp(a, 1)
    late_setup(a, opt)
    a("    s_barrier")
    if opt.wlate:
        a("    s_barrier                               ; #2")
    for m in range(4):
        a(f"    global_load_dwordx4 v[{8+8*m}:{11+8*m}], v3, s[{wp[m]}:{wp[m]+1}]")
        a(f"    global_load_dwordx4 v[{12+8*m}:{15+8*m}], v4, s[{wp[m]}:{wp[m]+1}]")
    if opt.touch:
        a(f"""    ; touch the workspace pages used later (unused words or tag-checked records only)
    v_lshlrev_b32 v45, 21, v{VL}
    v_add_u32 v45, 0x200000, v45
    v_mov_b32 v46, 0x276000
    v_cmp_eq_u32 vcc, 0, v{VL}
    s_nop 1
    v_cndmask_b32 v45, v45, v46, vcc
    s_mov_b64 exec, 0x3f
    global_load_dword v{TMP}, v45, s[26:27] sc1
    s_mov_b64 exec, -1""")
    a(f"""    s_cmp_eq_u32 s36, 5
    s_cbranch_scc1 L_TWC0
    global_load_dwordx4 v[40:43], v5, s[4:5]
    s_branch L_TB
L_TWC0:
    global_load_ushort v40, v50, s[16:17]
    global_load_ushort v41, v50, s[16:17] offset:128
    global_load_ushort v42, v50, s[16:17] offset:256
    global_load_ushort v43, v50, s[16:17] offset:384
L_TB:""")
    if not opt.wlate:
        a("    s_barrier                               ; #2")
    a(f"""    s_barrier                               ; #3
    s_cmp_eq_u32 s36, 5
    s_cbranch_scc1 L_TWC
    s_waitcnt vmcnt(0)
    ds_write_b128 v48, v[40:43] offset:{A_X - A_W}
    s_branch L_TST
L_TWC:
    s_mov_b32 s33, {NLOG2E:#x}
    v_lshlrev_b32 v44, 3, v{VL}
    s_waitcnt vmcnt(0)
    v_lshlrev_b32 v40, 16, v40
    v_lshlrev_b32 v41, 16, v41
    v_lshlrev_b32 v42, 16, v42
    v_lshlrev_b32 v43, 16, v43
    v_mul_f32 v40, s33, v40
    v_mul_f32 v41, s33, v41
    v_mul_f32 v42, s33, v42
    v_mul_f32 v43, s33, v43
    v_cvt_pk_bf16_f32 v40, v40, v41
    v_cvt_pk_bf16_f32 v41, v42, v43
    ds_write_b64 v44, v[40:41] offset:{L_WCB}
L_TST:""")
    for m in range(4):
        a(f"    ds_write_b128 v48, v[{8+8*m}:{11+8*m}] offset:{m*WIMG}")
        a(f"    ds_write_b128 v49, v[{12+8*m}:{15+8*m}] offset:{m*WIMG}")
    a(f"""    ; tile job: nt = u/2, mt in {{2*(u%2), 2*(u%2)+1}}
    s_lshr_b32 s30, s36, 1                  ; nt
    s_lshl_b32 s31, s37, 1                  ; mt0
    s_lshl_b32 s32, s30, 4
    v_add_u32 v4, s32, v{VI}                ; node
    v_mul_u32_u24 v5, 144, v4
    v_lshl_add_u32 v5, v{VQ}, 4, v5
    v_add_u32 v5, {A_X}, v5
    v_lshrrev_b32 v6, 2, v{VI}
    v_lshl_add_u32 v6, v{VQ}, 3, v6
    v_mul_u32_u24 v6, 144, v6
    v_and_b32 v7, 3, v{VI}
    v_lshl_add_u32 v6, v7, 3, v6
    s_lshl_b32 s32, s31, 5
    s_add_u32 s32, s32, {A_W}
    v_add_u32 v6, s32, v6
    v_mul_u32_u24 v7, 272, v4
    v_lshl_add_u32 v50, v{VQ}, 4, v7
    s_lshl_b32 s32, s31, 6
    v_add_u32 v50, s32, v50
    v_add_u32 v51, {L_AP}, v50
    v_add_u32 v53, {L_U}, v50
    s_waitcnt lgkmcnt(0)
    s_add_u32 s{S_TAG}, s{S_TAG}, 1
    s_addc_u32 s{S_TAG+1}, s{S_TAG+1}, 0
    s_and_b32 s{S_TAG8}, s{S_TAG}, 0xff
    v_mov_b32 v54, {L_GCNT+4}
    v_mov_b32 v55, 1
    s_mov_b64 exec, 1
    ds_add_u32 v54, v55
    s_mov_b64 exec, -1
L_TSYNC:
    ds_read_b32 v55, v54
    s_waitcnt lgkmcnt(0)
    v_readfirstlane_b32 s30, v55
    s_nop 3
    s_cmp_lt_u32 s30, 6
    s_cbranch_scc1 L_TSYNC
    ds_read_b128 v[8:11], v5
    ds_read_b128 v[12:15], v5 offset:64""")
    def wfrags(first):
        for m in range(2):
            for mat in range(2):
                for ks in range(2):
                    r = 16 + m * 16 + mat * 8 + ks * 4
                    for h in range(2):
                        a(f"    ds_read_b64_tr_b16 v[{r+2*h}:{r+2*h+1}], v6 offset:{(first+mat)*WIMG + ks*4608 + h*576 + m*32}")
    wfrags(0)
    a(f"""    ; table row address of this lane: (40 w + node)*256 + (16 mt0 + 4 g)*4 ; rows >= 40 of the tile are not stored
    s_mul_i32 s31, s2, {NPB*256}
    s_add_u32 s31, s31, {G_OFF}
    v_lshlrev_b32 v55, 8, v4
    v_add_u32 v55, s31, v55
    v_lshl_add_u32 v55, v{VQ}, 4, v55
    s_and_b32 s30, s36, 1
    s_lshl_b32 s30, s30, 7
    v_add_u32 v55, s30, v55
    v_cmp_gt_u32 s[34:35], {NPB}, v4
    s_mov_b32 s32, {NLOG2E:#x}
    s_mov_b32 s33, {BIG:#x}
    v_mov_b32 v54, {NBIG:#x}
    s_waitcnt lgkmcnt(0)""")
    for m in range(2):
        tile_mfma(a, 56 + 8 * m, 16 + 16 * m, 8)
    wfrags(2)
    a("    s_mov_b32 s30, 0x8000")
    for m in range(2):
        accb, accv = 56 + 8 * m, 60 + 8 * m
        o = 72 + 4 * m
        for r in range(4):
            a(f"    v_mul_f32 v{accb+r}, s32, v{accb+r}")
            a(f"    v_med3_f32 v{accb+r}, v{accb+r}, v54, s33")
        a(f"    v_cvt_pk_bf16_f32 v{o}, v{accb}, v{accb+1}")
        a(f"    v_cvt_pk_bf16_f32 v{o+1}, v{accb+2}, v{accb+3}")
        for p in range(2):
            lo, hi = accv + 2 * p, accv + 2 * p + 1
            a(f"    v_cvt_pk_bf16_f32 v80, v{lo}, v{lo}")
            a(f"    v_and_b32 v80, 0xffff, v80")
            a(f"    v_and_b32 v81, 0x7fffffff, v{hi}")
            a(f"    v_and_b32 v{hi}, 0x80000000, v{hi}")
            a(f"    v_sub_u32 v81, v81, v80")
            a(f"    v_add_u32 v81, s30, v81")
            a(f"    v_max_i32 v81, 0, v81")
            a(f"    v_and_b32 v81, 0xffff0000, v81")
            a(f"    v_or3_b32 v{o+2+p}, v81, v80, v{hi}")
    a(f"""    s_barrier
    s_mov_b64 exec, s[34:35]
    global_store_dwordx4 v55, v[72:75], s[26:27] offset:0 {st}
    global_store_dwordx4 v55, v[76:79], s[26:27] offset:64 {st}
    s_mov_b64 exec, -1""")
    a(f"""    ; padding row N of the table (gate saturates, value 0): last workgroup, wave u = 5
    s_cmp_lg_u32 s2, {NB-1}
    s_cbranch_scc1 L_TAU
    s_cmp_lg_u32 s36, 5
    s_cbranch_scc1 L_TAU
    v_mov_b32 v80, 0x71807180
    v_mov_b32 v81, v80
    v_mov_b32 v82, 0
    v_mov_b32 v83, 0
    v_lshlrev_b32 v7, 4, v{VL}
    v_add_u32 v7, {N*256 + G_OFF}, v7
    s_mov_b64 exec, 0xffff
    global_store_dwordx4 v7, v[80:83], s[26:27] {st}
    s_mov_b64 exec, -1
L_TAU:
    s_waitcnt lgkmcnt(0)""")
    for m in range(2):
        tile_mfma(a, 56 + 8 * m, 16 + 16 * m, 8)
    a(f"""    s_mov_b32 s34, {FSHIFT:#x}
    s_nop 6""")
    for m in range(2):
        acca, accu = 56 + 8 * m, 60 + 8 * m
        a(f"    ds_write_b128 v53, v[{accu}:{accu+3}] offset:{m*64}")
        for r in range(4):
            a(f"    v_mul_f32 v{acca+CHN[r]}, s32, v{acca+CHN[r]}")
            a(f"    v_med3_f32 v{acca+CHN[r]}, v{acca+CHN[r]}, v54, s33")
            a(f"    v_add_f32 v{16+r}, s34, v{acca+CHN[r]}")
        a(f"    ds_write_b128 v51, v[16:19] offset:{m*64}")
    a(f"""    ; the table rows of this workgroup are complete: the last table wave publishes the flag
    v_mov_b32 v16, {L_GCNT}
    v_mov_b32 v17, 1
    s_waitcnt vmcnt(0)
    s_mov_b64 exec, 1
    ds_add_rtn_u32 v18, v16, v17
    s_waitcnt lgkmcnt(0)
    v_readfirstlane_b32 s30, v18
    s_mov_b64 exec, -1
    s_cmp_lg_u32 s30, 5
    s_cbranch_scc1 L_PHASEB
    s_lshl_b32 s30, s2, 4
    s_add_u32 s30, s30, {GF_OFF}
    v_mov_b32 v16, s30
    v_mov_b32 v18, s{S_TAG}
    v_mov_b32 v19, s{S_TAG+1}
    s_mov_b64 exec, 1
    global_store_dwordx2 v16, v[18:19], s[26:27] {st}
    s_mov_b64 exec, -1""")

def phase_b(a, opt):
    GR = lambda j: 8 + 4 * j
    rec = lambda h, j: 24 + 16 * h + 4 * j
    RANK, DL = 56, 64
    msk = lambda h, j: (M0 if h == 0 else M1) + 2 * j
    pnd = lambda h, j: (P0M if h == 0 else P1M) + 2 * j
    inv = lambda j: S_INV + (2 if j >= 2 else 0)
    a("L_PHASEB:")
    stamp(a, 4)
    a(f"""    ; ================= phase B: wait for the run table entries of this bucket
    v_lshlrev_b32 v2, 3, v{VL}
    ds_read_b64 v[{WC}:{WC+1}], v2 offset:{L_WCB}""")
    a(f"""    s_mov_b32 s33, 0
    s_mov_b32 s38, s{S_TAG+1}
    s_mov_b32 s39, s{S_TAG}""")
    for j in range(4):
        a(f"    s_not_b64 s[{pnd(0,j)}:{pnd(0,j)+1}], s[{inv(j)}:{inv(j)+1}]")
    a("L_POLL:")
    for j in range(4):
        p = pnd(0, j)
        a(f"    s_mov_b64 exec, s[{p}:{p+1}]")
        a(f"    s_cbranch_execz L_NP{j}")
        a(f"    global_load_dwordx4 v[{GR(j)}:{GR(j)+3}], v{VGA}, s[26:27] offset:{128*j} sc1")
        a(f"L_NP{j}:")
    a("    s_waitcnt vmcnt(0)")
    for j in range(4):
        p = pnd(0, j)
        a(f"    s_mov_b64 exec, s[{p}:{p+1}]")
        a(f"    v_cmp_eq_u32 vcc, s{S_TAG}, v{GR(j)+1}")
        a(f"    v_cmp_eq_u64 s[34:35], v[{GR(j)+2}:{GR(j)+3}], s[38:39]")
        a(f"    s_nop 0")
        a(f"    s_and_b64 s[34:35], s[34:35], vcc")
        a(f"    s_andn2_b64 s[{p}:{p+1}], s[{p}:{p+1}], s[34:35]")
    a(f"""    s_mov_b64 exec, -1
    s_or_b64 s[34:35], s[{pnd(0,0)}:{pnd(0,0)+1}], s[{pnd(0,1)}:{pnd(0,1)+1}]
    s_or_b64 s[36:37], s[{pnd(0,2)}:{pnd(0,2)+1}], s[{pnd(0,3)}:{pnd(0,3)+1}]
    s_or_b64 s[34:35], s[34:35], s[36:37]
    s_cbranch_scc0 L_READY
    s_add_u32 s33, s33, 1
    s_cmp_ge_u32 s33, {POLL_LIMIT}
    s_cbranch_scc1 L_END
    s_sleep {opt.sleep}
    s_branch L_POLL
L_READY:""")
    stamp(a, 5)
    a(f"""L_ROUND:
    v_add_u32 v2, s{S_RB}, v{VI}
    v_add_u32 v3, 16, v2
    v_mul_u32_u24 v4, {opt.rec}, v2""")
    for j in range(4):
        a(f"    v_lshrrev_b32 v{GR(j)+1}, 20, v{GR(j)}      ; count")
        a(f"    v_and_b32 v{GR(j)}, 0xfffff, v{GR(j)}")
        a(f"    v_cmp_gt_u32 s[{msk(0,j)}:{msk(0,j)+1}], v{GR(j)+1}, v2")
        a(f"    v_cmp_gt_u32 s[{msk(1,j)}:{msk(1,j)+1}], v{GR(j)+1}, v3")
        if opt.rec == 16:
            a(f"    v_lshl_add_u32 v{GR(j)+2}, v{GR(j)}, 4, v4")
        else:
            a(f"    v_mad_u32_u24 v{GR(j)+2}, v{GR(j)}, 12, v4")
    a(f"    s_add_u32 s30, s{S_RB}, 32")
    for j in range(4):
        a(f"    s_andn2_b64 s[{msk(0,j)}:{msk(0,j)+1}], s[{msk(0,j)}:{msk(0,j)+1}], s[{inv(j)}:{inv(j)+1}]")
        a(f"    s_mov_b64 s[{pnd(0,j)}:{pnd(0,j)+1}], s[{msk(0,j)}:{msk(0,j)+1}]")
        a(f"    s_andn2_b64 s[{msk(1,j)}:{msk(1,j)+1}], s[{msk(1,j)}:{msk(1,j)+1}], s[{inv(j)}:{inv(j)+1}]")
        a(f"    s_mov_b64 s[{pnd(1,j)}:{pnd(1,j)+1}], s[{msk(1,j)}:{msk(1,j)+1}]")
        a(f"    s_cbranch_scc0 L_NMORE{j}")
        a(f"    s_mov_b64 exec, s[{msk(1,j)}:{msk(1,j)+1}]")
        a(f"    v_cmp_lt_u32 vcc, s30, v{GR(j)+1}")
        a(f"    s_mov_b64 exec, -1")
        a(f"    s_cmp_eq_u64 vcc, 0")
        a(f"    s_cbranch_scc1 L_NMORE{j}")
        a(f"    v_mov_b32 v5, {L_FLAG}")
        a(f"    v_mov_b32 v6, 1")
        a(f"    ds_write_b32 v5, v6")
        a(f"L_NMORE{j}:")
    if opt.rec == 16:
        a(f"""    s_mov_b32 s33, 0
L_RLOAD:""")
        for h in range(2):
            for j in range(4):
                p = pnd(h, j)
                a(f"    s_cmp_eq_u64 s[{p}:{p+1}], 0")
                a(f"    s_cbranch_scc1 L_NL{h}{j}")
                a(f"    s_mov_b64 exec, s[{p}:{p+1}]")
                off = " offset:256" if h else ""
                a(f"    buffer_load_dwordx4 v[{rec(h,j)}:{rec(h,j)+3}], v{GR(j)+2}, s[{S_REC}:{S_REC+3}], 0 offen{off} {opt.hload}")
                a(f"L_NL{h}{j}:")
        a("    s_waitcnt vmcnt(0)")
        for h in range(2):
            for j in range(4):
                p = pnd(h, j)
                r = rec(h, j)
                a(f"    s_cmp_eq_u64 s[{p}:{p+1}], 0")
                a(f"    s_cbranch_scc1 L_NC{h}{j}")
                a(f"    s_mov_b64 exec, s[{p}:{p+1}]")
                a(f"    v_bitop3_b32 v5, v{r}, v{r+2}, v{r+3} bitop3:0x96")
                a(f"    v_cmp_eq_u32_sdwa s[34:35], v{r+2}, s{S_TAG8} src0_sel:BYTE_3 src1_sel:DWORD")
                a(f"    v_cmp_eq_u32 vcc, s{S_TAG}, v5")
                a(f"    s_nop 0")
                a(f"    s_and_b64 s[34:35], s[34:35], vcc")
                a(f"    s_andn2_b64 s[{p}:{p+1}], s[{p}:{p+1}], s[34:35]")
                a(f"L_NC{h}{j}:")
        a(f"    s_mov_b64 exec, -1")
        a(f"    s_or_b64 s[34:35], s[{pnd(0,0)}:{pnd(0,0)+1}], s[{pnd(0,1)}:{pnd(0,1)+1}]")
        for h in range(2):
            for j in range(4):
                if (h, j) in ((0, 0), (0, 1)): continue
                a(f"    s_or_b64 s[34:35], s[34:35], s[{pnd(h,j)}:{pnd(h,j)+1}]")
        a(f"""    s_cbranch_scc0 L_HAVE
    s_add_u32 s33, s33, 1
    s_cmp_ge_u32 s33, {POLL_LIMIT}
    s_cbranch_scc1 L_END
    s_sleep {opt.sleep}
    s_branch L_RLOAD
L_HAVE:""")
    else:
        for h in range(2):
            for j in range(4):
                p = msk(h, j)
                if h:
                    a(f"    s_cmp_eq_u64 s[{p}:{p+1}], 0")
                    a(f"    s_cbranch_scc1 L_NL{h}{j}")
                a(f"    s_mov_b64 exec, s[{p}:{p+1}]")
                off = " offset:192" if h else ""
                a(f"    buffer_load_dwordx3 v[{rec(h,j)}:{rec(h,j)+2}], v{GR(j)+2}, s[{S_REC}:{S_REC+3}], 0 offen{off} {opt.hload}")
                if h:
                    a(f"L_NL{h}{j}:")
        a("    s_mov_b64 exec, -1")
        a("    s_waitcnt vmcnt(0)")
    stamp(a, 6)
    a(f"""    ; table-row flags of this wave's 16 producers: loaded now, checked before the first gather
    global_load_dwordx2 v[22:23], v{VGF}, s[26:27] sc1""")
    for h in range(2):
        for j in range(4):
            m = msk(h, j)
            if h == 1:
                a(f"    s_cmp_eq_u64 s[{m}:{m+1}], 0")
                a(f"    s_cbranch_scc1 L_NB1R{j}")
            a(f"    s_mov_b64 exec, s[{m}:{m+1}]")
            a(f"    v_and_b32 v{DL+4*h+j}, 0xff, v{rec(h,j)+2}")
            a(f"    ds_add_rtn_u32 v{RANK+4*h+j}, v{DL+4*h+j}, v{VONE} offset:{L_CNT}")
            if h == 1:
                a(f"L_NB1R{j}:")
    a(f"""    s_mov_b64 exec, -1
    v_mov_b32 v6, {L_FLAG}
    v_cmp_gt_u32 vcc, {NPB}, v{VL}
    s_waitcnt lgkmcnt(0)
    s_barrier                               ; #5""")
    stamp(a, 12)
    a(f"""    ds_read_b32 v5, v{VCA} offset:{L_CNT}
    ds_read_b32 v6, v6
    s_waitcnt lgkmcnt(0)
    v_add_u32 v4, 7, v5
    v_lshrrev_b32 v4, 3, v4
    v_max_u32 v4, 1, v4
    v_cndmask_b32 v4, 0, v4, vcc
    v_readfirstlane_b32 s{S_MORE}, v6
    v_mov_b32 v{QEND}, v4""")
    dpp_scan(a, QEND)
    stamp(a, 13)
    a(f"""    v_sub_u32 v{QST}, v{QEND}, v4
    v_readlane_b32 s{S_P}, v{QEND}, 63
    v_lshlrev_b32 v3, 3, v{QST}
    s_mov_b32 s30, {L_SRC}
    s_mov_b32 s31, {L_E}""")
    for j in range(4):
        a(f"    ds_bpermute_b32 v{8+j}, v{DL+j}, v3")
    for j in range(4):
        a(f"    s_cmp_eq_u64 s[{M1+2*j}:{M1+2*j+1}], 0")
        a(f"    s_cbranch_scc1 L_NB1P{j}")
        a(f"    ds_bpermute_b32 v{12+j}, v{DL+4+j}, v3")
        a(f"L_NB1P{j}:")
    a(f"""    ; padding slots: waves 0..4 take 8 nodes each, lane = (node, slot); wave 5 fills the tail
    s_cmp_ge_u32 s3, 5
    s_cbranch_scc1 L_NOPLK
    s_lshl_b32 s32, s3, 3
    v_lshrrev_b32 v16, 3, v{VL}
    v_add_u32 v16, s32, v16
    v_lshlrev_b32 v16, 2, v16               ; 4*node
    v_add_u32 v17, v3, v5
    v_lshlrev_b32 v18, 3, v{QEND}
    ds_bpermute_b32 v17, v16, v17
    ds_bpermute_b32 v18, v16, v18
L_NOPLK:
    s_mul_i32 s{S_TS}, s{S_P}, s3
    s_lshr_b32 s{S_TS}, s{S_TS}, 4
    s_add_u32 s32, s3, 1
    s_mul_i32 s{S_TE}, s{S_P}, s32
    s_lshr_b32 s{S_TE}, s{S_TE}, 4
    v_cmp_ge_u32 vcc, s{S_TS}, v{QEND}
    s_waitcnt lgkmcnt(0)
    s_bcnt1_i32_b64 s{S_N}, vcc""")
    for h in range(2):
        for j in range(4):
            m = msk(h, j)
            r = rec(h, j)
            if h == 1:
                a(f"    s_cmp_eq_u64 s[{m}:{m+1}], 0")
                a(f"    s_cbranch_scc1 L_NB1S{j}")
            a(f"    s_mov_b64 exec, s[{m}:{m+1}]")
            a(f"    v_add_u32 v{8+4*h+j}, v{8+4*h+j}, v{RANK+4*h+j}")
            a(f"    v_bfe_u32 v{r+2}, v{r+2}, 8, 16")
            a(f"    v_lshl_add_u32 v19, v{8+4*h+j}, 2, s30")
            a(f"    v_lshl_add_u32 v21, v{8+4*h+j}, 3, s31")
            a(f"    ds_write_b32 v19, v{r+2}")
            a(f"    ds_write_b64 v21, v[{r}:{r+1}]")
            if h == 1:
                a(f"L_NB1S{j}:")
    stamp(a, 14)
    a(f"""    s_mov_b64 exec, -1
    v_mov_b32 v11, {N}
    v_mov_b32 v12, 0
    v_mov_b32 v13, 0
    s_cmp_gt_u32 s3, 5
    s_cbranch_scc1 L_NOPAD
    v_and_b32 v16, 7, v{VL}
    v_add_u32 v16, v17, v16
    v_cmp_lt_u32 vcc, v16, v18
    s_cmp_lt_u32 s3, 5
    s_cbranch_scc1 L_PADW
    s_lshl_b32 s32, s{S_P}, 3
    v_add_u32 v16, s32, v{VL}
    s_mov_b64 vcc, -1
L_PADW:
    v_lshl_add_u32 v14, v16, 2, s30
    v_lshl_add_u32 v15, v16, 3, s31
    s_mov_b64 exec, vcc
    ds_write_b32 v14, v11
    ds_write_b64 v15, v[12:13]
    s_mov_b64 exec, -1
L_NOPAD:
    v_readlane_b32 s{S_SEGEND}, v{QEND}, s{S_N}
    s_lshl_b32 s32, s{S_TS}, 5
    v_add_u32 v2, s32, v{SRB}
    s_lshl_b32 s32, s{S_TS}, 1
    v_mad_u32_u24 v3, v{EM}, s32, v{EB}
    s_mul_i32 s32, s{S_N}, 272
    v_add_u32 v{TMP}, s32, v{APA}
    s_add_u32 s32, s{S_N}, s3
    s_lshl_b32 s32, s32, 9
    v_add_u32 v{SLA}, s32, v{SLB}
    s_min_u32 s{S_SEGEND}, s{S_SEGEND}, s{S_TE}
    s_sub_u32 s{S_REM}, s{S_SEGEND}, s{S_TS}
    s_sub_u32 s{S_REM}, s{S_REM}, 1""")
    S = lambda k: 8 + 6 * (k % 8)
    Da, Db, T = 56, 60, 64
    NUM, DEN = 68, 72
    PA, PB_, UA, UB, SA, SB = 76, 78, 80, 82, 84, 86
    a(f"""    s_mov_b32 s33, 0
    s_cmp_eq_u32 s3, 15
    s_cselect_b32 s34, 0xfc00fc00, 0
    s_mov_b32 s35, s34
L_GPOLL:
    s_waitcnt vmcnt(0)
    v_cmp_eq_u64 s[36:37], v[22:23], s[{S_TAG}:{S_TAG+1}]
    s_nop 0
    s_or_b64 s[36:37], s[36:37], s[34:35]
    s_cmp_eq_u64 s[36:37], -1
    s_cbranch_scc1 L_GOK
    s_add_u32 s33, s33, 1
    s_cmp_ge_u32 s33, {POLL_LIMIT}
    s_cbranch_scc1 L_END
    s_sleep {opt.sleep}
    global_load_dwordx2 v[22:23], v{VGF}, s[26:27] sc1
    s_branch L_GPOLL
L_GOK:""")
    stamp(a, 15)
    a(f"""    s_waitcnt lgkmcnt(0)
    s_barrier                               ; #6""")
    stamp(a, 7)
    cstamp(a, 10)
    pairs = [IDXA, IDXB, 56, 58, 60, 62]
    for k in range(6):
        a(f"    ds_read_b32 v{pairs[k]}, v2 offset:{16*k}")
    a(f"""    ds_read_b128 v[{AC}:{AC+3}], v{TMP}
    ds_read_b128 v[{ANX}:{ANX+3}], v{TMP} offset:272
    ds_read_b64 v[{A0}:{A0+1}], v3
    ds_read_b64 v[{A1}:{A1+1}], v3 offset:32""")
    for k in range(4):
        a(f"    v_mov_b32 v{56+2*k+1}, v{IDXA+1}")
    for k in range(8):
        a(f"    v_pk_mov_b32 v[{S(k)}:{S(k)+1}], v[{WC}:{WC+1}], v[{WC}:{WC+1}] op_sel:[0,1]")
    for r in range(0, 8, 2):
        a(f"    v_pk_mov_b32 v[{NUM+r}:{NUM+r+1}], 0, 0")
    for k in range(6):
        a(f"    s_waitcnt lgkmcnt({9-k})")
        a(f"    buffer_load_dwordx4 v[{S(k)+2}:{S(k)+5}], v[{pairs[k]}:{pairs[k]+1}], s[{S_G}:{S_G+3}], 0 idxen offen {opt.gload}")
    a(f"""    s_cmp_ge_u32 s3, 5
    s_cbranch_scc1 L_NOSEG
    v_cvt_f32_u32 v76, s{S_P}
    v_rcp_f32 v76, v76
    v_lshlrev_b32 v77, 4, v{QST}
    v_add_u32 v77, 16, v77
    v_cvt_f32_u32 v77, v77
    v_lshlrev_b32 v78, 4, v{QEND}
    v_cvt_f32_u32 v78, v78
    v_add_f32 v77, -0.5, v77
    v_add_f32 v78, -0.5, v78
    v_mul_f32 v77, v77, v76
    v_mul_f32 v78, v78, v76
    v_cvt_u32_f32 v77, v77
    v_cvt_u32_f32 v78, v78
    v_lshrrev_b32 v4, 3, v0                 ; node
    v_sub_u32 v78, v78, v77
    v_add_u32 v78, 1, v78
    v_add_u32 v77, v77, v{VL}
    v_lshl_or_b32 v77, v78, 16, v77
    v_lshlrev_b32 v5, 2, v4
    ds_bpermute_b32 v5, v5, v77
    v_and_b32 v6, 7, v0
    v_lshlrev_b32 v6, 4, v6
    v_mul_u32_u24 v4, 272, v4
    v_lshl_add_u32 v4, v6, 1, v4
    v_add_u32 v4, {L_U}, v4
    s_waitcnt lgkmcnt(0)
    v_lshrrev_b32 v7, 16, v5
    v_and_b32 v5, 0xffff, v5
    v_lshl_add_u32 v5, v5, 9, v6
L_NOSEG:""")
    if opt.prio:
        a(f"    s_setprio 3")
        a(f"    s_sub_u32 s{S_BLK}, s{S_TE}, s{S_TS}")
    a(f"    s_waitcnt lgkmcnt(0)")
    a("L_LOOP:")
    for k in range(0, 8, 2):
        sa, sb = S(k), S(k + 1)
        pa, pb = S(k - 2), S(k - 1)
        a(f"""    s_waitcnt vmcnt({4 if opt.onewait else 5})
    v_mfma_f32_16x16x32_bf16 v[{Da}:{Da+3}], v[{A0}:{A0+3}], v[{sa}:{sa+3}], v[{AC}:{AC+3}]
    ds_read_b32 v{IDXA}, v2 offset:{16*(k+6)}
    ds_read_b32 v{IDXB}, v2 offset:{16*(k+7)}
    v_lshlrev_b32 v{T}, 16, v{sa+4}
    v_lshlrev_b32 v{T+1}, 16, v{sa+5}
    {"s_nop 0" if opt.onewait == 2 else ("" if opt.onewait else "s_waitcnt vmcnt(4)")}
    v_mfma_f32_16x16x32_bf16 v[{Db}:{Db+3}], v[{A1}:{A1+3}], v[{sb}:{sb+3}], v[{AC}:{AC+3}]
    v_lshlrev_b32 v{T+2}, 16, v{sb+4}
    v_lshlrev_b32 v{T+3}, 16, v{sb+5}
    s_sub_u32 s{S_REM}, s{S_REM}, 1
    ds_read_b64 v[{A0}:{A0+1}], v3 offset:{32*(k+2)}
    ds_read_b64 v[{A1}:{A1+1}], v3 offset:{32*(k+3)}""")
        for i in range(4):
            a(f"    v_exp_f32 v{Da+i}, v{Da+i} clamp")
        a(f"""    s_waitcnt lgkmcnt(2)
    buffer_load_dwordx4 v[{pa+2}:{pa+5}], v[{IDXA}:{IDXA+1}], s[{S_G}:{S_G+3}], 0 idxen offen {opt.gload}
    buffer_load_dwordx4 v[{pb+2}:{pb+5}], v[{IDXB}:{IDXB+1}], s[{S_G}:{S_G+3}], 0 idxen offen {opt.gload}""")
        for i in range(4):
            a(f"    v_exp_f32 v{Db+i}, v{Db+i} clamp")
        c = f"s[{S_C60}:{S_C60+1}]"
        a(f"""    v_pk_add_f32 v[{Da}:{Da+1}], v[{Da}:{Da+1}], {c}
    v_pk_add_f32 v[{Da+2}:{Da+3}], v[{Da+2}:{Da+3}], {c}
    v_pk_add_f32 v[{Db}:{Db+1}], v[{Db}:{Db+1}], {c}
    v_pk_add_f32 v[{Db+2}:{Db+3}], v[{Db+2}:{Db+3}], {c}
    v_pk_mul_f32 v[{PA}:{PA+1}], v[{Da}:{Da+1}], v[{Db}:{Db+1}]
    v_pk_mul_f32 v[{PB_}:{PB_+1}], v[{Da+2}:{Da+3}], v[{Db+2}:{Db+3}]
    v_pk_mul_f32 v[{UA}:{UA+1}], v[{T}:{T+1}], v[{Db}:{Db+1}]
    v_rcp_f32 v{PA}, v{PA}
    v_rcp_f32 v{PA+1}, v{PA+1}
    v_pk_mul_f32 v[{UB}:{UB+1}], v[{sa+4}:{sa+5}], v[{Db+2}:{Db+3}]
    v_rcp_f32 v{PB_}, v{PB_}
    v_rcp_f32 v{PB_+1}, v{PB_+1}
    v_pk_fma_f32 v[{UA}:{UA+1}], v[{T+2}:{T+3}], v[{Da}:{Da+1}], v[{UA}:{UA+1}]
    v_pk_fma_f32 v[{UB}:{UB+1}], v[{sb+4}:{sb+5}], v[{Da+2}:{Da+3}], v[{UB}:{UB+1}]
    v_pk_add_f32 v[{SA}:{SA+1}], v[{Da}:{Da+1}], v[{Db}:{Db+1}]
    v_pk_add_f32 v[{SB}:{SB+1}], v[{Da+2}:{Da+3}], v[{Db+2}:{Db+3}]
    v_pk_fma_f32 v[{NUM}:{NUM+1}], v[{PA}:{PA+1}], v[{UA}:{UA+1}], v[{NUM}:{NUM+1}]
    v_pk_fma_f32 v[{NUM+2}:{NUM+3}], v[{PB_}:{PB_+1}], v[{UB}:{UB+1}], v[{NUM+2}:{NUM+3}]
    v_pk_fma_f32 v[{DEN}:{DEN+1}], v[{PA}:{PA+1}], v[{SA}:{SA+1}], v[{DEN}:{DEN+1}]
    v_pk_fma_f32 v[{DEN+2}:{DEN+3}], v[{PB_}:{PB_+1}], v[{SB}:{SB+1}], v[{DEN+2}:{DEN+3}]
    s_waitcnt lgkmcnt(0)
    s_cbranch_scc1 L_SB{k}
L_RB{k}:""")
        if k == 6:
            a(f"    v_add_u32 v2, 128, v2")
            a(f"    v_add_u32 v3, v{INCE}, v3")
            if opt.prio:
                t1, t2, t3 = opt.pth
                a(f"""    s_sub_u32 s{S_BLK}, s{S_BLK}, 4
    s_cmp_gt_i32 s{S_BLK}, {t1}
    s_cbranch_scc1 L_LOOP
    s_setprio 2
    s_cmp_gt_i32 s{S_BLK}, {t2}
    s_cbranch_scc1 L_LOOP
    s_setprio 1
    s_cmp_gt_i32 s{S_BLK}, {t3}
    s_cbranch_scc1 L_LOOP
    s_setprio 0""")
            a(f"    s_branch L_LOOP")
    for k in range(0, 8, 2):
        a(f"L_SB{k}:")
        for r in range(4):
            a(f"    v_permlane32_swap_b32 v{NUM+r}, v{DEN+r}")
        a(f"""    v_pk_add_f32 v[{NUM}:{NUM+1}], v[{NUM}:{NUM+1}], v[{DEN}:{DEN+1}]
    v_pk_add_f32 v[{NUM+2}:{NUM+3}], v[{NUM+2}:{NUM+3}], v[{DEN+2}:{DEN+3}]
    s_add_u32 s{S_N}, s{S_N}, 1
    s_add_u32 s36, s{S_N}, 1
    v_permlane16_swap_b32 v{NUM}, v{NUM+2}
    v_permlane16_swap_b32 v{NUM+1}, v{NUM+3}
    v_readlane_b32 s37, v{QEND}, s{S_N}
    s_mul_i32 s36, s36, 272
    v_pk_add_f32 v[{DEN}:{DEN+1}], v[{NUM}:{NUM+1}], v[{NUM+2}:{NUM+3}]
    v_add_u32 v{TMP}, s36, v{APA}
    s_cmp_eq_u32 s{S_SEGEND}, s{S_TE}
    ds_write_b64 v{SLA}, v[{DEN}:{DEN+1}]
    s_cbranch_scc1 L_DONE
    v_pk_mov_b32 v[{AC}:{AC+1}], v[{ANX}:{ANX+1}], v[{ANX}:{ANX+1}] op_sel:[0,1]
    v_pk_mov_b32 v[{AC+2}:{AC+3}], v[{ANX+2}:{ANX+3}], v[{ANX+2}:{ANX+3}] op_sel:[0,1]
    v_add_u32 v{SLA}, {SLOT_STR}, v{SLA}
    s_min_u32 s37, s37, s{S_TE}
    v_pk_mov_b32 v[{NUM}:{NUM+1}], 0, 0
    v_pk_mov_b32 v[{NUM+2}:{NUM+3}], 0, 0
    ds_read_b128 v[{ANX}:{ANX+3}], v{TMP}
    v_pk_mov_b32 v[{DEN}:{DEN+1}], 0, 0
    v_pk_mov_b32 v[{DEN+2}:{DEN+3}], 0, 0
    s_sub_u32 s{S_REM}, s37, s{S_SEGEND}
    s_sub_u32 s{S_REM}, s{S_REM}, 1
    s_mov_b32 s{S_SEGEND}, s37
    s_branch L_RB{k}""")
    a("L_DONE:")
    if opt.prio:
        a("    s_setprio 0")
    stamp(a, 8)
    cstamp(a, 11)
    a(f"""    s_waitcnt vmcnt(0) lgkmcnt(0)
    s_barrier                               ; #7
    s_cmp_ge_u32 s3, 5
    s_cbranch_scc1 L_MERGED
    ds_read_b128 v[24:27], v5 offset:{L_SLOT}
    ds_read_b128 v[28:31], v5 offset:{L_SLOT+128}
    ds_read_b128 v[32:35], v5 offset:{L_SLOT+256}
    ds_read_b128 v[36:39], v5 offset:{L_SLOT+384}
    ds_read_b128 v[40:43], v4
    ds_read_b128 v[44:47], v4 offset:16
    v_add_u32 v5, {SLOT_STR}, v5
    s_mov_b32 s36, 1
L_MERGE:
    v_cmp_lt_u32 vcc, s36, v7
    s_nop 1
    s_cmp_eq_u64 vcc, 0
    s_cbranch_scc1 L_MERGE_END
    s_mov_b64 exec, vcc
    ds_read_b128 v[8:11], v5 offset:{L_SLOT}
    ds_read_b128 v[12:15], v5 offset:{L_SLOT+128}
    ds_read_b128 v[16:19], v5 offset:{L_SLOT+256}
    ds_read_b128 v[20:23], v5 offset:{L_SLOT+384}
    v_add_u32 v5, {SLOT_STR}, v5
    s_add_u32 s36, s36, 1
    s_waitcnt lgkmcnt(0)""")
    for r in range(8):
        a(f"    v_pk_add_f32 v[{24+2*r}:{25+2*r}], v[{24+2*r}:{25+2*r}], v[{8+2*r}:{9+2*r}]")
    a(f"""    s_mov_b64 exec, -1
    s_branch L_MERGE
L_MERGE_END:
    s_waitcnt lgkmcnt(0)
    s_or_b32 s36, s{S_RB}, s{S_MORE}
    s_cmp_eq_u32 s36, 0
    s_cbranch_scc1 L_MERGED
    s_mul_i32 s36, s2, {320*64}
    s_add_u32 s36, s36, {TOT_OFF}
    v_lshl_add_u32 v48, v0, 6, s36
    s_cmp_eq_u32 s{S_RB}, 0
    s_cbranch_scc1 L_NOPREV""")
    for r in range(4):
        a(f"    global_load_dwordx4 v[{8+4*r}:{11+4*r}], v48, s[26:27] offset:{16*r} sc1")
    a("    s_waitcnt vmcnt(0)")
    for r in range(8):
        a(f"    v_pk_add_f32 v[{24+2*r}:{25+2*r}], v[{24+2*r}:{25+2*r}], v[{8+2*r}:{9+2*r}]")
    a(f"""L_NOPREV:
    s_cmp_eq_u32 s{S_MORE}, 0
    s_cbranch_scc1 L_MERGED""")
    for r in range(4):
        a(f"    global_store_dwordx4 v48, v[{24+4*r}:{27+4*r}], s[26:27] offset:{16*r} sc1")
    a(f"""    s_waitcnt vmcnt(0)
L_MERGED:
    s_cmp_eq_u32 s{S_MORE}, 0
    s_cbranch_scc1 L_EPI
    s_add_u32 s{S_RB}, s{S_RB}, 32
    s_cmp_lg_u32 s3, 0
    s_cbranch_scc1 L_NOCLR
    v_mov_b32 v9, 0
    v_lshlrev_b32 v10, 2, v{VL}
    ds_write_b32 v10, v9 offset:{L_CNT}
    v_mov_b32 v10, {L_FLAG}
    ds_write_b32 v10, v9
L_NOCLR:""")
    gran_addr(a)
    a(f"""    s_lshl_b32 s30, s3, 8
    s_add_u32 s30, s30, {GF_OFF}
    v_lshl_add_u32 v{VGF}, v{VI}, 4, s30
    v_mov_b32 v{VONE}, 1
    v_lshlrev_b32 v{VCA}, 2, v{VL}""")
    for j in range(4):
        a(f"    global_load_dwordx4 v[{GR(j)}:{GR(j)+3}], v2, s[26:27] offset:{128*j} sc1")
    a(f"""    s_waitcnt vmcnt(0) lgkmcnt(0)
    s_barrier
    s_branch L_ROUND
L_EPI:
    s_cmp_ge_u32 s3, 5
    s_cbranch_scc1 L_FIN
    s_mov_b32 s36, {EPS60:#x}               ; 1e-6 * 2^60""")
    nreg = [24 + c // 2 + 4 * (c % 2) for c in range(8)]
    dreg = [x + 8 for x in nreg]
    for c in range(8):
        a(f"    v_add_f32 v{dreg[c]}, s36, v{dreg[c]}")
        a(f"    v_rcp_f32 v{dreg[c]}, v{dreg[c]}")
    for c in range(8):
        xr = XR + c // 2
        if c % 2 == 0:
            a(f"    v_lshlrev_b32 v{8+c}, 16, v{xr}")
        else:
            a(f"    v_and_b32 v{8+c}, 0xffff0000, v{xr}")
    for c in range(8):
        a(f"    v_fma_f32 v{40+c}, v{nreg[c]}, v{dreg[c]}, v{40+c}")
    for c in range(8):
        a(f"    v_cmp_lt_f32 s[{48+2*c}:{49+2*c}], 0, v{40+c}")
        a(f"    v_mul_f32 v{16+c}, 0, v{40+c}")
    for c in range(8):
        a(f"    v_cndmask_b32 v{40+c}, v{16+c}, v{40+c}, s[{48+2*c}:{49+2*c}]")
    for c in range(8):
        a(f"    v_add_f32 v{40+c}, v{8+c}, v{40+c}")
    for c in range(4):
        a(f"    v_cvt_pk_bf16_f32 v{16+c}, v{40+2*c}, v{41+2*c}")
    a(f"""    v_lshlrev_b32 v4, 4, v0
    s_mul_i32 s36, s2, {NPB*128}
    v_add_u32 v4, s36, v4
    global_store_dwordx4 v4, v[16:19], s[22:23] {opt.ostore}
    s_or_b32 s36, s2, s3
    s_cmp_lg_u32 s36, 0
    s_cbranch_scc1 L_FIN
    v_mov_b32 v4, {GEN_OFF}
    v_mov_b32 v6, s{S_TAG}
    v_mov_b32 v7, s{S_TAG+1}
    s_mov_b64 exec, 1
    global_store_dwordx2 v4, v[6:7], s[26:27] sc1
L_FIN:""")
    stamp_flush(a)
    a("""L_END:
    s_endpgm
""")

HEADER = """; GatedGCN edge-featured MPNN layer, one launch, one workgroup per 40 destination nodes.
"""

def main():
    global PROF
    ap = argparse.ArgumentParser()
    ap.add_argument("-o", default="standalone__edge_featured_mpnn_gatedgcn__graph.s")
    ap.add_argument("--store", default="sc1")
    ap.add_argument("--hload", default="sc1")
    ap.add_argument("--gload", default="")
    ap.add_argument("--touch", type=int, default=0)
    ap.add_argument("--otouch", type=int, default=1)
    ap.add_argument("--onewait", type=int, default=0)
    ap.add_argument("--wsbase", type=lambda x: int(x, 0), default=0)
    ap.add_argument("--wlate", type=int, default=1)
    ap.add_argument("--rec", type=int, default=12)
    ap.add_argument("--ostore", default="sc1")
    ap.add_argument("--prio", type=int, default=1)
    ap.add_argument("--pth", type=int, nargs=3, default=[15, 10, 5])
    ap.add_argument("--sleep", type=int, default=2)
    ap.add_argument("--prof", action="store_true")
    ap.add_argument("--dbg", action="store_true")
    opt = ap.parse_args()
    PROF = opt.prof or opt.dbg
    global DBG
    DBG = opt.dbg
    a = Asm()
    a(HEADER.rstrip())
    a(f"; @launch grid=({NB},1,1) block=(1024,1,1) lds={L_END}")
    a('.amdgcn_target "amdgcn-amd-amdhsa--gfx950"')
    a(".text")
    entry(a, opt)
    phase_a_bin(a, opt)
    phase_a_table(a, opt)
    phase_b(a, opt)
    a(f""".section .rodata,"a"
.p2align 6
.amdhsa_kernel {KNAME}
  .amdhsa_next_free_vgpr 128
  .amdhsa_next_free_sgpr {98 if PROF else 96}
  .amdhsa_accum_offset 128
  .amdhsa_group_segment_fixed_size 0
  .amdhsa_kernarg_size 96
  .amdhsa_user_sgpr_count 2
  .amdhsa_user_sgpr_kernarg_segment_ptr 1
  .amdhsa_system_sgpr_workgroup_id_x 1
  .amdhsa_float_denorm_mode_32 3
  .amdhsa_dx10_clamp 0
.end_amdhsa_kernel""")
    open(opt.o, "w").write(a.text())
    print("wrote", opt.o, "lds", L_END)

if __name__ == "__main__":
    main()
```

```python
import argparse, struct

KNAME = "standalone__edge_featured_mpnn_gatedgcn__graph_kernel"
N, D, E = 10000, 64, 640000
NB, NPB = 250, 40
CH = 2560
GEN_OFF, G_OFF, GF_OFF, GRAN_OFF, REC_OFF, TOT_OFF = 0, 0x1000, 0x274000, 0x280000, 0x380000, 0xD80000
PROF_OFF = 0x1300000
NLOG2E = 0xBFB8AA3B
BIG, NBIG = 0x71800000, 0xF1800000
SHIFT = 60
C60 = (127 - SHIFT) << 23
EPS60 = struct.unpack("<I", struct.pack("<f", 1e-6 * 2.0 ** SHIFT))[0]
FSHIFT = struct.unpack("<I", struct.pack("<f", -float(SHIFT)))[0]
NWV = 16
POLL_LIMIT = 1 << 17
CHN = [0, 2, 1, 3]

SLOT_STR = 512
L_SLOT = 0
L_CNT = L_SLOT + (NPB + NWV) * SLOT_STR
L_ZREG = L_CNT + 256
L_FLAG = L_ZREG + 512
L_GCNT = L_FLAG + 4
L_ZEND = L_FLAG + 16
L_WCB = 29504
L_AP = 30080
L_U = L_AP + 48 * 272
L_SRC = L_U + 48 * 272
NSLOT = 250 * 32 + 320 + 64
L_E = L_SRC + NSLOT * 4
L_END = L_E + NSLOT * 8
A_HIST = L_SRC
A_OFFS = A_HIST + 1024
A_REC = A_OFFS + 1024
A_W = A_REC + CH * 16
WIMG = 64 * 144
A_X = A_W + 4 * WIMG
A_G = A_X + 48 * 144
assert A_G + 48 * 272 <= L_END <= 163840
assert all(x % 16 == 0 for x in (L_WCB, L_AP, L_U, L_SRC, L_E, A_REC, A_W, A_X, A_G))

SLA, TMP, INCE, APA = 88, 89, 90, 91
IDXA, IDXB = 92, 94
AC, A0, A1, ANX = 96, 100, 104, 108
XR = 112
QEND, QST = 116, 117
WC = 118
EB, EM, SRB, SLB = 120, 121, 122, 123
VPROF = 124
VI, VQ, VL = 125, 126, 127
S_TAG = 28
S_REC = 40
S_G = 44
M0, M1 = 48, 56
S_INV = 64
S_RB, S_MORE, S_P, S_TS, S_TE, S_N, S_SEGEND, S_REM = 68, 69, 70, 71, 72, 73, 74, 75
S_BLK, S_TAG8 = 76, 77
S_C60 = 78
P0M, P1M = 80, 88

class Asm:
    def __init__(self): self.l = []
    def __call__(self, s=""):
        self.l.extend(s.split("\n"))
    def text(self): return "\n".join(self.l) + "\n"

PROF = False
def stamp(a, idx):
    if PROF:
        a(f"    s_memrealtime s[96:97]")
        a(f"    s_waitcnt lgkmcnt(0)")
        a(f"    v_writelane_b32 v{VPROF}, s96, {idx}")

def cstamp(a, idx):
    if PROF:
        a(f"    s_memtime s[96:97]")
        a(f"    s_waitcnt lgkmcnt(0)")
        a(f"    v_writelane_b32 v{VPROF}, s96, {idx}")

DBG = False
def stamp_flush(a):
    if not PROF: return
    stamp(a, 9)
    if DBG:
        a(f"""    s_waitcnt vmcnt(0) lgkmcnt(0)
    v_readlane_b32 s30, v{VPROF}, 0
    v_readlane_b32 s31, v{VPROF}, 10
    v_readlane_b32 s32, v{VPROF}, 11
    v_readlane_b32 s33, v{VPROF}, 4
    v_readlane_b32 s34, v{VPROF}, 5
    v_readlane_b32 s35, v{VPROF}, 6
    s_nop 3
    s_not_b32 s30, s30
    s_sub_u32 s32, s32, s31
    s_cmp_lt_u32 s3, 10
    s_cselect_b32 s33, s33, 0
    s_cselect_b32 s34, s34, 0
    s_cselect_b32 s35, s35, 0
    v_writelane_b32 v{VPROF}, s30, 0
    v_writelane_b32 v{VPROF}, s32, 10
    v_writelane_b32 v{VPROF}, s33, 11
    v_writelane_b32 v{VPROF}, s34, 12
    v_writelane_b32 v{VPROF}, s35, 13
    s_mov_b64 exec, 0xffff
    v_lshlrev_b32 v2, 2, v{VL}
    global_atomic_umax v2, v{VPROF}, s[24:25]
    s_waitcnt vmcnt(0)""")
        return
    a(f"""    s_waitcnt vmcnt(0) lgkmcnt(0)
    s_mov_b64 exec, 0xffff
    s_lshl_b32 s30, s2, 4
    s_add_u32 s30, s30, s3
    s_lshl_b32 s30, s30, 6
    s_add_u32 s30, s30, {PROF_OFF}
    v_lshl_add_u32 v2, v{VL}, 2, s30
    global_store_dword v2, v{VPROF}, s[26:27]
    s_waitcnt vmcnt(0)""")

def dpp_scan(a, v):
    for sh in (1, 2, 4, 8):
        a(f"    s_nop 1")
        a(f"    v_add_u32_dpp v{v}, v{v}, v{v} row_shr:{sh} row_mask:0xf bank_mask:0xf bound_ctrl:0")
    a("    s_nop 1")
    a(f"    v_add_u32_dpp v{v}, v{v}, v{v} row_bcast:15 row_mask:0xa bank_mask:0xf")
    a("    s_nop 1")
    a(f"    v_add_u32_dpp v{v}, v{v}, v{v} row_bcast:31 row_mask:0xc bank_mask:0xf")
    a("    s_nop 1")

def entry(a, opt):
    a(f"""
.globl {KNAME}
.p2align 8
.type {KNAME},@function
{KNAME}:
    s_cmp_ge_u32 s2, {NB}
    s_cbranch_scc1 L_END
    s_load_dwordx16 s[4:19], s[0:1], 0
    s_load_dwordx8 s[20:27], s[0:1], 64
    v_lshrrev_b32 v1, 6, v0
    v_and_b32 v{VL}, 63, v0
    v_readfirstlane_b32 s3, v1
    v_lshrrev_b32 v{VQ}, 4, v{VL}
    v_and_b32 v{VI}, 15, v{VL}
    v_lshlrev_b32 v{IDXA+1}, 4, v{VI}
    v_mov_b32 v{IDXB+1}, v{IDXA+1}
    v_and_b32 v2, 3, v{VI}                  ; r
    v_lshrrev_b32 v3, 2, v{VI}              ; e
    v_cmp_eq_u32 vcc, v2, v{VQ}
    v_lshlrev_b32 v4, 3, v3
    v_add_u32 v4, {L_E}, v4
    v_mov_b32 v5, {L_ZREG}
    v_cndmask_b32 v{EB}, v5, v4, vcc
    v_mov_b32 v5, 32
    v_cndmask_b32 v{EM}, 0, v5, vcc
    v_lshlrev_b32 v{INCE}, 3, v{EM}
    v_cmp_eq_u32 vcc, v3, v{VQ}
    v_mov_b32 v5, 0x3f80
    v_lshrrev_b32 v6, 1, v2
    v_lshlrev_b32 v6, 4, v6
    v_lshlrev_b32 v5, v6, v5
    v_cndmask_b32 v5, 0, v5, vcc
    v_and_b32 v6, 1, v2                     ; r%2: 0 -> first register, 1 -> second
    v_cmp_eq_u32 vcc, 0, v6
    v_lshlrev_b32 v{APA}, 4, v{VI}
    v_add_u32 v{APA}, {L_AP}, v{APA}
    v_cndmask_b32 v{A0+2}, 0, v5, vcc
    v_cndmask_b32 v{A0+3}, v5, 0, vcc
    v_mov_b32 v{A1+2}, v{A0+2}
    v_mov_b32 v{A1+3}, v{A0+3}
    v_lshlrev_b32 v{SLB}, 3, v{VL}
    v_lshlrev_b32 v{SRB}, 2, v{VQ}
    v_add_u32 v{SRB}, {L_SRC}, v{SRB}
    s_mov_b32 s{S_RB}, 0
    s_mov_b32 s{S_C60}, {C60:#x}
    s_mov_b32 s{S_C60+1}, {C60:#x}
    s_cmp_eq_u32 s3, 15
    s_cselect_b32 s{S_INV+1}, 0xffff0000, 0
    s_cselect_b32 s{S_INV+3}, -1, 0
    s_mov_b32 s{S_INV}, 0
    s_mov_b32 s{S_INV+2}, 0""")
    if PROF:
        a(f"    v_mov_b32 v{VPROF}, 0")
    stamp(a, 0)
    a(f"""    s_cmp_ge_u32 s3, 10
    s_cbranch_scc1 L_TABLE""")

def gran_addr(a, dst=2):
    a(f"""    s_and_b32 s30, s2, 7
    s_lshl_b32 s30, s30, 5
    s_lshr_b32 s31, s2, 3
    s_or_b32 s31, s30, s31                  ; h
    s_lshr_b32 s30, s31, 3
    s_lshl_b32 s30, s30, 15
    s_and_b32 s31, s31, 7
    s_lshl_b32 s31, s31, 4
    s_add_u32 s30, s30, s31
    s_lshl_b32 s31, s3, 11
    s_add_u32 s30, s30, s31
    s_add_u32 s30, s30, {GRAN_OFF}
    v_lshl_add_u32 v{dst}, v{VQ}, 9, s30""")

VGA, VGF, VONE, VCA = 96, 97, 98, 99

def late_setup(a, opt):
    a(f"""    s_add_u32 s{S_REC}, s26, {REC_OFF}
    s_addc_u32 s{S_REC+1}, s27, 0
    s_mov_b32 s{S_REC+2}, {E*opt.rec}
    s_mov_b32 s{S_REC+3}, 0x20000
    s_add_u32 s{S_G}, s26, {G_OFF}
    s_addc_u32 s{S_G+1}, s27, 0
    s_or_b32 s{S_G+1}, s{S_G+1}, 0x01000000  ; stride 256
    s_mov_b32 s{S_G+2}, {N+1}
    s_mov_b32 s{S_G+3}, 0x20000""")
    gran_addr(a, VGA)
    a(f"""    s_lshl_b32 s30, s3, 8
    s_add_u32 s30, s30, {GF_OFF}
    v_lshl_add_u32 v{VGF}, v{VI}, 4, s30
    v_mov_b32 v{VONE}, 1
    v_lshlrev_b32 v{VCA}, 2, v{VL}""")

def phase_a_bin(a, opt):
    st = opt.store
    QR = lambda j: 16 + 4 * j
    a(f"""    ; ================= phase A, binning waves (tid < 640)
    s_mul_i32 s30, s2, {CH*4}
    v_lshlrev_b32 v2, 4, v0
    v_add_u32 v3, s30, v2
    s_lshl_b32 s31, s30, 1
    v_lshlrev_b32 v4, 5, v0
    v_add_u32 v4, s31, v4
    s_mul_i32 s32, s2, {NPB*128}
    v_add_u32 v64, s32, v2
    v_mov_b32 v6, 0
    v_lshlrev_b32 v7, 2, v0
    s_waitcnt lgkmcnt(0)""")
    if opt.wsbase:
        a(f"    s_add_u32 s26, s26, {opt.wsbase}")
        a(f"    s_addc_u32 s27, s27, 0")
    stamp(a, 1)
    a(f"""    global_load_dwordx4 v[8:11], v3, s[10:11]
    s_load_dwordx2 s[{S_TAG}:{S_TAG+1}], s[26:27], {GEN_OFF}
    s_cmp_ge_u32 s3, 4
    s_cbranch_scc1 L_NOZH
    ds_write_b32 v7, v6 offset:{A_HIST}
L_NOZH:
    s_cmp_lg_u32 s3, 4
    s_cbranch_scc1 L_NOZC
    v_mov_b32 v32, 0
    v_mov_b32 v33, 0
    v_mov_b32 v34, 0
    v_mov_b32 v35, 0
    v_lshlrev_b32 v36, 4, v{VL}
    v_cmp_gt_u32 vcc, {(L_ZEND-L_CNT)//16}, v{VL}
    s_and_saveexec_b64 s[34:35], vcc
    ds_write_b128 v36, v[32:35] offset:{L_CNT}
    s_mov_b64 exec, s[34:35]
L_NOZC:""")
    late_setup(a, opt)
    a(f"""    ; addresses of the copy-out and of the run table entry (bucket slot h = 64*wave + lane, waves 0..3)
    s_mul_i32 s36, s2, {CH*opt.rec}
    s_mov_b32 s38, {A_REC}
    v_lshl_add_u32 v56, v0, 4, s38
    v_mad_u32_u24 v57, v0, {opt.rec}, s36
    v_add_u32 v58, {640*opt.rec}, v57
    v_add_u32 v59, {2*640*opt.rec}, v57
    v_add_u32 v60, {3*640*opt.rec}, v57
    s_and_b32 s37, s3, 3
    s_lshl_b32 s30, s37, 8
    v_lshl_add_u32 v61, v{VL}, 2, s30       ; 4*h
    s_lshl_b32 s37, s37, 18
    s_lshl_b32 s30, s2, 7
    s_add_u32 s37, s37, s30
    s_add_u32 s37, s37, {GRAN_OFF}
    v_lshrrev_b32 v62, 3, v{VL}
    v_lshl_add_u32 v62, v62, 15, s37
    v_and_b32 v63, 7, v{VL}
    v_lshl_add_u32 v62, v63, 4, v62
    v_lshlrev_b32 v63, 4, v{VL}
    s_mul_i32 s39, s2, {CH}
    s_mov_b32 s33, 52429
    s_movk_i32 s34, 0xffd8                  ; -40
    s_movk_i32 s37, 0xfc04                  ; -1020
    s_waitcnt lgkmcnt(0)
    s_add_u32 s{S_TAG}, s{S_TAG}, 1
    s_addc_u32 s{S_TAG+1}, s{S_TAG+1}, 0
    s_and_b32 s{S_TAG8}, s{S_TAG}, 0xff
    s_lshl_b32 s35, s{S_TAG8}, 24
    v_mov_b32 v53, s{S_TAG}
    v_mov_b32 v54, s{S_TAG+1}
    v_mov_b32 v55, s{S_TAG}
    s_barrier                               ; #1
    global_load_dwordx4 v[12:15], v3, s[8:9]
    global_load_dwordx4 v[16:19], v4, s[6:7]
    global_load_dwordx4 v[24:27], v4, s[6:7] offset:16
    s_waitcnt vmcnt(3)""")
    stamp(a, 2)
    for j in range(4):
        a(f"    v_mul_u32_u24 v{40+j}, s33, v{8+j}")
        a(f"    v_lshrrev_b32 v{32+j}, 21, v{40+j}          ; bucket b")
        a(f"    v_lshrrev_b32 v{40+j}, 24, v{40+j}          ; b / 8")
        a(f"    v_mad_i32_i24 v{8+j}, v{32+j}, s34, v{8+j}")
        a(f"    v_lshlrev_b32 v{32+j}, 7, v{32+j}")
        a(f"    v_mad_i32_i24 v{32+j}, v{40+j}, s37, v{32+j}  ; 4 * ((b % 8) * 32 + b / 8): buckets of one die are adjacent")
        a(f"    ds_add_rtn_u32 v{36+j}, v{32+j}, v{VONE} offset:{A_HIST}")
    for j in range(4):
        a(f"    v_lshl_or_b32 v{8+j}, v{8+j}, 2, s35")
    a(f"""    s_waitcnt lgkmcnt(0)
    s_barrier                               ; #2
    ds_read_b128 v[40:43], v63 offset:{A_HIST}
    s_waitcnt lgkmcnt(0)
    v_add_u32 v44, v40, v41
    v_add_u32 v45, v44, v42
    v_add_u32 v46, v45, v43
    v_mov_b32 v47, v46""")
    dpp_scan(a, 47)
    a(f"""    v_sub_u32 v48, v47, v46
    v_add_u32 v49, v48, v40
    v_add_u32 v50, v48, v44
    v_add_u32 v51, v48, v45
    ds_write_b128 v63, v[48:51] offset:{A_OFFS}
    s_waitcnt vmcnt(0)""")
    for j in range(4):
        a(f"    v_lshl_or_b32 v{12+j}, v{12+j}, 8, v{8+j}")
    a("    v_pk_mov_b32 v[20:21], v[18:19], v[18:19] op_sel:[0,1]")
    a("    v_pk_mov_b32 v[28:29], v[26:27], v[26:27] op_sel:[0,1]")
    for j in range(4):
        a(f"    v_mov_b32 v{QR(j)+2}, v{12+j}")
        if opt.rec == 16:
            a(f"    v_bitop3_b32 v{QR(j)+3}, v{QR(j)}, v{12+j}, s{S_TAG} bitop3:0x96")
    a("    s_waitcnt lgkmcnt(0)")
    for j in range(4):
        a(f"    ds_read_b32 v{44+j}, v{32+j} offset:{A_OFFS}")
    a(f"""    ds_read_b32 v52, v61 offset:{A_OFFS}
    ds_read_b32 v48, v61 offset:{A_HIST}
    s_waitcnt lgkmcnt(2)""")
    for j in range(4):
        a(f"    v_add_u32 v{44+j}, v{44+j}, v{36+j}")
        a(f"    v_lshl_add_u32 v{44+j}, v{44+j}, 4, s38")
        a(f"    ds_write_b128 v{44+j}, v[{QR(j)}:{QR(j)+3}]")
    a(f"""    s_add_u32 s30, s26, {REC_OFF}
    s_addc_u32 s31, s27, 0
    s_waitcnt lgkmcnt(0)
    s_barrier                               ; #3""")
    stamp(a, 3)
    if opt.rec == 16:
        for j in range(4):
            a(f"    ds_read_b128 v[{32+4*j}:{35+4*j}], v56 offset:{j*10240}")
    else:
        for j in range(4):
            a(f"    ds_read_b96 v[{32+4*j}:{34+4*j}], v56 offset:{j*10240}")
    a(f"""    v_add_u32 v52, s39, v52
    v_lshl_or_b32 v52, v48, 20, v52""")
    for j in range(4):
        a(f"    s_waitcnt lgkmcnt({3-j})")
        if opt.rec == 16:
            a(f"    global_store_dwordx4 v{57+j}, v[{32+4*j}:{35+4*j}], s[30:31] {st}")
        else:
            a(f"    global_store_dwordx3 v{57+j}, v[{32+4*j}:{34+4*j}], s[30:31] {st}")
    a(f"""    s_cmp_ge_u32 s3, 5
    s_cbranch_scc1 L_NOXR
    global_load_dwordx4 v[{XR}:{XR+3}], v64, s[4:5]
""" + (f"    global_load_dword v{TMP}, v64, s[22:23]    ; touches the output page early\n" if opt.otouch else "") + "L_NOXR:")
    if opt.rec == 12:
        a("    s_waitcnt vmcnt(0)")
    a(f"""    s_barrier                               ; #4
    s_cmp_ge_u32 s3, 4
    s_cbranch_scc1 L_PHASEB
    global_store_dwordx4 v62, v[52:55], s[26:27] {st}
    s_branch L_PHASEB""")

def tile_mfma(a, acc0, wreg, xreg):
    for mat in range(2):
        acc = acc0 + 4 * mat
        r0, r1 = wreg + mat * 8, wreg + mat * 8 + 4
        a(f"    v_mfma_f32_16x16x32_bf16 v[{acc}:{acc+3}], v[{r0}:{r0+3}], v[{xreg}:{xreg+3}], 0")
        a(f"    v_mfma_f32_16x16x32_bf16 v[{acc}:{acc+3}], v[{r1}:{r1+3}], v[{xreg+4}:{xreg+7}], v[{acc}:{acc+3}]")

def phase_a_table(a, opt):
    st = opt.store
    wp = [14, 20, 12, 18]
    a(f"""L_TABLE:
    s_sub_u32 s36, s3, 10                   ; u
    s_and_b32 s37, s36, 1
    s_add_u32 s38, s37, 6
    v_lshlrev_b32 v2, 4, v{VL}
    s_lshl_b32 s30, s36, 10
    v_add_u32 v3, s30, v2                   ; piece u
    s_lshl_b32 s31, s38, 10
    v_add_u32 v4, s31, v2                   ; piece 6/7
    s_mul_i32 s32, s2, {NPB*128}
    v_add_u32 v5, s32, v3                   ; x offset
    v_lshrrev_b32 v6, 3, v{VL}
    v_mul_u32_u24 v6, 144, v6
    v_and_b32 v7, 7, v{VL}
    v_lshl_add_u32 v6, v7, 4, v6
    s_mul_i32 s33, s36, {8*144}
    s_add_u32 s33, s33, {A_W}
    v_add_u32 v48, s33, v6
    s_mul_i32 s33, s38, {8*144}
    s_add_u32 s33, s33, {A_W}
    v_add_u32 v49, s33, v6
    v_lshrrev_b32 v50, 1, v{VQ}
    v_and_b32 v51, 1, v{VQ}
    v_lshl_or_b32 v50, v51, 1, v50
    v_lshl_add_u32 v50, v{VI}, 2, v50
    v_lshlrev_b32 v50, 1, v50
    s_waitcnt lgkmcnt(0)""")
    if opt.wsbase:
        a(f"    s_add_u32 s26, s26, {opt.wsbase}")
        a(f"    s_addc_u32 s27, s27, 0")
    a(f"""    s_load_dwordx2 s[{S_TAG}:{S_TAG+1}], s[26:27], {GEN_OFF}""")
    stamp(a, 1)
    late_setup(a, opt)
    a("    s_barrier")
    if opt.wlate:
        a("    s_barrier                               ; #2")
    for m in range(4):
        a(f"    global_load_dwordx4 v[{8+8*m}:{11+8*m}], v3, s[{wp[m]}:{wp[m]+1}]")
        a(f"    global_load_dwordx4 v[{12+8*m}:{15+8*m}], v4, s[{wp[m]}:{wp[m]+1}]")
    if opt.touch:
        a(f"""    ; touch the workspace pages used later (unused words or tag-checked records only)
    v_lshlrev_b32 v45, 21, v{VL}
    v_add_u32 v45, 0x200000, v45
    v_mov_b32 v46, 0x276000
    v_cmp_eq_u32 vcc, 0, v{VL}
    s_nop 1
    v_cndmask_b32 v45, v45, v46, vcc
    s_mov_b64 exec, 0x3f
    global_load_dword v{TMP}, v45, s[26:27] sc1
    s_mov_b64 exec, -1""")
    a(f"""    s_cmp_eq_u32 s36, 5
    s_cbranch_scc1 L_TWC0
    global_load_dwordx4 v[40:43], v5, s[4:5]
    s_branch L_TB
L_TWC0:
    global_load_ushort v40, v50, s[16:17]
    global_load_ushort v41, v50, s[16:17] offset:128
    global_load_ushort v42, v50, s[16:17] offset:256
    global_load_ushort v43, v50, s[16:17] offset:384
L_TB:""")
    if not opt.wlate:
        a("    s_barrier                               ; #2")
    a(f"""    s_barrier                               ; #3
    s_cmp_eq_u32 s36, 5
    s_cbranch_scc1 L_TWC
    s_waitcnt vmcnt(0)
    ds_write_b128 v48, v[40:43] offset:{A_X - A_W}
    s_branch L_TST
L_TWC:
    s_mov_b32 s33, {NLOG2E:#x}
    v_lshlrev_b32 v44, 3, v{VL}
    s_waitcnt vmcnt(0)
    v_lshlrev_b32 v40, 16, v40
    v_lshlrev_b32 v41, 16, v41
    v_lshlrev_b32 v42, 16, v42
    v_lshlrev_b32 v43, 16, v43
    v_mul_f32 v40, s33, v40
    v_mul_f32 v41, s33, v41
    v_mul_f32 v42, s33, v42
    v_mul_f32 v43, s33, v43
    v_cvt_pk_bf16_f32 v40, v40, v41
    v_cvt_pk_bf16_f32 v41, v42, v43
    ds_write_b64 v44, v[40:41] offset:{L_WCB}
L_TST:""")
    for m in range(4):
        a(f"    ds_write_b128 v48, v[{8+8*m}:{11+8*m}] offset:{m*WIMG}")
        a(f"    ds_write_b128 v49, v[{12+8*m}:{15+8*m}] offset:{m*WIMG}")
    a(f"""    ; tile job: nt = u/2, mt in {{2*(u%2), 2*(u%2)+1}}
    s_lshr_b32 s30, s36, 1                  ; nt
    s_lshl_b32 s31, s37, 1                  ; mt0
    s_lshl_b32 s32, s30, 4
    v_add_u32 v4, s32, v{VI}                ; node
    v_mul_u32_u24 v5, 144, v4
    v_lshl_add_u32 v5, v{VQ}, 4, v5
    v_add_u32 v5, {A_X}, v5
    v_lshrrev_b32 v6, 2, v{VI}
    v_lshl_add_u32 v6, v{VQ}, 3, v6
    v_mul_u32_u24 v6, 144, v6
    v_and_b32 v7, 3, v{VI}
    v_lshl_add_u32 v6, v7, 3, v6
    s_lshl_b32 s32, s31, 5
    s_add_u32 s32, s32, {A_W}
    v_add_u32 v6, s32, v6
    v_mul_u32_u24 v7, 272, v4
    v_lshl_add_u32 v50, v{VQ}, 4, v7
    s_lshl_b32 s32, s31, 6
    v_add_u32 v50, s32, v50
    v_add_u32 v51, {L_AP}, v50
    v_add_u32 v53, {L_U}, v50
    s_waitcnt lgkmcnt(0)
    s_add_u32 s{S_TAG}, s{S_TAG}, 1
    s_addc_u32 s{S_TAG+1}, s{S_TAG+1}, 0
    s_and_b32 s{S_TAG8}, s{S_TAG}, 0xff
    v_mov_b32 v54, {L_GCNT+4}
    v_mov_b32 v55, 1
    s_mov_b64 exec, 1
    ds_add_u32 v54, v55
    s_mov_b64 exec, -1
L_TSYNC:
    ds_read_b32 v55, v54
    s_waitcnt lgkmcnt(0)
    v_readfirstlane_b32 s30, v55
    s_nop 3
    s_cmp_lt_u32 s30, 6
    s_cbranch_scc1 L_TSYNC
    ds_read_b128 v[8:11], v5
    ds_read_b128 v[12:15], v5 offset:64""")
    def wfrags(first):
        for m in range(2):
            for mat in range(2):
                for ks in range(2):
                    r = 16 + m * 16 + mat * 8 + ks * 4
                    for h in range(2):
                        a(f"    ds_read_b64_tr_b16 v[{r+2*h}:{r+2*h+1}], v6 offset:{(first+mat)*WIMG + ks*4608 + h*576 + m*32}")
    wfrags(0)
    a(f"""    ; table row address of this lane: (40 w + node)*256 + (16 mt0 + 4 g)*4 ; rows >= 40 of the tile are not stored
    s_mul_i32 s31, s2, {NPB*256}
    s_add_u32 s31, s31, {G_OFF}
    v_lshlrev_b32 v55, 8, v4
    v_add_u32 v55, s31, v55
    v_lshl_add_u32 v55, v{VQ}, 4, v55
    s_and_b32 s30, s36, 1
    s_lshl_b32 s30, s30, 7
    v_add_u32 v55, s30, v55
    v_cmp_gt_u32 s[34:35], {NPB}, v4
    s_mov_b32 s32, {NLOG2E:#x}
    s_mov_b32 s33, {BIG:#x}
    v_mov_b32 v54, {NBIG:#x}
    s_waitcnt lgkmcnt(0)""")
    for m in range(2):
        tile_mfma(a, 56 + 8 * m, 16 + 16 * m, 8)
    wfrags(2)
    a("    s_mov_b32 s30, 0x8000")
    for m in range(2):
        accb, accv = 56 + 8 * m, 60 + 8 * m
        o = 72 + 4 * m
        for r in range(4):
            a(f"    v_mul_f32 v{accb+r}, s32, v{accb+r}")
            a(f"    v_med3_f32 v{accb+r}, v{accb+r}, v54, s33")
        a(f"    v_cvt_pk_bf16_f32 v{o}, v{accb}, v{accb+1}")
        a(f"    v_cvt_pk_bf16_f32 v{o+1}, v{accb+2}, v{accb+3}")
        for p in range(2):
            lo, hi = accv + 2 * p, accv + 2 * p + 1
            a(f"    v_cvt_pk_bf16_f32 v80, v{lo}, v{lo}")
            a(f"    v_and_b32 v80, 0xffff, v80")
            a(f"    v_and_b32 v81, 0x7fffffff, v{hi}")
            a(f"    v_and_b32 v{hi}, 0x80000000, v{hi}")
            a(f"    v_sub_u32 v81, v81, v80")
            a(f"    v_add_u32 v81, s30, v81")
            a(f"    v_max_i32 v81, 0, v81")
            a(f"    v_and_b32 v81, 0xffff0000, v81")
            a(f"    v_or3_b32 v{o+2+p}, v81, v80, v{hi}")
    a(f"""    s_barrier
    s_mov_b64 exec, s[34:35]
    global_store_dwordx4 v55, v[72:75], s[26:27] offset:0 {st}
    global_store_dwordx4 v55, v[76:79], s[26:27] offset:64 {st}
    s_mov_b64 exec, -1""")
    a(f"""    ; padding row N of the table (gate saturates, value 0): last workgroup, wave u = 5
    s_cmp_lg_u32 s2, {NB-1}
    s_cbranch_scc1 L_TAU
    s_cmp_lg_u32 s36, 5
    s_cbranch_scc1 L_TAU
    v_mov_b32 v80, 0x71807180
    v_mov_b32 v81, v80
    v_mov_b32 v82, 0
    v_mov_b32 v83, 0
    v_lshlrev_b32 v7, 4, v{VL}
    v_add_u32 v7, {N*256 + G_OFF}, v7
    s_mov_b64 exec, 0xffff
    global_store_dwordx4 v7, v[80:83], s[26:27] {st}
    s_mov_b64 exec, -1
L_TAU:
    s_waitcnt lgkmcnt(0)""")
    for m in range(2):
        tile_mfma(a, 56 + 8 * m, 16 + 16 * m, 8)
    a(f"""    s_mov_b32 s34, {FSHIFT:#x}
    s_nop 6""")
    for m in range(2):
        acca, accu = 56 + 8 * m, 60 + 8 * m
        a(f"    ds_write_b128 v53, v[{accu}:{accu+3}] offset:{m*64}")
        for r in range(4):
            a(f"    v_mul_f32 v{acca+CHN[r]}, s32, v{acca+CHN[r]}")
            a(f"    v_med3_f32 v{acca+CHN[r]}, v{acca+CHN[r]}, v54, s33")
            a(f"    v_add_f32 v{16+r}, s34, v{acca+CHN[r]}")
        a(f"    ds_write_b128 v51, v[16:19] offset:{m*64}")
    a(f"""    ; the table rows of this workgroup are complete: the last table wave publishes the flag
    v_mov_b32 v16, {L_GCNT}
    v_mov_b32 v17, 1
    s_waitcnt vmcnt(0)
    s_mov_b64 exec, 1
    ds_add_rtn_u32 v18, v16, v17
    s_waitcnt lgkmcnt(0)
    v_readfirstlane_b32 s30, v18
    s_mov_b64 exec, -1
    s_cmp_lg_u32 s30, 5
    s_cbranch_scc1 L_PHASEB
    s_lshl_b32 s30, s2, 4
    s_add_u32 s30, s30, {GF_OFF}
    v_mov_b32 v16, s30
    v_mov_b32 v18, s{S_TAG}
    v_mov_b32 v19, s{S_TAG+1}
    s_mov_b64 exec, 1
    global_store_dwordx2 v16, v[18:19], s[26:27] {st}
    s_mov_b64 exec, -1""")

def phase_b(a, opt):
    GR = lambda j: 8 + 4 * j
    rec = lambda h, j: 24 + 16 * h + 4 * j
    RANK, DL = 56, 64
    msk = lambda h, j: (M0 if h == 0 else M1) + 2 * j
    pnd = lambda h, j: (P0M if h == 0 else P1M) + 2 * j
    inv = lambda j: S_INV + (2 if j >= 2 else 0)
    a("L_PHASEB:")
    stamp(a, 4)
    a(f"""    ; ================= phase B: wait for the run table entries of this bucket
    v_lshlrev_b32 v2, 3, v{VL}
    ds_read_b64 v[{WC}:{WC+1}], v2 offset:{L_WCB}""")
    a(f"""    s_mov_b32 s33, 0
    s_mov_b32 s38, s{S_TAG+1}
    s_mov_b32 s39, s{S_TAG}""")
    for j in range(4):
        a(f"    s_not_b64 s[{pnd(0,j)}:{pnd(0,j)+1}], s[{inv(j)}:{inv(j)+1}]")
    a("L_POLL:")
    for j in range(4):
        p = pnd(0, j)
        a(f"    s_mov_b64 exec, s[{p}:{p+1}]")
        a(f"    s_cbranch_execz L_NP{j}")
        a(f"    global_load_dwordx4 v[{GR(j)}:{GR(j)+3}], v{VGA}, s[26:27] offset:{128*j} sc1")
        a(f"L_NP{j}:")
    a("    s_waitcnt vmcnt(0)")
    for j in range(4):
        p = pnd(0, j)
        a(f"    s_mov_b64 exec, s[{p}:{p+1}]")
        a(f"    v_cmp_eq_u32 vcc, s{S_TAG}, v{GR(j)+1}")
        a(f"    v_cmp_eq_u64 s[34:35], v[{GR(j)+2}:{GR(j)+3}], s[38:39]")
        a(f"    s_nop 0")
        a(f"    s_and_b64 s[34:35], s[34:35], vcc")
        a(f"    s_andn2_b64 s[{p}:{p+1}], s[{p}:{p+1}], s[34:35]")
    a(f"""    s_mov_b64 exec, -1
    s_or_b64 s[34:35], s[{pnd(0,0)}:{pnd(0,0)+1}], s[{pnd(0,1)}:{pnd(0,1)+1}]
    s_or_b64 s[36:37], s[{pnd(0,2)}:{pnd(0,2)+1}], s[{pnd(0,3)}:{pnd(0,3)+1}]
    s_or_b64 s[34:35], s[34:35], s[36:37]
    s_cbranch_scc0 L_READY
    s_add_u32 s33, s33, 1
    s_cmp_ge_u32 s33, {POLL_LIMIT}
    s_cbranch_scc1 L_END
    s_sleep {opt.sleep}
    s_branch L_POLL
L_READY:""")
    stamp(a, 5)
    a(f"""L_ROUND:
    v_add_u32 v2, s{S_RB}, v{VI}
    v_add_u32 v3, 16, v2
    v_mul_u32_u24 v4, {opt.rec}, v2""")
    for j in range(4):
        a(f"    v_lshrrev_b32 v{GR(j)+1}, 20, v{GR(j)}      ; count")
        a(f"    v_and_b32 v{GR(j)}, 0xfffff, v{GR(j)}")
        a(f"    v_cmp_gt_u32 s[{msk(0,j)}:{msk(0,j)+1}], v{GR(j)+1}, v2")
        a(f"    v_cmp_gt_u32 s[{msk(1,j)}:{msk(1,j)+1}], v{GR(j)+1}, v3")
        if opt.rec == 16:
            a(f"    v_lshl_add_u32 v{GR(j)+2}, v{GR(j)}, 4, v4")
        else:
            a(f"    v_mad_u32_u24 v{GR(j)+2}, v{GR(j)}, 12, v4")
    a(f"    s_add_u32 s30, s{S_RB}, 32")
    for j in range(4):
        a(f"    s_andn2_b64 s[{msk(0,j)}:{msk(0,j)+1}], s[{msk(0,j)}:{msk(0,j)+1}], s[{inv(j)}:{inv(j)+1}]")
        a(f"    s_mov_b64 s[{pnd(0,j)}:{pnd(0,j)+1}], s[{msk(0,j)}:{msk(0,j)+1}]")
        a(f"    s_andn2_b64 s[{msk(1,j)}:{msk(1,j)+1}], s[{msk(1,j)}:{msk(1,j)+1}], s[{inv(j)}:{inv(j)+1}]")
        a(f"    s_mov_b64 s[{pnd(1,j)}:{pnd(1,j)+1}], s[{msk(1,j)}:{msk(1,j)+1}]")
        a(f"    s_cbranch_scc0 L_NMORE{j}")
        a(f"    s_mov_b64 exec, s[{msk(1,j)}:{msk(1,j)+1}]")
        a(f"    v_cmp_lt_u32 vcc, s30, v{GR(j)+1}")
        a(f"    s_mov_b64 exec, -1")
        a(f"    s_cmp_eq_u64 vcc, 0")
        a(f"    s_cbranch_scc1 L_NMORE{j}")
        a(f"    v_mov_b32 v5, {L_FLAG}")
        a(f"    v_mov_b32 v6, 1")
        a(f"    ds_write_b32 v5, v6")
        a(f"L_NMORE{j}:")
    if opt.rec == 16:
        a(f"""    s_mov_b32 s33, 0
L_RLOAD:""")
        for h in range(2):
            for j in range(4):
                p = pnd(h, j)
                a(f"    s_cmp_eq_u64 s[{p}:{p+1}], 0")
                a(f"    s_cbranch_scc1 L_NL{h}{j}")
                a(f"    s_mov_b64 exec, s[{p}:{p+1}]")
                off = " offset:256" if h else ""
                a(f"    buffer_load_dwordx4 v[{rec(h,j)}:{rec(h,j)+3}], v{GR(j)+2}, s[{S_REC}:{S_REC+3}], 0 offen{off} {opt.hload}")
                a(f"L_NL{h}{j}:")
        a("    s_waitcnt vmcnt(0)")
        for h in range(2):
            for j in range(4):
                p = pnd(h, j)
                r = rec(h, j)
                a(f"    s_cmp_eq_u64 s[{p}:{p+1}], 0")
                a(f"    s_cbranch_scc1 L_NC{h}{j}")
                a(f"    s_mov_b64 exec, s[{p}:{p+1}]")
                a(f"    v_bitop3_b32 v5, v{r}, v{r+2}, v{r+3} bitop3:0x96")
                a(f"    v_cmp_eq_u32_sdwa s[34:35], v{r+2}, s{S_TAG8} src0_sel:BYTE_3 src1_sel:DWORD")
                a(f"    v_cmp_eq_u32 vcc, s{S_TAG}, v5")
                a(f"    s_nop 0")
                a(f"    s_and_b64 s[34:35], s[34:35], vcc")
                a(f"    s_andn2_b64 s[{p}:{p+1}], s[{p}:{p+1}], s[34:35]")
                a(f"L_NC{h}{j}:")
        a(f"    s_mov_b64 exec, -1")
        a(f"    s_or_b64 s[34:35], s[{pnd(0,0)}:{pnd(0,0)+1}], s[{pnd(0,1)}:{pnd(0,1)+1}]")
        for h in range(2):
            for j in range(4):
                if (h, j) in ((0, 0), (0, 1)): continue
                a(f"    s_or_b64 s[34:35], s[34:35], s[{pnd(h,j)}:{pnd(h,j)+1}]")
        a(f"""    s_cbranch_scc0 L_HAVE
    s_add_u32 s33, s33, 1
    s_cmp_ge_u32 s33, {POLL_LIMIT}
    s_cbranch_scc1 L_END
    s_sleep {opt.sleep}
    s_branch L_RLOAD
L_HAVE:""")
    else:
        for h in range(2):
            for j in range(4):
                p = msk(h, j)
                if h:
                    a(f"    s_cmp_eq_u64 s[{p}:{p+1}], 0")
                    a(f"    s_cbranch_scc1 L_NL{h}{j}")
                a(f"    s_mov_b64 exec, s[{p}:{p+1}]")
                off = " offset:192" if h else ""
                a(f"    buffer_load_dwordx3 v[{rec(h,j)}:{rec(h,j)+2}], v{GR(j)+2}, s[{S_REC}:{S_REC+3}], 0 offen{off} {opt.hload}")
                if h:
                    a(f"L_NL{h}{j}:")
        a("    s_mov_b64 exec, -1")
        a("    s_waitcnt vmcnt(0)")
    stamp(a, 6)
    a(f"""    ; table-row flags of this wave's 16 producers: loaded now, checked before the first gather
    global_load_dwordx2 v[22:23], v{VGF}, s[26:27] sc1""")
    for h in range(2):
        for j in range(4):
            m = msk(h, j)
            if h == 1:
                a(f"    s_cmp_eq_u64 s[{m}:{m+1}], 0")
                a(f"    s_cbranch_scc1 L_NB1R{j}")
            a(f"    s_mov_b64 exec, s[{m}:{m+1}]")
            a(f"    v_and_b32 v{DL+4*h+j}, 0xff, v{rec(h,j)+2}")
            a(f"    ds_add_rtn_u32 v{RANK+4*h+j}, v{DL+4*h+j}, v{VONE} offset:{L_CNT}")
            if h == 1:
                a(f"L_NB1R{j}:")
    a(f"""    s_mov_b64 exec, -1
    v_mov_b32 v6, {L_FLAG}
    v_cmp_gt_u32 vcc, {NPB}, v{VL}
    s_waitcnt lgkmcnt(0)
    s_barrier                               ; #5""")
    stamp(a, 12)
    a(f"""    ds_read_b32 v5, v{VCA} offset:{L_CNT}
    ds_read_b32 v6, v6
    s_waitcnt lgkmcnt(0)
    v_add_u32 v4, 7, v5
    v_lshrrev_b32 v4, 3, v4
    v_max_u32 v4, 1, v4
    v_cndmask_b32 v4, 0, v4, vcc
    v_readfirstlane_b32 s{S_MORE}, v6
    v_mov_b32 v{QEND}, v4""")
    dpp_scan(a, QEND)
    stamp(a, 13)
    a(f"""    v_sub_u32 v{QST}, v{QEND}, v4
    v_readlane_b32 s{S_P}, v{QEND}, 63
    v_lshlrev_b32 v3, 3, v{QST}
    s_mov_b32 s30, {L_SRC}
    s_mov_b32 s31, {L_E}""")
    for j in range(4):
        a(f"    ds_bpermute_b32 v{8+j}, v{DL+j}, v3")
    for j in range(4):
        a(f"    s_cmp_eq_u64 s[{M1+2*j}:{M1+2*j+1}], 0")
        a(f"    s_cbranch_scc1 L_NB1P{j}")
        a(f"    ds_bpermute_b32 v{12+j}, v{DL+4+j}, v3")
        a(f"L_NB1P{j}:")
    a(f"""    ; padding slots: waves 0..4 take 8 nodes each, lane = (node, slot); wave 5 fills the tail
    s_cmp_ge_u32 s3, 5
    s_cbranch_scc1 L_NOPLK
    s_lshl_b32 s32, s3, 3
    v_lshrrev_b32 v16, 3, v{VL}
    v_add_u32 v16, s32, v16
    v_lshlrev_b32 v16, 2, v16               ; 4*node
    v_add_u32 v17, v3, v5
    v_lshlrev_b32 v18, 3, v{QEND}
    ds_bpermute_b32 v17, v16, v17
    ds_bpermute_b32 v18, v16, v18
L_NOPLK:
    s_mul_i32 s{S_TS}, s{S_P}, s3
    s_lshr_b32 s{S_TS}, s{S_TS}, 4
    s_add_u32 s32, s3, 1
    s_mul_i32 s{S_TE}, s{S_P}, s32
    s_lshr_b32 s{S_TE}, s{S_TE}, 4
    v_cmp_ge_u32 vcc, s{S_TS}, v{QEND}
    s_waitcnt lgkmcnt(0)
    s_bcnt1_i32_b64 s{S_N}, vcc""")
    for h in range(2):
        for j in range(4):
            m = msk(h, j)
            r = rec(h, j)
            if h == 1:
                a(f"    s_cmp_eq_u64 s[{m}:{m+1}], 0")
                a(f"    s_cbranch_scc1 L_NB1S{j}")
            a(f"    s_mov_b64 exec, s[{m}:{m+1}]")
            a(f"    v_add_u32 v{8+4*h+j}, v{8+4*h+j}, v{RANK+4*h+j}")
            a(f"    v_bfe_u32 v{r+2}, v{r+2}, 8, 16")
            a(f"    v_lshl_add_u32 v19, v{8+4*h+j}, 2, s30")
            a(f"    v_lshl_add_u32 v21, v{8+4*h+j}, 3, s31")
            a(f"    ds_write_b32 v19, v{r+2}")
            a(f"    ds_write_b64 v21, v[{r}:{r+1}]")
            if h == 1:
                a(f"L_NB1S{j}:")
    stamp(a, 14)
    a(f"""    s_mov_b64 exec, -1
    v_mov_b32 v11, {N}
    v_mov_b32 v12, 0
    v_mov_b32 v13, 0
    s_cmp_gt_u32 s3, 5
    s_cbranch_scc1 L_NOPAD
    v_and_b32 v16, 7, v{VL}
    v_add_u32 v16, v17, v16
    v_cmp_lt_u32 vcc, v16, v18
    s_cmp_lt_u32 s3, 5
    s_cbranch_scc1 L_PADW
    s_lshl_b32 s32, s{S_P}, 3
    v_add_u32 v16, s32, v{VL}
    s_mov_b64 vcc, -1
L_PADW:
    v_lshl_add_u32 v14, v16, 2, s30
    v_lshl_add_u32 v15, v16, 3, s31
    s_mov_b64 exec, vcc
    ds_write_b32 v14, v11
    ds_write_b64 v15, v[12:13]
    s_mov_b64 exec, -1
L_NOPAD:
    v_readlane_b32 s{S_SEGEND}, v{QEND}, s{S_N}
    s_lshl_b32 s32, s{S_TS}, 5
    v_add_u32 v2, s32, v{SRB}
    s_lshl_b32 s32, s{S_TS}, 1
    v_mad_u32_u24 v3, v{EM}, s32, v{EB}
    s_mul_i32 s32, s{S_N}, 272
    v_add_u32 v{TMP}, s32, v{APA}
    s_add_u32 s32, s{S_N}, s3
    s_lshl_b32 s32, s32, 9
    v_add_u32 v{SLA}, s32, v{SLB}
    s_min_u32 s{S_SEGEND}, s{S_SEGEND}, s{S_TE}
    s_sub_u32 s{S_REM}, s{S_SEGEND}, s{S_TS}
    s_sub_u32 s{S_REM}, s{S_REM}, 1""")
    S = lambda k: 8 + 6 * (k % 8)
    Da, Db, T = 56, 60, 64
    NUM, DEN = 68, 72
    PA, PB_, UA, UB, SA, SB = 76, 78, 80, 82, 84, 86
    a(f"""    s_mov_b32 s33, 0
    s_cmp_eq_u32 s3, 15
    s_cselect_b32 s34, 0xfc00fc00, 0
    s_mov_b32 s35, s34
L_GPOLL:
    s_waitcnt vmcnt(0)
    v_cmp_eq_u64 s[36:37], v[22:23], s[{S_TAG}:{S_TAG+1}]
    s_nop 0
    s_or_b64 s[36:37], s[36:37], s[34:35]
    s_cmp_eq_u64 s[36:37], -1
    s_cbranch_scc1 L_GOK
    s_add_u32 s33, s33, 1
    s_cmp_ge_u32 s33, {POLL_LIMIT}
    s_cbranch_scc1 L_END
    s_sleep {opt.sleep}
    global_load_dwordx2 v[22:23], v{VGF}, s[26:27] sc1
    s_branch L_GPOLL
L_GOK:""")
    stamp(a, 15)
    a(f"""    s_waitcnt lgkmcnt(0)
    s_barrier                               ; #6""")
    stamp(a, 7)
    cstamp(a, 10)
    pairs = [IDXA, IDXB, 56, 58, 60, 62]
    for k in range(6):
        a(f"    ds_read_b32 v{pairs[k]}, v2 offset:{16*k}")
    a(f"""    ds_read_b128 v[{AC}:{AC+3}], v{TMP}
    ds_read_b128 v[{ANX}:{ANX+3}], v{TMP} offset:272
    ds_read_b64 v[{A0}:{A0+1}], v3
    ds_read_b64 v[{A1}:{A1+1}], v3 offset:32""")
    for k in range(4):
        a(f"    v_mov_b32 v{56+2*k+1}, v{IDXA+1}")
    for k in range(8):
        a(f"    v_pk_mov_b32 v[{S(k)}:{S(k)+1}], v[{WC}:{WC+1}], v[{WC}:{WC+1}] op_sel:[0,1]")
    for r in range(0, 8, 2):
        a(f"    v_pk_mov_b32 v[{NUM+r}:{NUM+r+1}], 0, 0")
    for k in range(6):
        a(f"    s_waitcnt lgkmcnt({9-k})")
        a(f"    buffer_load_dwordx4 v[{S(k)+2}:{S(k)+5}], v[{pairs[k]}:{pairs[k]+1}], s[{S_G}:{S_G+3}], 0 idxen offen {opt.gload}")
    a(f"""    s_cmp_ge_u32 s3, 5
    s_cbranch_scc1 L_NOSEG
    v_cvt_f32_u32 v76, s{S_P}
    v_rcp_f32 v76, v76
    v_lshlrev_b32 v77, 4, v{QST}
    v_add_u32 v77, 16, v77
    v_cvt_f32_u32 v77, v77
    v_lshlrev_b32 v78, 4, v{QEND}
    v_cvt_f32_u32 v78, v78
    v_add_f32 v77, -0.5, v77
    v_add_f32 v78, -0.5, v78
    v_mul_f32 v77, v77, v76
    v_mul_f32 v78, v78, v76
    v_cvt_u32_f32 v77, v77
    v_cvt_u32_f32 v78, v78
    v_lshrrev_b32 v4, 3, v0                 ; node
    v_sub_u32 v78, v78, v77
    v_add_u32 v78, 1, v78
    v_add_u32 v77, v77, v{VL}
    v_lshl_or_b32 v77, v78, 16, v77
    v_lshlrev_b32 v5, 2, v4
    ds_bpermute_b32 v5, v5, v77
    v_and_b32 v6, 7, v0
    v_lshlrev_b32 v6, 4, v6
    v_mul_u32_u24 v4, 272, v4
    v_lshl_add_u32 v4, v6, 1, v4
    v_add_u32 v4, {L_U}, v4
    s_waitcnt lgkmcnt(0)
    v_lshrrev_b32 v7, 16, v5
    v_and_b32 v5, 0xffff, v5
    v_lshl_add_u32 v5, v5, 9, v6
L_NOSEG:""")
    if opt.prio:
        a(f"    s_setprio 3")
        a(f"    s_sub_u32 s{S_BLK}, s{S_TE}, s{S_TS}")
    a(f"    s_waitcnt lgkmcnt(0)")
    a("L_LOOP:")
    for k in range(0, 8, 2):
        sa, sb = S(k), S(k + 1)
        pa, pb = S(k - 2), S(k - 1)
        a(f"""    s_waitcnt vmcnt({4 if opt.onewait else 5})
    v_mfma_f32_16x16x32_bf16 v[{Da}:{Da+3}], v[{A0}:{A0+3}], v[{sa}:{sa+3}], v[{AC}:{AC+3}]
    ds_read_b32 v{IDXA}, v2 offset:{16*(k+6)}
    ds_read_b32 v{IDXB}, v2 offset:{16*(k+7)}
    v_lshlrev_b32 v{T}, 16, v{sa+4}
    v_lshlrev_b32 v{T+1}, 16, v{sa+5}
    {"s_nop 0" if opt.onewait == 2 else ("" if opt.onewait else "s_waitcnt vmcnt(4)")}
    v_mfma_f32_16x16x32_bf16 v[{Db}:{Db+3}], v[{A1}:{A1+3}], v[{sb}:{sb+3}], v[{AC}:{AC+3}]
    v_lshlrev_b32 v{T+2}, 16, v{sb+4}
    v_lshlrev_b32 v{T+3}, 16, v{sb+5}
    s_sub_u32 s{S_REM}, s{S_REM}, 1
    ds_read_b64 v[{A0}:{A0+1}], v3 offset:{32*(k+2)}
    ds_read_b64 v[{A1}:{A1+1}], v3 offset:{32*(k+3)}""")
        for i in range(4):
            a(f"    v_exp_f32 v{Da+i}, v{Da+i} clamp")
        a(f"""    s_waitcnt lgkmcnt(2)
    buffer_load_dwordx4 v[{pa+2}:{pa+5}], v[{IDXA}:{IDXA+1}], s[{S_G}:{S_G+3}], 0 idxen offen {opt.gload}
    buffer_load_dwordx4 v[{pb+2}:{pb+5}], v[{IDXB}:{IDXB+1}], s[{S_G}:{S_G+3}], 0 idxen offen {opt.gload}""")
        for i in range(4):
            a(f"    v_exp_f32 v{Db+i}, v{Db+i} clamp")
        c = f"s[{S_C60}:{S_C60+1}]"
        a(f"""    v_pk_add_f32 v[{Da}:{Da+1}], v[{Da}:{Da+1}], {c}
    v_pk_add_f32 v[{Da+2}:{Da+3}], v[{Da+2}:{Da+3}], {c}
    v_pk_add_f32 v[{Db}:{Db+1}], v[{Db}:{Db+1}], {c}
    v_pk_add_f32 v[{Db+2}:{Db+3}], v[{Db+2}:{Db+3}], {c}
    v_pk_mul_f32 v[{PA}:{PA+1}], v[{Da}:{Da+1}], v[{Db}:{Db+1}]
    v_pk_mul_f32 v[{PB_}:{PB_+1}], v[{Da+2}:{Da+3}], v[{Db+2}:{Db+3}]
    v_pk_mul_f32 v[{UA}:{UA+1}], v[{T}:{T+1}], v[{Db}:{Db+1}]
    v_rcp_f32 v{PA}, v{PA}
    v_rcp_f32 v{PA+1}, v{PA+1}
    v_pk_mul_f32 v[{UB}:{UB+1}], v[{sa+4}:{sa+5}], v[{Db+2}:{Db+3}]
    v_rcp_f32 v{PB_}, v{PB_}
    v_rcp_f32 v{PB_+1}, v{PB_+1}
    v_pk_fma_f32 v[{UA}:{UA+1}], v[{T+2}:{T+3}], v[{Da}:{Da+1}], v[{UA}:{UA+1}]
    v_pk_fma_f32 v[{UB}:{UB+1}], v[{sb+4}:{sb+5}], v[{Da+2}:{Da+3}], v[{UB}:{UB+1}]
    v_pk_add_f32 v[{SA}:{SA+1}], v[{Da}:{Da+1}], v[{Db}:{Db+1}]
    v_pk_add_f32 v[{SB}:{SB+1}], v[{Da+2}:{Da+3}], v[{Db+2}:{Db+3}]
    v_pk_fma_f32 v[{NUM}:{NUM+1}], v[{PA}:{PA+1}], v[{UA}:{UA+1}], v[{NUM}:{NUM+1}]
    v_pk_fma_f32 v[{NUM+2}:{NUM+3}], v[{PB_}:{PB_+1}], v[{UB}:{UB+1}], v[{NUM+2}:{NUM+3}]
    v_pk_fma_f32 v[{DEN}:{DEN+1}], v[{PA}:{PA+1}], v[{SA}:{SA+1}], v[{DEN}:{DEN+1}]
    v_pk_fma_f32 v[{DEN+2}:{DEN+3}], v[{PB_}:{PB_+1}], v[{SB}:{SB+1}], v[{DEN+2}:{DEN+3}]
    s_waitcnt lgkmcnt(0)
    s_cbranch_scc1 L_SB{k}
L_RB{k}:""")
        if k == 6:
            a(f"    v_add_u32 v2, 128, v2")
            a(f"    v_add_u32 v3, v{INCE}, v3")
            if opt.prio:
                t1, t2, t3 = opt.pth
                a(f"""    s_sub_u32 s{S_BLK}, s{S_BLK}, 4
    s_cmp_gt_i32 s{S_BLK}, {t1}
    s_cbranch_scc1 L_LOOP
    s_setprio 2
    s_cmp_gt_i32 s{S_BLK}, {t2}
    s_cbranch_scc1 L_LOOP
    s_setprio 1
    s_cmp_gt_i32 s{S_BLK}, {t3}
    s_cbranch_scc1 L_LOOP
    s_setprio 0""")
            a(f"    s_branch L_LOOP")
    for k in range(0, 8, 2):
        a(f"L_SB{k}:")
        for r in range(4):
            a(f"    v_permlane32_swap_b32 v{NUM+r}, v{DEN+r}")
        a(f"""    v_pk_add_f32 v[{NUM}:{NUM+1}], v[{NUM}:{NUM+1}], v[{DEN}:{DEN+1}]
    v_pk_add_f32 v[{NUM+2}:{NUM+3}], v[{NUM+2}:{NUM+3}], v[{DEN+2}:{DEN+3}]
    s_add_u32 s{S_N}, s{S_N}, 1
    s_add_u32 s36, s{S_N}, 1
    v_permlane16_swap_b32 v{NUM}, v{NUM+2}
    v_permlane16_swap_b32 v{NUM+1}, v{NUM+3}
    v_readlane_b32 s37, v{QEND}, s{S_N}
    s_mul_i32 s36, s36, 272
    v_pk_add_f32 v[{DEN}:{DEN+1}], v[{NUM}:{NUM+1}], v[{NUM+2}:{NUM+3}]
    v_add_u32 v{TMP}, s36, v{APA}
    s_cmp_eq_u32 s{S_SEGEND}, s{S_TE}
    ds_write_b64 v{SLA}, v[{DEN}:{DEN+1}]
    s_cbranch_scc1 L_DONE
    v_pk_mov_b32 v[{AC}:{AC+1}], v[{ANX}:{ANX+1}], v[{ANX}:{ANX+1}] op_sel:[0,1]
    v_pk_mov_b32 v[{AC+2}:{AC+3}], v[{ANX+2}:{ANX+3}], v[{ANX+2}:{ANX+3}] op_sel:[0,1]
    v_add_u32 v{SLA}, {SLOT_STR}, v{SLA}
    s_min_u32 s37, s37, s{S_TE}
    v_pk_mov_b32 v[{NUM}:{NUM+1}], 0, 0
    v_pk_mov_b32 v[{NUM+2}:{NUM+3}], 0, 0
    ds_read_b128 v[{ANX}:{ANX+3}], v{TMP}
    v_pk_mov_b32 v[{DEN}:{DEN+1}], 0, 0
    v_pk_mov_b32 v[{DEN+2}:{DEN+3}], 0, 0
    s_sub_u32 s{S_REM}, s37, s{S_SEGEND}
    s_sub_u32 s{S_REM}, s{S_REM}, 1
    s_mov_b32 s{S_SEGEND}, s37
    s_branch L_RB{k}""")
    a("L_DONE:")
    if opt.prio:
        a("    s_setprio 0")
    stamp(a, 8)
    cstamp(a, 11)
    a(f"""    s_waitcnt vmcnt(0) lgkmcnt(0)
    s_barrier                               ; #7
    s_cmp_ge_u32 s3, 5
    s_cbranch_scc1 L_MERGED
    ds_read_b128 v[24:27], v5 offset:{L_SLOT}
    ds_read_b128 v[28:31], v5 offset:{L_SLOT+128}
    ds_read_b128 v[32:35], v5 offset:{L_SLOT+256}
    ds_read_b128 v[36:39], v5 offset:{L_SLOT+384}
    ds_read_b128 v[40:43], v4
    ds_read_b128 v[44:47], v4 offset:16
    v_add_u32 v5, {SLOT_STR}, v5
    s_mov_b32 s36, 1
L_MERGE:
    v_cmp_lt_u32 vcc, s36, v7
    s_nop 1
    s_cmp_eq_u64 vcc, 0
    s_cbranch_scc1 L_MERGE_END
    s_mov_b64 exec, vcc
    ds_read_b128 v[8:11], v5 offset:{L_SLOT}
    ds_read_b128 v[12:15], v5 offset:{L_SLOT+128}
    ds_read_b128 v[16:19], v5 offset:{L_SLOT+256}
    ds_read_b128 v[20:23], v5 offset:{L_SLOT+384}
    v_add_u32 v5, {SLOT_STR}, v5
    s_add_u32 s36, s36, 1
    s_waitcnt lgkmcnt(0)""")
    for r in range(8):
        a(f"    v_pk_add_f32 v[{24+2*r}:{25+2*r}], v[{24+2*r}:{25+2*r}], v[{8+2*r}:{9+2*r}]")
    a(f"""    s_mov_b64 exec, -1
    s_branch L_MERGE
L_MERGE_END:
    s_waitcnt lgkmcnt(0)
    s_or_b32 s36, s{S_RB}, s{S_MORE}
    s_cmp_eq_u32 s36, 0
    s_cbranch_scc1 L_MERGED
    s_mul_i32 s36, s2, {320*64}
    s_add_u32 s36, s36, {TOT_OFF}
    v_lshl_add_u32 v48, v0, 6, s36
    s_cmp_eq_u32 s{S_RB}, 0
    s_cbranch_scc1 L_NOPREV""")
    for r in range(4):
        a(f"    global_load_dwordx4 v[{8+4*r}:{11+4*r}], v48, s[26:27] offset:{16*r} sc1")
    a("    s_waitcnt vmcnt(0)")
    for r in range(8):
        a(f"    v_pk_add_f32 v[{24+2*r}:{25+2*r}], v[{24+2*r}:{25+2*r}], v[{8+2*r}:{9+2*r}]")
    a(f"""L_NOPREV:
    s_cmp_eq_u32 s{S_MORE}, 0
    s_cbranch_scc1 L_MERGED""")
    for r in range(4):
        a(f"    global_store_dwordx4 v48, v[{24+4*r}:{27+4*r}], s[26:27] offset:{16*r} sc1")
    a(f"""    s_waitcnt vmcnt(0)
L_MERGED:
    s_cmp_eq_u32 s{S_MORE}, 0
    s_cbranch_scc1 L_EPI
    s_add_u32 s{S_RB}, s{S_RB}, 32
    s_cmp_lg_u32 s3, 0
    s_cbranch_scc1 L_NOCLR
    v_mov_b32 v9, 0
    v_lshlrev_b32 v10, 2, v{VL}
    ds_write_b32 v10, v9 offset:{L_CNT}
    v_mov_b32 v10, {L_FLAG}
    ds_write_b32 v10, v9
L_NOCLR:""")
    gran_addr(a)
    a(f"""    s_lshl_b32 s30, s3, 8
    s_add_u32 s30, s30, {GF_OFF}
    v_lshl_add_u32 v{VGF}, v{VI}, 4, s30
    v_mov_b32 v{VONE}, 1
    v_lshlrev_b32 v{VCA}, 2, v{VL}""")
    for j in range(4):
        a(f"    global_load_dwordx4 v[{GR(j)}:{GR(j)+3}], v2, s[26:27] offset:{128*j} sc1")
    a(f"""    s_waitcnt vmcnt(0) lgkmcnt(0)
    s_barrier
    s_branch L_ROUND
L_EPI:
    s_cmp_ge_u32 s3, 5
    s_cbranch_scc1 L_FIN
    s_mov_b32 s36, {EPS60:#x}               ; 1e-6 * 2^60""")
    nreg = [24 + c // 2 + 4 * (c % 2) for c in range(8)]
    dreg = [x + 8 for x in nreg]
    for c in range(8):
        a(f"    v_add_f32 v{dreg[c]}, s36, v{dreg[c]}")
        a(f"    v_rcp_f32 v{dreg[c]}, v{dreg[c]}")
    for c in range(8):
        xr = XR + c // 2
        if c % 2 == 0:
            a(f"    v_lshlrev_b32 v{8+c}, 16, v{xr}")
        else:
            a(f"    v_and_b32 v{8+c}, 0xffff0000, v{xr}")
    for c in range(8):
        a(f"    v_fma_f32 v{40+c}, v{nreg[c]}, v{dreg[c]}, v{40+c}")
    for c in range(8):
        a(f"    v_cmp_lt_f32 s[{48+2*c}:{49+2*c}], 0, v{40+c}")
        a(f"    v_mul_f32 v{16+c}, 0, v{40+c}")
    for c in range(8):
        a(f"    v_cndmask_b32 v{40+c}, v{16+c}, v{40+c}, s[{48+2*c}:{49+2*c}]")
    for c in range(8):
        a(f"    v_add_f32 v{40+c}, v{8+c}, v{40+c}")
    for c in range(4):
        a(f"    v_cvt_pk_bf16_f32 v{16+c}, v{40+2*c}, v{41+2*c}")
    a(f"""    v_lshlrev_b32 v4, 4, v0
    s_mul_i32 s36, s2, {NPB*128}
    v_add_u32 v4, s36, v4
    global_store_dwordx4 v4, v[16:19], s[22:23] {opt.ostore}
    s_or_b32 s36, s2, s3
    s_cmp_lg_u32 s36, 0
    s_cbranch_scc1 L_FIN
    v_mov_b32 v4, {GEN_OFF}
    v_mov_b32 v6, s{S_TAG}
    v_mov_b32 v7, s{S_TAG+1}
    s_mov_b64 exec, 1
    global_store_dwordx2 v4, v[6:7], s[26:27] sc1
L_FIN:""")
    stamp_flush(a)
    a("""L_END:
    s_endpgm
""")

HEADER = """; GatedGCN edge-featured MPNN layer, one launch, one workgroup per 40 destination nodes.
"""

def main():
    global PROF
    ap = argparse.ArgumentParser()
    ap.add_argument("-o", default="standalone__edge_featured_mpnn_gatedgcn__graph.s")
    ap.add_argument("--store", default="sc1")
    ap.add_argument("--hload", default="sc1")
    ap.add_argument("--gload", default="")
    ap.add_argument("--touch", type=int, default=0)
    ap.add_argument("--otouch", type=int, default=0)
    ap.add_argument("--onewait", type=int, default=0)
    ap.add_argument("--wsbase", type=lambda x: int(x, 0), default=0)
    ap.add_argument("--wlate", type=int, default=1)
    ap.add_argument("--rec", type=int, default=12)
    ap.add_argument("--ostore", default="sc1")
    ap.add_argument("--prio", type=int, default=1)
    ap.add_argument("--pth", type=int, nargs=3, default=[15, 10, 5])
    ap.add_argument("--sleep", type=int, default=2)
    ap.add_argument("--prof", action="store_true")
    ap.add_argument("--dbg", action="store_true")
    opt = ap.parse_args()
    PROF = opt.prof or opt.dbg
    global DBG
    DBG = opt.dbg
    a = Asm()
    a(HEADER.rstrip())
    a(f"; @launch grid=({NB},1,1) block=(1024,1,1) lds={L_END}")
    a('.amdgcn_target "amdgcn-amd-amdhsa--gfx950"')
    a(".text")
    entry(a, opt)
    phase_a_bin(a, opt)
    phase_a_table(a, opt)
    phase_b(a, opt)
    a(f""".section .rodata,"a"
.p2align 6
.amdhsa_kernel {KNAME}
  .amdhsa_next_free_vgpr 128
  .amdhsa_next_free_sgpr {98 if PROF else 96}
  .amdhsa_accum_offset 128
  .amdhsa_group_segment_fixed_size 0
  .amdhsa_kernarg_size 96
  .amdhsa_user_sgpr_count 2
  .amdhsa_user_sgpr_kernarg_segment_ptr 1
  .amdhsa_system_sgpr_workgroup_id_x 1
  .amdhsa_float_denorm_mode_32 3
  .amdhsa_dx10_clamp 0
.end_amdhsa_kernel""")
    open(opt.o, "w").write(a.text())
    print("wrote", opt.o, "lds", L_END)

if __name__ == "__main__":
    main()
```

```python
import argparse, struct

KNAME = "standalone__edge_featured_mpnn_gatedgcn__graph_kernel"
N, D, E = 10000, 64, 640000
NB, NPB = 250, 40
CH = 2560
GEN_OFF, G_OFF, GF_OFF, GRAN_OFF, REC_OFF, TOT_OFF = 0, 0x1000, 0x274000, 0x280000, 0x380000, 0xD80000
PROF_OFF = 0x1300000
NLOG2E = 0xBFB8AA3B
BIG, NBIG = 0x71800000, 0xF1800000
SHIFT = 60
C60 = (127 - SHIFT) << 23
EPS60 = struct.unpack("<I", struct.pack("<f", 1e-6 * 2.0 ** SHIFT))[0]
FSHIFT = struct.unpack("<I", struct.pack("<f", -float(SHIFT)))[0]
NWV = 16
POLL_LIMIT = 1 << 17
CHN = [0, 2, 1, 3]

SLOT_STR = 512
L_SLOT = 0
L_CNT = L_SLOT + (NPB + NWV) * SLOT_STR
L_ZREG = L_CNT + 256
L_FLAG = L_ZREG + 512
L_GCNT = L_FLAG + 4
L_ZEND = L_FLAG + 16
L_WCB = 29504
L_AP = 30080
L_U = L_AP + 48 * 272
L_SRC = L_U + 48 * 272
NSLOT = 250 * 32 + 320 + 64
L_E = L_SRC + NSLOT * 4
L_END = L_E + NSLOT * 8
A_HIST = L_SRC
A_OFFS = A_HIST + 1024
A_REC = A_OFFS + 1024
A_W = A_REC + CH * 16
WIMG = 64 * 144
A_X = A_W + 4 * WIMG
A_G = A_X + 48 * 144
assert A_G + 48 * 272 <= L_END <= 163840
assert all(x % 16 == 0 for x in (L_WCB, L_AP, L_U, L_SRC, L_E, A_REC, A_W, A_X, A_G))

SLA, TMP, INCE, APA = 88, 89, 90, 91
IDXA, IDXB = 92, 94
AC, A0, A1, ANX = 96, 100, 104, 108
XR = 112
QEND, QST = 116, 117
WC = 118
EB, EM, SRB, SLB = 120, 121, 122, 123
VPROF = 124
VI, VQ, VL = 125, 126, 127
S_TAG = 28
S_REC = 40
S_G = 44
M0, M1 = 48, 56
S_INV = 64
S_RB, S_MORE, S_P, S_TS, S_TE, S_N, S_SEGEND, S_REM = 68, 69, 70, 71, 72, 73, 74, 75
S_BLK, S_TAG8 = 76, 77
S_C60 = 78
P0M, P1M = 80, 88

class Asm:
    def __init__(self): self.l = []
    def __call__(self, s=""):
        self.l.extend(s.split("\n"))
    def text(self): return "\n".join(self.l) + "\n"

PROF = False
def stamp(a, idx):
    if PROF:
        a(f"    s_memrealtime s[96:97]")
        a(f"    s_waitcnt lgkmcnt(0)")
        a(f"    v_writelane_b32 v{VPROF}, s96, {idx}")

def cstamp(a, idx):
    if PROF:
        a(f"    s_memtime s[96:97]")
        a(f"    s_waitcnt lgkmcnt(0)")
        a(f"    v_writelane_b32 v{VPROF}, s96, {idx}")

DBG = False
def stamp_flush(a):
    if not PROF: return
    stamp(a, 9)
    if DBG:
        a(f"""    s_waitcnt vmcnt(0) lgkmcnt(0)
    v_readlane_b32 s30, v{VPROF}, 0
    v_readlane_b32 s31, v{VPROF}, 10
    v_readlane_b32 s32, v{VPROF}, 11
    v_readlane_b32 s33, v{VPROF}, 4
    v_readlane_b32 s34, v{VPROF}, 5
    v_readlane_b32 s35, v{VPROF}, 6
    s_nop 3
    s_not_b32 s30, s30
    s_sub_u32 s32, s32, s31
    s_cmp_lt_u32 s3, 10
    s_cselect_b32 s33, s33, 0
    s_cselect_b32 s34, s34, 0
    s_cselect_b32 s35, s35, 0
    v_writelane_b32 v{VPROF}, s30, 0
    v_writelane_b32 v{VPROF}, s32, 10
    v_writelane_b32 v{VPROF}, s33, 11
    v_writelane_b32 v{VPROF}, s34, 12
    v_writelane_b32 v{VPROF}, s35, 13
    s_mov_b64 exec, 0xffff
    v_lshlrev_b32 v2, 2, v{VL}
    global_atomic_umax v2, v{VPROF}, s[24:25]
    s_waitcnt vmcnt(0)""")
        return
    a(f"""    s_waitcnt vmcnt(0) lgkmcnt(0)
    s_mov_b64 exec, 0xffff
    s_lshl_b32 s30, s2, 4
    s_add_u32 s30, s30, s3
    s_lshl_b32 s30, s30, 6
    s_add_u32 s30, s30, {PROF_OFF}
    v_lshl_add_u32 v2, v{VL}, 2, s30
    global_store_dword v2, v{VPROF}, s[26:27]
    s_waitcnt vmcnt(0)""")

def dpp_scan(a, v):
    for sh in (1, 2, 4, 8):
        a(f"    s_nop 1")
        a(f"    v_add_u32_dpp v{v}, v{v}, v{v} row_shr:{sh} row_mask:0xf bank_mask:0xf bound_ctrl:0")
    a("    s_nop 1")
    a(f"    v_add_u32_dpp v{v}, v{v}, v{v} row_bcast:15 row_mask:0xa bank_mask:0xf")
    a("    s_nop 1")
    a(f"    v_add_u32_dpp v{v}, v{v}, v{v} row_bcast:31 row_mask:0xc bank_mask:0xf")
    a("    s_nop 1")

def entry(a, opt):
    a(f"""
.globl {KNAME}
.p2align 8
.type {KNAME},@function
{KNAME}:
    s_cmp_ge_u32 s2, {NB}
    s_cbranch_scc1 L_END
    s_load_dwordx16 s[4:19], s[0:1], 0
    s_load_dwordx8 s[20:27], s[0:1], 64
    v_lshrrev_b32 v1, 6, v0
    v_and_b32 v{VL}, 63, v0
    v_readfirstlane_b32 s3, v1
    v_lshrrev_b32 v{VQ}, 4, v{VL}
    v_and_b32 v{VI}, 15, v{VL}
    v_lshlrev_b32 v{IDXA+1}, 4, v{VI}
    v_mov_b32 v{IDXB+1}, v{IDXA+1}
    v_and_b32 v2, 3, v{VI}                  ; r
    v_lshrrev_b32 v3, 2, v{VI}              ; e
    v_cmp_eq_u32 vcc, v2, v{VQ}
    v_lshlrev_b32 v4, 3, v3
    v_add_u32 v4, {L_E}, v4
    v_mov_b32 v5, {L_ZREG}
    v_cndmask_b32 v{EB}, v5, v4, vcc
    v_mov_b32 v5, 32
    v_cndmask_b32 v{EM}, 0, v5, vcc
    v_lshlrev_b32 v{INCE}, 3, v{EM}
    v_cmp_eq_u32 vcc, v3, v{VQ}
    v_mov_b32 v5, 0x3f80
    v_lshrrev_b32 v6, 1, v2
    v_lshlrev_b32 v6, 4, v6
    v_lshlrev_b32 v5, v6, v5
    v_cndmask_b32 v5, 0, v5, vcc
    v_and_b32 v6, 1, v2                     ; r%2: 0 -> first register, 1 -> second
    v_cmp_eq_u32 vcc, 0, v6
    v_lshlrev_b32 v{APA}, 4, v{VI}
    v_add_u32 v{APA}, {L_AP}, v{APA}
    v_cndmask_b32 v{A0+2}, 0, v5, vcc
    v_cndmask_b32 v{A0+3}, v5, 0, vcc
    v_mov_b32 v{A1+2}, v{A0+2}
    v_mov_b32 v{A1+3}, v{A0+3}
    v_lshlrev_b32 v{SLB}, 3, v{VL}
    v_lshlrev_b32 v{SRB}, 2, v{VQ}
    v_add_u32 v{SRB}, {L_SRC}, v{SRB}
    s_mov_b32 s{S_RB}, 0
    s_mov_b32 s{S_C60}, {C60:#x}
    s_mov_b32 s{S_C60+1}, {C60:#x}
    s_cmp_eq_u32 s3, 15
    s_cselect_b32 s{S_INV+1}, 0xffff0000, 0
    s_cselect_b32 s{S_INV+3}, -1, 0
    s_mov_b32 s{S_INV}, 0
    s_mov_b32 s{S_INV+2}, 0""")
    if PROF:
        a(f"    v_mov_b32 v{VPROF}, 0")
    stamp(a, 0)
    a(f"""    s_cmp_ge_u32 s3, 10
    s_cbranch_scc1 L_TABLE""")

def gran_addr(a, dst=2):
    a(f"""    s_and_b32 s30, s2, 7
    s_lshl_b32 s30, s30, 5
    s_lshr_b32 s31, s2, 3
    s_or_b32 s31, s30, s31                  ; h
    s_lshr_b32 s30, s31, 3
    s_lshl_b32 s30, s30, 15
    s_and_b32 s31, s31, 7
    s_lshl_b32 s31, s31, 4
    s_add_u32 s30, s30, s31
    s_lshl_b32 s31, s3, 11
    s_add_u32 s30, s30, s31
    s_add_u32 s30, s30, {GRAN_OFF}
    v_lshl_add_u32 v{dst}, v{VQ}, 9, s30""")

VGA, VGF, VONE, VCA = 96, 97, 98, 99

def late_setup(a, opt):
    a(f"""    s_add_u32 s{S_REC}, s26, {REC_OFF}
    s_addc_u32 s{S_REC+1}, s27, 0
    s_mov_b32 s{S_REC+2}, {E*opt.rec}
    s_mov_b32 s{S_REC+3}, 0x20000
    s_add_u32 s{S_G}, s26, {G_OFF}
    s_addc_u32 s{S_G+1}, s27, 0
    s_or_b32 s{S_G+1}, s{S_G+1}, 0x01000000  ; stride 256
    s_mov_b32 s{S_G+2}, {N+1}
    s_mov_b32 s{S_G+3}, 0x20000""")
    gran_addr(a, VGA)
    a(f"""    s_lshl_b32 s30, s3, 8
    s_add_u32 s30, s30, {GF_OFF}
    v_lshl_add_u32 v{VGF}, v{VI}, 4, s30
    v_mov_b32 v{VONE}, 1
    v_lshlrev_b32 v{VCA}, 2, v{VL}""")

def phase_a_bin(a, opt):
    st = opt.store
    QR = lambda j: 16 + 4 * j
    a(f"""    ; ================= phase A, binning waves (tid < 640)
    s_mul_i32 s30, s2, {CH*4}
    v_lshlrev_b32 v2, 4, v0
    v_add_u32 v3, s30, v2
    s_lshl_b32 s31, s30, 1
    v_lshlrev_b32 v4, 5, v0
    v_add_u32 v4, s31, v4
    s_mul_i32 s32, s2, {NPB*128}
    v_add_u32 v64, s32, v2
    v_mov_b32 v6, 0
    v_lshlrev_b32 v7, 2, v0
    s_waitcnt lgkmcnt(0)""")
    if opt.wsbase:
        a(f"    s_add_u32 s26, s26, {opt.wsbase}")
        a(f"    s_addc_u32 s27, s27, 0")
    stamp(a, 1)
    a(f"""    global_load_dwordx4 v[8:11], v3, s[10:11]
    s_load_dwordx2 s[{S_TAG}:{S_TAG+1}], s[26:27], {GEN_OFF}
    s_cmp_ge_u32 s3, 4
    s_cbranch_scc1 L_NOZH
    ds_write_b32 v7, v6 offset:{A_HIST}
L_NOZH:
    s_cmp_lg_u32 s3, 4
    s_cbranch_scc1 L_NOZC
    v_mov_b32 v32, 0
    v_mov_b32 v33, 0
    v_mov_b32 v34, 0
    v_mov_b32 v35, 0
    v_lshlrev_b32 v36, 4, v{VL}
    v_cmp_gt_u32 vcc, {(L_ZEND-L_CNT)//16}, v{VL}
    s_and_saveexec_b64 s[34:35], vcc
    ds_write_b128 v36, v[32:35] offset:{L_CNT}
    s_mov_b64 exec, s[34:35]
L_NOZC:""")
    late_setup(a, opt)
    a(f"""    ; addresses of the copy-out and of the run table entry (bucket slot h = 64*wave + lane, waves 0..3)
    s_mul_i32 s36, s2, {CH*opt.rec}
    s_mov_b32 s38, {A_REC}
    v_lshl_add_u32 v56, v0, 4, s38
    v_mad_u32_u24 v57, v0, {opt.rec}, s36
    v_add_u32 v58, {640*opt.rec}, v57
    v_add_u32 v59, {2*640*opt.rec}, v57
    v_add_u32 v60, {3*640*opt.rec}, v57
    s_and_b32 s37, s3, 3
    s_lshl_b32 s30, s37, 8
    v_lshl_add_u32 v61, v{VL}, 2, s30       ; 4*h
    s_lshl_b32 s37, s37, 18
    s_lshl_b32 s30, s2, 7
    s_add_u32 s37, s37, s30
    s_add_u32 s37, s37, {GRAN_OFF}
    v_lshrrev_b32 v62, 3, v{VL}
    v_lshl_add_u32 v62, v62, 15, s37
    v_and_b32 v63, 7, v{VL}
    v_lshl_add_u32 v62, v63, 4, v62
    v_lshlrev_b32 v63, 4, v{VL}
    s_mul_i32 s39, s2, {CH}
    s_mov_b32 s33, 52429
    s_movk_i32 s34, 0xffd8                  ; -40
    s_movk_i32 s37, 0xfc04                  ; -1020
    global_load_dwordx4 v[12:15], v3, s[8:9]
    global_load_dwordx4 v[16:19], v4, s[6:7]
    global_load_dwordx4 v[24:27], v4, s[6:7] offset:16
    s_waitcnt lgkmcnt(0)
    s_add_u32 s{S_TAG}, s{S_TAG}, 1
    s_addc_u32 s{S_TAG+1}, s{S_TAG+1}, 0
    s_and_b32 s{S_TAG8}, s{S_TAG}, 0xff
    s_lshl_b32 s35, s{S_TAG8}, 24
    v_mov_b32 v53, s{S_TAG}
    v_mov_b32 v54, s{S_TAG+1}
    v_mov_b32 v55, s{S_TAG}
    s_barrier                               ; #1
    s_waitcnt vmcnt(3)""")
    stamp(a, 2)
    for j in range(4):
        a(f"    v_mul_u32_u24 v{40+j}, s33, v{8+j}")
        a(f"    v_lshrrev_b32 v{32+j}, 21, v{40+j}          ; bucket b")
        a(f"    v_lshrrev_b32 v{40+j}, 24, v{40+j}          ; b / 8")
        a(f"    v_mad_i32_i24 v{8+j}, v{32+j}, s34, v{8+j}")
        a(f"    v_lshlrev_b32 v{32+j}, 7, v{32+j}")
        a(f"    v_mad_i32_i24 v{32+j}, v{40+j}, s37, v{32+j}  ; 4 * ((b % 8) * 32 + b / 8): buckets of one die are adjacent")
        a(f"    ds_add_rtn_u32 v{36+j}, v{32+j}, v{VONE} offset:{A_HIST}")
    for j in range(4):
        a(f"    v_lshl_or_b32 v{8+j}, v{8+j}, 2, s35")
    a(f"""    s_waitcnt lgkmcnt(0)
    s_barrier                               ; #2
    ds_read_b128 v[40:43], v63 offset:{A_HIST}
    s_waitcnt lgkmcnt(0)
    v_add_u32 v44, v40, v41
    v_add_u32 v45, v44, v42
    v_add_u32 v46, v45, v43
    v_mov_b32 v47, v46""")
    dpp_scan(a, 47)
    a(f"""    v_sub_u32 v48, v47, v46
    v_add_u32 v49, v48, v40
    v_add_u32 v50, v48, v44
    v_add_u32 v51, v48, v45
    ds_write_b128 v63, v[48:51] offset:{A_OFFS}
    s_waitcnt vmcnt(0)""")
    for j in range(4):
        a(f"    v_lshl_or_b32 v{12+j}, v{12+j}, 8, v{8+j}")
    a("    v_pk_mov_b32 v[20:21], v[18:19], v[18:19] op_sel:[0,1]")
    a("    v_pk_mov_b32 v[28:29], v[26:27], v[26:27] op_sel:[0,1]")
    for j in range(4):
        a(f"    v_mov_b32 v{QR(j)+2}, v{12+j}")
        if opt.rec == 16:
            a(f"    v_bitop3_b32 v{QR(j)+3}, v{QR(j)}, v{12+j}, s{S_TAG} bitop3:0x96")
    a("    s_waitcnt lgkmcnt(0)")
    for j in range(4):
        a(f"    ds_read_b32 v{44+j}, v{32+j} offset:{A_OFFS}")
    a(f"""    ds_read_b32 v52, v61 offset:{A_OFFS}
    ds_read_b32 v48, v61 offset:{A_HIST}
    s_waitcnt lgkmcnt(2)""")
    for j in range(4):
        a(f"    v_add_u32 v{44+j}, v{44+j}, v{36+j}")
        a(f"    v_lshl_add_u32 v{44+j}, v{44+j}, 4, s38")
        a(f"    ds_write_b128 v{44+j}, v[{QR(j)}:{QR(j)+3}]")
    a(f"""    s_add_u32 s30, s26, {REC_OFF}
    s_addc_u32 s31, s27, 0
    s_waitcnt lgkmcnt(0)
    s_barrier                               ; #3""")
    stamp(a, 3)
    if opt.rec == 16:
        for j in range(4):
            a(f"    ds_read_b128 v[{32+4*j}:{35+4*j}], v56 offset:{j*10240}")
    else:
        for j in range(4):
            a(f"    ds_read_b96 v[{32+4*j}:{34+4*j}], v56 offset:{j*10240}")
    a(f"""    v_add_u32 v52, s39, v52
    v_lshl_or_b32 v52, v48, 20, v52""")
    for j in range(4):
        a(f"    s_waitcnt lgkmcnt({3-j})")
        if opt.rec == 16:
            a(f"    global_store_dwordx4 v{57+j}, v[{32+4*j}:{35+4*j}], s[30:31] {st}")
        else:
            a(f"    global_store_dwordx3 v{57+j}, v[{32+4*j}:{34+4*j}], s[30:31] {st}")
    a(f"""    s_cmp_ge_u32 s3, 5
    s_cbranch_scc1 L_NOXR
    global_load_dwordx4 v[{XR}:{XR+3}], v64, s[4:5]
""" + (f"    global_load_dword v{TMP}, v64, s[22:23]    ; touches the output page early\n" if opt.otouch else "") + "L_NOXR:")
    if opt.rec == 12:
        a("    s_waitcnt vmcnt(0)")
    a(f"""    s_barrier                               ; #4
    s_cmp_ge_u32 s3, 4
    s_cbranch_scc1 L_PHASEB
    global_store_dwordx4 v62, v[52:55], s[26:27] {st}
    s_branch L_PHASEB""")

def tile_mfma(a, acc0, wreg, xreg):
    for mat in range(2):
        acc = acc0 + 4 * mat
        r0, r1 = wreg + mat * 8, wreg + mat * 8 + 4
        a(f"    v_mfma_f32_16x16x32_bf16 v[{acc}:{acc+3}], v[{r0}:{r0+3}], v[{xreg}:{xreg+3}], 0")
        a(f"    v_mfma_f32_16x16x32_bf16 v[{acc}:{acc+3}], v[{r1}:{r1+3}], v[{xreg+4}:{xreg+7}], v[{acc}:{acc+3}]")

def phase_a_table(a, opt):
    st = opt.store
    wp = [14, 20, 12, 18]
    a(f"""L_TABLE:
    s_sub_u32 s36, s3, 10                   ; u""")
    if opt.ipf:
        a(f"""    ; the table waves are idle here: they pull the kernel's own code into the cache (2 KB per wave)
    s_getpc_b64 s[30:31]
L_PC:
    s_sub_u32 s30, s30, L_PC-{KNAME}
    s_subb_u32 s31, s31, 0
    s_lshl_b32 s32, s36, 11
    v_lshl_add_u32 v80, v{VL}, 4, s32
    v_add_u32 v81, 1024, v80
    s_mov_b32 s33, L_CODE_END-{KNAME}
    v_cmp_gt_u32 vcc, s33, v80
    v_cmp_gt_u32 s[34:35], s33, v81
    s_mov_b64 exec, vcc
    s_cbranch_execz L_NOPF0
    global_load_dword v82, v80, s[30:31]
L_NOPF0:
    s_mov_b64 exec, s[34:35]
    s_cbranch_execz L_NOPF1
    global_load_dword v83, v81, s[30:31]
L_NOPF1:
    s_mov_b64 exec, -1""")
    a(f"""    s_and_b32 s37, s36, 1
    s_add_u32 s38, s37, 6
    v_lshlrev_b32 v2, 4, v{VL}
    s_lshl_b32 s30, s36, 10
    v_add_u32 v3, s30, v2                   ; piece u
    s_lshl_b32 s31, s38, 10
    v_add_u32 v4, s31, v2                   ; piece 6/7
    s_mul_i32 s32, s2, {NPB*128}
    v_add_u32 v5, s32, v3                   ; x offset
    v_lshrrev_b32 v6, 3, v{VL}
    v_mul_u32_u24 v6, 144, v6
    v_and_b32 v7, 7, v{VL}
    v_lshl_add_u32 v6, v7, 4, v6
    s_mul_i32 s33, s36, {8*144}
    s_add_u32 s33, s33, {A_W}
    v_add_u32 v48, s33, v6
    s_mul_i32 s33, s38, {8*144}
    s_add_u32 s33, s33, {A_W}
    v_add_u32 v49, s33, v6
    v_lshrrev_b32 v50, 1, v{VQ}
    v_and_b32 v51, 1, v{VQ}
    v_lshl_or_b32 v50, v51, 1, v50
    v_lshl_add_u32 v50, v{VI}, 2, v50
    v_lshlrev_b32 v50, 1, v50
    s_waitcnt lgkmcnt(0)""")
    if opt.wsbase:
        a(f"    s_add_u32 s26, s26, {opt.wsbase}")
        a(f"    s_addc_u32 s27, s27, 0")
    a(f"""    s_load_dwordx2 s[{S_TAG}:{S_TAG+1}], s[26:27], {GEN_OFF}""")
    stamp(a, 1)
    late_setup(a, opt)
    a("    s_barrier")
    if opt.wlate:
        a("    s_barrier                               ; #2")
    for m in range(4):
        a(f"    global_load_dwordx4 v[{8+8*m}:{11+8*m}], v3, s[{wp[m]}:{wp[m]+1}]")
        a(f"    global_load_dwordx4 v[{12+8*m}:{15+8*m}], v4, s[{wp[m]}:{wp[m]+1}]")
    if opt.touch:
        a(f"""    ; touch the workspace pages used later (unused words or tag-checked records only)
    v_lshlrev_b32 v45, 21, v{VL}
    v_add_u32 v45, 0x200000, v45
    v_mov_b32 v46, 0x276000
    v_cmp_eq_u32 vcc, 0, v{VL}
    s_nop 1
    v_cndmask_b32 v45, v45, v46, vcc
    s_mov_b64 exec, 0x3f
    global_load_dword v{TMP}, v45, s[26:27] sc1
    s_mov_b64 exec, -1""")
    a(f"""    s_cmp_eq_u32 s36, 5
    s_cbranch_scc1 L_TWC0
    global_load_dwordx4 v[40:43], v5, s[4:5]
    s_branch L_TB
L_TWC0:
    global_load_ushort v40, v50, s[16:17]
    global_load_ushort v41, v50, s[16:17] offset:128
    global_load_ushort v42, v50, s[16:17] offset:256
    global_load_ushort v43, v50, s[16:17] offset:384
L_TB:""")
    if not opt.wlate:
        a("    s_barrier                               ; #2")
    a(f"""    s_barrier                               ; #3
    s_cmp_eq_u32 s36, 5
    s_cbranch_scc1 L_TWC
    s_waitcnt vmcnt(0)
    ds_write_b128 v48, v[40:43] offset:{A_X - A_W}
    s_branch L_TST
L_TWC:
    s_mov_b32 s33, {NLOG2E:#x}
    v_lshlrev_b32 v44, 3, v{VL}
    s_waitcnt vmcnt(0)
    v_lshlrev_b32 v40, 16, v40
    v_lshlrev_b32 v41, 16, v41
    v_lshlrev_b32 v42, 16, v42
    v_lshlrev_b32 v43, 16, v43
    v_mul_f32 v40, s33, v40
    v_mul_f32 v41, s33, v41
    v_mul_f32 v42, s33, v42
    v_mul_f32 v43, s33, v43
    v_cvt_pk_bf16_f32 v40, v40, v41
    v_cvt_pk_bf16_f32 v41, v42, v43
    ds_write_b64 v44, v[40:41] offset:{L_WCB}
L_TST:""")
    for m in range(4):
        a(f"    ds_write_b128 v48, v[{8+8*m}:{11+8*m}] offset:{m*WIMG}")
        a(f"    ds_write_b128 v49, v[{12+8*m}:{15+8*m}] offset:{m*WIMG}")
    a(f"""    ; tile job: nt = u/2, mt in {{2*(u%2), 2*(u%2)+1}}
    s_lshr_b32 s30, s36, 1                  ; nt
    s_lshl_b32 s31, s37, 1                  ; mt0
    s_lshl_b32 s32, s30, 4
    v_add_u32 v4, s32, v{VI}                ; node
    v_mul_u32_u24 v5, 144, v4
    v_lshl_add_u32 v5, v{VQ}, 4, v5
    v_add_u32 v5, {A_X}, v5
    v_lshrrev_b32 v6, 2, v{VI}
    v_lshl_add_u32 v6, v{VQ}, 3, v6
    v_mul_u32_u24 v6, 144, v6
    v_and_b32 v7, 3, v{VI}
    v_lshl_add_u32 v6, v7, 3, v6
    s_lshl_b32 s32, s31, 5
    s_add_u32 s32, s32, {A_W}
    v_add_u32 v6, s32, v6
    v_mul_u32_u24 v7, 272, v4
    v_lshl_add_u32 v50, v{VQ}, 4, v7
    s_lshl_b32 s32, s31, 6
    v_add_u32 v50, s32, v50
    v_add_u32 v51, {L_AP}, v50
    v_add_u32 v53, {L_U}, v50
    s_waitcnt lgkmcnt(0)
    s_add_u32 s{S_TAG}, s{S_TAG}, 1
    s_addc_u32 s{S_TAG+1}, s{S_TAG+1}, 0
    s_and_b32 s{S_TAG8}, s{S_TAG}, 0xff
    v_mov_b32 v54, {L_GCNT+4}
    v_mov_b32 v55, 1
    s_mov_b64 exec, 1
    ds_add_u32 v54, v55
    s_mov_b64 exec, -1
L_TSYNC:
    ds_read_b32 v55, v54
    s_waitcnt lgkmcnt(0)
    v_readfirstlane_b32 s30, v55
    s_nop 3
    s_cmp_lt_u32 s30, 6
    s_cbranch_scc1 L_TSYNC
    ds_read_b128 v[8:11], v5
    ds_read_b128 v[12:15], v5 offset:64""")
    def wfrags(first):
        for m in range(2):
            for mat in range(2):
                for ks in range(2):
                    r = 16 + m * 16 + mat * 8 + ks * 4
                    for h in range(2):
                        a(f"    ds_read_b64_tr_b16 v[{r+2*h}:{r+2*h+1}], v6 offset:{(first+mat)*WIMG + ks*4608 + h*576 + m*32}")
    wfrags(0)
    a(f"""    ; table row address of this lane: (40 w + node)*256 + (16 mt0 + 4 g)*4 ; rows >= 40 of the tile are not stored
    s_mul_i32 s31, s2, {NPB*256}
    s_add_u32 s31, s31, {G_OFF}
    v_lshlrev_b32 v55, 8, v4
    v_add_u32 v55, s31, v55
    v_lshl_add_u32 v55, v{VQ}, 4, v55
    s_and_b32 s30, s36, 1
    s_lshl_b32 s30, s30, 7
    v_add_u32 v55, s30, v55
    v_cmp_gt_u32 s[34:35], {NPB}, v4
    s_mov_b32 s32, {NLOG2E:#x}
    s_mov_b32 s33, {BIG:#x}
    v_mov_b32 v54, {NBIG:#x}
    s_waitcnt lgkmcnt(0)""")
    for m in range(2):
        tile_mfma(a, 56 + 8 * m, 16 + 16 * m, 8)
    wfrags(2)
    a("    s_mov_b32 s30, 0x8000")
    for m in range(2):
        accb, accv = 56 + 8 * m, 60 + 8 * m
        o = 72 + 4 * m
        for r in range(4):
            a(f"    v_mul_f32 v{accb+r}, s32, v{accb+r}")
            a(f"    v_med3_f32 v{accb+r}, v{accb+r}, v54, s33")
        a(f"    v_cvt_pk_bf16_f32 v{o}, v{accb}, v{accb+1}")
        a(f"    v_cvt_pk_bf16_f32 v{o+1}, v{accb+2}, v{accb+3}")
        for p in range(2):
            lo, hi = accv + 2 * p, accv + 2 * p + 1
            a(f"    v_cvt_pk_bf16_f32 v80, v{lo}, v{lo}")
            a(f"    v_and_b32 v80, 0xffff, v80")
            a(f"    v_and_b32 v81, 0x7fffffff, v{hi}")
            a(f"    v_and_b32 v{hi}, 0x80000000, v{hi}")
            a(f"    v_sub_u32 v81, v81, v80")
            a(f"    v_add_u32 v81, s30, v81")
            a(f"    v_max_i32 v81, 0, v81")
            a(f"    v_and_b32 v81, 0xffff0000, v81")
            a(f"    v_or3_b32 v{o+2+p}, v81, v80, v{hi}")
    if not opt.gearly:
        a("    s_barrier")
    a(f"""    s_mov_b64 exec, s[34:35]
    global_store_dwordx4 v55, v[72:75], s[26:27] offset:0 {st}
    global_store_dwordx4 v55, v[76:79], s[26:27] offset:64 {st}
    s_mov_b64 exec, -1""")
    a(f"""    ; padding row N of the table (gate saturates, value 0): last workgroup, wave u = 5
    s_cmp_lg_u32 s2, {NB-1}
    s_cbranch_scc1 L_TAU
    s_cmp_lg_u32 s36, 5
    s_cbranch_scc1 L_TAU
    v_mov_b32 v80, 0x71807180
    v_mov_b32 v81, v80
    v_mov_b32 v82, 0
    v_mov_b32 v83, 0
    v_lshlrev_b32 v7, 4, v{VL}
    v_add_u32 v7, {N*256 + G_OFF}, v7
    s_mov_b64 exec, 0xffff
    global_store_dwordx4 v7, v[80:83], s[26:27] {st}
    s_mov_b64 exec, -1
L_TAU:
    s_waitcnt lgkmcnt(0)""")
    for m in range(2):
        tile_mfma(a, 56 + 8 * m, 16 + 16 * m, 8)
    a(f"""    s_mov_b32 s34, {FSHIFT:#x}
    s_nop 6""")
    for m in range(2):
        acca, accu = 56 + 8 * m, 60 + 8 * m
        a(f"    ds_write_b128 v53, v[{accu}:{accu+3}] offset:{m*64}")
        for r in range(4):
            a(f"    v_mul_f32 v{acca+CHN[r]}, s32, v{acca+CHN[r]}")
            a(f"    v_med3_f32 v{acca+CHN[r]}, v{acca+CHN[r]}, v54, s33")
            a(f"    v_add_f32 v{16+r}, s34, v{acca+CHN[r]}")
        a(f"    ds_write_b128 v51, v[16:19] offset:{m*64}")
    if opt.gearly == 2:
        a("    s_barrier                               ; #4")
    a(f"""    ; the table rows of this workgroup are complete: the last table wave publishes the flag
    v_mov_b32 v16, {L_GCNT}
    v_mov_b32 v17, 1
    s_waitcnt vmcnt(0)
    s_mov_b64 exec, 1
    ds_add_rtn_u32 v18, v16, v17
    s_waitcnt lgkmcnt(0)
    v_readfirstlane_b32 s30, v18
    s_mov_b64 exec, -1
    s_cmp_lg_u32 s30, 5
    s_cbranch_scc1 {"L_TB4" if opt.gearly == 1 else "L_PHASEB"}
    s_lshl_b32 s30, s2, 4
    s_add_u32 s30, s30, {GF_OFF}
    v_mov_b32 v16, s30
    v_mov_b32 v18, s{S_TAG}
    v_mov_b32 v19, s{S_TAG+1}
    s_mov_b64 exec, 1
    global_store_dwordx2 v16, v[18:19], s[26:27] {st}
    s_mov_b64 exec, -1""")
    if opt.gearly == 1:
        a("L_TB4:")
        a("    s_barrier                               ; #4")

def phase_b(a, opt):
    GR = lambda j: 8 + 4 * j
    rec = lambda h, j: 24 + 16 * h + 4 * j
    RANK, DL = 56, 64
    msk = lambda h, j: (M0 if h == 0 else M1) + 2 * j
    pnd = lambda h, j: (P0M if h == 0 else P1M) + 2 * j
    inv = lambda j: S_INV + (2 if j >= 2 else 0)
    a("L_PHASEB:")
    stamp(a, 4)
    a(f"""    ; ================= phase B: wait for the run table entries of this bucket
    v_lshlrev_b32 v2, 3, v{VL}
    ds_read_b64 v[{WC}:{WC+1}], v2 offset:{L_WCB}""")
    a(f"""    s_mov_b32 s33, 0
    s_mov_b32 s38, s{S_TAG+1}
    s_mov_b32 s39, s{S_TAG}""")
    for j in range(4):
        a(f"    s_not_b64 s[{pnd(0,j)}:{pnd(0,j)+1}], s[{inv(j)}:{inv(j)+1}]")
    a("L_POLL:")
    for j in range(4):
        p = pnd(0, j)
        a(f"    s_mov_b64 exec, s[{p}:{p+1}]")
        a(f"    s_cbranch_execz L_NP{j}")
        a(f"    global_load_dwordx4 v[{GR(j)}:{GR(j)+3}], v{VGA}, s[26:27] offset:{128*j} sc1")
        a(f"L_NP{j}:")
    a("    s_waitcnt vmcnt(0)")
    for j in range(4):
        p = pnd(0, j)
        a(f"    s_mov_b64 exec, s[{p}:{p+1}]")
        a(f"    v_cmp_eq_u32 vcc, s{S_TAG}, v{GR(j)+1}")
        a(f"    v_cmp_eq_u64 s[34:35], v[{GR(j)+2}:{GR(j)+3}], s[38:39]")
        a(f"    s_nop 0")
        a(f"    s_and_b64 s[34:35], s[34:35], vcc")
        a(f"    s_andn2_b64 s[{p}:{p+1}], s[{p}:{p+1}], s[34:35]")
    a(f"""    s_mov_b64 exec, -1
    s_or_b64 s[34:35], s[{pnd(0,0)}:{pnd(0,0)+1}], s[{pnd(0,1)}:{pnd(0,1)+1}]
    s_or_b64 s[36:37], s[{pnd(0,2)}:{pnd(0,2)+1}], s[{pnd(0,3)}:{pnd(0,3)+1}]
    s_or_b64 s[34:35], s[34:35], s[36:37]
    s_cbranch_scc0 L_READY
    s_add_u32 s33, s33, 1
    s_cmp_ge_u32 s33, {POLL_LIMIT}
    s_cbranch_scc1 L_END
    s_sleep {opt.sleep}
    s_branch L_POLL
L_READY:""")
    stamp(a, 5)
    a(f"""L_ROUND:
    v_add_u32 v2, s{S_RB}, v{VI}
    v_add_u32 v3, 16, v2
    v_mul_u32_u24 v4, {opt.rec}, v2""")
    for j in range(4):
        a(f"    v_lshrrev_b32 v{GR(j)+1}, 20, v{GR(j)}      ; count")
        a(f"    v_and_b32 v{GR(j)}, 0xfffff, v{GR(j)}")
        a(f"    v_cmp_gt_u32 s[{msk(0,j)}:{msk(0,j)+1}], v{GR(j)+1}, v2")
        a(f"    v_cmp_gt_u32 s[{msk(1,j)}:{msk(1,j)+1}], v{GR(j)+1}, v3")
        if opt.rec == 16:
            a(f"    v_lshl_add_u32 v{GR(j)+2}, v{GR(j)}, 4, v4")
        else:
            a(f"    v_mad_u32_u24 v{GR(j)+2}, v{GR(j)}, 12, v4")
    a(f"    s_add_u32 s30, s{S_RB}, 32")
    for j in range(4):
        a(f"    s_andn2_b64 s[{msk(0,j)}:{msk(0,j)+1}], s[{msk(0,j)}:{msk(0,j)+1}], s[{inv(j)}:{inv(j)+1}]")
        a(f"    s_mov_b64 s[{pnd(0,j)}:{pnd(0,j)+1}], s[{msk(0,j)}:{msk(0,j)+1}]")
        a(f"    s_andn2_b64 s[{msk(1,j)}:{msk(1,j)+1}], s[{msk(1,j)}:{msk(1,j)+1}], s[{inv(j)}:{inv(j)+1}]")
        a(f"    s_mov_b64 s[{pnd(1,j)}:{pnd(1,j)+1}], s[{msk(1,j)}:{msk(1,j)+1}]")
        a(f"    s_cbranch_scc0 L_NMORE{j}")
        a(f"    s_mov_b64 exec, s[{msk(1,j)}:{msk(1,j)+1}]")
        a(f"    v_cmp_lt_u32 vcc, s30, v{GR(j)+1}")
        a(f"    s_mov_b64 exec, -1")
        a(f"    s_cmp_eq_u64 vcc, 0")
        a(f"    s_cbranch_scc1 L_NMORE{j}")
        a(f"    v_mov_b32 v5, {L_FLAG}")
        a(f"    v_mov_b32 v6, 1")
        a(f"    ds_write_b32 v5, v6")
        a(f"L_NMORE{j}:")
    if opt.rec == 16:
        a(f"""    s_mov_b32 s33, 0
L_RLOAD:""")
        for h in range(2):
            for j in range(4):
                p = pnd(h, j)
                a(f"    s_cmp_eq_u64 s[{p}:{p+1}], 0")
                a(f"    s_cbranch_scc1 L_NL{h}{j}")
                a(f"    s_mov_b64 exec, s[{p}:{p+1}]")
                off = " offset:256" if h else ""
                a(f"    buffer_load_dwordx4 v[{rec(h,j)}:{rec(h,j)+3}], v{GR(j)+2}, s[{S_REC}:{S_REC+3}], 0 offen{off} {opt.hload}")
                a(f"L_NL{h}{j}:")
        a("    s_waitcnt vmcnt(0)")
        for h in range(2):
            for j in range(4):
                p = pnd(h, j)
                r = rec(h, j)
                a(f"    s_cmp_eq_u64 s[{p}:{p+1}], 0")
                a(f"    s_cbranch_scc1 L_NC{h}{j}")
                a(f"    s_mov_b64 exec, s[{p}:{p+1}]")
                a(f"    v_bitop3_b32 v5, v{r}, v{r+2}, v{r+3} bitop3:0x96")
                a(f"    v_cmp_eq_u32_sdwa s[34:35], v{r+2}, s{S_TAG8} src0_sel:BYTE_3 src1_sel:DWORD")
                a(f"    v_cmp_eq_u32 vcc, s{S_TAG}, v5")
                a(f"    s_nop 0")
                a(f"    s_and_b64 s[34:35], s[34:35], vcc")
                a(f"    s_andn2_b64 s[{p}:{p+1}], s[{p}:{p+1}], s[34:35]")
                a(f"L_NC{h}{j}:")
        a(f"    s_mov_b64 exec, -1")
        a(f"    s_or_b64 s[34:35], s[{pnd(0,0)}:{pnd(0,0)+1}], s[{pnd(0,1)}:{pnd(0,1)+1}]")
        for h in range(2):
            for j in range(4):
                if (h, j) in ((0, 0), (0, 1)): continue
                a(f"    s_or_b64 s[34:35], s[34:35], s[{pnd(h,j)}:{pnd(h,j)+1}]")
        a(f"""    s_cbranch_scc0 L_HAVE
    s_add_u32 s33, s33, 1
    s_cmp_ge_u32 s33, {POLL_LIMIT}
    s_cbranch_scc1 L_END
    s_sleep {opt.sleep}
    s_branch L_RLOAD
L_HAVE:""")
    else:
        for h in range(2):
            for j in range(4):
                p = msk(h, j)
                if h:
                    a(f"    s_cmp_eq_u64 s[{p}:{p+1}], 0")
                    a(f"    s_cbranch_scc1 L_NL{h}{j}")
                a(f"    s_mov_b64 exec, s[{p}:{p+1}]")
                off = " offset:192" if h else ""
                a(f"    buffer_load_dwordx3 v[{rec(h,j)}:{rec(h,j)+2}], v{GR(j)+2}, s[{S_REC}:{S_REC+3}], 0 offen{off} {opt.hload}")
                if h:
                    a(f"L_NL{h}{j}:")
        a("    s_mov_b64 exec, -1")
        a("    s_waitcnt vmcnt(0)")
    stamp(a, 6)
    a(f"""    ; table-row flags of this wave's 16 producers: loaded now, checked before the first gather
    global_load_dwordx2 v[22:23], v{VGF}, s[26:27] sc1""")
    for h in range(2):
        for j in range(4):
            m = msk(h, j)
            if h == 1:
                a(f"    s_cmp_eq_u64 s[{m}:{m+1}], 0")
                a(f"    s_cbranch_scc1 L_NB1R{j}")
            a(f"    s_mov_b64 exec, s[{m}:{m+1}]")
            a(f"    v_and_b32 v{DL+4*h+j}, 0xff, v{rec(h,j)+2}")
            a(f"    ds_add_rtn_u32 v{RANK+4*h+j}, v{DL+4*h+j}, v{VONE} offset:{L_CNT}")
            if h == 1:
                a(f"L_NB1R{j}:")
    a(f"""    s_mov_b64 exec, -1
    v_mov_b32 v6, {L_FLAG}
    v_cmp_gt_u32 vcc, {NPB}, v{VL}
    s_waitcnt lgkmcnt(0)
    s_barrier                               ; #5""")
    stamp(a, 12)
    a(f"""    ds_read_b32 v5, v{VCA} offset:{L_CNT}
    ds_read_b32 v6, v6
    s_waitcnt lgkmcnt(0)
    v_add_u32 v4, 7, v5
    v_lshrrev_b32 v4, 3, v4
    v_max_u32 v4, 1, v4
    v_cndmask_b32 v4, 0, v4, vcc
    v_readfirstlane_b32 s{S_MORE}, v6
    v_mov_b32 v{QEND}, v4""")
    dpp_scan(a, QEND)
    stamp(a, 13)
    a(f"""    v_sub_u32 v{QST}, v{QEND}, v4
    v_readlane_b32 s{S_P}, v{QEND}, 63
    v_lshlrev_b32 v3, 3, v{QST}
    s_mov_b32 s30, {L_SRC}
    s_mov_b32 s31, {L_E}""")
    for j in range(4):
        a(f"    ds_bpermute_b32 v{8+j}, v{DL+j}, v3")
    for j in range(4):
        a(f"    s_cmp_eq_u64 s[{M1+2*j}:{M1+2*j+1}], 0")
        a(f"    s_cbranch_scc1 L_NB1P{j}")
        a(f"    ds_bpermute_b32 v{12+j}, v{DL+4+j}, v3")
        a(f"L_NB1P{j}:")
    a(f"""    ; padding slots: waves 0..4 take 8 nodes each, lane = (node, slot); wave 5 fills the tail
    s_cmp_ge_u32 s3, 5
    s_cbranch_scc1 L_NOPLK
    s_lshl_b32 s32, s3, 3
    v_lshrrev_b32 v16, 3, v{VL}
    v_add_u32 v16, s32, v16
    v_lshlrev_b32 v16, 2, v16               ; 4*node
    v_add_u32 v17, v3, v5
    v_lshlrev_b32 v18, 3, v{QEND}
    ds_bpermute_b32 v17, v16, v17
    ds_bpermute_b32 v18, v16, v18
L_NOPLK:
    s_mul_i32 s{S_TS}, s{S_P}, s3
    s_lshr_b32 s{S_TS}, s{S_TS}, 4
    s_add_u32 s32, s3, 1
    s_mul_i32 s{S_TE}, s{S_P}, s32
    s_lshr_b32 s{S_TE}, s{S_TE}, 4
    v_cmp_ge_u32 vcc, s{S_TS}, v{QEND}
    s_waitcnt lgkmcnt(0)
    s_bcnt1_i32_b64 s{S_N}, vcc""")
    for h in range(2):
        for j in range(4):
            m = msk(h, j)
            r = rec(h, j)
            if h == 1:
                a(f"    s_cmp_eq_u64 s[{m}:{m+1}], 0")
                a(f"    s_cbranch_scc1 L_NB1S{j}")
            a(f"    s_mov_b64 exec, s[{m}:{m+1}]")
            a(f"    v_add_u32 v{8+4*h+j}, v{8+4*h+j}, v{RANK+4*h+j}")
            a(f"    v_bfe_u32 v{r+2}, v{r+2}, 8, 16")
            a(f"    v_lshl_add_u32 v19, v{8+4*h+j}, 2, s30")
            a(f"    v_lshl_add_u32 v21, v{8+4*h+j}, 3, s31")
            a(f"    ds_write_b32 v19, v{r+2}")
            a(f"    ds_write_b64 v21, v[{r}:{r+1}]")
            if h == 1:
                a(f"L_NB1S{j}:")
    stamp(a, 14)
    a(f"""    s_mov_b64 exec, -1
    v_mov_b32 v11, {N}
    v_mov_b32 v12, 0
    v_mov_b32 v13, 0
    s_cmp_gt_u32 s3, 5
    s_cbranch_scc1 L_NOPAD
    v_and_b32 v16, 7, v{VL}
    v_add_u32 v16, v17, v16
    v_cmp_lt_u32 vcc, v16, v18
    s_cmp_lt_u32 s3, 5
    s_cbranch_scc1 L_PADW
    s_lshl_b32 s32, s{S_P}, 3
    v_add_u32 v16, s32, v{VL}
    s_mov_b64 vcc, -1
L_PADW:
    v_lshl_add_u32 v14, v16, 2, s30
    v_lshl_add_u32 v15, v16, 3, s31
    s_mov_b64 exec, vcc
    ds_write_b32 v14, v11
    ds_write_b64 v15, v[12:13]
    s_mov_b64 exec, -1
L_NOPAD:
    v_readlane_b32 s{S_SEGEND}, v{QEND}, s{S_N}
    s_lshl_b32 s32, s{S_TS}, 5
    v_add_u32 v2, s32, v{SRB}
    s_lshl_b32 s32, s{S_TS}, 1
    v_mad_u32_u24 v3, v{EM}, s32, v{EB}
    s_mul_i32 s32, s{S_N}, 272
    v_add_u32 v{TMP}, s32, v{APA}
    s_add_u32 s32, s{S_N}, s3
    s_lshl_b32 s32, s32, 9
    v_add_u32 v{SLA}, s32, v{SLB}
    s_min_u32 s{S_SEGEND}, s{S_SEGEND}, s{S_TE}
    s_sub_u32 s{S_REM}, s{S_SEGEND}, s{S_TS}
    s_sub_u32 s{S_REM}, s{S_REM}, 1""")
    S = lambda k: 8 + 6 * (k % 8)
    Da, Db, T = 56, 60, 64
    NUM, DEN = 68, 72
    PA, PB_, UA, UB, SA, SB = 76, 78, 80, 82, 84, 86
    a(f"""    s_mov_b32 s33, 0
    s_cmp_eq_u32 s3, 15
    s_cselect_b32 s34, 0xfc00fc00, 0
    s_mov_b32 s35, s34
L_GPOLL:
    s_waitcnt vmcnt(0)
    v_cmp_eq_u64 s[36:37], v[22:23], s[{S_TAG}:{S_TAG+1}]
    s_nop 0
    s_or_b64 s[36:37], s[36:37], s[34:35]
    s_cmp_eq_u64 s[36:37], -1
    s_cbranch_scc1 L_GOK
    s_add_u32 s33, s33, 1
    s_cmp_ge_u32 s33, {POLL_LIMIT}
    s_cbranch_scc1 L_END
    s_sleep {opt.sleep}
    global_load_dwordx2 v[22:23], v{VGF}, s[26:27] sc1
    s_branch L_GPOLL
L_GOK:""")
    stamp(a, 15)
    a(f"""    s_waitcnt lgkmcnt(0)
    s_barrier                               ; #6""")
    stamp(a, 7)
    cstamp(a, 10)
    pairs = [IDXA, IDXB, 56, 58, 60, 62]
    for k in range(6):
        a(f"    ds_read_b32 v{pairs[k]}, v2 offset:{16*k}")
    a(f"""    ds_read_b128 v[{AC}:{AC+3}], v{TMP}
    ds_read_b128 v[{ANX}:{ANX+3}], v{TMP} offset:272
    ds_read_b64 v[{A0}:{A0+1}], v3
    ds_read_b64 v[{A1}:{A1+1}], v3 offset:32""")
    for k in range(4):
        a(f"    v_mov_b32 v{56+2*k+1}, v{IDXA+1}")
    for k in range(8):
        a(f"    v_pk_mov_b32 v[{S(k)}:{S(k)+1}], v[{WC}:{WC+1}], v[{WC}:{WC+1}] op_sel:[0,1]")
    for r in range(0, 8, 2):
        a(f"    v_pk_mov_b32 v[{NUM+r}:{NUM+r+1}], 0, 0")
    for k in range(6):
        a(f"    s_waitcnt lgkmcnt({9-k})")
        a(f"    buffer_load_dwordx4 v[{S(k)+2}:{S(k)+5}], v[{pairs[k]}:{pairs[k]+1}], s[{S_G}:{S_G+3}], 0 idxen offen {opt.gload}")
    a(f"""    s_cmp_ge_u32 s3, 5
    s_cbranch_scc1 L_NOSEG
    v_cvt_f32_u32 v76, s{S_P}
    v_rcp_f32 v76, v76
    v_lshlrev_b32 v77, 4, v{QST}
    v_add_u32 v77, 16, v77
    v_cvt_f32_u32 v77, v77
    v_lshlrev_b32 v78, 4, v{QEND}
    v_cvt_f32_u32 v78, v78
    v_add_f32 v77, -0.5, v77
    v_add_f32 v78, -0.5, v78
    v_mul_f32 v77, v77, v76
    v_mul_f32 v78, v78, v76
    v_cvt_u32_f32 v77, v77
    v_cvt_u32_f32 v78, v78
    v_lshrrev_b32 v4, 3, v0                 ; node
    v_sub_u32 v78, v78, v77
    v_add_u32 v78, 1, v78
    v_add_u32 v77, v77, v{VL}
    v_lshl_or_b32 v77, v78, 16, v77
    v_lshlrev_b32 v5, 2, v4
    ds_bpermute_b32 v5, v5, v77
    v_and_b32 v6, 7, v0
    v_lshlrev_b32 v6, 4, v6
    v_mul_u32_u24 v4, 272, v4
    v_lshl_add_u32 v4, v6, 1, v4
    v_add_u32 v4, {L_U}, v4
    s_waitcnt lgkmcnt(0)
    v_lshrrev_b32 v7, 16, v5
    v_and_b32 v5, 0xffff, v5
    v_lshl_add_u32 v5, v5, 9, v6
L_NOSEG:""")
    if opt.prio:
        a(f"    s_setprio 3")
        a(f"    s_sub_u32 s{S_BLK}, s{S_TE}, s{S_TS}")
    a(f"    s_waitcnt lgkmcnt(0)")
    a("L_LOOP:")
    for k in range(0, 8, 2):
        sa, sb = S(k), S(k + 1)
        pa, pb = S(k - 2), S(k - 1)
        a(f"""    s_waitcnt vmcnt({4 if opt.onewait else 5})
    v_mfma_f32_16x16x32_bf16 v[{Da}:{Da+3}], v[{A0}:{A0+3}], v[{sa}:{sa+3}], v[{AC}:{AC+3}]
    ds_read_b32 v{IDXA}, v2 offset:{16*(k+6)}
    ds_read_b32 v{IDXB}, v2 offset:{16*(k+7)}
    v_lshlrev_b32 v{T}, 16, v{sa+4}
    v_lshlrev_b32 v{T+1}, 16, v{sa+5}
    {"s_nop 0" if opt.onewait == 2 else ("" if opt.onewait else "s_waitcnt vmcnt(4)")}
    v_mfma_f32_16x16x32_bf16 v[{Db}:{Db+3}], v[{A1}:{A1+3}], v[{sb}:{sb+3}], v[{AC}:{AC+3}]
    v_lshlrev_b32 v{T+2}, 16, v{sb+4}
    v_lshlrev_b32 v{T+3}, 16, v{sb+5}
    s_sub_u32 s{S_REM}, s{S_REM}, 1
    ds_read_b64 v[{A0}:{A0+1}], v3 offset:{32*(k+2)}
    ds_read_b64 v[{A1}:{A1+1}], v3 offset:{32*(k+3)}""")
        for i in range(4):
            a(f"    v_exp_f32 v{Da+i}, v{Da+i} clamp")
        a(f"""    s_waitcnt lgkmcnt(2)
    buffer_load_dwordx4 v[{pa+2}:{pa+5}], v[{IDXA}:{IDXA+1}], s[{S_G}:{S_G+3}], 0 idxen offen {opt.gload}
    buffer_load_dwordx4 v[{pb+2}:{pb+5}], v[{IDXB}:{IDXB+1}], s[{S_G}:{S_G+3}], 0 idxen offen {opt.gload}""")
        for i in range(4):
            a(f"    v_exp_f32 v{Db+i}, v{Db+i} clamp")
        c = f"s[{S_C60}:{S_C60+1}]"
        a(f"""    v_pk_add_f32 v[{Da}:{Da+1}], v[{Da}:{Da+1}], {c}
    v_pk_add_f32 v[{Da+2}:{Da+3}], v[{Da+2}:{Da+3}], {c}
    v_pk_add_f32 v[{Db}:{Db+1}], v[{Db}:{Db+1}], {c}
    v_pk_add_f32 v[{Db+2}:{Db+3}], v[{Db+2}:{Db+3}], {c}
    v_pk_mul_f32 v[{PA}:{PA+1}], v[{Da}:{Da+1}], v[{Db}:{Db+1}]
    v_pk_mul_f32 v[{PB_}:{PB_+1}], v[{Da+2}:{Da+3}], v[{Db+2}:{Db+3}]
    v_pk_mul_f32 v[{UA}:{UA+1}], v[{T}:{T+1}], v[{Db}:{Db+1}]
    v_rcp_f32 v{PA}, v{PA}
    v_rcp_f32 v{PA+1}, v{PA+1}
    v_pk_mul_f32 v[{UB}:{UB+1}], v[{sa+4}:{sa+5}], v[{Db+2}:{Db+3}]
    v_rcp_f32 v{PB_}, v{PB_}
    v_rcp_f32 v{PB_+1}, v{PB_+1}
    v_pk_fma_f32 v[{UA}:{UA+1}], v[{T+2}:{T+3}], v[{Da}:{Da+1}], v[{UA}:{UA+1}]
    v_pk_fma_f32 v[{UB}:{UB+1}], v[{sb+4}:{sb+5}], v[{Da+2}:{Da+3}], v[{UB}:{UB+1}]
    v_pk_add_f32 v[{SA}:{SA+1}], v[{Da}:{Da+1}], v[{Db}:{Db+1}]
    v_pk_add_f32 v[{SB}:{SB+1}], v[{Da+2}:{Da+3}], v[{Db+2}:{Db+3}]
    v_pk_fma_f32 v[{NUM}:{NUM+1}], v[{PA}:{PA+1}], v[{UA}:{UA+1}], v[{NUM}:{NUM+1}]
    v_pk_fma_f32 v[{NUM+2}:{NUM+3}], v[{PB_}:{PB_+1}], v[{UB}:{UB+1}], v[{NUM+2}:{NUM+3}]
    v_pk_fma_f32 v[{DEN}:{DEN+1}], v[{PA}:{PA+1}], v[{SA}:{SA+1}], v[{DEN}:{DEN+1}]
    v_pk_fma_f32 v[{DEN+2}:{DEN+3}], v[{PB_}:{PB_+1}], v[{SB}:{SB+1}], v[{DEN+2}:{DEN+3}]
    s_waitcnt lgkmcnt(0)
    s_cbranch_scc1 L_SB{k}
L_RB{k}:""")
        if k == 6:
            a(f"    v_add_u32 v2, 128, v2")
            a(f"    v_add_u32 v3, v{INCE}, v3")
            if opt.prio:
                t1, t2, t3 = opt.pth
                a(f"""    s_sub_u32 s{S_BLK}, s{S_BLK}, 4
    s_cmp_gt_i32 s{S_BLK}, {t1}
    s_cbranch_scc1 L_LOOP
    s_setprio 2
    s_cmp_gt_i32 s{S_BLK}, {t2}
    s_cbranch_scc1 L_LOOP
    s_setprio 1
    s_cmp_gt_i32 s{S_BLK}, {t3}
    s_cbranch_scc1 L_LOOP
    s_setprio 0""")
            a(f"    s_branch L_LOOP")
    for k in range(0, 8, 2):
        a(f"L_SB{k}:")
        for r in range(4):
            a(f"    v_permlane32_swap_b32 v{NUM+r}, v{DEN+r}")
        a(f"""    v_pk_add_f32 v[{NUM}:{NUM+1}], v[{NUM}:{NUM+1}], v[{DEN}:{DEN+1}]
    v_pk_add_f32 v[{NUM+2}:{NUM+3}], v[{NUM+2}:{NUM+3}], v[{DEN+2}:{DEN+3}]
    s_add_u32 s{S_N}, s{S_N}, 1
    s_add_u32 s36, s{S_N}, 1
    v_permlane16_swap_b32 v{NUM}, v{NUM+2}
    v_permlane16_swap_b32 v{NUM+1}, v{NUM+3}
    v_readlane_b32 s37, v{QEND}, s{S_N}
    s_mul_i32 s36, s36, 272
    v_pk_add_f32 v[{DEN}:{DEN+1}], v[{NUM}:{NUM+1}], v[{NUM+2}:{NUM+3}]
    v_add_u32 v{TMP}, s36, v{APA}
    s_cmp_eq_u32 s{S_SEGEND}, s{S_TE}
    ds_write_b64 v{SLA}, v[{DEN}:{DEN+1}]
    s_cbranch_scc1 L_DONE
    v_pk_mov_b32 v[{AC}:{AC+1}], v[{ANX}:{ANX+1}], v[{ANX}:{ANX+1}] op_sel:[0,1]
    v_pk_mov_b32 v[{AC+2}:{AC+3}], v[{ANX+2}:{ANX+3}], v[{ANX+2}:{ANX+3}] op_sel:[0,1]
    v_add_u32 v{SLA}, {SLOT_STR}, v{SLA}
    s_min_u32 s37, s37, s{S_TE}
    v_pk_mov_b32 v[{NUM}:{NUM+1}], 0, 0
    v_pk_mov_b32 v[{NUM+2}:{NUM+3}], 0, 0
    ds_read_b128 v[{ANX}:{ANX+3}], v{TMP}
    v_pk_mov_b32 v[{DEN}:{DEN+1}], 0, 0
    v_pk_mov_b32 v[{DEN+2}:{DEN+3}], 0, 0
    s_sub_u32 s{S_REM}, s37, s{S_SEGEND}
    s_sub_u32 s{S_REM}, s{S_REM}, 1
    s_mov_b32 s{S_SEGEND}, s37
    s_branch L_RB{k}""")
    a("L_DONE:")
    if opt.prio:
        a("    s_setprio 0")
    stamp(a, 8)
    cstamp(a, 11)
    a(f"""    s_waitcnt vmcnt(0) lgkmcnt(0)
    s_barrier                               ; #7
    s_cmp_ge_u32 s3, 5
    s_cbranch_scc1 L_MERGED
    ds_read_b128 v[24:27], v5 offset:{L_SLOT}
    ds_read_b128 v[28:31], v5 offset:{L_SLOT+128}
    ds_read_b128 v[32:35], v5 offset:{L_SLOT+256}
    ds_read_b128 v[36:39], v5 offset:{L_SLOT+384}
    ds_read_b128 v[40:43], v4
    ds_read_b128 v[44:47], v4 offset:16
    v_add_u32 v5, {SLOT_STR}, v5
    s_mov_b32 s36, 1
L_MERGE:
    v_cmp_lt_u32 vcc, s36, v7
    s_nop 1
    s_cmp_eq_u64 vcc, 0
    s_cbranch_scc1 L_MERGE_END
    s_mov_b64 exec, vcc
    ds_read_b128 v[8:11], v5 offset:{L_SLOT}
    ds_read_b128 v[12:15], v5 offset:{L_SLOT+128}
    ds_read_b128 v[16:19], v5 offset:{L_SLOT+256}
    ds_read_b128 v[20:23], v5 offset:{L_SLOT+384}
    v_add_u32 v5, {SLOT_STR}, v5
    s_add_u32 s36, s36, 1
    s_waitcnt lgkmcnt(0)""")
    for r in range(8):
        a(f"    v_pk_add_f32 v[{24+2*r}:{25+2*r}], v[{24+2*r}:{25+2*r}], v[{8+2*r}:{9+2*r}]")
    a(f"""    s_mov_b64 exec, -1
    s_branch L_MERGE
L_MERGE_END:
    s_waitcnt lgkmcnt(0)
    s_or_b32 s36, s{S_RB}, s{S_MORE}
    s_cmp_eq_u32 s36, 0
    s_cbranch_scc1 L_MERGED
    s_mul_i32 s36, s2, {320*64}
    s_add_u32 s36, s36, {TOT_OFF}
    v_lshl_add_u32 v48, v0, 6, s36
    s_cmp_eq_u32 s{S_RB}, 0
    s_cbranch_scc1 L_NOPREV""")
    for r in range(4):
        a(f"    global_load_dwordx4 v[{8+4*r}:{11+4*r}], v48, s[26:27] offset:{16*r} sc1")
    a("    s_waitcnt vmcnt(0)")
    for r in range(8):
        a(f"    v_pk_add_f32 v[{24+2*r}:{25+2*r}], v[{24+2*r}:{25+2*r}], v[{8+2*r}:{9+2*r}]")
    a(f"""L_NOPREV:
    s_cmp_eq_u32 s{S_MORE}, 0
    s_cbranch_scc1 L_MERGED""")
    for r in range(4):
        a(f"    global_store_dwordx4 v48, v[{24+4*r}:{27+4*r}], s[26:27] offset:{16*r} sc1")
    a(f"""    s_waitcnt vmcnt(0)
L_MERGED:
    s_cmp_eq_u32 s{S_MORE}, 0
    s_cbranch_scc1 L_EPI
    s_add_u32 s{S_RB}, s{S_RB}, 32
    s_cmp_lg_u32 s3, 0
    s_cbranch_scc1 L_NOCLR
    v_mov_b32 v9, 0
    v_lshlrev_b32 v10, 2, v{VL}
    ds_write_b32 v10, v9 offset:{L_CNT}
    v_mov_b32 v10, {L_FLAG}
    ds_write_b32 v10, v9
L_NOCLR:""")
    gran_addr(a)
    a(f"""    s_lshl_b32 s30, s3, 8
    s_add_u32 s30, s30, {GF_OFF}
    v_lshl_add_u32 v{VGF}, v{VI}, 4, s30
    v_mov_b32 v{VONE}, 1
    v_lshlrev_b32 v{VCA}, 2, v{VL}""")
    for j in range(4):
        a(f"    global_load_dwordx4 v[{GR(j)}:{GR(j)+3}], v2, s[26:27] offset:{128*j} sc1")
    a(f"""    s_waitcnt vmcnt(0) lgkmcnt(0)
    s_barrier
    s_branch L_ROUND
L_EPI:
    s_cmp_ge_u32 s3, 5
    s_cbranch_scc1 L_FIN
    s_mov_b32 s36, {EPS60:#x}               ; 1e-6 * 2^60""")
    nreg = [24 + c // 2 + 4 * (c % 2) for c in range(8)]
    dreg = [x + 8 for x in nreg]
    for c in range(8):
        a(f"    v_add_f32 v{dreg[c]}, s36, v{dreg[c]}")
        a(f"    v_rcp_f32 v{dreg[c]}, v{dreg[c]}")
    for c in range(8):
        xr = XR + c // 2
        if c % 2 == 0:
            a(f"    v_lshlrev_b32 v{8+c}, 16, v{xr}")
        else:
            a(f"    v_and_b32 v{8+c}, 0xffff0000, v{xr}")
    for c in range(8):
        a(f"    v_fma_f32 v{40+c}, v{nreg[c]}, v{dreg[c]}, v{40+c}")
    for c in range(8):
        a(f"    v_cmp_lt_f32 s[{48+2*c}:{49+2*c}], 0, v{40+c}")
        a(f"    v_mul_f32 v{16+c}, 0, v{40+c}")
    for c in range(8):
        a(f"    v_cndmask_b32 v{40+c}, v{16+c}, v{40+c}, s[{48+2*c}:{49+2*c}]")
    for c in range(8):
        a(f"    v_add_f32 v{40+c}, v{8+c}, v{40+c}")
    for c in range(4):
        a(f"    v_cvt_pk_bf16_f32 v{16+c}, v{40+2*c}, v{41+2*c}")
    a(f"""    v_lshlrev_b32 v4, 4, v0
    s_mul_i32 s36, s2, {NPB*128}
    v_add_u32 v4, s36, v4
    global_store_dwordx4 v4, v[16:19], s[22:23] {opt.ostore}
    s_or_b32 s36, s2, s3
    s_cmp_lg_u32 s36, 0
    s_cbranch_scc1 L_FIN
    v_mov_b32 v4, {GEN_OFF}
    v_mov_b32 v6, s{S_TAG}
    v_mov_b32 v7, s{S_TAG+1}
    s_mov_b64 exec, 1
    global_store_dwordx2 v4, v[6:7], s[26:27] sc1
L_FIN:""")
    stamp_flush(a)
    a("""L_END:
    s_endpgm
L_CODE_END:
""")

HEADER = """; GatedGCN edge-featured MPNN layer, one launch, one workgroup per 40 destination nodes.
"""

def main():
    global PROF
    ap = argparse.ArgumentParser()
    ap.add_argument("-o", default="standalone__edge_featured_mpnn_gatedgcn__graph.s")
    ap.add_argument("--store", default="sc1")
    ap.add_argument("--hload", default="sc1")
    ap.add_argument("--gload", default="")
    ap.add_argument("--touch", type=int, default=0)
    ap.add_argument("--ipf", type=int, default=0)
    ap.add_argument("--gearly", type=int, default=0)
    ap.add_argument("--otouch", type=int, default=0)
    ap.add_argument("--onewait", type=int, default=0)
    ap.add_argument("--wsbase", type=lambda x: int(x, 0), default=0)
    ap.add_argument("--wlate", type=int, default=1)
    ap.add_argument("--rec", type=int, default=12)
    ap.add_argument("--ostore", default="sc1")
    ap.add_argument("--prio", type=int, default=1)
    ap.add_argument("--pth", type=int, nargs=3, default=[15, 10, 5])
    ap.add_argument("--sleep", type=int, default=2)
    ap.add_argument("--prof", action="store_true")
    ap.add_argument("--dbg", action="store_true")
    opt = ap.parse_args()
    PROF = opt.prof or opt.dbg
    global DBG
    DBG = opt.dbg
    a = Asm()
    a(HEADER.rstrip())
    a(f"; @launch grid=({NB},1,1) block=(1024,1,1) lds={L_END}")
    a('.amdgcn_target "amdgcn-amd-amdhsa--gfx950"')
    a(".text")
    entry(a, opt)
    phase_a_bin(a, opt)
    phase_a_table(a, opt)
    phase_b(a, opt)
    a(f""".section .rodata,"a"
.p2align 6
.amdhsa_kernel {KNAME}
  .amdhsa_next_free_vgpr 128
  .amdhsa_next_free_sgpr {98 if PROF else 96}
  .amdhsa_accum_offset 128
  .amdhsa_group_segment_fixed_size 0
  .amdhsa_kernarg_size 96
  .amdhsa_user_sgpr_count 2
  .amdhsa_user_sgpr_kernarg_segment_ptr 1
  .amdhsa_system_sgpr_workgroup_id_x 1
  .amdhsa_float_denorm_mode_32 3
  .amdhsa_dx10_clamp 0
.end_amdhsa_kernel""")
    open(opt.o, "w").write(a.text())
    print("wrote", opt.o, "lds", L_END)

if __name__ == "__main__":
    main()
```

```python
import argparse, struct

KNAME = "standalone__edge_featured_mpnn_gatedgcn__graph_kernel"
N, D, E = 10000, 64, 640000
NB, NPB = 250, 40
CH = 2560
GEN_OFF, G_OFF, GF_OFF, GRAN_OFF, REC_OFF, TOT_OFF = 0, 0x1000, 0x274000, 0x280000, 0x3A0000, 0xD80000
GS = 32768
PROF_OFF = 0x1300000
NLOG2E = 0xBFB8AA3B
BIG, NBIG = 0x71800000, 0xF1800000
SHIFT = 60
C60 = (127 - SHIFT) << 23
EPS60 = struct.unpack("<I", struct.pack("<f", 1e-6 * 2.0 ** SHIFT))[0]
FSHIFT = struct.unpack("<I", struct.pack("<f", -float(SHIFT)))[0]
NWV = 16
POLL_LIMIT = 1 << 20
CHN = [0, 2, 1, 3]

SLOT_STR = 512
L_SLOT = 0
L_CNT = L_SLOT + (NPB + NWV) * SLOT_STR
L_ZREG = L_CNT + 256
L_FLAG = L_ZREG + 512
L_GCNT = L_FLAG + 4
L_ZEND = L_FLAG + 16
L_WCB = 29504
L_AP = 30080
L_U = L_AP + 48 * 272
L_SRC = L_U + 48 * 272
NSLOT = 250 * 32 + 320 + 64
L_E = L_SRC + NSLOT * 4
L_END = L_E + NSLOT * 8
A_HIST = L_SRC
A_OFFS = A_HIST + 1024
A_REC = A_OFFS + 1024
A_W = A_REC + CH * 16
WIMG = 64 * 144
A_X = A_W + 4 * WIMG
A_G = A_X + 48 * 144
assert A_G + 48 * 272 <= L_END <= 163840
assert all(x % 16 == 0 for x in (L_WCB, L_AP, L_U, L_SRC, L_E, A_REC, A_W, A_X, A_G))

SLA, TMP, INCE, APA = 88, 89, 90, 91
IDXA, IDXB = 92, 94
AC, A0, A1, ANX = 96, 100, 104, 108
XR = 112
QEND, QST = 116, 117
WC = 118
EB, EM, SRB, SLB = 120, 121, 122, 123
VPROF = 124
VI, VQ, VL = 125, 126, 127
S_TAG = 28
S_REC = 40
S_G = 44
M0, M1 = 48, 56
S_INV = 64
S_RB, S_MORE, S_P, S_TS, S_TE, S_N, S_SEGEND, S_REM = 68, 69, 70, 71, 72, 73, 74, 75
S_BLK, S_TAG8 = 76, 77
S_C60 = 78
P0M, P1M = 80, 88

class Asm:
    def __init__(self): self.l = []
    def __call__(self, s=""):
        self.l.extend(s.split("\n"))
    def text(self): return "\n".join(self.l) + "\n"

PROF = False
def stamp(a, idx):
    if PROF:
        a(f"    s_memrealtime s[96:97]")
        a(f"    s_waitcnt lgkmcnt(0)")
        a(f"    v_writelane_b32 v{VPROF}, s96, {idx}")

def cstamp(a, idx):
    if PROF:
        a(f"    s_memtime s[96:97]")
        a(f"    s_waitcnt lgkmcnt(0)")
        a(f"    v_writelane_b32 v{VPROF}, s96, {idx}")

DBG = False
def stamp_flush(a):
    if not PROF: return
    stamp(a, 9)
    if DBG:
        a(f"""    s_waitcnt vmcnt(0) lgkmcnt(0)
    v_readlane_b32 s30, v{VPROF}, 0
    v_readlane_b32 s31, v{VPROF}, 10
    v_readlane_b32 s32, v{VPROF}, 11
    v_readlane_b32 s33, v{VPROF}, 4
    v_readlane_b32 s34, v{VPROF}, 5
    v_readlane_b32 s35, v{VPROF}, 6
    s_nop 3
    s_not_b32 s30, s30
    s_sub_u32 s32, s32, s31
    s_cmp_lt_u32 s3, 10
    s_cselect_b32 s33, s33, 0
    s_cselect_b32 s34, s34, 0
    s_cselect_b32 s35, s35, 0
    v_writelane_b32 v{VPROF}, s30, 0
    v_writelane_b32 v{VPROF}, s32, 10
    v_writelane_b32 v{VPROF}, s33, 11
    v_writelane_b32 v{VPROF}, s34, 12
    v_writelane_b32 v{VPROF}, s35, 13
    s_mov_b64 exec, 0xffff
    v_lshlrev_b32 v2, 2, v{VL}
    global_atomic_umax v2, v{VPROF}, s[24:25]
    s_waitcnt vmcnt(0)""")
        return
    a(f"""    s_waitcnt vmcnt(0) lgkmcnt(0)
    s_mov_b64 exec, 0xffff
    s_lshl_b32 s30, s2, 4
    s_add_u32 s30, s30, s3
    s_lshl_b32 s30, s30, 6
    s_add_u32 s30, s30, {PROF_OFF}
    v_lshl_add_u32 v2, v{VL}, 2, s30
    global_store_dword v2, v{VPROF}, s[26:27]
    s_waitcnt vmcnt(0)""")

def dpp_scan(a, v):
    for sh in (1, 2, 4, 8):
        a(f"    s_nop 1")
        a(f"    v_add_u32_dpp v{v}, v{v}, v{v} row_shr:{sh} row_mask:0xf bank_mask:0xf bound_ctrl:0")
    a("    s_nop 1")
    a(f"    v_add_u32_dpp v{v}, v{v}, v{v} row_bcast:15 row_mask:0xa bank_mask:0xf")
    a("    s_nop 1")
    a(f"    v_add_u32_dpp v{v}, v{v}, v{v} row_bcast:31 row_mask:0xc bank_mask:0xf")
    a("    s_nop 1")

def entry(a, opt):
    a(f"""
.globl {KNAME}
.p2align 8
.type {KNAME},@function
{KNAME}:
    s_cmp_ge_u32 s2, {NB}
    s_cbranch_scc1 L_END
    s_load_dwordx16 s[4:19], s[0:1], 0
    s_load_dwordx8 s[20:27], s[0:1], 64
    v_lshrrev_b32 v1, 6, v0
    v_and_b32 v{VL}, 63, v0
    v_readfirstlane_b32 s3, v1
    v_lshrrev_b32 v{VQ}, 4, v{VL}
    v_and_b32 v{VI}, 15, v{VL}
    v_lshlrev_b32 v{IDXA+1}, 4, v{VI}
    v_mov_b32 v{IDXB+1}, v{IDXA+1}
    v_and_b32 v2, 3, v{VI}                  ; r
    v_lshrrev_b32 v3, 2, v{VI}              ; e
    v_cmp_eq_u32 vcc, v2, v{VQ}
    v_lshlrev_b32 v4, 3, v3
    v_add_u32 v4, {L_E}, v4
    v_mov_b32 v5, {L_ZREG}
    v_cndmask_b32 v{EB}, v5, v4, vcc
    v_mov_b32 v5, 32
    v_cndmask_b32 v{EM}, 0, v5, vcc
    v_lshlrev_b32 v{INCE}, 3, v{EM}
    v_cmp_eq_u32 vcc, v3, v{VQ}
    v_mov_b32 v5, 0x3f80
    v_lshrrev_b32 v6, 1, v2
    v_lshlrev_b32 v6, 4, v6
    v_lshlrev_b32 v5, v6, v5
    v_cndmask_b32 v5, 0, v5, vcc
    v_and_b32 v6, 1, v2                     ; r%2: 0 -> first register, 1 -> second
    v_cmp_eq_u32 vcc, 0, v6
    v_lshlrev_b32 v{APA}, 4, v{VI}
    v_add_u32 v{APA}, {L_AP}, v{APA}
    v_cndmask_b32 v{A0+2}, 0, v5, vcc
    v_cndmask_b32 v{A0+3}, v5, 0, vcc
    v_mov_b32 v{A1+2}, v{A0+2}
    v_mov_b32 v{A1+3}, v{A0+3}
    v_lshlrev_b32 v{SLB}, 3, v{VL}
    v_lshlrev_b32 v{SRB}, 2, v{VQ}
    v_add_u32 v{SRB}, {L_SRC}, v{SRB}
    s_mov_b32 s{S_RB}, 0
    s_mov_b32 s{S_C60}, {C60:#x}
    s_mov_b32 s{S_C60+1}, {C60:#x}
    s_cmp_eq_u32 s3, 15
    s_cselect_b32 s{S_INV+1}, 0xffff0000, 0
    s_cselect_b32 s{S_INV+3}, -1, 0
    s_mov_b32 s{S_INV}, 0
    s_mov_b32 s{S_INV+2}, 0""")
    if PROF:
        a(f"    v_mov_b32 v{VPROF}, 0")
    stamp(a, 0)
    a(f"""    s_cmp_ge_u32 s3, 10
    s_cbranch_scc1 L_TABLE""")

def gran_addr(a, dst=2):
    a(f"""    s_and_b32 s30, s2, 7
    s_lshl_b32 s30, s30, 5
    s_lshr_b32 s31, s2, 3
    s_or_b32 s31, s30, s31                  ; h
    s_lshr_b32 s30, s31, 3
    s_mul_i32 s30, s30, {GS}
    s_and_b32 s31, s31, 7
    s_lshl_b32 s31, s31, 4
    s_add_u32 s30, s30, s31
    s_lshl_b32 s31, s3, 11
    s_add_u32 s30, s30, s31
    s_add_u32 s30, s30, {GRAN_OFF}
    v_lshl_add_u32 v{dst}, v{VQ}, 9, s30""")

VGA, VGF, VONE, VCA = 96, 97, 98, 99

def late_setup(a, opt):
    a(f"""    s_add_u32 s{S_REC}, s26, {REC_OFF}
    s_addc_u32 s{S_REC+1}, s27, 0
    s_mov_b32 s{S_REC+2}, {E*opt.rec}
    s_mov_b32 s{S_REC+3}, 0x20000
    s_add_u32 s{S_G}, s26, {G_OFF}
    s_addc_u32 s{S_G+1}, s27, 0
    s_or_b32 s{S_G+1}, s{S_G+1}, 0x01000000  ; stride 256
    s_mov_b32 s{S_G+2}, {N+1}
    s_mov_b32 s{S_G+3}, 0x20000""")
    gran_addr(a, VGA)
    a(f"""    s_lshl_b32 s30, s3, 8
    s_add_u32 s30, s30, {GF_OFF}
    v_lshl_add_u32 v{VGF}, v{VI}, 4, s30
    v_mov_b32 v{VONE}, 1
    v_lshlrev_b32 v{VCA}, 2, v{VL}""")

def phase_a_bin(a, opt):
    st = opt.store
    QR = lambda j: 16 + 4 * j
    a(f"""    ; ================= phase A, binning waves (tid < 640)
    s_mul_i32 s30, s2, {CH*4}
    v_lshlrev_b32 v2, 4, v0
    v_add_u32 v3, s30, v2
    s_lshl_b32 s31, s30, 1
    v_lshlrev_b32 v4, 5, v0
    v_add_u32 v4, s31, v4
    s_mul_i32 s32, s2, {NPB*128}
    v_add_u32 v64, s32, v2
    v_mov_b32 v6, 0
    v_lshlrev_b32 v7, 2, v0
    s_waitcnt lgkmcnt(0)""")
    if opt.wsbase:
        a(f"    s_add_u32 s26, s26, {opt.wsbase}")
        a(f"    s_addc_u32 s27, s27, 0")
    stamp(a, 1)
    a(f"""    global_load_dwordx4 v[8:11], v3, s[10:11]
    s_load_dwordx2 s[{S_TAG}:{S_TAG+1}], s[26:27], {GEN_OFF}
    s_cmp_ge_u32 s3, 4
    s_cbranch_scc1 L_NOZH
    ds_write_b32 v7, v6 offset:{A_HIST}
L_NOZH:
    s_cmp_lg_u32 s3, 4
    s_cbranch_scc1 L_NOZC
    v_mov_b32 v32, 0
    v_mov_b32 v33, 0
    v_mov_b32 v34, 0
    v_mov_b32 v35, 0
    v_lshlrev_b32 v36, 4, v{VL}
    v_cmp_gt_u32 vcc, {(L_ZEND-L_CNT)//16}, v{VL}
    s_and_saveexec_b64 s[34:35], vcc
    ds_write_b128 v36, v[32:35] offset:{L_CNT}
    s_mov_b64 exec, s[34:35]
L_NOZC:""")
    late_setup(a, opt)
    a(f"""    ; addresses of the copy-out and of the run table entry (bucket slot h = 64*wave + lane, waves 0..3)
    s_mul_i32 s36, s2, {CH*opt.rec}
    s_mov_b32 s38, {A_REC}
    v_lshl_add_u32 v56, v0, 4, s38
    v_mad_u32_u24 v57, v0, {opt.rec}, s36
    v_add_u32 v58, {640*opt.rec}, v57
    v_add_u32 v59, {2*640*opt.rec}, v57
    v_add_u32 v60, {3*640*opt.rec}, v57
    s_and_b32 s37, s3, 3
    s_lshl_b32 s30, s37, 8
    v_lshl_add_u32 v61, v{VL}, 2, s30       ; 4*h
    s_mul_i32 s37, s37, {8*GS}
    s_lshl_b32 s30, s2, 7
    s_add_u32 s37, s37, s30
    s_add_u32 s37, s37, {GRAN_OFF}
    v_lshrrev_b32 v62, 3, v{VL}
    v_mul_u32_u24 v62, {GS}, v62
    v_add_u32 v62, s37, v62
    v_and_b32 v63, 7, v{VL}
    v_lshl_add_u32 v62, v63, 4, v62
    v_lshlrev_b32 v63, 4, v{VL}
    s_mul_i32 s39, s2, {CH}
    s_mov_b32 s33, 52429
    s_movk_i32 s34, 0xffd8                  ; -40
    s_movk_i32 s37, 0xfc04                  ; -1020
    global_load_dwordx4 v[12:15], v3, s[8:9]
    global_load_dwordx4 v[16:19], v4, s[6:7]
    global_load_dwordx4 v[24:27], v4, s[6:7] offset:16
    s_waitcnt lgkmcnt(0)
    s_add_u32 s{S_TAG}, s{S_TAG}, 1
    s_addc_u32 s{S_TAG+1}, s{S_TAG+1}, 0
    s_and_b32 s{S_TAG8}, s{S_TAG}, 0xff
    s_lshl_b32 s35, s{S_TAG8}, 24
    v_mov_b32 v53, s{S_TAG}
    v_mov_b32 v54, s{S_TAG+1}
    v_mov_b32 v55, s{S_TAG}
    s_barrier                               ; #1
    s_waitcnt vmcnt(3)""")
    stamp(a, 2)
    for j in range(4):
        a(f"    v_mul_u32_u24 v{40+j}, s33, v{8+j}")
        a(f"    v_lshrrev_b32 v{32+j}, 21, v{40+j}          ; bucket b")
        a(f"    v_lshrrev_b32 v{40+j}, 24, v{40+j}          ; b / 8")
        a(f"    v_mad_i32_i24 v{8+j}, v{32+j}, s34, v{8+j}")
        a(f"    v_lshlrev_b32 v{32+j}, 7, v{32+j}")
        a(f"    v_mad_i32_i24 v{32+j}, v{40+j}, s37, v{32+j}  ; 4 * ((b % 8) * 32 + b / 8): buckets of one die are adjacent")
        a(f"    ds_add_rtn_u32 v{36+j}, v{32+j}, v{VONE} offset:{A_HIST}")
    for j in range(4):
        a(f"    v_lshl_or_b32 v{8+j}, v{8+j}, 2, s35")
    a(f"""    s_waitcnt lgkmcnt(0)
    s_barrier                               ; #2
    ds_read_b128 v[40:43], v63 offset:{A_HIST}
    s_waitcnt lgkmcnt(0)
    v_add_u32 v44, v40, v41
    v_add_u32 v45, v44, v42
    v_add_u32 v46, v45, v43
    v_mov_b32 v47, v46""")
    dpp_scan(a, 47)
    a(f"""    v_sub_u32 v48, v47, v46
    v_add_u32 v49, v48, v40
    v_add_u32 v50, v48, v44
    v_add_u32 v51, v48, v45
    ds_write_b128 v63, v[48:51] offset:{A_OFFS}
    s_waitcnt vmcnt(0)""")
    for j in range(4):
        a(f"    v_lshl_or_b32 v{12+j}, v{12+j}, 8, v{8+j}")
    a("    v_pk_mov_b32 v[20:21], v[18:19], v[18:19] op_sel:[0,1]")
    a("    v_pk_mov_b32 v[28:29], v[26:27], v[26:27] op_sel:[0,1]")
    for j in range(4):
        a(f"    v_mov_b32 v{QR(j)+2}, v{12+j}")
        if opt.rec == 16:
            a(f"    v_bitop3_b32 v{QR(j)+3}, v{QR(j)}, v{12+j}, s{S_TAG} bitop3:0x96")
    a("    s_waitcnt lgkmcnt(0)")
    for j in range(4):
        a(f"    ds_read_b32 v{44+j}, v{32+j} offset:{A_OFFS}")
    a(f"""    ds_read_b32 v52, v61 offset:{A_OFFS}
    ds_read_b32 v48, v61 offset:{A_HIST}
    s_waitcnt lgkmcnt(2)""")
    for j in range(4):
        a(f"    v_add_u32 v{44+j}, v{44+j}, v{36+j}")
        a(f"    v_lshl_add_u32 v{44+j}, v{44+j}, 4, s38")
        a(f"    ds_write_b128 v{44+j}, v[{QR(j)}:{QR(j)+3}]")
    a(f"""    s_add_u32 s30, s26, {REC_OFF}
    s_addc_u32 s31, s27, 0
    s_waitcnt lgkmcnt(0)
    s_barrier                               ; #3""")
    stamp(a, 3)
    if opt.rec == 16:
        for j in range(4):
            a(f"    ds_read_b128 v[{32+4*j}:{35+4*j}], v56 offset:{j*10240}")
    else:
        for j in range(4):
            a(f"    ds_read_b96 v[{32+4*j}:{34+4*j}], v56 offset:{j*10240}")
    a(f"""    v_add_u32 v52, s39, v52
    v_lshl_or_b32 v52, v48, 20, v52""")
    for j in range(4):
        a(f"    s_waitcnt lgkmcnt({3-j})")
        if opt.rec == 16:
            a(f"    global_store_dwordx4 v{57+j}, v[{32+4*j}:{35+4*j}], s[30:31] {st}")
        else:
            a(f"    global_store_dwordx3 v{57+j}, v[{32+4*j}:{34+4*j}], s[30:31] {st}")
    a(f"""    s_cmp_ge_u32 s3, 5
    s_cbranch_scc1 L_NOXR
    global_load_dwordx4 v[{XR}:{XR+3}], v64, s[4:5]
""" + (f"    global_load_dword v{TMP}, v64, s[22:23]    ; touches the output page early\n" if opt.otouch else "") + "L_NOXR:")
    if opt.rec == 12:
        a("    s_waitcnt vmcnt(0)")
    a(f"""    s_barrier                               ; #4
    s_cmp_ge_u32 s3, 4
    s_cbranch_scc1 L_PHASEB
    global_store_dwordx4 v62, v[52:55], s[26:27] {st}
    s_branch L_PHASEB""")

def tile_mfma(a, acc0, wreg, xreg):
    for mat in range(2):
        acc = acc0 + 4 * mat
        r0, r1 = wreg + mat * 8, wreg + mat * 8 + 4
        a(f"    v_mfma_f32_16x16x32_bf16 v[{acc}:{acc+3}], v[{r0}:{r0+3}], v[{xreg}:{xreg+3}], 0")
        a(f"    v_mfma_f32_16x16x32_bf16 v[{acc}:{acc+3}], v[{r1}:{r1+3}], v[{xreg+4}:{xreg+7}], v[{acc}:{acc+3}]")

def phase_a_table(a, opt):
    st = opt.store
    wp = [14, 20, 12, 18]
    a(f"""L_TABLE:
    s_sub_u32 s36, s3, 10                   ; u""")
    if opt.ipf:
        a(f"""    ; the table waves are idle here: they pull the kernel's own code into the cache (2 KB per wave)
    s_getpc_b64 s[30:31]
L_PC:
    s_sub_u32 s30, s30, L_PC-{KNAME}
    s_subb_u32 s31, s31, 0
    s_lshl_b32 s32, s36, 11
    v_lshl_add_u32 v80, v{VL}, 4, s32
    v_add_u32 v81, 1024, v80
    s_mov_b32 s33, L_CODE_END-{KNAME}
    v_cmp_gt_u32 vcc, s33, v80
    v_cmp_gt_u32 s[34:35], s33, v81
    s_mov_b64 exec, vcc
    s_cbranch_execz L_NOPF0
    global_load_dword v82, v80, s[30:31]
L_NOPF0:
    s_mov_b64 exec, s[34:35]
    s_cbranch_execz L_NOPF1
    global_load_dword v83, v81, s[30:31]
L_NOPF1:
    s_mov_b64 exec, -1""")
    a(f"""    s_and_b32 s37, s36, 1
    s_add_u32 s38, s37, 6
    v_lshlrev_b32 v2, 4, v{VL}
    s_lshl_b32 s30, s36, 10
    v_add_u32 v3, s30, v2                   ; piece u
    s_lshl_b32 s31, s38, 10
    v_add_u32 v4, s31, v2                   ; piece 6/7
    s_mul_i32 s32, s2, {NPB*128}
    v_add_u32 v5, s32, v3                   ; x offset
    v_lshrrev_b32 v6, 3, v{VL}
    v_mul_u32_u24 v6, 144, v6
    v_and_b32 v7, 7, v{VL}
    v_lshl_add_u32 v6, v7, 4, v6
    s_mul_i32 s33, s36, {8*144}
    s_add_u32 s33, s33, {A_W}
    v_add_u32 v48, s33, v6
    s_mul_i32 s33, s38, {8*144}
    s_add_u32 s33, s33, {A_W}
    v_add_u32 v49, s33, v6
    v_lshrrev_b32 v50, 1, v{VQ}
    v_and_b32 v51, 1, v{VQ}
    v_lshl_or_b32 v50, v51, 1, v50
    v_lshl_add_u32 v50, v{VI}, 2, v50
    v_lshlrev_b32 v50, 1, v50
    s_waitcnt lgkmcnt(0)""")
    if opt.wsbase:
        a(f"    s_add_u32 s26, s26, {opt.wsbase}")
        a(f"    s_addc_u32 s27, s27, 0")
    a(f"""    s_load_dwordx2 s[{S_TAG}:{S_TAG+1}], s[26:27], {GEN_OFF}""")
    stamp(a, 1)
    late_setup(a, opt)
    a("    s_barrier")
    if opt.wlate:
        a("    s_barrier                               ; #2")
    for m in range(4):
        a(f"    global_load_dwordx4 v[{8+8*m}:{11+8*m}], v3, s[{wp[m]}:{wp[m]+1}]")
        a(f"    global_load_dwordx4 v[{12+8*m}:{15+8*m}], v4, s[{wp[m]}:{wp[m]+1}]")
    if opt.touch:
        a(f"""    ; touch the workspace pages used later (unused words or tag-checked records only)
    v_lshlrev_b32 v45, 21, v{VL}
    v_add_u32 v45, 0x200000, v45
    v_mov_b32 v46, 0x276000
    v_cmp_eq_u32 vcc, 0, v{VL}
    s_nop 1
    v_cndmask_b32 v45, v45, v46, vcc
    s_mov_b64 exec, 0x3f
    global_load_dword v{TMP}, v45, s[26:27] sc1
    s_mov_b64 exec, -1""")
    a(f"""    s_cmp_eq_u32 s36, 5
    s_cbranch_scc1 L_TWC0
    global_load_dwordx4 v[40:43], v5, s[4:5]
    s_branch L_TB
L_TWC0:
    global_load_ushort v40, v50, s[16:17]
    global_load_ushort v41, v50, s[16:17] offset:128
    global_load_ushort v42, v50, s[16:17] offset:256
    global_load_ushort v43, v50, s[16:17] offset:384
L_TB:""")
    if not opt.wlate:
        a("    s_barrier                               ; #2")
    a(f"""    s_barrier                               ; #3
    s_cmp_eq_u32 s36, 5
    s_cbranch_scc1 L_TWC
    s_waitcnt vmcnt(0)
    ds_write_b128 v48, v[40:43] offset:{A_X - A_W}
    s_branch L_TST
L_TWC:
    s_mov_b32 s33, {NLOG2E:#x}
    v_lshlrev_b32 v44, 3, v{VL}
    s_waitcnt vmcnt(0)
    v_lshlrev_b32 v40, 16, v40
    v_lshlrev_b32 v41, 16, v41
    v_lshlrev_b32 v42, 16, v42
    v_lshlrev_b32 v43, 16, v43
    v_mul_f32 v40, s33, v40
    v_mul_f32 v41, s33, v41
    v_mul_f32 v42, s33, v42
    v_mul_f32 v43, s33, v43
    v_cvt_pk_bf16_f32 v40, v40, v41
    v_cvt_pk_bf16_f32 v41, v42, v43
    ds_write_b64 v44, v[40:41] offset:{L_WCB}
L_TST:""")
    for m in range(4):
        a(f"    ds_write_b128 v48, v[{8+8*m}:{11+8*m}] offset:{m*WIMG}")
        a(f"    ds_write_b128 v49, v[{12+8*m}:{15+8*m}] offset:{m*WIMG}")
    a(f"""    ; tile job: nt = u/2, mt in {{2*(u%2), 2*(u%2)+1}}
    s_lshr_b32 s30, s36, 1                  ; nt
    s_lshl_b32 s31, s37, 1                  ; mt0
    s_lshl_b32 s32, s30, 4
    v_add_u32 v4, s32, v{VI}                ; node
    v_mul_u32_u24 v5, 144, v4
    v_lshl_add_u32 v5, v{VQ}, 4, v5
    v_add_u32 v5, {A_X}, v5
    v_lshrrev_b32 v6, 2, v{VI}
    v_lshl_add_u32 v6, v{VQ}, 3, v6
    v_mul_u32_u24 v6, 144, v6
    v_and_b32 v7, 3, v{VI}
    v_lshl_add_u32 v6, v7, 3, v6
    s_lshl_b32 s32, s31, 5
    s_add_u32 s32, s32, {A_W}
    v_add_u32 v6, s32, v6
    v_mul_u32_u24 v7, 272, v4
    v_lshl_add_u32 v50, v{VQ}, 4, v7
    s_lshl_b32 s32, s31, 6
    v_add_u32 v50, s32, v50
    v_add_u32 v51, {L_AP}, v50
    v_add_u32 v53, {L_U}, v50
    s_waitcnt lgkmcnt(0)
    s_add_u32 s{S_TAG}, s{S_TAG}, 1
    s_addc_u32 s{S_TAG+1}, s{S_TAG+1}, 0
    s_and_b32 s{S_TAG8}, s{S_TAG}, 0xff
    v_mov_b32 v54, {L_GCNT+4}
    v_mov_b32 v55, 1
    s_mov_b64 exec, 1
    ds_add_u32 v54, v55
    s_mov_b64 exec, -1
    s_mov_b32 s33, 0
L_TSYNC:
    ds_read_b32 v55, v54
    s_add_u32 s33, s33, 1
    s_cmp_ge_u32 s33, {POLL_LIMIT}
    s_cbranch_scc1 L_END
    s_waitcnt lgkmcnt(0)
    v_readfirstlane_b32 s30, v55
    s_nop 3
    s_cmp_lt_u32 s30, 6
    s_cbranch_scc1 L_TSYNC
    ds_read_b128 v[8:11], v5
    ds_read_b128 v[12:15], v5 offset:64""")
    def wfrags(first):
        for m in range(2):
            for mat in range(2):
                for ks in range(2):
                    r = 16 + m * 16 + mat * 8 + ks * 4
                    for h in range(2):
                        a(f"    ds_read_b64_tr_b16 v[{r+2*h}:{r+2*h+1}], v6 offset:{(first+mat)*WIMG + ks*4608 + h*576 + m*32}")
    wfrags(0)
    a(f"""    ; table row address of this lane: (40 w + node)*256 + (16 mt0 + 4 g)*4 ; rows >= 40 of the tile are not stored
    s_mul_i32 s31, s2, {NPB*256}
    s_add_u32 s31, s31, {G_OFF}
    v_lshlrev_b32 v55, 8, v4
    v_add_u32 v55, s31, v55
    v_lshl_add_u32 v55, v{VQ}, 4, v55
    s_and_b32 s30, s36, 1
    s_lshl_b32 s30, s30, 7
    v_add_u32 v55, s30, v55
    v_cmp_gt_u32 s[34:35], {NPB}, v4
    s_mov_b32 s32, {NLOG2E:#x}
    s_mov_b32 s33, {BIG:#x}
    v_mov_b32 v54, {NBIG:#x}
    s_waitcnt lgkmcnt(0)""")
    for m in range(2):
        tile_mfma(a, 56 + 8 * m, 16 + 16 * m, 8)
    wfrags(2)
    a("    s_mov_b32 s30, 0x8000")
    for m in range(2):
        accb, accv = 56 + 8 * m, 60 + 8 * m
        o = 72 + 4 * m
        for r in range(4):
            a(f"    v_mul_f32 v{accb+r}, s32, v{accb+r}")
            a(f"    v_med3_f32 v{accb+r}, v{accb+r}, v54, s33")
        a(f"    v_cvt_pk_bf16_f32 v{o}, v{accb}, v{accb+1}")
        a(f"    v_cvt_pk_bf16_f32 v{o+1}, v{accb+2}, v{accb+3}")
        for p in range(2):
            lo, hi = accv + 2 * p, accv + 2 * p + 1
            a(f"    v_cvt_pk_bf16_f32 v80, v{lo}, v{lo}")
            a(f"    v_and_b32 v80, 0xffff, v80")
            a(f"    v_and_b32 v81, 0x7fffffff, v{hi}")
            a(f"    v_and_b32 v{hi}, 0x80000000, v{hi}")
            a(f"    v_sub_u32 v81, v81, v80")
            a(f"    v_add_u32 v81, s30, v81")
            a(f"    v_max_i32 v81, 0, v81")
            a(f"    v_and_b32 v81, 0xffff0000, v81")
            a(f"    v_or3_b32 v{o+2+p}, v81, v80, v{hi}")
    if not opt.gearly:
        a("    s_barrier")
    a(f"""    s_mov_b64 exec, s[34:35]
    global_store_dwordx4 v55, v[72:75], s[26:27] offset:0 {st}
    global_store_dwordx4 v55, v[76:79], s[26:27] offset:64 {st}
    s_mov_b64 exec, -1""")
    a(f"""    ; padding row N of the table (gate saturates, value 0): last workgroup, wave u = 5
    s_cmp_lg_u32 s2, {NB-1}
    s_cbranch_scc1 L_TAU
    s_cmp_lg_u32 s36, 5
    s_cbranch_scc1 L_TAU
    v_mov_b32 v80, 0x71807180
    v_mov_b32 v81, v80
    v_mov_b32 v82, 0
    v_mov_b32 v83, 0
    v_lshlrev_b32 v7, 4, v{VL}
    v_add_u32 v7, {N*256 + G_OFF}, v7
    s_mov_b64 exec, 0xffff
    global_store_dwordx4 v7, v[80:83], s[26:27] {st}
    s_mov_b64 exec, -1
L_TAU:
    s_waitcnt lgkmcnt(0)""")
    for m in range(2):
        tile_mfma(a, 56 + 8 * m, 16 + 16 * m, 8)
    a(f"""    s_mov_b32 s34, {FSHIFT:#x}
    s_nop 6""")
    for m in range(2):
        acca, accu = 56 + 8 * m, 60 + 8 * m
        a(f"    ds_write_b128 v53, v[{accu}:{accu+3}] offset:{m*64}")
        for r in range(4):
            a(f"    v_mul_f32 v{acca+CHN[r]}, s32, v{acca+CHN[r]}")
            a(f"    v_med3_f32 v{acca+CHN[r]}, v{acca+CHN[r]}, v54, s33")
            a(f"    v_add_f32 v{16+r}, s34, v{acca+CHN[r]}")
        a(f"    ds_write_b128 v51, v[16:19] offset:{m*64}")
    if opt.gearly == 2:
        a("    s_barrier                               ; #4")
    a(f"""    ; the table rows of this workgroup are complete: the last table wave publishes the flag
    v_mov_b32 v16, {L_GCNT}
    v_mov_b32 v17, 1
    s_waitcnt vmcnt(0)
    s_mov_b64 exec, 1
    ds_add_rtn_u32 v18, v16, v17
    s_waitcnt lgkmcnt(0)
    v_readfirstlane_b32 s30, v18
    s_mov_b64 exec, -1
    s_cmp_lg_u32 s30, 5
    s_cbranch_scc1 {"L_TB4" if opt.gearly == 1 else "L_PHASEB"}
    s_lshl_b32 s30, s2, 4
    s_add_u32 s30, s30, {GF_OFF}
    v_mov_b32 v16, s30
    v_mov_b32 v18, s{S_TAG}
    v_mov_b32 v19, s{S_TAG+1}
    s_mov_b64 exec, 1
    global_store_dwordx2 v16, v[18:19], s[26:27] {st}
    s_mov_b64 exec, -1""")
    if opt.gearly == 1:
        a("L_TB4:")
        a("    s_barrier                               ; #4")

def phase_b(a, opt):
    GR = lambda j: 8 + 4 * j
    rec = lambda h, j: 24 + 16 * h + 4 * j
    RANK, DL = 56, 64
    msk = lambda h, j: (M0 if h == 0 else M1) + 2 * j
    pnd = lambda h, j: (P0M if h == 0 else P1M) + 2 * j
    inv = lambda j: S_INV + (2 if j >= 2 else 0)
    a("L_PHASEB:")
    stamp(a, 4)
    a(f"""    ; ================= phase B: wait for the run table entries of this bucket
    v_lshlrev_b32 v2, 3, v{VL}
    ds_read_b64 v[{WC}:{WC+1}], v2 offset:{L_WCB}""")
    a(f"""    s_mov_b32 s33, 0
    s_mov_b32 s38, s{S_TAG+1}
    s_mov_b32 s39, s{S_TAG}""")
    for j in range(4):
        a(f"    s_not_b64 s[{pnd(0,j)}:{pnd(0,j)+1}], s[{inv(j)}:{inv(j)+1}]")
    a("L_POLL:")
    for j in range(4):
        p = pnd(0, j)
        a(f"    s_mov_b64 exec, s[{p}:{p+1}]")
        a(f"    s_cbranch_execz L_NP{j}")
        a(f"    global_load_dwordx4 v[{GR(j)}:{GR(j)+3}], v{VGA}, s[26:27] offset:{128*j} sc1")
        a(f"L_NP{j}:")
    a("    s_waitcnt vmcnt(0)")
    for j in range(4):
        p = pnd(0, j)
        a(f"    s_mov_b64 exec, s[{p}:{p+1}]")
        a(f"    v_cmp_eq_u32 vcc, s{S_TAG}, v{GR(j)+1}")
        a(f"    v_cmp_eq_u64 s[34:35], v[{GR(j)+2}:{GR(j)+3}], s[38:39]")
        a(f"    s_nop 0")
        a(f"    s_and_b64 s[34:35], s[34:35], vcc")
        a(f"    s_andn2_b64 s[{p}:{p+1}], s[{p}:{p+1}], s[34:35]")
    a(f"""    s_mov_b64 exec, -1
    s_or_b64 s[34:35], s[{pnd(0,0)}:{pnd(0,0)+1}], s[{pnd(0,1)}:{pnd(0,1)+1}]
    s_or_b64 s[36:37], s[{pnd(0,2)}:{pnd(0,2)+1}], s[{pnd(0,3)}:{pnd(0,3)+1}]
    s_or_b64 s[34:35], s[34:35], s[36:37]
    s_cbranch_scc0 L_READY
    s_add_u32 s33, s33, 1
    s_cmp_ge_u32 s33, {POLL_LIMIT}
    s_cbranch_scc1 L_END
    s_sleep {opt.sleep}
    s_branch L_POLL
L_READY:""")
    stamp(a, 5)
    a(f"""L_ROUND:
    v_add_u32 v2, s{S_RB}, v{VI}
    v_add_u32 v3, 16, v2
    v_mul_u32_u24 v4, {opt.rec}, v2""")
    for j in range(4):
        a(f"    v_lshrrev_b32 v{GR(j)+1}, 20, v{GR(j)}      ; count")
        a(f"    v_and_b32 v{GR(j)}, 0xfffff, v{GR(j)}")
        a(f"    v_cmp_gt_u32 s[{msk(0,j)}:{msk(0,j)+1}], v{GR(j)+1}, v2")
        a(f"    v_cmp_gt_u32 s[{msk(1,j)}:{msk(1,j)+1}], v{GR(j)+1}, v3")
        if opt.rec == 16:
            a(f"    v_lshl_add_u32 v{GR(j)+2}, v{GR(j)}, 4, v4")
        else:
            a(f"    v_mad_u32_u24 v{GR(j)+2}, v{GR(j)}, 12, v4")
    a(f"    s_add_u32 s30, s{S_RB}, 32")
    for j in range(4):
        a(f"    s_andn2_b64 s[{msk(0,j)}:{msk(0,j)+1}], s[{msk(0,j)}:{msk(0,j)+1}], s[{inv(j)}:{inv(j)+1}]")
        a(f"    s_mov_b64 s[{pnd(0,j)}:{pnd(0,j)+1}], s[{msk(0,j)}:{msk(0,j)+1}]")
        a(f"    s_andn2_b64 s[{msk(1,j)}:{msk(1,j)+1}], s[{msk(1,j)}:{msk(1,j)+1}], s[{inv(j)}:{inv(j)+1}]")
        a(f"    s_mov_b64 s[{pnd(1,j)}:{pnd(1,j)+1}], s[{msk(1,j)}:{msk(1,j)+1}]")
        a(f"    s_cbranch_scc0 L_NMORE{j}")
        a(f"    s_mov_b64 exec, s[{msk(1,j)}:{msk(1,j)+1}]")
        a(f"    v_cmp_lt_u32 vcc, s30, v{GR(j)+1}")
        a(f"    s_mov_b64 exec, -1")
        a(f"    s_cmp_eq_u64 vcc, 0")
        a(f"    s_cbranch_scc1 L_NMORE{j}")
        a(f"    v_mov_b32 v5, {L_FLAG}")
        a(f"    v_mov_b32 v6, 1")
        a(f"    ds_write_b32 v5, v6")
        a(f"L_NMORE{j}:")
    if opt.rec == 16:
        a(f"""    s_mov_b32 s33, 0
L_RLOAD:""")
        for h in range(2):
            for j in range(4):
                p = pnd(h, j)
                a(f"    s_cmp_eq_u64 s[{p}:{p+1}], 0")
                a(f"    s_cbranch_scc1 L_NL{h}{j}")
                a(f"    s_mov_b64 exec, s[{p}:{p+1}]")
                off = " offset:256" if h else ""
                a(f"    buffer_load_dwordx4 v[{rec(h,j)}:{rec(h,j)+3}], v{GR(j)+2}, s[{S_REC}:{S_REC+3}], 0 offen{off} {opt.hload}")
                a(f"L_NL{h}{j}:")
        a("    s_waitcnt vmcnt(0)")
        for h in range(2):
            for j in range(4):
                p = pnd(h, j)
                r = rec(h, j)
                a(f"    s_cmp_eq_u64 s[{p}:{p+1}], 0")
                a(f"    s_cbranch_scc1 L_NC{h}{j}")
                a(f"    s_mov_b64 exec, s[{p}:{p+1}]")
                a(f"    v_bitop3_b32 v5, v{r}, v{r+2}, v{r+3} bitop3:0x96")
                a(f"    v_cmp_eq_u32_sdwa s[34:35], v{r+2}, s{S_TAG8} src0_sel:BYTE_3 src1_sel:DWORD")
                a(f"    v_cmp_eq_u32 vcc, s{S_TAG}, v5")
                a(f"    s_nop 0")
                a(f"    s_and_b64 s[34:35], s[34:35], vcc")
                a(f"    s_andn2_b64 s[{p}:{p+1}], s[{p}:{p+1}], s[34:35]")
                a(f"L_NC{h}{j}:")
        a(f"    s_mov_b64 exec, -1")
        a(f"    s_or_b64 s[34:35], s[{pnd(0,0)}:{pnd(0,0)+1}], s[{pnd(0,1)}:{pnd(0,1)+1}]")
        for h in range(2):
            for j in range(4):
                if (h, j) in ((0, 0), (0, 1)): continue
                a(f"    s_or_b64 s[34:35], s[34:35], s[{pnd(h,j)}:{pnd(h,j)+1}]")
        a(f"""    s_cbranch_scc0 L_HAVE
    s_add_u32 s33, s33, 1
    s_cmp_ge_u32 s33, {POLL_LIMIT}
    s_cbranch_scc1 L_END
    s_sleep {opt.sleep}
    s_branch L_RLOAD
L_HAVE:""")
    else:
        for h in range(2):
            for j in range(4):
                p = msk(h, j)
                if h:
                    a(f"    s_cmp_eq_u64 s[{p}:{p+1}], 0")
                    a(f"    s_cbranch_scc1 L_NL{h}{j}")
                a(f"    s_mov_b64 exec, s[{p}:{p+1}]")
                off = " offset:192" if h else ""
                a(f"    buffer_load_dwordx3 v[{rec(h,j)}:{rec(h,j)+2}], v{GR(j)+2}, s[{S_REC}:{S_REC+3}], 0 offen{off} {opt.hload}")
                if h:
                    a(f"L_NL{h}{j}:")
        a("    s_mov_b64 exec, -1")
        a("    s_waitcnt vmcnt(0)")
    stamp(a, 6)
    a(f"""    ; table-row flags of this wave's 16 producers: loaded now, checked before the first gather
    global_load_dwordx2 v[22:23], v{VGF}, s[26:27] sc1""")
    for h in range(2):
        for j in range(4):
            m = msk(h, j)
            if h == 1:
                a(f"    s_cmp_eq_u64 s[{m}:{m+1}], 0")
                a(f"    s_cbranch_scc1 L_NB1R{j}")
            a(f"    s_mov_b64 exec, s[{m}:{m+1}]")
            a(f"    v_and_b32 v{DL+4*h+j}, 0xff, v{rec(h,j)+2}")
            a(f"    ds_add_rtn_u32 v{RANK+4*h+j}, v{DL+4*h+j}, v{VONE} offset:{L_CNT}")
            if h == 1:
                a(f"L_NB1R{j}:")
    a(f"""    s_mov_b64 exec, -1
    v_mov_b32 v6, {L_FLAG}
    v_cmp_gt_u32 vcc, {NPB}, v{VL}
    s_waitcnt lgkmcnt(0)
    s_barrier                               ; #5""")
    stamp(a, 12)
    a(f"""    ds_read_b32 v5, v{VCA} offset:{L_CNT}
    ds_read_b32 v6, v6
    s_waitcnt lgkmcnt(0)
    v_add_u32 v4, 7, v5
    v_lshrrev_b32 v4, 3, v4
    v_max_u32 v4, 1, v4
    v_cndmask_b32 v4, 0, v4, vcc
    v_readfirstlane_b32 s{S_MORE}, v6
    v_mov_b32 v{QEND}, v4""")
    dpp_scan(a, QEND)
    stamp(a, 13)
    a(f"""    v_sub_u32 v{QST}, v{QEND}, v4
    v_readlane_b32 s{S_P}, v{QEND}, 63
    v_lshlrev_b32 v3, 3, v{QST}
    s_mov_b32 s30, {L_SRC}
    s_mov_b32 s31, {L_E}""")
    for j in range(4):
        a(f"    ds_bpermute_b32 v{8+j}, v{DL+j}, v3")
    for j in range(4):
        a(f"    s_cmp_eq_u64 s[{M1+2*j}:{M1+2*j+1}], 0")
        a(f"    s_cbranch_scc1 L_NB1P{j}")
        a(f"    ds_bpermute_b32 v{12+j}, v{DL+4+j}, v3")
        a(f"L_NB1P{j}:")
    a(f"""    ; padding slots: waves 0..4 take 8 nodes each, lane = (node, slot); wave 5 fills the tail
    s_cmp_ge_u32 s3, 5
    s_cbranch_scc1 L_NOPLK
    s_lshl_b32 s32, s3, 3
    v_lshrrev_b32 v16, 3, v{VL}
    v_add_u32 v16, s32, v16
    v_lshlrev_b32 v16, 2, v16               ; 4*node
    v_add_u32 v17, v3, v5
    v_lshlrev_b32 v18, 3, v{QEND}
    ds_bpermute_b32 v17, v16, v17
    ds_bpermute_b32 v18, v16, v18
L_NOPLK:
    s_mul_i32 s{S_TS}, s{S_P}, s3
    s_lshr_b32 s{S_TS}, s{S_TS}, 4
    s_add_u32 s32, s3, 1
    s_mul_i32 s{S_TE}, s{S_P}, s32
    s_lshr_b32 s{S_TE}, s{S_TE}, 4
    v_cmp_ge_u32 vcc, s{S_TS}, v{QEND}
    s_waitcnt lgkmcnt(0)
    s_bcnt1_i32_b64 s{S_N}, vcc""")
    for h in range(2):
        for j in range(4):
            m = msk(h, j)
            r = rec(h, j)
            if h == 1:
                a(f"    s_cmp_eq_u64 s[{m}:{m+1}], 0")
                a(f"    s_cbranch_scc1 L_NB1S{j}")
            a(f"    s_mov_b64 exec, s[{m}:{m+1}]")
            a(f"    v_add_u32 v{8+4*h+j}, v{8+4*h+j}, v{RANK+4*h+j}")
            a(f"    v_bfe_u32 v{r+2}, v{r+2}, 8, 16")
            a(f"    v_lshl_add_u32 v19, v{8+4*h+j}, 2, s30")
            a(f"    v_lshl_add_u32 v21, v{8+4*h+j}, 3, s31")
            a(f"    ds_write_b32 v19, v{r+2}")
            a(f"    ds_write_b64 v21, v[{r}:{r+1}]")
            if h == 1:
                a(f"L_NB1S{j}:")
    stamp(a, 14)
    a(f"""    s_mov_b64 exec, -1
    v_mov_b32 v11, {N}
    v_mov_b32 v12, 0
    v_mov_b32 v13, 0
    s_cmp_gt_u32 s3, 5
    s_cbranch_scc1 L_NOPAD
    v_and_b32 v16, 7, v{VL}
    v_add_u32 v16, v17, v16
    v_cmp_lt_u32 vcc, v16, v18
    s_cmp_lt_u32 s3, 5
    s_cbranch_scc1 L_PADW
    s_lshl_b32 s32, s{S_P}, 3
    v_add_u32 v16, s32, v{VL}
    s_mov_b64 vcc, -1
L_PADW:
    v_lshl_add_u32 v14, v16, 2, s30
    v_lshl_add_u32 v15, v16, 3, s31
    s_mov_b64 exec, vcc
    ds_write_b32 v14, v11
    ds_write_b64 v15, v[12:13]
    s_mov_b64 exec, -1
L_NOPAD:
    v_readlane_b32 s{S_SEGEND}, v{QEND}, s{S_N}
    s_lshl_b32 s32, s{S_TS}, 5
    v_add_u32 v2, s32, v{SRB}
    s_lshl_b32 s32, s{S_TS}, 1
    v_mad_u32_u24 v3, v{EM}, s32, v{EB}
    s_mul_i32 s32, s{S_N}, 272
    v_add_u32 v{TMP}, s32, v{APA}
    s_add_u32 s32, s{S_N}, s3
    s_lshl_b32 s32, s32, 9
    v_add_u32 v{SLA}, s32, v{SLB}
    s_min_u32 s{S_SEGEND}, s{S_SEGEND}, s{S_TE}
    s_sub_u32 s{S_REM}, s{S_SEGEND}, s{S_TS}
    s_sub_u32 s{S_REM}, s{S_REM}, 1""")
    S = lambda k: 8 + 6 * (k % 8)
    Da, Db, T = 56, 60, 64
    NUM, DEN = 68, 72
    PA, PB_, UA, UB, SA, SB = 76, 78, 80, 82, 84, 86
    a(f"""    s_mov_b32 s33, 0
    s_cmp_eq_u32 s3, 15
    s_cselect_b32 s34, 0xfc00fc00, 0
    s_mov_b32 s35, s34
L_GPOLL:
    s_waitcnt vmcnt(0)
    v_cmp_eq_u64 s[36:37], v[22:23], s[{S_TAG}:{S_TAG+1}]
    s_nop 0
    s_or_b64 s[36:37], s[36:37], s[34:35]
    s_cmp_eq_u64 s[36:37], -1
    s_cbranch_scc1 L_GOK
    s_add_u32 s33, s33, 1
    s_cmp_ge_u32 s33, {POLL_LIMIT}
    s_cbranch_scc1 L_END
    s_sleep {opt.sleep}
    global_load_dwordx2 v[22:23], v{VGF}, s[26:27] sc1
    s_branch L_GPOLL
L_GOK:""")
    stamp(a, 15)
    a(f"""    s_waitcnt lgkmcnt(0)
    s_barrier                               ; #6""")
    stamp(a, 7)
    cstamp(a, 10)
    pairs = [IDXA, IDXB, 56, 58, 60, 62]
    for k in range(6):
        a(f"    ds_read_b32 v{pairs[k]}, v2 offset:{16*k}")
    a(f"""    ds_read_b128 v[{AC}:{AC+3}], v{TMP}
    ds_read_b128 v[{ANX}:{ANX+3}], v{TMP} offset:272
    ds_read_b64 v[{A0}:{A0+1}], v3
    ds_read_b64 v[{A1}:{A1+1}], v3 offset:32""")
    for k in range(4):
        a(f"    v_mov_b32 v{56+2*k+1}, v{IDXA+1}")
    for k in range(8):
        a(f"    v_pk_mov_b32 v[{S(k)}:{S(k)+1}], v[{WC}:{WC+1}], v[{WC}:{WC+1}] op_sel:[0,1]")
    for r in range(0, 8, 2):
        a(f"    v_pk_mov_b32 v[{NUM+r}:{NUM+r+1}], 0, 0")
    for k in range(6):
        a(f"    s_waitcnt lgkmcnt({9-k})")
        a(f"    buffer_load_dwordx4 v[{S(k)+2}:{S(k)+5}], v[{pairs[k]}:{pairs[k]+1}], s[{S_G}:{S_G+3}], 0 idxen offen {opt.gload}")
    a(f"""    s_cmp_ge_u32 s3, 5
    s_cbranch_scc1 L_NOSEG
    v_cvt_f32_u32 v76, s{S_P}
    v_rcp_f32 v76, v76
    v_lshlrev_b32 v77, 4, v{QST}
    v_add_u32 v77, 16, v77
    v_cvt_f32_u32 v77, v77
    v_lshlrev_b32 v78, 4, v{QEND}
    v_cvt_f32_u32 v78, v78
    v_add_f32 v77, -0.5, v77
    v_add_f32 v78, -0.5, v78
    v_mul_f32 v77, v77, v76
    v_mul_f32 v78, v78, v76
    v_cvt_u32_f32 v77, v77
    v_cvt_u32_f32 v78, v78
    v_lshrrev_b32 v4, 3, v0                 ; node
    v_sub_u32 v78, v78, v77
    v_add_u32 v78, 1, v78
    v_add_u32 v77, v77, v{VL}
    v_lshl_or_b32 v77, v78, 16, v77
    v_lshlrev_b32 v5, 2, v4
    ds_bpermute_b32 v5, v5, v77
    v_and_b32 v6, 7, v0
    v_lshlrev_b32 v6, 4, v6
    v_mul_u32_u24 v4, 272, v4
    v_lshl_add_u32 v4, v6, 1, v4
    v_add_u32 v4, {L_U}, v4
    s_waitcnt lgkmcnt(0)
    v_lshrrev_b32 v7, 16, v5
    v_and_b32 v5, 0xffff, v5
    v_lshl_add_u32 v5, v5, 9, v6
L_NOSEG:""")
    if opt.prio:
        a(f"    s_setprio 3")
        a(f"    s_sub_u32 s{S_BLK}, s{S_TE}, s{S_TS}")
    a(f"    s_waitcnt lgkmcnt(0)")
    a("L_LOOP:")
    for k in range(0, 8, 2):
        sa, sb = S(k), S(k + 1)
        pa, pb = S(k - 2), S(k - 1)
        a(f"""    s_waitcnt vmcnt({4 if opt.onewait else 5})
    v_mfma_f32_16x16x32_bf16 v[{Da}:{Da+3}], v[{A0}:{A0+3}], v[{sa}:{sa+3}], v[{AC}:{AC+3}]
    ds_read_b32 v{IDXA}, v2 offset:{16*(k+6)}
    ds_read_b32 v{IDXB}, v2 offset:{16*(k+7)}
    v_lshlrev_b32 v{T}, 16, v{sa+4}
    v_lshlrev_b32 v{T+1}, 16, v{sa+5}
    {"s_nop 0" if opt.onewait == 2 else ("" if opt.onewait else "s_waitcnt vmcnt(4)")}
    v_mfma_f32_16x16x32_bf16 v[{Db}:{Db+3}], v[{A1}:{A1+3}], v[{sb}:{sb+3}], v[{AC}:{AC+3}]
    v_lshlrev_b32 v{T+2}, 16, v{sb+4}
    v_lshlrev_b32 v{T+3}, 16, v{sb+5}
    s_sub_u32 s{S_REM}, s{S_REM}, 1
    ds_read_b64 v[{A0}:{A0+1}], v3 offset:{32*(k+2)}
    ds_read_b64 v[{A1}:{A1+1}], v3 offset:{32*(k+3)}""")
        for i in range(4):
            a(f"    v_exp_f32 v{Da+i}, v{Da+i} clamp")
        a(f"""    s_waitcnt lgkmcnt(2)
    buffer_load_dwordx4 v[{pa+2}:{pa+5}], v[{IDXA}:{IDXA+1}], s[{S_G}:{S_G+3}], 0 idxen offen {opt.gload}
    buffer_load_dwordx4 v[{pb+2}:{pb+5}], v[{IDXB}:{IDXB+1}], s[{S_G}:{S_G+3}], 0 idxen offen {opt.gload}""")
        for i in range(4):
            a(f"    v_exp_f32 v{Db+i}, v{Db+i} clamp")
        c = f"s[{S_C60}:{S_C60+1}]"
        a(f"""    v_pk_add_f32 v[{Da}:{Da+1}], v[{Da}:{Da+1}], {c}
    v_pk_add_f32 v[{Da+2}:{Da+3}], v[{Da+2}:{Da+3}], {c}
    v_pk_add_f32 v[{Db}:{Db+1}], v[{Db}:{Db+1}], {c}
    v_pk_add_f32 v[{Db+2}:{Db+3}], v[{Db+2}:{Db+3}], {c}
    v_pk_mul_f32 v[{PA}:{PA+1}], v[{Da}:{Da+1}], v[{Db}:{Db+1}]
    v_pk_mul_f32 v[{PB_}:{PB_+1}], v[{Da+2}:{Da+3}], v[{Db+2}:{Db+3}]
    v_pk_mul_f32 v[{UA}:{UA+1}], v[{T}:{T+1}], v[{Db}:{Db+1}]
    v_rcp_f32 v{PA}, v{PA}
    v_rcp_f32 v{PA+1}, v{PA+1}
    v_pk_mul_f32 v[{UB}:{UB+1}], v[{sa+4}:{sa+5}], v[{Db+2}:{Db+3}]
    v_rcp_f32 v{PB_}, v{PB_}
    v_rcp_f32 v{PB_+1}, v{PB_+1}
    v_pk_fma_f32 v[{UA}:{UA+1}], v[{T+2}:{T+3}], v[{Da}:{Da+1}], v[{UA}:{UA+1}]
    v_pk_fma_f32 v[{UB}:{UB+1}], v[{sb+4}:{sb+5}], v[{Da+2}:{Da+3}], v[{UB}:{UB+1}]
    v_pk_add_f32 v[{SA}:{SA+1}], v[{Da}:{Da+1}], v[{Db}:{Db+1}]
    v_pk_add_f32 v[{SB}:{SB+1}], v[{Da+2}:{Da+3}], v[{Db+2}:{Db+3}]
    v_pk_fma_f32 v[{NUM}:{NUM+1}], v[{PA}:{PA+1}], v[{UA}:{UA+1}], v[{NUM}:{NUM+1}]
    v_pk_fma_f32 v[{NUM+2}:{NUM+3}], v[{PB_}:{PB_+1}], v[{UB}:{UB+1}], v[{NUM+2}:{NUM+3}]
    v_pk_fma_f32 v[{DEN}:{DEN+1}], v[{PA}:{PA+1}], v[{SA}:{SA+1}], v[{DEN}:{DEN+1}]
    v_pk_fma_f32 v[{DEN+2}:{DEN+3}], v[{PB_}:{PB_+1}], v[{SB}:{SB+1}], v[{DEN+2}:{DEN+3}]
    s_waitcnt lgkmcnt(0)
    s_cbranch_scc1 L_SB{k}
L_RB{k}:""")
        if k == 6:
            a(f"    v_add_u32 v2, 128, v2")
            a(f"    v_add_u32 v3, v{INCE}, v3")
            if opt.prio:
                t1, t2, t3 = opt.pth
                a(f"""    s_sub_u32 s{S_BLK}, s{S_BLK}, 4
    s_cmp_gt_i32 s{S_BLK}, {t1}
    s_cbranch_scc1 L_LOOP
    s_setprio 2
    s_cmp_gt_i32 s{S_BLK}, {t2}
    s_cbranch_scc1 L_LOOP
    s_setprio 1
    s_cmp_gt_i32 s{S_BLK}, {t3}
    s_cbranch_scc1 L_LOOP
    s_setprio 0""")
            a(f"    s_branch L_LOOP")
    for k in range(0, 8, 2):
        a(f"L_SB{k}:")
        for r in range(4):
            a(f"    v_permlane32_swap_b32 v{NUM+r}, v{DEN+r}")
        a(f"""    v_pk_add_f32 v[{NUM}:{NUM+1}], v[{NUM}:{NUM+1}], v[{DEN}:{DEN+1}]
    v_pk_add_f32 v[{NUM+2}:{NUM+3}], v[{NUM+2}:{NUM+3}], v[{DEN+2}:{DEN+3}]
    s_add_u32 s{S_N}, s{S_N}, 1
    s_add_u32 s36, s{S_N}, 1
    v_permlane16_swap_b32 v{NUM}, v{NUM+2}
    v_permlane16_swap_b32 v{NUM+1}, v{NUM+3}
    v_readlane_b32 s37, v{QEND}, s{S_N}
    s_mul_i32 s36, s36, 272
    v_pk_add_f32 v[{DEN}:{DEN+1}], v[{NUM}:{NUM+1}], v[{NUM+2}:{NUM+3}]
    v_add_u32 v{TMP}, s36, v{APA}
    s_cmp_eq_u32 s{S_SEGEND}, s{S_TE}
    ds_write_b64 v{SLA}, v[{DEN}:{DEN+1}]
    s_cbranch_scc1 L_DONE
    v_pk_mov_b32 v[{AC}:{AC+1}], v[{ANX}:{ANX+1}], v[{ANX}:{ANX+1}] op_sel:[0,1]
    v_pk_mov_b32 v[{AC+2}:{AC+3}], v[{ANX+2}:{ANX+3}], v[{ANX+2}:{ANX+3}] op_sel:[0,1]
    v_add_u32 v{SLA}, {SLOT_STR}, v{SLA}
    s_min_u32 s37, s37, s{S_TE}
    v_pk_mov_b32 v[{NUM}:{NUM+1}], 0, 0
    v_pk_mov_b32 v[{NUM+2}:{NUM+3}], 0, 0
    ds_read_b128 v[{ANX}:{ANX+3}], v{TMP}
    v_pk_mov_b32 v[{DEN}:{DEN+1}], 0, 0
    v_pk_mov_b32 v[{DEN+2}:{DEN+3}], 0, 0
    s_sub_u32 s{S_REM}, s37, s{S_SEGEND}
    s_sub_u32 s{S_REM}, s{S_REM}, 1
    s_mov_b32 s{S_SEGEND}, s37
    s_branch L_RB{k}""")
    a("L_DONE:")
    if opt.prio:
        a("    s_setprio 0")
    stamp(a, 8)
    cstamp(a, 11)
    a(f"""    s_waitcnt vmcnt(0) lgkmcnt(0)
    s_barrier                               ; #7
    s_cmp_ge_u32 s3, 5
    s_cbranch_scc1 L_MERGED
    ds_read_b128 v[24:27], v5 offset:{L_SLOT}
    ds_read_b128 v[28:31], v5 offset:{L_SLOT+128}
    ds_read_b128 v[32:35], v5 offset:{L_SLOT+256}
    ds_read_b128 v[36:39], v5 offset:{L_SLOT+384}
    ds_read_b128 v[40:43], v4
    ds_read_b128 v[44:47], v4 offset:16
    v_add_u32 v5, {SLOT_STR}, v5
    s_mov_b32 s36, 1
L_MERGE:
    v_cmp_lt_u32 vcc, s36, v7
    s_nop 1
    s_cmp_eq_u64 vcc, 0
    s_cbranch_scc1 L_MERGE_END
    s_mov_b64 exec, vcc
    ds_read_b128 v[8:11], v5 offset:{L_SLOT}
    ds_read_b128 v[12:15], v5 offset:{L_SLOT+128}
    ds_read_b128 v[16:19], v5 offset:{L_SLOT+256}
    ds_read_b128 v[20:23], v5 offset:{L_SLOT+384}
    v_add_u32 v5, {SLOT_STR}, v5
    s_add_u32 s36, s36, 1
    s_waitcnt lgkmcnt(0)""")
    for r in range(8):
        a(f"    v_pk_add_f32 v[{24+2*r}:{25+2*r}], v[{24+2*r}:{25+2*r}], v[{8+2*r}:{9+2*r}]")
    a(f"""    s_mov_b64 exec, -1
    s_branch L_MERGE
L_MERGE_END:
    s_waitcnt lgkmcnt(0)
    s_or_b32 s36, s{S_RB}, s{S_MORE}
    s_cmp_eq_u32 s36, 0
    s_cbranch_scc1 L_MERGED
    s_mul_i32 s36, s2, {320*64}
    s_add_u32 s36, s36, {TOT_OFF}
    v_lshl_add_u32 v48, v0, 6, s36
    s_cmp_eq_u32 s{S_RB}, 0
    s_cbranch_scc1 L_NOPREV""")
    for r in range(4):
        a(f"    global_load_dwordx4 v[{8+4*r}:{11+4*r}], v48, s[26:27] offset:{16*r} sc1")
    a("    s_waitcnt vmcnt(0)")
    for r in range(8):
        a(f"    v_pk_add_f32 v[{24+2*r}:{25+2*r}], v[{24+2*r}:{25+2*r}], v[{8+2*r}:{9+2*r}]")
    a(f"""L_NOPREV:
    s_cmp_eq_u32 s{S_MORE}, 0
    s_cbranch_scc1 L_MERGED""")
    for r in range(4):
        a(f"    global_store_dwordx4 v48, v[{24+4*r}:{27+4*r}], s[26:27] offset:{16*r} sc1")
    a(f"""    s_waitcnt vmcnt(0)
L_MERGED:
    s_cmp_eq_u32 s{S_MORE}, 0
    s_cbranch_scc1 L_EPI
    s_add_u32 s{S_RB}, s{S_RB}, 32
    s_cmp_lg_u32 s3, 0
    s_cbranch_scc1 L_NOCLR
    v_mov_b32 v9, 0
    v_lshlrev_b32 v10, 2, v{VL}
    ds_write_b32 v10, v9 offset:{L_CNT}
    v_mov_b32 v10, {L_FLAG}
    ds_write_b32 v10, v9
L_NOCLR:""")
    gran_addr(a)
    a(f"""    s_lshl_b32 s30, s3, 8
    s_add_u32 s30, s30, {GF_OFF}
    v_lshl_add_u32 v{VGF}, v{VI}, 4, s30
    v_mov_b32 v{VONE}, 1
    v_lshlrev_b32 v{VCA}, 2, v{VL}""")
    for j in range(4):
        a(f"    global_load_dwordx4 v[{GR(j)}:{GR(j)+3}], v2, s[26:27] offset:{128*j} sc1")
    a(f"""    s_waitcnt vmcnt(0) lgkmcnt(0)
    s_barrier
    s_branch L_ROUND
L_EPI:
    s_cmp_ge_u32 s3, 5
    s_cbranch_scc1 L_FIN
    s_mov_b32 s36, {EPS60:#x}               ; 1e-6 * 2^60""")
    nreg = [24 + c // 2 + 4 * (c % 2) for c in range(8)]
    dreg = [x + 8 for x in nreg]
    for c in range(8):
        a(f"    v_add_f32 v{dreg[c]}, s36, v{dreg[c]}")
        a(f"    v_rcp_f32 v{dreg[c]}, v{dreg[c]}")
    for c in range(8):
        xr = XR + c // 2
        if c % 2 == 0:
            a(f"    v_lshlrev_b32 v{8+c}, 16, v{xr}")
        else:
            a(f"    v_and_b32 v{8+c}, 0xffff0000, v{xr}")
    for c in range(8):
        a(f"    v_fma_f32 v{40+c}, v{nreg[c]}, v{dreg[c]}, v{40+c}")
    for c in range(8):
        a(f"    v_cmp_lt_f32 s[{48+2*c}:{49+2*c}], 0, v{40+c}")
        a(f"    v_mul_f32 v{16+c}, 0, v{40+c}")
    for c in range(8):
        a(f"    v_cndmask_b32 v{40+c}, v{16+c}, v{40+c}, s[{48+2*c}:{49+2*c}]")
    for c in range(8):
        a(f"    v_add_f32 v{40+c}, v{8+c}, v{40+c}")
    for c in range(4):
        a(f"    v_cvt_pk_bf16_f32 v{16+c}, v{40+2*c}, v{41+2*c}")
    a(f"""    v_lshlrev_b32 v4, 4, v0
    s_mul_i32 s36, s2, {NPB*128}
    v_add_u32 v4, s36, v4
    global_store_dwordx4 v4, v[16:19], s[22:23] {opt.ostore}
    s_or_b32 s36, s2, s3
    s_cmp_lg_u32 s36, 0
    s_cbranch_scc1 L_FIN
    v_mov_b32 v4, {GEN_OFF}
    v_mov_b32 v6, s{S_TAG}
    v_mov_b32 v7, s{S_TAG+1}
    s_mov_b64 exec, 1
    global_store_dwordx2 v4, v[6:7], s[26:27] sc1
L_FIN:""")
    stamp_flush(a)
    a("""L_END:
    s_endpgm
L_CODE_END:
""")

HEADER = """; GatedGCN edge-featured MPNN layer, one launch, one workgroup per 40 destination nodes.
"""

def main():
    global PROF
    ap = argparse.ArgumentParser()
    ap.add_argument("-o", default="standalone__edge_featured_mpnn_gatedgcn__graph.s")
    ap.add_argument("--store", default="sc1")
    ap.add_argument("--hload", default="sc1")
    ap.add_argument("--gload", default="")
    ap.add_argument("--touch", type=int, default=0)
    ap.add_argument("--ipf", type=int, default=0)
    ap.add_argument("--gearly", type=int, default=0)
    ap.add_argument("--otouch", type=int, default=0)
    ap.add_argument("--onewait", type=int, default=0)
    ap.add_argument("--wsbase", type=lambda x: int(x, 0), default=0)
    ap.add_argument("--wlate", type=int, default=1)
    ap.add_argument("--rec", type=int, default=12)
    ap.add_argument("--ostore", default="sc1")
    ap.add_argument("--prio", type=int, default=1)
    ap.add_argument("--pth", type=int, nargs=3, default=[16, 8, 4])
    ap.add_argument("--gs", type=int, default=33152)
    ap.add_argument("--sleep", type=int, default=2)
    ap.add_argument("--prof", action="store_true")
    ap.add_argument("--dbg", action="store_true")
    opt = ap.parse_args()
    PROF = opt.prof or opt.dbg
    global GS
    GS = opt.gs
    assert 32 * GS <= REC_OFF - GRAN_OFF
    global DBG
    DBG = opt.dbg
    a = Asm()
    a(HEADER.rstrip())
    a(f"; @launch grid=({NB},1,1) block=(1024,1,1) lds={L_END}")
    a('.amdgcn_target "amdgcn-amd-amdhsa--gfx950"')
    a(".text")
    entry(a, opt)
    phase_a_bin(a, opt)
    phase_a_table(a, opt)
    phase_b(a, opt)
    a(f""".section .rodata,"a"
.p2align 6
.amdhsa_kernel {KNAME}
  .amdhsa_next_free_vgpr 128
  .amdhsa_next_free_sgpr {98 if PROF else 96}
  .amdhsa_accum_offset 128
  .amdhsa_group_segment_fixed_size 0
  .amdhsa_kernarg_size 96
  .amdhsa_user_sgpr_count 2
  .amdhsa_user_sgpr_kernarg_segment_ptr 1
  .amdhsa_system_sgpr_workgroup_id_x 1
  .amdhsa_float_denorm_mode_32 3
  .amdhsa_dx10_clamp 0
.end_amdhsa_kernel""")
    open(opt.o, "w").write(a.text())
    print("wrote", opt.o, "lds", L_END)

if __name__ == "__main__":
    main()
```

```python
import argparse, struct

KNAME = "standalone__edge_featured_mpnn_gatedgcn__graph_kernel"
N, D, E = 10000, 64, 640000
NB, NPB = 250, 40
CH = 2560
GEN_OFF, G_OFF, GF_OFF, GRAN_OFF, REC_OFF, TOT_OFF = 0, 0x1000, 0x274000, 0x280000, 0x3A0000, 0xD80000
GS = 32768
PROF_OFF = 0x1300000
NLOG2E = 0xBFB8AA3B
BIG, NBIG = 0x71800000, 0xF1800000
SHIFT = 60
C60 = (127 - SHIFT) << 23
EPS60 = struct.unpack("<I", struct.pack("<f", 1e-6 * 2.0 ** SHIFT))[0]
FSHIFT = struct.unpack("<I", struct.pack("<f", -float(SHIFT)))[0]
NWV = 16
POLL_LIMIT = 1 << 20
CHN = [0, 2, 1, 3]

SLOT_STR = 512
L_SLOT = 0
L_CNT = L_SLOT + (NPB + NWV) * SLOT_STR
L_ZREG = L_CNT + 256
L_FLAG = L_ZREG + 512
L_GCNT = L_FLAG + 4
L_ZEND = L_FLAG + 16
L_WCB = 29504
L_AP = 30080
L_U = L_AP + 48 * 272
L_SRC = L_U + 48 * 272
NSLOT = 250 * 32 + 320 + 64
L_E = L_SRC + NSLOT * 4
L_END = L_E + NSLOT * 8
A_HIST = L_SRC
A_OFFS = A_HIST + 1024
A_REC = A_OFFS + 1024
A_W = A_REC + CH * 16
WIMG = 64 * 144
A_X = A_W + 4 * WIMG
A_G = A_X + 48 * 144
assert A_G + 48 * 272 <= L_END <= 163840
assert all(x % 16 == 0 for x in (L_WCB, L_AP, L_U, L_SRC, L_E, A_REC, A_W, A_X, A_G))

SLA, TMP, INCE, APA = 88, 89, 90, 91
IDXA, IDXB = 92, 94
AC, A0, A1, ANX = 96, 100, 104, 108
XR = 112
QEND, QST = 116, 117
WC = 118
EB, EM, SRB, SLB = 120, 121, 122, 123
VPROF = 124
VI, VQ, VL = 125, 126, 127
S_TAG = 28
S_REC = 40
S_G = 44
M0, M1 = 48, 56
S_INV = 64
S_RB, S_MORE, S_P, S_TS, S_TE, S_N, S_SEGEND, S_REM = 68, 69, 70, 71, 72, 73, 74, 75
S_BLK, S_TAG8 = 76, 77
S_C60 = 78
P0M, P1M = 80, 88

class Asm:
    def __init__(self): self.l = []
    def __call__(self, s=""):
        self.l.extend(s.split("\n"))
    def text(self): return "\n".join(self.l) + "\n"

PROF = False
def stamp(a, idx):
    if PROF:
        a(f"    s_memrealtime s[96:97]")
        a(f"    s_waitcnt lgkmcnt(0)")
        a(f"    v_writelane_b32 v{VPROF}, s96, {idx}")

def cstamp(a, idx):
    if PROF:
        a(f"    s_memtime s[96:97]")
        a(f"    s_waitcnt lgkmcnt(0)")
        a(f"    v_writelane_b32 v{VPROF}, s96, {idx}")

DBG = False
def stamp_flush(a):
    if not PROF: return
    stamp(a, 9)
    if DBG:
        a(f"""    s_waitcnt vmcnt(0) lgkmcnt(0)
    v_readlane_b32 s30, v{VPROF}, 0
    v_readlane_b32 s31, v{VPROF}, 10
    v_readlane_b32 s32, v{VPROF}, 11
    v_readlane_b32 s33, v{VPROF}, 4
    v_readlane_b32 s34, v{VPROF}, 5
    v_readlane_b32 s35, v{VPROF}, 6
    s_nop 3
    s_not_b32 s30, s30
    s_sub_u32 s32, s32, s31
    s_cmp_lt_u32 s3, 10
    s_cselect_b32 s33, s33, 0
    s_cselect_b32 s34, s34, 0
    s_cselect_b32 s35, s35, 0
    v_writelane_b32 v{VPROF}, s30, 0
    v_writelane_b32 v{VPROF}, s32, 10
    v_writelane_b32 v{VPROF}, s33, 11
    v_writelane_b32 v{VPROF}, s34, 12
    v_writelane_b32 v{VPROF}, s35, 13
    s_mov_b64 exec, 0xffff
    v_lshlrev_b32 v2, 2, v{VL}
    global_atomic_umax v2, v{VPROF}, s[24:25]
    s_waitcnt vmcnt(0)""")
        return
    a(f"""    s_waitcnt vmcnt(0) lgkmcnt(0)
    s_mov_b64 exec, 0xffff
    s_lshl_b32 s30, s2, 4
    s_add_u32 s30, s30, s3
    s_lshl_b32 s30, s30, 6
    s_add_u32 s30, s30, {PROF_OFF}
    v_lshl_add_u32 v2, v{VL}, 2, s30
    global_store_dword v2, v{VPROF}, s[26:27]
    s_waitcnt vmcnt(0)""")

def dpp_scan(a, v):
    for sh in (1, 2, 4, 8):
        a(f"    s_nop 1")
        a(f"    v_add_u32_dpp v{v}, v{v}, v{v} row_shr:{sh} row_mask:0xf bank_mask:0xf bound_ctrl:0")
    a("    s_nop 1")
    a(f"    v_add_u32_dpp v{v}, v{v}, v{v} row_bcast:15 row_mask:0xa bank_mask:0xf")
    a("    s_nop 1")
    a(f"    v_add_u32_dpp v{v}, v{v}, v{v} row_bcast:31 row_mask:0xc bank_mask:0xf")
    a("    s_nop 1")

def entry(a, opt):
    a(f"""
.globl {KNAME}
.p2align 8
.type {KNAME},@function
{KNAME}:
    s_cmp_ge_u32 s2, {NB}
    s_cbranch_scc1 L_END
    s_load_dwordx16 s[4:19], s[0:1], 0
    s_load_dwordx8 s[20:27], s[0:1], 64
    v_lshrrev_b32 v1, 6, v0
    v_and_b32 v{VL}, 63, v0
    v_readfirstlane_b32 s3, v1
    v_lshrrev_b32 v{VQ}, 4, v{VL}
    v_and_b32 v{VI}, 15, v{VL}
    v_lshlrev_b32 v{IDXA+1}, 4, v{VI}
    v_mov_b32 v{IDXB+1}, v{IDXA+1}
    v_and_b32 v2, 3, v{VI}                  ; r
    v_lshrrev_b32 v3, 2, v{VI}              ; e
    v_cmp_eq_u32 vcc, v2, v{VQ}
    v_lshlrev_b32 v4, 3, v3
    v_add_u32 v4, {L_E}, v4
    v_mov_b32 v5, {L_ZREG}
    v_cndmask_b32 v{EB}, v5, v4, vcc
    v_mov_b32 v5, 32
    v_cndmask_b32 v{EM}, 0, v5, vcc
    v_lshlrev_b32 v{INCE}, 3, v{EM}
    v_cmp_eq_u32 vcc, v3, v{VQ}
    v_mov_b32 v5, 0x3f80
    v_lshrrev_b32 v6, 1, v2
    v_lshlrev_b32 v6, 4, v6
    v_lshlrev_b32 v5, v6, v5
    v_cndmask_b32 v5, 0, v5, vcc
    v_and_b32 v6, 1, v2                     ; r%2: 0 -> first register, 1 -> second
    v_cmp_eq_u32 vcc, 0, v6
    v_lshlrev_b32 v{APA}, 4, v{VI}
    v_add_u32 v{APA}, {L_AP}, v{APA}
    v_cndmask_b32 v{A0+2}, 0, v5, vcc
    v_cndmask_b32 v{A0+3}, v5, 0, vcc
    v_mov_b32 v{A1+2}, v{A0+2}
    v_mov_b32 v{A1+3}, v{A0+3}
    v_lshlrev_b32 v{SLB}, 3, v{VL}
    v_lshlrev_b32 v{SRB}, 2, v{VQ}
    v_add_u32 v{SRB}, {L_SRC}, v{SRB}
    s_mov_b32 s{S_RB}, 0
    s_mov_b32 s{S_C60}, {C60:#x}
    s_mov_b32 s{S_C60+1}, {C60:#x}
    s_cmp_eq_u32 s3, 15
    s_cselect_b32 s{S_INV+1}, 0xffff0000, 0
    s_cselect_b32 s{S_INV+3}, -1, 0
    s_mov_b32 s{S_INV}, 0
    s_mov_b32 s{S_INV+2}, 0""")
    if PROF:
        a(f"    v_mov_b32 v{VPROF}, 0")
    stamp(a, 0)
    a(f"""    s_cmp_ge_u32 s3, 10
    s_cbranch_scc1 L_TABLE""")

def gran_addr(a, dst=2):
    a(f"""    s_and_b32 s30, s2, 7
    s_lshl_b32 s30, s30, 5
    s_lshr_b32 s31, s2, 3
    s_or_b32 s31, s30, s31                  ; h
    s_lshr_b32 s30, s31, 3
    s_mul_i32 s30, s30, {GS}
    s_and_b32 s31, s31, 7
    s_lshl_b32 s31, s31, 4
    s_add_u32 s30, s30, s31
    s_lshl_b32 s31, s3, 11
    s_add_u32 s30, s30, s31
    s_add_u32 s30, s30, {GRAN_OFF}
    v_lshl_add_u32 v{dst}, v{VQ}, 9, s30""")

VGA, VGF, VONE, VCA = 96, 97, 98, 99

def late_setup(a, opt):
    a(f"""    s_add_u32 s{S_REC}, s26, {REC_OFF}
    s_addc_u32 s{S_REC+1}, s27, 0
    s_mov_b32 s{S_REC+2}, {E*opt.rec}
    s_mov_b32 s{S_REC+3}, 0x20000
    s_add_u32 s{S_G}, s26, {G_OFF}
    s_addc_u32 s{S_G+1}, s27, 0
    s_or_b32 s{S_G+1}, s{S_G+1}, 0x01000000  ; stride 256
    s_mov_b32 s{S_G+2}, {N+1}
    s_mov_b32 s{S_G+3}, 0x20000""")
    gran_addr(a, VGA)
    a(f"""    s_lshl_b32 s30, s3, 8
    s_add_u32 s30, s30, {GF_OFF}
    v_lshl_add_u32 v{VGF}, v{VI}, 4, s30
    v_mov_b32 v{VONE}, 1
    v_lshlrev_b32 v{VCA}, 2, v{VL}""")

def phase_a_bin(a, opt):
    st = opt.store
    QR = lambda j: 16 + 4 * j
    a(f"""    ; ================= phase A, binning waves (tid < 640)
    s_mul_i32 s30, s2, {CH*4}
    v_lshlrev_b32 v2, 4, v0
    v_add_u32 v3, s30, v2
    s_lshl_b32 s31, s30, 1
    v_lshlrev_b32 v4, 5, v0
    v_add_u32 v4, s31, v4
    s_mul_i32 s32, s2, {NPB*128}
    v_add_u32 v64, s32, v2
    v_mov_b32 v6, 0
    v_lshlrev_b32 v7, 2, v0
    s_waitcnt lgkmcnt(0)""")
    if opt.wsbase:
        a(f"    s_add_u32 s26, s26, {opt.wsbase}")
        a(f"    s_addc_u32 s27, s27, 0")
    stamp(a, 1)
    a(f"""    global_load_dwordx4 v[8:11], v3, s[10:11]
    s_load_dwordx2 s[{S_TAG}:{S_TAG+1}], s[26:27], {GEN_OFF}
    s_cmp_ge_u32 s3, 4
    s_cbranch_scc1 L_NOZH
    ds_write_b32 v7, v6 offset:{A_HIST}
L_NOZH:
    s_cmp_lg_u32 s3, 4
    s_cbranch_scc1 L_NOZC
    v_mov_b32 v32, 0
    v_mov_b32 v33, 0
    v_mov_b32 v34, 0
    v_mov_b32 v35, 0
    v_lshlrev_b32 v36, 4, v{VL}
    v_cmp_gt_u32 vcc, {(L_ZEND-L_CNT)//16}, v{VL}
    s_and_saveexec_b64 s[34:35], vcc
    ds_write_b128 v36, v[32:35] offset:{L_CNT}
    s_mov_b64 exec, s[34:35]
L_NOZC:""")
    late_setup(a, opt)
    a(f"""    ; addresses of the copy-out and of the run table entry (bucket slot h = 64*wave + lane, waves 0..3)
    s_mul_i32 s36, s2, {CH*opt.rec}
    s_mov_b32 s38, {A_REC}
    v_lshl_add_u32 v56, v0, 4, s38
    v_mad_u32_u24 v57, v0, {opt.rec}, s36
    v_add_u32 v58, {640*opt.rec}, v57
    v_add_u32 v59, {2*640*opt.rec}, v57
    v_add_u32 v60, {3*640*opt.rec}, v57
    s_and_b32 s37, s3, 3
    s_lshl_b32 s30, s37, 8
    v_lshl_add_u32 v61, v{VL}, 2, s30       ; 4*h
    s_mul_i32 s37, s37, {8*GS}
    s_lshl_b32 s30, s2, 7
    s_add_u32 s37, s37, s30
    s_add_u32 s37, s37, {GRAN_OFF}
    v_lshrrev_b32 v62, 3, v{VL}
    v_mul_u32_u24 v62, {GS}, v62
    v_add_u32 v62, s37, v62
    v_and_b32 v63, 7, v{VL}
    v_lshl_add_u32 v62, v63, 4, v62
    v_lshlrev_b32 v63, 4, v{VL}
    s_mul_i32 s39, s2, {CH}
    s_mov_b32 s33, 52429
    s_movk_i32 s34, 0xffd8                  ; -40
    s_movk_i32 s37, 0xfc04                  ; -1020
    global_load_dwordx4 v[12:15], v3, s[8:9]
    global_load_dwordx4 v[16:19], v4, s[6:7]
    global_load_dwordx4 v[24:27], v4, s[6:7] offset:16
    s_waitcnt lgkmcnt(0)
    s_add_u32 s{S_TAG}, s{S_TAG}, 1
    s_addc_u32 s{S_TAG+1}, s{S_TAG+1}, 0
    s_and_b32 s{S_TAG8}, s{S_TAG}, 0xff
    s_lshl_b32 s35, s{S_TAG8}, 24
    v_mov_b32 v53, s{S_TAG}
    v_mov_b32 v54, s{S_TAG+1}
    v_mov_b32 v55, s{S_TAG}
    s_barrier                               ; #1
    s_waitcnt vmcnt(3)""")
    stamp(a, 2)
    for j in range(4):
        a(f"    v_mul_u32_u24 v{40+j}, s33, v{8+j}")
        a(f"    v_lshrrev_b32 v{32+j}, 21, v{40+j}          ; bucket b")
        a(f"    v_lshrrev_b32 v{40+j}, 24, v{40+j}          ; b / 8")
        a(f"    v_mad_i32_i24 v{8+j}, v{32+j}, s34, v{8+j}")
        a(f"    v_lshlrev_b32 v{32+j}, 7, v{32+j}")
        a(f"    v_mad_i32_i24 v{32+j}, v{40+j}, s37, v{32+j}  ; 4 * ((b % 8) * 32 + b / 8): buckets of one die are adjacent")
        a(f"    ds_add_rtn_u32 v{36+j}, v{32+j}, v{VONE} offset:{A_HIST}")
    for j in range(4):
        a(f"    v_lshl_or_b32 v{8+j}, v{8+j}, 2, s35")
    a(f"""    s_waitcnt lgkmcnt(0)
    s_barrier                               ; #2
    ds_read_b128 v[40:43], v63 offset:{A_HIST}
    s_waitcnt lgkmcnt(0)
    v_add_u32 v44, v40, v41
    v_add_u32 v45, v44, v42
    v_add_u32 v46, v45, v43
    v_mov_b32 v47, v46""")
    dpp_scan(a, 47)
    a(f"""    v_sub_u32 v48, v47, v46
    v_add_u32 v49, v48, v40
    v_add_u32 v50, v48, v44
    v_add_u32 v51, v48, v45
    ds_write_b128 v63, v[48:51] offset:{A_OFFS}
    s_waitcnt vmcnt(0)""")
    for j in range(4):
        a(f"    v_lshl_or_b32 v{12+j}, v{12+j}, 8, v{8+j}")
    a("    v_pk_mov_b32 v[20:21], v[18:19], v[18:19] op_sel:[0,1]")
    a("    v_pk_mov_b32 v[28:29], v[26:27], v[26:27] op_sel:[0,1]")
    for j in range(4):
        a(f"    v_mov_b32 v{QR(j)+2}, v{12+j}")
        if opt.rec == 16:
            a(f"    v_bitop3_b32 v{QR(j)+3}, v{QR(j)}, v{12+j}, s{S_TAG} bitop3:0x96")
    a("    s_waitcnt lgkmcnt(0)")
    for j in range(4):
        a(f"    ds_read_b32 v{44+j}, v{32+j} offset:{A_OFFS}")
    a(f"""    ds_read_b32 v52, v61 offset:{A_OFFS}
    ds_read_b32 v48, v61 offset:{A_HIST}
    s_waitcnt lgkmcnt(2)""")
    for j in range(4):
        a(f"    v_add_u32 v{44+j}, v{44+j}, v{36+j}")
        a(f"    v_lshl_add_u32 v{44+j}, v{44+j}, 4, s38")
        a(f"    ds_write_b128 v{44+j}, v[{QR(j)}:{QR(j)+3}]")
    a(f"""    s_add_u32 s30, s26, {REC_OFF}
    s_addc_u32 s31, s27, 0
    s_waitcnt lgkmcnt(0)
    s_barrier                               ; #3""")
    stamp(a, 3)
    if opt.rec == 16:
        for j in range(4):
            a(f"    ds_read_b128 v[{32+4*j}:{35+4*j}], v56 offset:{j*10240}")
    else:
        for j in range(4):
            a(f"    ds_read_b96 v[{32+4*j}:{34+4*j}], v56 offset:{j*10240}")
    a(f"""    v_add_u32 v52, s39, v52
    v_lshl_or_b32 v52, v48, 20, v52""")
    for j in range(4):
        a(f"    s_waitcnt lgkmcnt({3-j})")
        if opt.rec == 16:
            a(f"    global_store_dwordx4 v{57+j}, v[{32+4*j}:{35+4*j}], s[30:31] {st}")
        else:
            a(f"    global_store_dwordx3 v{57+j}, v[{32+4*j}:{34+4*j}], s[30:31] {st}")
    a(f"""    s_cmp_ge_u32 s3, 5
    s_cbranch_scc1 L_NOXR
    global_load_dwordx4 v[{XR}:{XR+3}], v64, s[4:5]
""" + (f"    global_load_dword v{TMP}, v64, s[22:23]    ; touches the output page early\n" if opt.otouch else "") + "L_NOXR:")
    if opt.rec == 12:
        a("    s_waitcnt vmcnt(0)")
    a(f"""    s_barrier                               ; #4
    s_cmp_ge_u32 s3, 4
    s_cbranch_scc1 L_PHASEB
    global_store_dwordx4 v62, v[52:55], s[26:27] {st}
    s_branch L_PHASEB""")

def tile_mfma(a, acc0, wreg, xreg):
    for mat in range(2):
        acc = acc0 + 4 * mat
        r0, r1 = wreg + mat * 8, wreg + mat * 8 + 4
        a(f"    v_mfma_f32_16x16x32_bf16 v[{acc}:{acc+3}], v[{r0}:{r0+3}], v[{xreg}:{xreg+3}], 0")
        a(f"    v_mfma_f32_16x16x32_bf16 v[{acc}:{acc+3}], v[{r1}:{r1+3}], v[{xreg+4}:{xreg+7}], v[{acc}:{acc+3}]")

def phase_a_table(a, opt):
    st = opt.store
    wp = [14, 20, 12, 18]
    a(f"""L_TABLE:
    s_sub_u32 s36, s3, 10                   ; u""")
    if opt.ipf:
        a(f"""    ; the table waves are idle here: they pull the kernel's own code into the cache (2 KB per wave)
    s_getpc_b64 s[30:31]
L_PC:
    s_sub_u32 s30, s30, L_PC-{KNAME}
    s_subb_u32 s31, s31, 0
    s_lshl_b32 s32, s36, 11
    v_lshl_add_u32 v80, v{VL}, 4, s32
    v_add_u32 v81, 1024, v80
    s_mov_b32 s33, L_CODE_END-{KNAME}
    v_cmp_gt_u32 vcc, s33, v80
    v_cmp_gt_u32 s[34:35], s33, v81
    s_mov_b64 exec, vcc
    s_cbranch_execz L_NOPF0
    global_load_dword v82, v80, s[30:31]
L_NOPF0:
    s_mov_b64 exec, s[34:35]
    s_cbranch_execz L_NOPF1
    global_load_dword v83, v81, s[30:31]
L_NOPF1:
    s_mov_b64 exec, -1""")
    a(f"""    s_and_b32 s37, s36, 1
    s_add_u32 s38, s37, 6
    v_lshlrev_b32 v2, 4, v{VL}
    s_lshl_b32 s30, s36, 10
    v_add_u32 v3, s30, v2                   ; piece u
    s_lshl_b32 s31, s38, 10
    v_add_u32 v4, s31, v2                   ; piece 6/7
    s_mul_i32 s32, s2, {NPB*128}
    v_add_u32 v5, s32, v3                   ; x offset
    v_lshrrev_b32 v6, 3, v{VL}
    v_mul_u32_u24 v6, 144, v6
    v_and_b32 v7, 7, v{VL}
    v_lshl_add_u32 v6, v7, 4, v6
    s_mul_i32 s33, s36, {8*144}
    s_add_u32 s33, s33, {A_W}
    v_add_u32 v48, s33, v6
    s_mul_i32 s33, s38, {8*144}
    s_add_u32 s33, s33, {A_W}
    v_add_u32 v49, s33, v6
    v_lshrrev_b32 v50, 1, v{VQ}
    v_and_b32 v51, 1, v{VQ}
    v_lshl_or_b32 v50, v51, 1, v50
    v_lshl_add_u32 v50, v{VI}, 2, v50
    v_lshlrev_b32 v50, 1, v50
    s_waitcnt lgkmcnt(0)""")
    if opt.wsbase:
        a(f"    s_add_u32 s26, s26, {opt.wsbase}")
        a(f"    s_addc_u32 s27, s27, 0")
    a(f"""    s_load_dwordx2 s[{S_TAG}:{S_TAG+1}], s[26:27], {GEN_OFF}""")
    if opt.touch:
        a(f"""    ; first access to the workspace pages written later (address translation only; the values are not used)
    v_lshlrev_b32 v45, 21, v{VL}
    v_add_u32 v45, 0x1f0000, v45
    v_mov_b32 v46, 0x800
    v_cmp_eq_u32 vcc, 0, v{VL}
    s_mov_b64 s[34:35], exec
    v_cndmask_b32 v45, v45, v46, vcc
    s_mov_b64 exec, 0x3f
    global_load_dword v84, v45, s[26:27] sc1
    s_mov_b64 exec, -1""")
        if opt.touch > 1:
            a(f"""    s_mul_i32 s30, s2, {NPB*128}
    v_mov_b32 v46, s30
    s_mov_b64 exec, 1
    global_load_dword v85, v46, s[22:23] sc1
    s_mov_b64 exec, -1""")
    stamp(a, 1)
    late_setup(a, opt)
    a("    s_barrier")
    if opt.wlate:
        a("    s_barrier                               ; #2")
    for m in range(4):
        a(f"    global_load_dwordx4 v[{8+8*m}:{11+8*m}], v3, s[{wp[m]}:{wp[m]+1}]")
        a(f"    global_load_dwordx4 v[{12+8*m}:{15+8*m}], v4, s[{wp[m]}:{wp[m]+1}]")
    a(f"""    s_cmp_eq_u32 s36, 5
    s_cbranch_scc1 L_TWC0
    global_load_dwordx4 v[40:43], v5, s[4:5]
    s_branch L_TB
L_TWC0:
    global_load_ushort v40, v50, s[16:17]
    global_load_ushort v41, v50, s[16:17] offset:128
    global_load_ushort v42, v50, s[16:17] offset:256
    global_load_ushort v43, v50, s[16:17] offset:384
L_TB:""")
    if not opt.wlate:
        a("    s_barrier                               ; #2")
    a(f"""    s_barrier                               ; #3
    s_cmp_eq_u32 s36, 5
    s_cbranch_scc1 L_TWC
    s_waitcnt vmcnt(0)
    ds_write_b128 v48, v[40:43] offset:{A_X - A_W}
    s_branch L_TST
L_TWC:
    s_mov_b32 s33, {NLOG2E:#x}
    v_lshlrev_b32 v44, 3, v{VL}
    s_waitcnt vmcnt(0)
    v_lshlrev_b32 v40, 16, v40
    v_lshlrev_b32 v41, 16, v41
    v_lshlrev_b32 v42, 16, v42
    v_lshlrev_b32 v43, 16, v43
    v_mul_f32 v40, s33, v40
    v_mul_f32 v41, s33, v41
    v_mul_f32 v42, s33, v42
    v_mul_f32 v43, s33, v43
    v_cvt_pk_bf16_f32 v40, v40, v41
    v_cvt_pk_bf16_f32 v41, v42, v43
    ds_write_b64 v44, v[40:41] offset:{L_WCB}
L_TST:""")
    for m in range(4):
        a(f"    ds_write_b128 v48, v[{8+8*m}:{11+8*m}] offset:{m*WIMG}")
        a(f"    ds_write_b128 v49, v[{12+8*m}:{15+8*m}] offset:{m*WIMG}")
    a(f"""    ; tile job: nt = u/2, mt in {{2*(u%2), 2*(u%2)+1}}
    s_lshr_b32 s30, s36, 1                  ; nt
    s_lshl_b32 s31, s37, 1                  ; mt0
    s_lshl_b32 s32, s30, 4
    v_add_u32 v4, s32, v{VI}                ; node
    v_mul_u32_u24 v5, 144, v4
    v_lshl_add_u32 v5, v{VQ}, 4, v5
    v_add_u32 v5, {A_X}, v5
    v_lshrrev_b32 v6, 2, v{VI}
    v_lshl_add_u32 v6, v{VQ}, 3, v6
    v_mul_u32_u24 v6, 144, v6
    v_and_b32 v7, 3, v{VI}
    v_lshl_add_u32 v6, v7, 3, v6
    s_lshl_b32 s32, s31, 5
    s_add_u32 s32, s32, {A_W}
    v_add_u32 v6, s32, v6
    v_mul_u32_u24 v7, 272, v4
    v_lshl_add_u32 v50, v{VQ}, 4, v7
    s_lshl_b32 s32, s31, 6
    v_add_u32 v50, s32, v50
    v_add_u32 v51, {L_AP}, v50
    v_add_u32 v53, {L_U}, v50
    s_waitcnt lgkmcnt(0)
    s_add_u32 s{S_TAG}, s{S_TAG}, 1
    s_addc_u32 s{S_TAG+1}, s{S_TAG+1}, 0
    s_and_b32 s{S_TAG8}, s{S_TAG}, 0xff
    v_mov_b32 v54, {L_GCNT+4}
    v_mov_b32 v55, 1
    s_mov_b64 exec, 1
    ds_add_u32 v54, v55
    s_mov_b64 exec, -1
    s_mov_b32 s33, 0
L_TSYNC:
    ds_read_b32 v55, v54
    s_add_u32 s33, s33, 1
    s_cmp_ge_u32 s33, {POLL_LIMIT}
    s_cbranch_scc1 L_END
    s_waitcnt lgkmcnt(0)
    v_readfirstlane_b32 s30, v55
    s_nop 3
    s_cmp_lt_u32 s30, 6
    s_cbranch_scc1 L_TSYNC
    ds_read_b128 v[8:11], v5
    ds_read_b128 v[12:15], v5 offset:64""")
    def wfrags(first):
        for m in range(2):
            for mat in range(2):
                for ks in range(2):
                    r = 16 + m * 16 + mat * 8 + ks * 4
                    for h in range(2):
                        a(f"    ds_read_b64_tr_b16 v[{r+2*h}:{r+2*h+1}], v6 offset:{(first+mat)*WIMG + ks*4608 + h*576 + m*32}")
    wfrags(0)
    a(f"""    ; table row address of this lane: (40 w + node)*256 + (16 mt0 + 4 g)*4 ; rows >= 40 of the tile are not stored
    s_mul_i32 s31, s2, {NPB*256}
    s_add_u32 s31, s31, {G_OFF}
    v_lshlrev_b32 v55, 8, v4
    v_add_u32 v55, s31, v55
    v_lshl_add_u32 v55, v{VQ}, 4, v55
    s_and_b32 s30, s36, 1
    s_lshl_b32 s30, s30, 7
    v_add_u32 v55, s30, v55
    v_cmp_gt_u32 s[34:35], {NPB}, v4
    s_mov_b32 s32, {NLOG2E:#x}
    s_mov_b32 s33, {BIG:#x}
    v_mov_b32 v54, {NBIG:#x}
    s_waitcnt lgkmcnt(0)""")
    for m in range(2):
        tile_mfma(a, 56 + 8 * m, 16 + 16 * m, 8)
    wfrags(2)
    a("    s_mov_b32 s30, 0x8000")
    for m in range(2):
        accb, accv = 56 + 8 * m, 60 + 8 * m
        o = 72 + 4 * m
        for r in range(4):
            a(f"    v_mul_f32 v{accb+r}, s32, v{accb+r}")
            a(f"    v_med3_f32 v{accb+r}, v{accb+r}, v54, s33")
        a(f"    v_cvt_pk_bf16_f32 v{o}, v{accb}, v{accb+1}")
        a(f"    v_cvt_pk_bf16_f32 v{o+1}, v{accb+2}, v{accb+3}")
        for p in range(2):
            lo, hi = accv + 2 * p, accv + 2 * p + 1
            a(f"    v_cvt_pk_bf16_f32 v80, v{lo}, v{lo}")
            a(f"    v_and_b32 v80, 0xffff, v80")
            a(f"    v_and_b32 v81, 0x7fffffff, v{hi}")
            a(f"    v_and_b32 v{hi}, 0x80000000, v{hi}")
            a(f"    v_sub_u32 v81, v81, v80")
            a(f"    v_add_u32 v81, s30, v81")
            a(f"    v_max_i32 v81, 0, v81")
            a(f"    v_and_b32 v81, 0xffff0000, v81")
            a(f"    v_or3_b32 v{o+2+p}, v81, v80, v{hi}")
    if not opt.gearly:
        a("    s_barrier")
    a(f"""    s_mov_b64 exec, s[34:35]
    global_store_dwordx4 v55, v[72:75], s[26:27] offset:0 {st}
    global_store_dwordx4 v55, v[76:79], s[26:27] offset:64 {st}
    s_mov_b64 exec, -1""")
    a(f"""    ; padding row N of the table (gate saturates, value 0): last workgroup, wave u = 5
    s_cmp_lg_u32 s2, {NB-1}
    s_cbranch_scc1 L_TAU
    s_cmp_lg_u32 s36, 5
    s_cbranch_scc1 L_TAU
    v_mov_b32 v80, 0x71807180
    v_mov_b32 v81, v80
    v_mov_b32 v82, 0
    v_mov_b32 v83, 0
    v_lshlrev_b32 v7, 4, v{VL}
    v_add_u32 v7, {N*256 + G_OFF}, v7
    s_mov_b64 exec, 0xffff
    global_store_dwordx4 v7, v[80:83], s[26:27] {st}
    s_mov_b64 exec, -1
L_TAU:
    s_waitcnt lgkmcnt(0)""")
    for m in range(2):
        tile_mfma(a, 56 + 8 * m, 16 + 16 * m, 8)
    a(f"""    s_mov_b32 s34, {FSHIFT:#x}
    s_nop 6""")
    for m in range(2):
        acca, accu = 56 + 8 * m, 60 + 8 * m
        a(f"    ds_write_b128 v53, v[{accu}:{accu+3}] offset:{m*64}")
        for r in range(4):
            a(f"    v_mul_f32 v{acca+CHN[r]}, s32, v{acca+CHN[r]}")
            a(f"    v_med3_f32 v{acca+CHN[r]}, v{acca+CHN[r]}, v54, s33")
            a(f"    v_add_f32 v{16+r}, s34, v{acca+CHN[r]}")
        a(f"    ds_write_b128 v51, v[16:19] offset:{m*64}")
    if opt.gearly == 2:
        a("    s_barrier                               ; #4")
    a(f"""    ; the table rows of this workgroup are complete: the last table wave publishes the flag
    v_mov_b32 v16, {L_GCNT}
    v_mov_b32 v17, 1
    s_waitcnt vmcnt(0)
    s_mov_b64 exec, 1
    ds_add_rtn_u32 v18, v16, v17
    s_waitcnt lgkmcnt(0)
    v_readfirstlane_b32 s30, v18
    s_mov_b64 exec, -1
    s_cmp_lg_u32 s30, 5
    s_cbranch_scc1 {"L_TB4" if opt.gearly == 1 else "L_PHASEB"}
    s_lshl_b32 s30, s2, 4
    s_add_u32 s30, s30, {GF_OFF}
    v_mov_b32 v16, s30
    v_mov_b32 v18, s{S_TAG}
    v_mov_b32 v19, s{S_TAG+1}
    s_mov_b64 exec, 1
    global_store_dwordx2 v16, v[18:19], s[26:27] {st}
    s_mov_b64 exec, -1""")
    if opt.gearly == 1:
        a("L_TB4:")
        a("    s_barrier                               ; #4")

def phase_b(a, opt):
    GR = lambda j: 8 + 4 * j
    rec = lambda h, j: 24 + 16 * h + 4 * j
    RANK, DL = 56, 64
    msk = lambda h, j: (M0 if h == 0 else M1) + 2 * j
    pnd = lambda h, j: (P0M if h == 0 else P1M) + 2 * j
    inv = lambda j: S_INV + (2 if j >= 2 else 0)
    a("L_PHASEB:")
    stamp(a, 4)
    a(f"""    ; ================= phase B: wait for the run table entries of this bucket
    v_lshlrev_b32 v2, 3, v{VL}
    ds_read_b64 v[{WC}:{WC+1}], v2 offset:{L_WCB}""")
    a(f"""    s_mov_b32 s33, 0
    s_mov_b32 s38, s{S_TAG+1}
    s_mov_b32 s39, s{S_TAG}""")
    for j in range(4):
        a(f"    s_not_b64 s[{pnd(0,j)}:{pnd(0,j)+1}], s[{inv(j)}:{inv(j)+1}]")
    a("L_POLL:")
    for j in range(4):
        p = pnd(0, j)
        a(f"    s_mov_b64 exec, s[{p}:{p+1}]")
        a(f"    s_cbranch_execz L_NP{j}")
        a(f"    global_load_dwordx4 v[{GR(j)}:{GR(j)+3}], v{VGA}, s[26:27] offset:{128*j} sc1")
        a(f"L_NP{j}:")
    a("    s_waitcnt vmcnt(0)")
    for j in range(4):
        p = pnd(0, j)
        a(f"    s_mov_b64 exec, s[{p}:{p+1}]")
        a(f"    v_cmp_eq_u32 vcc, s{S_TAG}, v{GR(j)+1}")
        a(f"    v_cmp_eq_u64 s[34:35], v[{GR(j)+2}:{GR(j)+3}], s[38:39]")
        a(f"    s_nop 0")
        a(f"    s_and_b64 s[34:35], s[34:35], vcc")
        a(f"    s_andn2_b64 s[{p}:{p+1}], s[{p}:{p+1}], s[34:35]")
    a(f"""    s_mov_b64 exec, -1
    s_or_b64 s[34:35], s[{pnd(0,0)}:{pnd(0,0)+1}], s[{pnd(0,1)}:{pnd(0,1)+1}]
    s_or_b64 s[36:37], s[{pnd(0,2)}:{pnd(0,2)+1}], s[{pnd(0,3)}:{pnd(0,3)+1}]
    s_or_b64 s[34:35], s[34:35], s[36:37]
    s_cbranch_scc0 L_READY
    s_add_u32 s33, s33, 1
    s_cmp_ge_u32 s33, {POLL_LIMIT}
    s_cbranch_scc1 L_END
    s_sleep {opt.sleep}
    s_branch L_POLL
L_READY:""")
    stamp(a, 5)
    a(f"""L_ROUND:
    v_add_u32 v2, s{S_RB}, v{VI}
    v_add_u32 v3, 16, v2
    v_mul_u32_u24 v4, {opt.rec}, v2""")
    for j in range(4):
        a(f"    v_lshrrev_b32 v{GR(j)+1}, 20, v{GR(j)}      ; count")
        a(f"    v_and_b32 v{GR(j)}, 0xfffff, v{GR(j)}")
        a(f"    v_cmp_gt_u32 s[{msk(0,j)}:{msk(0,j)+1}], v{GR(j)+1}, v2")
        a(f"    v_cmp_gt_u32 s[{msk(1,j)}:{msk(1,j)+1}], v{GR(j)+1}, v3")
        if opt.rec == 16:
            a(f"    v_lshl_add_u32 v{GR(j)+2}, v{GR(j)}, 4, v4")
        else:
            a(f"    v_mad_u32_u24 v{GR(j)+2}, v{GR(j)}, 12, v4")
    a(f"    s_add_u32 s30, s{S_RB}, 32")
    for j in range(4):
        a(f"    s_andn2_b64 s[{msk(0,j)}:{msk(0,j)+1}], s[{msk(0,j)}:{msk(0,j)+1}], s[{inv(j)}:{inv(j)+1}]")
        a(f"    s_mov_b64 s[{pnd(0,j)}:{pnd(0,j)+1}], s[{msk(0,j)}:{msk(0,j)+1}]")
        a(f"    s_andn2_b64 s[{msk(1,j)}:{msk(1,j)+1}], s[{msk(1,j)}:{msk(1,j)+1}], s[{inv(j)}:{inv(j)+1}]")
        a(f"    s_mov_b64 s[{pnd(1,j)}:{pnd(1,j)+1}], s[{msk(1,j)}:{msk(1,j)+1}]")
        a(f"    s_cbranch_scc0 L_NMORE{j}")
        a(f"    s_mov_b64 exec, s[{msk(1,j)}:{msk(1,j)+1}]")
        a(f"    v_cmp_lt_u32 vcc, s30, v{GR(j)+1}")
        a(f"    s_mov_b64 exec, -1")
        a(f"    s_cmp_eq_u64 vcc, 0")
        a(f"    s_cbranch_scc1 L_NMORE{j}")
        a(f"    v_mov_b32 v5, {L_FLAG}")
        a(f"    v_mov_b32 v6, 1")
        a(f"    ds_write_b32 v5, v6")
        a(f"L_NMORE{j}:")
    if opt.rec == 16:
        a(f"""    s_mov_b32 s33, 0
L_RLOAD:""")
        for h in range(2):
            for j in range(4):
                p = pnd(h, j)
                a(f"    s_cmp_eq_u64 s[{p}:{p+1}], 0")
                a(f"    s_cbranch_scc1 L_NL{h}{j}")
                a(f"    s_mov_b64 exec, s[{p}:{p+1}]")
                off = " offset:256" if h else ""
                a(f"    buffer_load_dwordx4 v[{rec(h,j)}:{rec(h,j)+3}], v{GR(j)+2}, s[{S_REC}:{S_REC+3}], 0 offen{off} {opt.hload}")
                a(f"L_NL{h}{j}:")
        a("    s_waitcnt vmcnt(0)")
        for h in range(2):
            for j in range(4):
                p = pnd(h, j)
                r = rec(h, j)
                a(f"    s_cmp_eq_u64 s[{p}:{p+1}], 0")
                a(f"    s_cbranch_scc1 L_NC{h}{j}")
                a(f"    s_mov_b64 exec, s[{p}:{p+1}]")
                a(f"    v_bitop3_b32 v5, v{r}, v{r+2}, v{r+3} bitop3:0x96")
                a(f"    v_cmp_eq_u32_sdwa s[34:35], v{r+2}, s{S_TAG8} src0_sel:BYTE_3 src1_sel:DWORD")
                a(f"    v_cmp_eq_u32 vcc, s{S_TAG}, v5")
                a(f"    s_nop 0")
                a(f"    s_and_b64 s[34:35], s[34:35], vcc")
                a(f"    s_andn2_b64 s[{p}:{p+1}], s[{p}:{p+1}], s[34:35]")
                a(f"L_NC{h}{j}:")
        a(f"    s_mov_b64 exec, -1")
        a(f"    s_or_b64 s[34:35], s[{pnd(0,0)}:{pnd(0,0)+1}], s[{pnd(0,1)}:{pnd(0,1)+1}]")
        for h in range(2):
            for j in range(4):
                if (h, j) in ((0, 0), (0, 1)): continue
                a(f"    s_or_b64 s[34:35], s[34:35], s[{pnd(h,j)}:{pnd(h,j)+1}]")
        a(f"""    s_cbranch_scc0 L_HAVE
    s_add_u32 s33, s33, 1
    s_cmp_ge_u32 s33, {POLL_LIMIT}
    s_cbranch_scc1 L_END
    s_sleep {opt.sleep}
    s_branch L_RLOAD
L_HAVE:""")
    else:
        for h in range(2):
            for j in range(4):
                p = msk(h, j)
                if h:
                    a(f"    s_cmp_eq_u64 s[{p}:{p+1}], 0")
                    a(f"    s_cbranch_scc1 L_NL{h}{j}")
                a(f"    s_mov_b64 exec, s[{p}:{p+1}]")
                off = " offset:192" if h else ""
                a(f"    buffer_load_dwordx3 v[{rec(h,j)}:{rec(h,j)+2}], v{GR(j)+2}, s[{S_REC}:{S_REC+3}], 0 offen{off} {opt.hload}")
                if h:
                    a(f"L_NL{h}{j}:")
        a("    s_mov_b64 exec, -1")
        a("    s_waitcnt vmcnt(0)")
    stamp(a, 6)
    a(f"""    ; table-row flags of this wave's 16 producers: loaded now, checked before the first gather
    global_load_dwordx2 v[22:23], v{VGF}, s[26:27] sc1""")
    for h in range(2):
        for j in range(4):
            m = msk(h, j)
            if h == 1:
                a(f"    s_cmp_eq_u64 s[{m}:{m+1}], 0")
                a(f"    s_cbranch_scc1 L_NB1R{j}")
            a(f"    s_mov_b64 exec, s[{m}:{m+1}]")
            a(f"    v_and_b32 v{DL+4*h+j}, 0xff, v{rec(h,j)+2}")
            a(f"    ds_add_rtn_u32 v{RANK+4*h+j}, v{DL+4*h+j}, v{VONE} offset:{L_CNT}")
            if h == 1:
                a(f"L_NB1R{j}:")
    a(f"""    s_mov_b64 exec, -1
    v_mov_b32 v6, {L_FLAG}
    v_cmp_gt_u32 vcc, {NPB}, v{VL}
    s_waitcnt lgkmcnt(0)
    s_barrier                               ; #5""")
    stamp(a, 12)
    a(f"""    ds_read_b32 v5, v{VCA} offset:{L_CNT}
    ds_read_b32 v6, v6
    s_waitcnt lgkmcnt(0)
    v_add_u32 v4, 7, v5
    v_lshrrev_b32 v4, 3, v4
    v_max_u32 v4, 1, v4
    v_cndmask_b32 v4, 0, v4, vcc
    v_readfirstlane_b32 s{S_MORE}, v6
    v_mov_b32 v{QEND}, v4""")
    dpp_scan(a, QEND)
    stamp(a, 13)
    a(f"""    v_sub_u32 v{QST}, v{QEND}, v4
    v_readlane_b32 s{S_P}, v{QEND}, 63
    v_lshlrev_b32 v3, 3, v{QST}
    s_mov_b32 s30, {L_SRC}
    s_mov_b32 s31, {L_E}""")
    for j in range(4):
        a(f"    ds_bpermute_b32 v{8+j}, v{DL+j}, v3")
    for j in range(4):
        a(f"    s_cmp_eq_u64 s[{M1+2*j}:{M1+2*j+1}], 0")
        a(f"    s_cbranch_scc1 L_NB1P{j}")
        a(f"    ds_bpermute_b32 v{12+j}, v{DL+4+j}, v3")
        a(f"L_NB1P{j}:")
    a(f"""    ; padding slots: waves 0..4 take 8 nodes each, lane = (node, slot); wave 5 fills the tail
    s_cmp_ge_u32 s3, 5
    s_cbranch_scc1 L_NOPLK
    s_lshl_b32 s32, s3, 3
    v_lshrrev_b32 v16, 3, v{VL}
    v_add_u32 v16, s32, v16
    v_lshlrev_b32 v16, 2, v16               ; 4*node
    v_add_u32 v17, v3, v5
    v_lshlrev_b32 v18, 3, v{QEND}
    ds_bpermute_b32 v17, v16, v17
    ds_bpermute_b32 v18, v16, v18
L_NOPLK:
    s_mul_i32 s{S_TS}, s{S_P}, s3
    s_lshr_b32 s{S_TS}, s{S_TS}, 4
    s_add_u32 s32, s3, 1
    s_mul_i32 s{S_TE}, s{S_P}, s32
    s_lshr_b32 s{S_TE}, s{S_TE}, 4
    v_cmp_ge_u32 vcc, s{S_TS}, v{QEND}
    s_waitcnt lgkmcnt(0)
    s_bcnt1_i32_b64 s{S_N}, vcc""")
    for h in range(2):
        for j in range(4):
            m = msk(h, j)
            r = rec(h, j)
            if h == 1:
                a(f"    s_cmp_eq_u64 s[{m}:{m+1}], 0")
                a(f"    s_cbranch_scc1 L_NB1S{j}")
            a(f"    s_mov_b64 exec, s[{m}:{m+1}]")
            a(f"    v_add_u32 v{8+4*h+j}, v{8+4*h+j}, v{RANK+4*h+j}")
            a(f"    v_bfe_u32 v{r+2}, v{r+2}, 8, 16")
            a(f"    v_lshl_add_u32 v19, v{8+4*h+j}, 2, s30")
            a(f"    v_lshl_add_u32 v21, v{8+4*h+j}, 3, s31")
            a(f"    ds_write_b32 v19, v{r+2}")
            a(f"    ds_write_b64 v21, v[{r}:{r+1}]")
            if h == 1:
                a(f"L_NB1S{j}:")
    stamp(a, 14)
    a(f"""    s_mov_b64 exec, -1
    v_mov_b32 v11, {N}
    v_mov_b32 v12, 0
    v_mov_b32 v13, 0
    s_cmp_gt_u32 s3, 5
    s_cbranch_scc1 L_NOPAD
    v_and_b32 v16, 7, v{VL}
    v_add_u32 v16, v17, v16
    v_cmp_lt_u32 vcc, v16, v18
    s_cmp_lt_u32 s3, 5
    s_cbranch_scc1 L_PADW
    s_lshl_b32 s32, s{S_P}, 3
    v_add_u32 v16, s32, v{VL}
    s_mov_b64 vcc, -1
L_PADW:
    v_lshl_add_u32 v14, v16, 2, s30
    v_lshl_add_u32 v15, v16, 3, s31
    s_mov_b64 exec, vcc
    ds_write_b32 v14, v11
    ds_write_b64 v15, v[12:13]
    s_mov_b64 exec, -1
L_NOPAD:
    v_readlane_b32 s{S_SEGEND}, v{QEND}, s{S_N}
    s_lshl_b32 s32, s{S_TS}, 5
    v_add_u32 v2, s32, v{SRB}
    s_lshl_b32 s32, s{S_TS}, 1
    v_mad_u32_u24 v3, v{EM}, s32, v{EB}
    s_mul_i32 s32, s{S_N}, 272
    v_add_u32 v{TMP}, s32, v{APA}
    s_add_u32 s32, s{S_N}, s3
    s_lshl_b32 s32, s32, 9
    v_add_u32 v{SLA}, s32, v{SLB}
    s_min_u32 s{S_SEGEND}, s{S_SEGEND}, s{S_TE}
    s_sub_u32 s{S_REM}, s{S_SEGEND}, s{S_TS}
    s_sub_u32 s{S_REM}, s{S_REM}, 1""")
    S = lambda k: 8 + 6 * (k % 8)
    Da, Db, T = 56, 60, 64
    NUM, DEN = 68, 72
    PA, PB_, UA, UB, SA, SB = 76, 78, 80, 82, 84, 86
    a(f"""    s_mov_b32 s33, 0
    s_cmp_eq_u32 s3, 15
    s_cselect_b32 s34, 0xfc00fc00, 0
    s_mov_b32 s35, s34
L_GPOLL:
    s_waitcnt vmcnt(0)
    v_cmp_eq_u64 s[36:37], v[22:23], s[{S_TAG}:{S_TAG+1}]
    s_nop 0
    s_or_b64 s[36:37], s[36:37], s[34:35]
    s_cmp_eq_u64 s[36:37], -1
    s_cbranch_scc1 L_GOK
    s_add_u32 s33, s33, 1
    s_cmp_ge_u32 s33, {POLL_LIMIT}
    s_cbranch_scc1 L_END
    s_sleep {opt.sleep}
    global_load_dwordx2 v[22:23], v{VGF}, s[26:27] sc1
    s_branch L_GPOLL
L_GOK:""")
    stamp(a, 15)
    a(f"""    s_waitcnt lgkmcnt(0)
    s_barrier                               ; #6""")
    stamp(a, 7)
    cstamp(a, 10)
    pairs = [IDXA, IDXB, 56, 58, 60, 62]
    for k in range(6):
        a(f"    ds_read_b32 v{pairs[k]}, v2 offset:{16*k}")
    a(f"""    ds_read_b128 v[{AC}:{AC+3}], v{TMP}
    ds_read_b128 v[{ANX}:{ANX+3}], v{TMP} offset:272
    ds_read_b64 v[{A0}:{A0+1}], v3
    ds_read_b64 v[{A1}:{A1+1}], v3 offset:32""")
    for k in range(4):
        a(f"    v_mov_b32 v{56+2*k+1}, v{IDXA+1}")
    for k in range(8):
        a(f"    v_pk_mov_b32 v[{S(k)}:{S(k)+1}], v[{WC}:{WC+1}], v[{WC}:{WC+1}] op_sel:[0,1]")
    for r in range(0, 8, 2):
        a(f"    v_pk_mov_b32 v[{NUM+r}:{NUM+r+1}], 0, 0")
    for k in range(6):
        a(f"    s_waitcnt lgkmcnt({9-k})")
        a(f"    buffer_load_dwordx4 v[{S(k)+2}:{S(k)+5}], v[{pairs[k]}:{pairs[k]+1}], s[{S_G}:{S_G+3}], 0 idxen offen {opt.gload}")
    a(f"""    s_cmp_ge_u32 s3, 5
    s_cbranch_scc1 L_NOSEG
    v_cvt_f32_u32 v76, s{S_P}
    v_rcp_f32 v76, v76
    v_lshlrev_b32 v77, 4, v{QST}
    v_add_u32 v77, 16, v77
    v_cvt_f32_u32 v77, v77
    v_lshlrev_b32 v78, 4, v{QEND}
    v_cvt_f32_u32 v78, v78
    v_add_f32 v77, -0.5, v77
    v_add_f32 v78, -0.5, v78
    v_mul_f32 v77, v77, v76
    v_mul_f32 v78, v78, v76
    v_cvt_u32_f32 v77, v77
    v_cvt_u32_f32 v78, v78
    v_lshrrev_b32 v4, 3, v0                 ; node
    v_sub_u32 v78, v78, v77
    v_add_u32 v78, 1, v78
    v_add_u32 v77, v77, v{VL}
    v_lshl_or_b32 v77, v78, 16, v77
    v_lshlrev_b32 v5, 2, v4
    ds_bpermute_b32 v5, v5, v77
    v_and_b32 v6, 7, v0
    v_lshlrev_b32 v6, 4, v6
    v_mul_u32_u24 v4, 272, v4
    v_lshl_add_u32 v4, v6, 1, v4
    v_add_u32 v4, {L_U}, v4
    s_waitcnt lgkmcnt(0)
    v_lshrrev_b32 v7, 16, v5
    v_and_b32 v5, 0xffff, v5
    v_lshl_add_u32 v5, v5, 9, v6
L_NOSEG:""")
    if opt.prio:
        a(f"    s_setprio 3")
        a(f"    s_sub_u32 s{S_BLK}, s{S_TE}, s{S_TS}")
    a(f"    s_waitcnt lgkmcnt(0)")
    a("L_LOOP:")
    for k in range(0, 8, 2):
        sa, sb = S(k), S(k + 1)
        pa, pb = S(k - 2), S(k - 1)
        a(f"""    s_waitcnt vmcnt({4 if opt.onewait else 5})
    v_mfma_f32_16x16x32_bf16 v[{Da}:{Da+3}], v[{A0}:{A0+3}], v[{sa}:{sa+3}], v[{AC}:{AC+3}]
    ds_read_b32 v{IDXA}, v2 offset:{16*(k+6)}
    ds_read_b32 v{IDXB}, v2 offset:{16*(k+7)}
    v_lshlrev_b32 v{T}, 16, v{sa+4}
    v_lshlrev_b32 v{T+1}, 16, v{sa+5}
    {"s_nop 0" if opt.onewait == 2 else ("" if opt.onewait else "s_waitcnt vmcnt(4)")}
    v_mfma_f32_16x16x32_bf16 v[{Db}:{Db+3}], v[{A1}:{A1+3}], v[{sb}:{sb+3}], v[{AC}:{AC+3}]
    v_lshlrev_b32 v{T+2}, 16, v{sb+4}
    v_lshlrev_b32 v{T+3}, 16, v{sb+5}
    s_sub_u32 s{S_REM}, s{S_REM}, 1
    ds_read_b64 v[{A0}:{A0+1}], v3 offset:{32*(k+2)}
    ds_read_b64 v[{A1}:{A1+1}], v3 offset:{32*(k+3)}""")
        for i in range(4):
            a(f"    v_exp_f32 v{Da+i}, v{Da+i} clamp")
        a(f"""    s_waitcnt lgkmcnt(2)
    buffer_load_dwordx4 v[{pa+2}:{pa+5}], v[{IDXA}:{IDXA+1}], s[{S_G}:{S_G+3}], 0 idxen offen {opt.gload}
    buffer_load_dwordx4 v[{pb+2}:{pb+5}], v[{IDXB}:{IDXB+1}], s[{S_G}:{S_G+3}], 0 idxen offen {opt.gload}""")
        for i in range(4):
            a(f"    v_exp_f32 v{Db+i}, v{Db+i} clamp")
        c = f"s[{S_C60}:{S_C60+1}]"
        a(f"""    v_pk_add_f32 v[{Da}:{Da+1}], v[{Da}:{Da+1}], {c}
    v_pk_add_f32 v[{Da+2}:{Da+3}], v[{Da+2}:{Da+3}], {c}
    v_pk_add_f32 v[{Db}:{Db+1}], v[{Db}:{Db+1}], {c}
    v_pk_add_f32 v[{Db+2}:{Db+3}], v[{Db+2}:{Db+3}], {c}
    v_pk_mul_f32 v[{PA}:{PA+1}], v[{Da}:{Da+1}], v[{Db}:{Db+1}]
    v_pk_mul_f32 v[{PB_}:{PB_+1}], v[{Da+2}:{Da+3}], v[{Db+2}:{Db+3}]
    v_pk_mul_f32 v[{UA}:{UA+1}], v[{T}:{T+1}], v[{Db}:{Db+1}]
    v_rcp_f32 v{PA}, v{PA}
    v_rcp_f32 v{PA+1}, v{PA+1}
    v_pk_mul_f32 v[{UB}:{UB+1}], v[{sa+4}:{sa+5}], v[{Db+2}:{Db+3}]
    v_rcp_f32 v{PB_}, v{PB_}
    v_rcp_f32 v{PB_+1}, v{PB_+1}
    v_pk_fma_f32 v[{UA}:{UA+1}], v[{T+2}:{T+3}], v[{Da}:{Da+1}], v[{UA}:{UA+1}]
    v_pk_fma_f32 v[{UB}:{UB+1}], v[{sb+4}:{sb+5}], v[{Da+2}:{Da+3}], v[{UB}:{UB+1}]
    v_pk_add_f32 v[{SA}:{SA+1}], v[{Da}:{Da+1}], v[{Db}:{Db+1}]
    v_pk_add_f32 v[{SB}:{SB+1}], v[{Da+2}:{Da+3}], v[{Db+2}:{Db+3}]
    v_pk_fma_f32 v[{NUM}:{NUM+1}], v[{PA}:{PA+1}], v[{UA}:{UA+1}], v[{NUM}:{NUM+1}]
    v_pk_fma_f32 v[{NUM+2}:{NUM+3}], v[{PB_}:{PB_+1}], v[{UB}:{UB+1}], v[{NUM+2}:{NUM+3}]
    v_pk_fma_f32 v[{DEN}:{DEN+1}], v[{PA}:{PA+1}], v[{SA}:{SA+1}], v[{DEN}:{DEN+1}]
    v_pk_fma_f32 v[{DEN+2}:{DEN+3}], v[{PB_}:{PB_+1}], v[{SB}:{SB+1}], v[{DEN+2}:{DEN+3}]
    s_waitcnt lgkmcnt(0)
    s_cbranch_scc1 L_SB{k}
L_RB{k}:""")
        if k == 6:
            a(f"    v_add_u32 v2, 128, v2")
            a(f"    v_add_u32 v3, v{INCE}, v3")
            if opt.prio:
                t1, t2, t3 = opt.pth
                a(f"""    s_sub_u32 s{S_BLK}, s{S_BLK}, 4
    s_cmp_gt_i32 s{S_BLK}, {t1}
    s_cbranch_scc1 L_LOOP
    s_setprio 2
    s_cmp_gt_i32 s{S_BLK}, {t2}
    s_cbranch_scc1 L_LOOP
    s_setprio 1
    s_cmp_gt_i32 s{S_BLK}, {t3}
    s_cbranch_scc1 L_LOOP
    s_setprio 0""")
            a(f"    s_branch L_LOOP")
    for k in range(0, 8, 2):
        a(f"L_SB{k}:")
        for r in range(4):
            a(f"    v_permlane32_swap_b32 v{NUM+r}, v{DEN+r}")
        a(f"""    v_pk_add_f32 v[{NUM}:{NUM+1}], v[{NUM}:{NUM+1}], v[{DEN}:{DEN+1}]
    v_pk_add_f32 v[{NUM+2}:{NUM+3}], v[{NUM+2}:{NUM+3}], v[{DEN+2}:{DEN+3}]
    s_add_u32 s{S_N}, s{S_N}, 1
    s_add_u32 s36, s{S_N}, 1
    v_permlane16_swap_b32 v{NUM}, v{NUM+2}
    v_permlane16_swap_b32 v{NUM+1}, v{NUM+3}
    v_readlane_b32 s37, v{QEND}, s{S_N}
    s_mul_i32 s36, s36, 272
    v_pk_add_f32 v[{DEN}:{DEN+1}], v[{NUM}:{NUM+1}], v[{NUM+2}:{NUM+3}]
    v_add_u32 v{TMP}, s36, v{APA}
    s_cmp_eq_u32 s{S_SEGEND}, s{S_TE}
    ds_write_b64 v{SLA}, v[{DEN}:{DEN+1}]
    s_cbranch_scc1 L_DONE
    v_pk_mov_b32 v[{AC}:{AC+1}], v[{ANX}:{ANX+1}], v[{ANX}:{ANX+1}] op_sel:[0,1]
    v_pk_mov_b32 v[{AC+2}:{AC+3}], v[{ANX+2}:{ANX+3}], v[{ANX+2}:{ANX+3}] op_sel:[0,1]
    v_add_u32 v{SLA}, {SLOT_STR}, v{SLA}
    s_min_u32 s37, s37, s{S_TE}
    v_pk_mov_b32 v[{NUM}:{NUM+1}], 0, 0
    v_pk_mov_b32 v[{NUM+2}:{NUM+3}], 0, 0
    ds_read_b128 v[{ANX}:{ANX+3}], v{TMP}
    v_pk_mov_b32 v[{DEN}:{DEN+1}], 0, 0
    v_pk_mov_b32 v[{DEN+2}:{DEN+3}], 0, 0
    s_sub_u32 s{S_REM}, s37, s{S_SEGEND}
    s_sub_u32 s{S_REM}, s{S_REM}, 1
    s_mov_b32 s{S_SEGEND}, s37
    s_branch L_RB{k}""")
    a("L_DONE:")
    if opt.prio:
        a("    s_setprio 0")
    stamp(a, 8)
    cstamp(a, 11)
    a(f"""    s_waitcnt vmcnt(0) lgkmcnt(0)
    s_barrier                               ; #7
    s_cmp_ge_u32 s3, 5
    s_cbranch_scc1 L_MERGED
    ds_read_b128 v[24:27], v5 offset:{L_SLOT}
    ds_read_b128 v[28:31], v5 offset:{L_SLOT+128}
    ds_read_b128 v[32:35], v5 offset:{L_SLOT+256}
    ds_read_b128 v[36:39], v5 offset:{L_SLOT+384}
    ds_read_b128 v[40:43], v4
    ds_read_b128 v[44:47], v4 offset:16
    v_add_u32 v5, {SLOT_STR}, v5
    s_mov_b32 s36, 1
L_MERGE:
    v_cmp_lt_u32 vcc, s36, v7
    s_nop 1
    s_cmp_eq_u64 vcc, 0
    s_cbranch_scc1 L_MERGE_END
    s_mov_b64 exec, vcc
    ds_read_b128 v[8:11], v5 offset:{L_SLOT}
    ds_read_b128 v[12:15], v5 offset:{L_SLOT+128}
    ds_read_b128 v[16:19], v5 offset:{L_SLOT+256}
    ds_read_b128 v[20:23], v5 offset:{L_SLOT+384}
    v_add_u32 v5, {SLOT_STR}, v5
    s_add_u32 s36, s36, 1
    s_waitcnt lgkmcnt(0)""")
    for r in range(8):
        a(f"    v_pk_add_f32 v[{24+2*r}:{25+2*r}], v[{24+2*r}:{25+2*r}], v[{8+2*r}:{9+2*r}]")
    a(f"""    s_mov_b64 exec, -1
    s_branch L_MERGE
L_MERGE_END:
    s_waitcnt lgkmcnt(0)
    s_or_b32 s36, s{S_RB}, s{S_MORE}
    s_cmp_eq_u32 s36, 0
    s_cbranch_scc1 L_MERGED
    s_mul_i32 s36, s2, {320*64}
    s_add_u32 s36, s36, {TOT_OFF}
    v_lshl_add_u32 v48, v0, 6, s36
    s_cmp_eq_u32 s{S_RB}, 0
    s_cbranch_scc1 L_NOPREV""")
    for r in range(4):
        a(f"    global_load_dwordx4 v[{8+4*r}:{11+4*r}], v48, s[26:27] offset:{16*r} sc1")
    a("    s_waitcnt vmcnt(0)")
    for r in range(8):
        a(f"    v_pk_add_f32 v[{24+2*r}:{25+2*r}], v[{24+2*r}:{25+2*r}], v[{8+2*r}:{9+2*r}]")
    a(f"""L_NOPREV:
    s_cmp_eq_u32 s{S_MORE}, 0
    s_cbranch_scc1 L_MERGED""")
    for r in range(4):
        a(f"    global_store_dwordx4 v48, v[{24+4*r}:{27+4*r}], s[26:27] offset:{16*r} sc1")
    a(f"""    s_waitcnt vmcnt(0)
L_MERGED:
    s_cmp_eq_u32 s{S_MORE}, 0
    s_cbranch_scc1 L_EPI
    s_add_u32 s{S_RB}, s{S_RB}, 32
    s_cmp_lg_u32 s3, 0
    s_cbranch_scc1 L_NOCLR
    v_mov_b32 v9, 0
    v_lshlrev_b32 v10, 2, v{VL}
    ds_write_b32 v10, v9 offset:{L_CNT}
    v_mov_b32 v10, {L_FLAG}
    ds_write_b32 v10, v9
L_NOCLR:""")
    gran_addr(a)
    a(f"""    s_lshl_b32 s30, s3, 8
    s_add_u32 s30, s30, {GF_OFF}
    v_lshl_add_u32 v{VGF}, v{VI}, 4, s30
    v_mov_b32 v{VONE}, 1
    v_lshlrev_b32 v{VCA}, 2, v{VL}""")
    for j in range(4):
        a(f"    global_load_dwordx4 v[{GR(j)}:{GR(j)+3}], v2, s[26:27] offset:{128*j} sc1")
    a(f"""    s_waitcnt vmcnt(0) lgkmcnt(0)
    s_barrier
    s_branch L_ROUND
L_EPI:
    s_cmp_ge_u32 s3, 5
    s_cbranch_scc1 L_FIN
    s_mov_b32 s36, {EPS60:#x}               ; 1e-6 * 2^60""")
    nreg = [24 + c // 2 + 4 * (c % 2) for c in range(8)]
    dreg = [x + 8 for x in nreg]
    for c in range(8):
        a(f"    v_add_f32 v{dreg[c]}, s36, v{dreg[c]}")
        a(f"    v_rcp_f32 v{dreg[c]}, v{dreg[c]}")
    for c in range(8):
        xr = XR + c // 2
        if c % 2 == 0:
            a(f"    v_lshlrev_b32 v{8+c}, 16, v{xr}")
        else:
            a(f"    v_and_b32 v{8+c}, 0xffff0000, v{xr}")
    for c in range(8):
        a(f"    v_fma_f32 v{40+c}, v{nreg[c]}, v{dreg[c]}, v{40+c}")
    for c in range(8):
        a(f"    v_cmp_lt_f32 s[{48+2*c}:{49+2*c}], 0, v{40+c}")
        a(f"    v_mul_f32 v{16+c}, 0, v{40+c}")
    for c in range(8):
        a(f"    v_cndmask_b32 v{40+c}, v{16+c}, v{40+c}, s[{48+2*c}:{49+2*c}]")
    for c in range(8):
        a(f"    v_add_f32 v{40+c}, v{8+c}, v{40+c}")
    for c in range(4):
        a(f"    v_cvt_pk_bf16_f32 v{16+c}, v{40+2*c}, v{41+2*c}")
    a(f"""    v_lshlrev_b32 v4, 4, v0
    s_mul_i32 s36, s2, {NPB*128}
    v_add_u32 v4, s36, v4
    global_store_dwordx4 v4, v[16:19], s[22:23] {opt.ostore}
    s_or_b32 s36, s2, s3
    s_cmp_lg_u32 s36, 0
    s_cbranch_scc1 L_FIN
    v_mov_b32 v4, {GEN_OFF}
    v_mov_b32 v6, s{S_TAG}
    v_mov_b32 v7, s{S_TAG+1}
    s_mov_b64 exec, 1
    global_store_dwordx2 v4, v[6:7], s[26:27] sc1
L_FIN:""")
    stamp_flush(a)
    a("""L_END:
    s_endpgm
L_CODE_END:
""")

HEADER = """; GatedGCN edge-featured MPNN layer, one launch, one workgroup per 40 destination nodes.
"""

def main():
    global PROF
    ap = argparse.ArgumentParser()
    ap.add_argument("-o", default="standalone__edge_featured_mpnn_gatedgcn__graph.s")
    ap.add_argument("--store", default="sc1")
    ap.add_argument("--hload", default="sc1")
    ap.add_argument("--gload", default="")
    ap.add_argument("--touch", type=int, default=0)
    ap.add_argument("--ipf", type=int, default=0)
    ap.add_argument("--gearly", type=int, default=0)
    ap.add_argument("--otouch", type=int, default=0)
    ap.add_argument("--onewait", type=int, default=0)
    ap.add_argument("--wsbase", type=lambda x: int(x, 0), default=0)
    ap.add_argument("--wlate", type=int, default=1)
    ap.add_argument("--rec", type=int, default=12)
    ap.add_argument("--ostore", default="sc1")
    ap.add_argument("--prio", type=int, default=1)
    ap.add_argument("--pth", type=int, nargs=3, default=[16, 8, 4])
    ap.add_argument("--gs", type=int, default=33152)
    ap.add_argument("--sleep", type=int, default=2)
    ap.add_argument("--prof", action="store_true")
    ap.add_argument("--dbg", action="store_true")
    opt = ap.parse_args()
    PROF = opt.prof or opt.dbg
    global GS
    GS = opt.gs
    assert 32 * GS <= REC_OFF - GRAN_OFF
    global DBG
    DBG = opt.dbg
    a = Asm()
    a(HEADER.rstrip())
    a(f"; @launch grid=({NB},1,1) block=(1024,1,1) lds={L_END}")
    a('.amdgcn_target "amdgcn-amd-amdhsa--gfx950"')
    a(".text")
    entry(a, opt)
    phase_a_bin(a, opt)
    phase_a_table(a, opt)
    phase_b(a, opt)
    a(f""".section .rodata,"a"
.p2align 6
.amdhsa_kernel {KNAME}
  .amdhsa_next_free_vgpr 128
  .amdhsa_next_free_sgpr {98 if PROF else 96}
  .amdhsa_accum_offset 128
  .amdhsa_group_segment_fixed_size 0
  .amdhsa_kernarg_size 96
  .amdhsa_user_sgpr_count 2
  .amdhsa_user_sgpr_kernarg_segment_ptr 1
  .amdhsa_system_sgpr_workgroup_id_x 1
  .amdhsa_float_denorm_mode_32 3
  .amdhsa_dx10_clamp 0
.end_amdhsa_kernel""")
    open(opt.o, "w").write(a.text())
    print("wrote", opt.o, "lds", L_END)

if __name__ == "__main__":
    main()
```

```python
import argparse, struct

KNAME = "standalone__edge_featured_mpnn_gatedgcn__graph_kernel"
N, D, E = 10000, 64, 640000
NB, NPB = 250, 40
CH = 2560
GEN_OFF, G_OFF, GF_OFF, GRAN_OFF, REC_OFF, TOT_OFF = 0, 0x1000, 0x274000, 0x280000, 0x3A0000, 0xD80000
CSTR = 31232
GS = 32768
PROF_OFF = 0x1300000
NLOG2E = 0xBFB8AA3B
BIG, NBIG = 0x71800000, 0xF1800000
SHIFT = 60
C60 = (127 - SHIFT) << 23
EPS60 = struct.unpack("<I", struct.pack("<f", 1e-6 * 2.0 ** SHIFT))[0]
FSHIFT = struct.unpack("<I", struct.pack("<f", -float(SHIFT)))[0]
NWV = 16
POLL_LIMIT = 1 << 20
CHN = [0, 2, 1, 3]

SLOT_STR = 512
L_SLOT = 0
L_CNT = L_SLOT + (NPB + NWV) * SLOT_STR
L_ZREG = L_CNT + 256
L_FLAG = L_ZREG + 512
L_GCNT = L_FLAG + 4
L_ZEND = L_FLAG + 16
L_WCB = 29504
L_AP = 30080
L_U = L_AP + 48 * 272
L_SRC = L_U + 48 * 272
NSLOT = 250 * 32 + 320 + 64
L_E = L_SRC + NSLOT * 4
L_END = L_E + NSLOT * 8
A_HIST = L_SRC
A_OFFS = A_HIST + 1024
A_REC = A_OFFS + 1024
A_W = A_REC + CH * 16
WIMG = 64 * 144
A_X = A_W + 4 * WIMG
A_G = A_X + 48 * 144
assert A_G + 48 * 272 <= L_END <= 163840
assert all(x % 16 == 0 for x in (L_WCB, L_AP, L_U, L_SRC, L_E, A_REC, A_W, A_X, A_G))

SLA, TMP, INCE, APA = 88, 89, 90, 91
IDXA, IDXB = 92, 94
AC, A0, A1, ANX = 96, 100, 104, 108
XR = 112
QEND, QST = 116, 117
WC = 118
EB, EM, SRB, SLB = 120, 121, 122, 123
VPROF = 124
VI, VQ, VL = 125, 126, 127
S_TAG = 28
S_REC = 40
S_G = 44
M0, M1 = 48, 56
S_INV = 64
S_RB, S_MORE, S_P, S_TS, S_TE, S_N, S_SEGEND, S_REM = 68, 69, 70, 71, 72, 73, 74, 75
S_BLK, S_TAG8 = 76, 77
S_C60 = 78
P0M, P1M = 80, 88

class Asm:
    def __init__(self): self.l = []
    def __call__(self, s=""):
        self.l.extend(s.split("\n"))
    def text(self): return "\n".join(self.l) + "\n"

PROF = False
def stamp(a, idx):
    if PROF:
        a(f"    s_memrealtime s[96:97]")
        a(f"    s_waitcnt lgkmcnt(0)")
        a(f"    v_writelane_b32 v{VPROF}, s96, {idx}")

def cstamp(a, idx):
    if PROF:
        a(f"    s_memtime s[96:97]")
        a(f"    s_waitcnt lgkmcnt(0)")
        a(f"    v_writelane_b32 v{VPROF}, s96, {idx}")

DBG = False
def stamp_flush(a):
    if not PROF: return
    stamp(a, 9)
    if DBG:
        a(f"""    s_waitcnt vmcnt(0) lgkmcnt(0)
    v_readlane_b32 s30, v{VPROF}, 0
    v_readlane_b32 s31, v{VPROF}, 10
    v_readlane_b32 s32, v{VPROF}, 11
    v_readlane_b32 s33, v{VPROF}, 4
    v_readlane_b32 s34, v{VPROF}, 5
    v_readlane_b32 s35, v{VPROF}, 6
    s_nop 3
    s_not_b32 s30, s30
    s_sub_u32 s32, s32, s31
    s_cmp_lt_u32 s3, 10
    s_cselect_b32 s33, s33, 0
    s_cselect_b32 s34, s34, 0
    s_cselect_b32 s35, s35, 0
    v_writelane_b32 v{VPROF}, s30, 0
    v_writelane_b32 v{VPROF}, s32, 10
    v_writelane_b32 v{VPROF}, s33, 11
    v_writelane_b32 v{VPROF}, s34, 12
    v_writelane_b32 v{VPROF}, s35, 13
    s_mov_b64 exec, 0xffff
    v_lshlrev_b32 v2, 2, v{VL}
    global_atomic_umax v2, v{VPROF}, s[24:25]
    s_waitcnt vmcnt(0)""")
        return
    a(f"""    s_waitcnt vmcnt(0) lgkmcnt(0)
    s_mov_b64 exec, 0xffff
    s_lshl_b32 s30, s2, 4
    s_add_u32 s30, s30, s3
    s_lshl_b32 s30, s30, 6
    s_add_u32 s30, s30, {PROF_OFF}
    v_lshl_add_u32 v2, v{VL}, 2, s30
    global_store_dword v2, v{VPROF}, s[26:27]
    s_waitcnt vmcnt(0)""")

def dpp_scan(a, v):
    for sh in (1, 2, 4, 8):
        a(f"    s_nop 1")
        a(f"    v_add_u32_dpp v{v}, v{v}, v{v} row_shr:{sh} row_mask:0xf bank_mask:0xf bound_ctrl:0")
    a("    s_nop 1")
    a(f"    v_add_u32_dpp v{v}, v{v}, v{v} row_bcast:15 row_mask:0xa bank_mask:0xf")
    a("    s_nop 1")
    a(f"    v_add_u32_dpp v{v}, v{v}, v{v} row_bcast:31 row_mask:0xc bank_mask:0xf")
    a("    s_nop 1")

def entry(a, opt):
    a(f"""
.globl {KNAME}
.p2align 8
.type {KNAME},@function
{KNAME}:
    s_cmp_ge_u32 s2, {NB}
    s_cbranch_scc1 L_END
    s_load_dwordx16 s[4:19], s[0:1], 0
    s_load_dwordx8 s[20:27], s[0:1], 64
    v_lshrrev_b32 v1, 6, v0
    v_and_b32 v{VL}, 63, v0
    v_readfirstlane_b32 s3, v1
    v_lshrrev_b32 v{VQ}, 4, v{VL}
    v_and_b32 v{VI}, 15, v{VL}
    v_lshlrev_b32 v{IDXA+1}, 4, v{VI}
    v_mov_b32 v{IDXB+1}, v{IDXA+1}
    v_and_b32 v2, 3, v{VI}                  ; r
    v_lshrrev_b32 v3, 2, v{VI}              ; e
    v_cmp_eq_u32 vcc, v2, v{VQ}
    v_lshlrev_b32 v4, 3, v3
    v_add_u32 v4, {L_E}, v4
    v_mov_b32 v5, {L_ZREG}
    v_cndmask_b32 v{EB}, v5, v4, vcc
    v_mov_b32 v5, 32
    v_cndmask_b32 v{EM}, 0, v5, vcc
    v_lshlrev_b32 v{INCE}, 3, v{EM}
    v_cmp_eq_u32 vcc, v3, v{VQ}
    v_mov_b32 v5, 0x3f80
    v_lshrrev_b32 v6, 1, v2
    v_lshlrev_b32 v6, 4, v6
    v_lshlrev_b32 v5, v6, v5
    v_cndmask_b32 v5, 0, v5, vcc
    v_and_b32 v6, 1, v2                     ; r%2: 0 -> first register, 1 -> second
    v_cmp_eq_u32 vcc, 0, v6
    v_lshlrev_b32 v{APA}, 4, v{VI}
    v_add_u32 v{APA}, {L_AP}, v{APA}
    v_cndmask_b32 v{A0+2}, 0, v5, vcc
    v_cndmask_b32 v{A0+3}, v5, 0, vcc
    v_mov_b32 v{A1+2}, v{A0+2}
    v_mov_b32 v{A1+3}, v{A0+3}
    v_lshlrev_b32 v{SLB}, 3, v{VL}
    v_lshlrev_b32 v{SRB}, 2, v{VQ}
    v_add_u32 v{SRB}, {L_SRC}, v{SRB}
    s_mov_b32 s{S_RB}, 0
    s_mov_b32 s{S_C60}, {C60:#x}
    s_mov_b32 s{S_C60+1}, {C60:#x}
    s_cmp_eq_u32 s3, 15
    s_cselect_b32 s{S_INV+1}, 0xffff0000, 0
    s_cselect_b32 s{S_INV+3}, -1, 0
    s_mov_b32 s{S_INV}, 0
    s_mov_b32 s{S_INV+2}, 0""")
    if PROF:
        a(f"    v_mov_b32 v{VPROF}, 0")
    stamp(a, 0)
    a(f"""    s_cmp_ge_u32 s3, 10
    s_cbranch_scc1 L_TABLE""")

def gran_addr(a, dst=2):
    a(f"""    s_and_b32 s30, s2, 7
    s_lshl_b32 s30, s30, 5
    s_lshr_b32 s31, s2, 3
    s_or_b32 s31, s30, s31                  ; h
    s_lshr_b32 s30, s31, 3
    s_mul_i32 s30, s30, {GS}
    s_and_b32 s31, s31, 7
    s_lshl_b32 s31, s31, 4
    s_add_u32 s30, s30, s31
    s_lshl_b32 s31, s3, 11
    s_add_u32 s30, s30, s31
    s_add_u32 s30, s30, {GRAN_OFF}
    v_lshl_add_u32 v{dst}, v{VQ}, 9, s30""")

VGA, VGF, VONE, VCA = 96, 97, 98, 99

def late_setup(a, opt):
    a(f"""    s_add_u32 s{S_REC}, s26, {REC_OFF}
    s_addc_u32 s{S_REC+1}, s27, 0
    s_mov_b32 s{S_REC+2}, {NB*CSTR}
    s_mov_b32 s{S_REC+3}, 0x20000
    s_add_u32 s{S_G}, s26, {G_OFF}
    s_addc_u32 s{S_G+1}, s27, 0
    s_or_b32 s{S_G+1}, s{S_G+1}, 0x01000000  ; stride 256
    s_mov_b32 s{S_G+2}, {N+1}
    s_mov_b32 s{S_G+3}, 0x20000""")
    gran_addr(a, VGA)
    a(f"""    s_lshl_b32 s30, s3, 8
    s_add_u32 s30, s30, {GF_OFF}
    v_lshl_add_u32 v{VGF}, v{VI}, 4, s30
    v_mov_b32 v{VONE}, 1
    v_lshlrev_b32 v{VCA}, 2, v{VL}""")

def phase_a_bin(a, opt):
    st = opt.store
    QR = lambda j: 16 + 4 * j
    a(f"""    ; ================= phase A, binning waves (tid < 640)
    s_mul_i32 s30, s2, {CH*4}
    v_lshlrev_b32 v2, 4, v0
    v_add_u32 v3, s30, v2
    s_lshl_b32 s31, s30, 1
    v_lshlrev_b32 v4, 5, v0
    v_add_u32 v4, s31, v4
    s_mul_i32 s32, s2, {NPB*128}
    v_add_u32 v64, s32, v2
    v_mov_b32 v6, 0
    v_lshlrev_b32 v7, 2, v0
    s_waitcnt lgkmcnt(0)""")
    if opt.wsbase:
        a(f"    s_add_u32 s26, s26, {opt.wsbase}")
        a(f"    s_addc_u32 s27, s27, 0")
    stamp(a, 1)
    a(f"""    global_load_dwordx4 v[8:11], v3, s[10:11]
    s_load_dwordx2 s[{S_TAG}:{S_TAG+1}], s[26:27], {GEN_OFF}
    s_cmp_ge_u32 s3, 4
    s_cbranch_scc1 L_NOZH
    ds_write_b32 v7, v6 offset:{A_HIST}
L_NOZH:
    s_cmp_lg_u32 s3, 4
    s_cbranch_scc1 L_NOZC
    v_mov_b32 v32, 0
    v_mov_b32 v33, 0
    v_mov_b32 v34, 0
    v_mov_b32 v35, 0
    v_lshlrev_b32 v36, 4, v{VL}
    v_cmp_gt_u32 vcc, {(L_ZEND-L_CNT)//16}, v{VL}
    s_and_saveexec_b64 s[34:35], vcc
    ds_write_b128 v36, v[32:35] offset:{L_CNT}
    s_mov_b64 exec, s[34:35]
L_NOZC:""")
    late_setup(a, opt)
    a(f"""    ; addresses of the copy-out and of the run table entry (bucket slot h = 64*wave + lane, waves 0..3)
    s_mul_i32 s36, s2, {CSTR}
    s_mov_b32 s38, {A_REC}
    v_lshl_add_u32 v56, v0, 4, s38
    v_mad_u32_u24 v57, v0, {opt.rec}, s36
    v_add_u32 v58, {640*opt.rec}, v57
    v_add_u32 v59, {2*640*opt.rec}, v57
    v_add_u32 v60, {3*640*opt.rec}, v57
    s_and_b32 s37, s3, 3
    s_lshl_b32 s30, s37, 8
    v_lshl_add_u32 v61, v{VL}, 2, s30       ; 4*h
    s_mul_i32 s37, s37, {8*GS}
    s_lshl_b32 s30, s2, 7
    s_add_u32 s37, s37, s30
    s_add_u32 s37, s37, {GRAN_OFF}
    v_lshrrev_b32 v62, 3, v{VL}
    v_mul_u32_u24 v62, {GS}, v62
    v_add_u32 v62, s37, v62
    v_and_b32 v63, 7, v{VL}
    v_lshl_add_u32 v62, v63, 4, v62
    v_lshlrev_b32 v63, 4, v{VL}
    s_mov_b32 s33, 52429
    s_movk_i32 s34, 0xffd8                  ; -40
    s_movk_i32 s37, 0xfc04                  ; -1020
    global_load_dwordx4 v[12:15], v3, s[8:9]
    global_load_dwordx4 v[16:19], v4, s[6:7]
    global_load_dwordx4 v[24:27], v4, s[6:7] offset:16
    s_waitcnt lgkmcnt(0)
    s_add_u32 s{S_TAG}, s{S_TAG}, 1
    s_addc_u32 s{S_TAG+1}, s{S_TAG+1}, 0
    s_and_b32 s{S_TAG8}, s{S_TAG}, 0xff
    s_lshl_b32 s35, s{S_TAG8}, 24
    v_mov_b32 v53, s{S_TAG}
    v_mov_b32 v54, s{S_TAG+1}
    v_mov_b32 v55, s{S_TAG}
    s_barrier                               ; #1
    s_waitcnt vmcnt(3)""")
    stamp(a, 2)
    for j in range(4):
        a(f"    v_mul_u32_u24 v{40+j}, s33, v{8+j}")
        a(f"    v_lshrrev_b32 v{32+j}, 21, v{40+j}          ; bucket b")
        a(f"    v_lshrrev_b32 v{40+j}, 24, v{40+j}          ; b / 8")
        a(f"    v_mad_i32_i24 v{8+j}, v{32+j}, s34, v{8+j}")
        a(f"    v_lshlrev_b32 v{32+j}, 7, v{32+j}")
        a(f"    v_mad_i32_i24 v{32+j}, v{40+j}, s37, v{32+j}  ; 4 * ((b % 8) * 32 + b / 8): buckets of one die are adjacent")
        a(f"    ds_add_rtn_u32 v{36+j}, v{32+j}, v{VONE} offset:{A_HIST}")
    for j in range(4):
        a(f"    v_lshl_or_b32 v{8+j}, v{8+j}, 2, s35")
    a(f"""    s_waitcnt lgkmcnt(0)
    s_barrier                               ; #2
    ds_read_b128 v[40:43], v63 offset:{A_HIST}
    s_waitcnt lgkmcnt(0)
    v_add_u32 v44, v40, v41
    v_add_u32 v45, v44, v42
    v_add_u32 v46, v45, v43
    v_mov_b32 v47, v46""")
    dpp_scan(a, 47)
    a(f"""    v_sub_u32 v48, v47, v46
    v_add_u32 v49, v48, v40
    v_add_u32 v50, v48, v44
    v_add_u32 v51, v48, v45
    ds_write_b128 v63, v[48:51] offset:{A_OFFS}
    s_waitcnt vmcnt(0)""")
    for j in range(4):
        a(f"    v_lshl_or_b32 v{12+j}, v{12+j}, 8, v{8+j}")
    a("    v_pk_mov_b32 v[20:21], v[18:19], v[18:19] op_sel:[0,1]")
    a("    v_pk_mov_b32 v[28:29], v[26:27], v[26:27] op_sel:[0,1]")
    for j in range(4):
        a(f"    v_mov_b32 v{QR(j)+2}, v{12+j}")
        if opt.rec == 16:
            a(f"    v_bitop3_b32 v{QR(j)+3}, v{QR(j)}, v{12+j}, s{S_TAG} bitop3:0x96")
    a("    s_waitcnt lgkmcnt(0)")
    for j in range(4):
        a(f"    ds_read_b32 v{44+j}, v{32+j} offset:{A_OFFS}")
    a(f"""    ds_read_b32 v52, v61 offset:{A_OFFS}
    ds_read_b32 v48, v61 offset:{A_HIST}
    s_waitcnt lgkmcnt(2)""")
    for j in range(4):
        a(f"    v_add_u32 v{44+j}, v{44+j}, v{36+j}")
        a(f"    v_lshl_add_u32 v{44+j}, v{44+j}, 4, s38")
        a(f"    ds_write_b128 v{44+j}, v[{QR(j)}:{QR(j)+3}]")
    a(f"""    s_add_u32 s30, s26, {REC_OFF}
    s_addc_u32 s31, s27, 0
    s_waitcnt lgkmcnt(0)
    s_barrier                               ; #3""")
    stamp(a, 3)
    if opt.rec == 16:
        for j in range(4):
            a(f"    ds_read_b128 v[{32+4*j}:{35+4*j}], v56 offset:{j*10240}")
    else:
        for j in range(4):
            a(f"    ds_read_b96 v[{32+4*j}:{34+4*j}], v56 offset:{j*10240}")
    a(f"""    v_lshl_or_b32 v52, v48, 20, v52""")
    for j in range(4):
        a(f"    s_waitcnt lgkmcnt({3-j})")
        if opt.rec == 16:
            a(f"    global_store_dwordx4 v{57+j}, v[{32+4*j}:{35+4*j}], s[30:31] {st}")
        else:
            a(f"    global_store_dwordx3 v{57+j}, v[{32+4*j}:{34+4*j}], s[30:31] {st}")
    a(f"""    s_cmp_ge_u32 s3, 5
    s_cbranch_scc1 L_NOXR
    global_load_dwordx4 v[{XR}:{XR+3}], v64, s[4:5]
""" + (f"    global_load_dword v{TMP}, v64, s[22:23]    ; touches the output page early\n" if opt.otouch else "") + "L_NOXR:")
    if opt.rec == 12:
        a("    s_waitcnt vmcnt(0)")
    a(f"""    s_barrier                               ; #4
    s_cmp_ge_u32 s3, 4
    s_cbranch_scc1 L_PHASEB
    global_store_dwordx4 v62, v[52:55], s[26:27] {st}
    s_branch L_PHASEB""")

def tile_mfma(a, acc0, wreg, xreg):
    for mat in range(2):
        acc = acc0 + 4 * mat
        r0, r1 = wreg + mat * 8, wreg + mat * 8 + 4
        a(f"    v_mfma_f32_16x16x32_bf16 v[{acc}:{acc+3}], v[{r0}:{r0+3}], v[{xreg}:{xreg+3}], 0")
        a(f"    v_mfma_f32_16x16x32_bf16 v[{acc}:{acc+3}], v[{r1}:{r1+3}], v[{xreg+4}:{xreg+7}], v[{acc}:{acc+3}]")

def phase_a_table(a, opt):
    st = opt.store
    wp = [14, 20, 12, 18]
    a(f"""L_TABLE:
    s_sub_u32 s36, s3, 10                   ; u""")
    if opt.ipf:
        a(f"""    ; the table waves are idle here: they pull the kernel's own code into the cache (2 KB per wave)
    s_getpc_b64 s[30:31]
L_PC:
    s_sub_u32 s30, s30, L_PC-{KNAME}
    s_subb_u32 s31, s31, 0
    s_lshl_b32 s32, s36, 11
    v_lshl_add_u32 v80, v{VL}, 4, s32
    v_add_u32 v81, 1024, v80
    s_mov_b32 s33, L_CODE_END-{KNAME}
    v_cmp_gt_u32 vcc, s33, v80
    v_cmp_gt_u32 s[34:35], s33, v81
    s_mov_b64 exec, vcc
    s_cbranch_execz L_NOPF0
    global_load_dword v82, v80, s[30:31]
L_NOPF0:
    s_mov_b64 exec, s[34:35]
    s_cbranch_execz L_NOPF1
    global_load_dword v83, v81, s[30:31]
L_NOPF1:
    s_mov_b64 exec, -1""")
    a(f"""    s_and_b32 s37, s36, 1
    s_add_u32 s38, s37, 6
    v_lshlrev_b32 v2, 4, v{VL}
    s_lshl_b32 s30, s36, 10
    v_add_u32 v3, s30, v2                   ; piece u
    s_lshl_b32 s31, s38, 10
    v_add_u32 v4, s31, v2                   ; piece 6/7
    s_mul_i32 s32, s2, {NPB*128}
    v_add_u32 v5, s32, v3                   ; x offset
    v_lshrrev_b32 v6, 3, v{VL}
    v_mul_u32_u24 v6, 144, v6
    v_and_b32 v7, 7, v{VL}
    v_lshl_add_u32 v6, v7, 4, v6
    s_mul_i32 s33, s36, {8*144}
    s_add_u32 s33, s33, {A_W}
    v_add_u32 v48, s33, v6
    s_mul_i32 s33, s38, {8*144}
    s_add_u32 s33, s33, {A_W}
    v_add_u32 v49, s33, v6
    v_lshrrev_b32 v50, 1, v{VQ}
    v_and_b32 v51, 1, v{VQ}
    v_lshl_or_b32 v50, v51, 1, v50
    v_lshl_add_u32 v50, v{VI}, 2, v50
    v_lshlrev_b32 v50, 1, v50
    s_waitcnt lgkmcnt(0)""")
    if opt.wsbase:
        a(f"    s_add_u32 s26, s26, {opt.wsbase}")
        a(f"    s_addc_u32 s27, s27, 0")
    a(f"""    s_load_dwordx2 s[{S_TAG}:{S_TAG+1}], s[26:27], {GEN_OFF}""")
    if opt.touch:
        a(f"""    ; first access to the workspace pages written later (address translation only; the values are not used)
    v_mul_u32_u24 v45, {64*CSTR}, v{VL}
    v_add_u32 v45, {REC_OFF + 8*CSTR + CH*12 - 64*CSTR}, v45
    v_mov_b32 v46, 0x800
    v_cmp_eq_u32 vcc, 0, v{VL}
    s_nop 1
    v_cndmask_b32 v45, v45, v46, vcc
    s_mov_b64 exec, 0x3f
    global_load_dword v84, v45, s[26:27] sc1
    s_mov_b64 exec, -1""")
        if opt.touch > 1:
            a(f"""    s_mul_i32 s30, s2, {NPB*128}
    v_mov_b32 v46, s30
    s_mov_b64 exec, 1
    global_load_dword v85, v46, s[22:23] sc1
    s_mov_b64 exec, -1""")
    stamp(a, 1)
    late_setup(a, opt)
    if opt.wlate >= 0:
        a("    s_barrier")
    if opt.wlate > 0:
        a("    s_barrier                               ; #2")
    for m in range(4):
        a(f"    global_load_dwordx4 v[{8+8*m}:{11+8*m}], v3, s[{wp[m]}:{wp[m]+1}]")
        a(f"    global_load_dwordx4 v[{12+8*m}:{15+8*m}], v4, s[{wp[m]}:{wp[m]+1}]")
    a(f"""    s_cmp_eq_u32 s36, 5
    s_cbranch_scc1 L_TWC0
    global_load_dwordx4 v[40:43], v5, s[4:5]
    s_branch L_TB
L_TWC0:
    global_load_ushort v40, v50, s[16:17]
    global_load_ushort v41, v50, s[16:17] offset:128
    global_load_ushort v42, v50, s[16:17] offset:256
    global_load_ushort v43, v50, s[16:17] offset:384
L_TB:""")
    if opt.wlate < 0:
        a("    s_waitcnt lgkmcnt(0)")
        a("    s_barrier                               ; #1")
    if opt.wlate <= 0:
        a("    s_barrier                               ; #2")
    if not opt.stage3:
        a("    s_barrier                               ; #3")
    a(f"""    s_cmp_eq_u32 s36, 5
    s_cbranch_scc1 L_TWC
    s_waitcnt vmcnt(0)
    ds_write_b128 v48, v[40:43] offset:{A_X - A_W}
    s_branch L_TST
L_TWC:
    s_mov_b32 s33, {NLOG2E:#x}
    v_lshlrev_b32 v44, 3, v{VL}
    s_waitcnt vmcnt(0)
    v_lshlrev_b32 v40, 16, v40
    v_lshlrev_b32 v41, 16, v41
    v_lshlrev_b32 v42, 16, v42
    v_lshlrev_b32 v43, 16, v43
    v_mul_f32 v40, s33, v40
    v_mul_f32 v41, s33, v41
    v_mul_f32 v42, s33, v42
    v_mul_f32 v43, s33, v43
    v_cvt_pk_bf16_f32 v40, v40, v41
    v_cvt_pk_bf16_f32 v41, v42, v43
    ds_write_b64 v44, v[40:41] offset:{L_WCB}
L_TST:""")
    for m in range(4):
        a(f"    ds_write_b128 v48, v[{8+8*m}:{11+8*m}] offset:{m*WIMG}")
        a(f"    ds_write_b128 v49, v[{12+8*m}:{15+8*m}] offset:{m*WIMG}")
    a(f"""    ; tile job: nt = u/2, mt in {{2*(u%2), 2*(u%2)+1}}
    s_lshr_b32 s30, s36, 1                  ; nt
    s_lshl_b32 s31, s37, 1                  ; mt0
    s_lshl_b32 s32, s30, 4
    v_add_u32 v4, s32, v{VI}                ; node
    v_mul_u32_u24 v5, 144, v4
    v_lshl_add_u32 v5, v{VQ}, 4, v5
    v_add_u32 v5, {A_X}, v5
    v_lshrrev_b32 v6, 2, v{VI}
    v_lshl_add_u32 v6, v{VQ}, 3, v6
    v_mul_u32_u24 v6, 144, v6
    v_and_b32 v7, 3, v{VI}
    v_lshl_add_u32 v6, v7, 3, v6
    s_lshl_b32 s32, s31, 5
    s_add_u32 s32, s32, {A_W}
    v_add_u32 v6, s32, v6
    v_mul_u32_u24 v7, 272, v4
    v_lshl_add_u32 v50, v{VQ}, 4, v7
    s_lshl_b32 s32, s31, 6
    v_add_u32 v50, s32, v50
    v_add_u32 v51, {L_AP}, v50
    v_add_u32 v53, {L_U}, v50
    s_waitcnt lgkmcnt(0)
    s_add_u32 s{S_TAG}, s{S_TAG}, 1
    s_addc_u32 s{S_TAG+1}, s{S_TAG+1}, 0
    s_and_b32 s{S_TAG8}, s{S_TAG}, 0xff
""")
    if opt.stage3:
        a("    s_barrier                               ; #3")
    else:
        a(f"""    ; the six table waves synchronise among themselves through an LDS counter (staging complete)
    v_mov_b32 v54, {L_GCNT+4}
    v_mov_b32 v55, 1
    s_mov_b64 exec, 1
    ds_add_u32 v54, v55
    s_mov_b64 exec, -1
    s_mov_b32 s33, 0
L_TSYNC:
    ds_read_b32 v55, v54
    s_add_u32 s33, s33, 1
    s_cmp_ge_u32 s33, {POLL_LIMIT}
    s_cbranch_scc1 L_END
    s_waitcnt lgkmcnt(0)
    v_readfirstlane_b32 s30, v55
    s_nop 3
    s_cmp_lt_u32 s30, 6
    s_cbranch_scc1 L_TSYNC
""")
    a(f"""    ds_read_b128 v[8:11], v5
    ds_read_b128 v[12:15], v5 offset:64""")
    def wfrags(first):
        for m in range(2):
            for mat in range(2):
                for ks in range(2):
                    r = 16 + m * 16 + mat * 8 + ks * 4
                    for h in range(2):
                        a(f"    ds_read_b64_tr_b16 v[{r+2*h}:{r+2*h+1}], v6 offset:{(first+mat)*WIMG + ks*4608 + h*576 + m*32}")
    wfrags(0)
    a(f"""    ; table row address of this lane: (40 w + node)*256 + (16 mt0 + 4 g)*4 ; rows >= 40 of the tile are not stored
    s_mul_i32 s31, s2, {NPB*256}
    s_add_u32 s31, s31, {G_OFF}
    v_lshlrev_b32 v55, 8, v4
    v_add_u32 v55, s31, v55
    v_lshl_add_u32 v55, v{VQ}, 4, v55
    s_and_b32 s30, s36, 1
    s_lshl_b32 s30, s30, 7
    v_add_u32 v55, s30, v55
    v_cmp_gt_u32 s[34:35], {NPB}, v4
    s_mov_b32 s32, {NLOG2E:#x}
    s_mov_b32 s33, {BIG:#x}
    v_mov_b32 v54, {NBIG:#x}
    s_waitcnt lgkmcnt(0)""")
    for m in range(2):
        tile_mfma(a, 56 + 8 * m, 16 + 16 * m, 8)
    wfrags(2)
    a("    s_mov_b32 s30, 0x8000")
    for m in range(2):
        accb, accv = 56 + 8 * m, 60 + 8 * m
        o = 72 + 4 * m
        for r in range(4):
            a(f"    v_mul_f32 v{accb+r}, s32, v{accb+r}")
            a(f"    v_med3_f32 v{accb+r}, v{accb+r}, v54, s33")
        a(f"    v_cvt_pk_bf16_f32 v{o}, v{accb}, v{accb+1}")
        a(f"    v_cvt_pk_bf16_f32 v{o+1}, v{accb+2}, v{accb+3}")
        for p in range(2):
            lo, hi = accv + 2 * p, accv + 2 * p + 1
            a(f"    v_cvt_pk_bf16_f32 v80, v{lo}, v{lo}")
            a(f"    v_and_b32 v80, 0xffff, v80")
            a(f"    v_and_b32 v81, 0x7fffffff, v{hi}")
            a(f"    v_and_b32 v{hi}, 0x80000000, v{hi}")
            a(f"    v_sub_u32 v81, v81, v80")
            a(f"    v_add_u32 v81, s30, v81")
            a(f"    v_max_i32 v81, 0, v81")
            a(f"    v_and_b32 v81, 0xffff0000, v81")
            a(f"    v_or3_b32 v{o+2+p}, v81, v80, v{hi}")
    if not opt.gearly:
        a("    s_barrier")
    a(f"""    s_mov_b64 exec, s[34:35]
    global_store_dwordx4 v55, v[72:75], s[26:27] offset:0 {st}
    global_store_dwordx4 v55, v[76:79], s[26:27] offset:64 {st}
    s_mov_b64 exec, -1""")
    a(f"""    ; padding row N of the table (gate saturates, value 0): last workgroup, wave u = 5
    s_cmp_lg_u32 s2, {NB-1}
    s_cbranch_scc1 L_TAU
    s_cmp_lg_u32 s36, 5
    s_cbranch_scc1 L_TAU
    v_mov_b32 v80, 0x71807180
    v_mov_b32 v81, v80
    v_mov_b32 v82, 0
    v_mov_b32 v83, 0
    v_lshlrev_b32 v7, 4, v{VL}
    v_add_u32 v7, {N*256 + G_OFF}, v7
    s_mov_b64 exec, 0xffff
    global_store_dwordx4 v7, v[80:83], s[26:27] {st}
    s_mov_b64 exec, -1
L_TAU:
    s_waitcnt lgkmcnt(0)""")
    for m in range(2):
        tile_mfma(a, 56 + 8 * m, 16 + 16 * m, 8)
    a(f"""    s_mov_b32 s34, {FSHIFT:#x}
    s_nop 6""")
    for m in range(2):
        acca, accu = 56 + 8 * m, 60 + 8 * m
        a(f"    ds_write_b128 v53, v[{accu}:{accu+3}] offset:{m*64}")
        for r in range(4):
            a(f"    v_mul_f32 v{acca+CHN[r]}, s32, v{acca+CHN[r]}")
            a(f"    v_med3_f32 v{acca+CHN[r]}, v{acca+CHN[r]}, v54, s33")
            a(f"    v_add_f32 v{16+r}, s34, v{acca+CHN[r]}")
        a(f"    ds_write_b128 v51, v[16:19] offset:{m*64}")
    if opt.gearly == 2:
        a("    s_barrier                               ; #4")
    a(f"""    ; the table rows of this workgroup are complete: the last table wave publishes the flag
    v_mov_b32 v16, {L_GCNT}
    v_mov_b32 v17, 1
    s_waitcnt vmcnt(0)
    s_mov_b64 exec, 1
    ds_add_rtn_u32 v18, v16, v17
    s_waitcnt lgkmcnt(0)
    v_readfirstlane_b32 s30, v18
    s_mov_b64 exec, -1
    s_cmp_lg_u32 s30, 5
    s_cbranch_scc1 {"L_TB4" if opt.gearly == 1 else "L_PHASEB"}
    s_lshl_b32 s30, s2, 4
    s_add_u32 s30, s30, {GF_OFF}
    v_mov_b32 v16, s30
    v_mov_b32 v18, s{S_TAG}
    v_mov_b32 v19, s{S_TAG+1}
    s_mov_b64 exec, 1
    global_store_dwordx2 v16, v[18:19], s[26:27] {st}
    s_mov_b64 exec, -1""")
    if opt.gearly == 1:
        a("L_TB4:")
        a("    s_barrier                               ; #4")

def phase_b(a, opt):
    GR = lambda j: 8 + 4 * j
    rec = lambda h, j: 24 + 16 * h + 4 * j
    RANK, DL = 56, 64
    msk = lambda h, j: (M0 if h == 0 else M1) + 2 * j
    pnd = lambda h, j: (P0M if h == 0 else P1M) + 2 * j
    inv = lambda j: S_INV + (2 if j >= 2 else 0)
    a("L_PHASEB:")
    stamp(a, 4)
    a(f"""    ; ================= phase B: wait for the run table entries of this bucket
    v_lshlrev_b32 v2, 3, v{VL}
    ds_read_b64 v[{WC}:{WC+1}], v2 offset:{L_WCB}""")
    a(f"""    s_mov_b32 s33, 0
    s_mov_b32 s38, s{S_TAG+1}
    s_mov_b32 s39, s{S_TAG}""")
    for j in range(4):
        a(f"    s_not_b64 s[{pnd(0,j)}:{pnd(0,j)+1}], s[{inv(j)}:{inv(j)+1}]")
    a("L_POLL:")
    for j in range(4):
        p = pnd(0, j)
        a(f"    s_mov_b64 exec, s[{p}:{p+1}]")
        a(f"    s_cbranch_execz L_NP{j}")
        a(f"    global_load_dwordx4 v[{GR(j)}:{GR(j)+3}], v{VGA}, s[26:27] offset:{128*j} sc1")
        a(f"L_NP{j}:")
    a("    s_waitcnt vmcnt(0)")
    for j in range(4):
        p = pnd(0, j)
        a(f"    s_mov_b64 exec, s[{p}:{p+1}]")
        a(f"    v_cmp_eq_u32 vcc, s{S_TAG}, v{GR(j)+1}")
        a(f"    v_cmp_eq_u64 s[34:35], v[{GR(j)+2}:{GR(j)+3}], s[38:39]")
        a(f"    s_nop 0")
        a(f"    s_and_b64 s[34:35], s[34:35], vcc")
        a(f"    s_andn2_b64 s[{p}:{p+1}], s[{p}:{p+1}], s[34:35]")
    a(f"""    s_mov_b64 exec, -1
    s_or_b64 s[34:35], s[{pnd(0,0)}:{pnd(0,0)+1}], s[{pnd(0,1)}:{pnd(0,1)+1}]
    s_or_b64 s[36:37], s[{pnd(0,2)}:{pnd(0,2)+1}], s[{pnd(0,3)}:{pnd(0,3)+1}]
    s_or_b64 s[34:35], s[34:35], s[36:37]
    s_cbranch_scc0 L_READY
    s_add_u32 s33, s33, 1
    s_cmp_ge_u32 s33, {POLL_LIMIT}
    s_cbranch_scc1 L_END
    s_sleep {opt.sleep}
    s_branch L_POLL
L_READY:""")
    stamp(a, 5)
    a(f"""L_ROUND:
    v_add_u32 v2, s{S_RB}, v{VI}
    v_add_u32 v3, 16, v2
    s_lshl_b32 s30, s3, 4
    v_lshl_add_u32 v4, v{VQ}, 2, s30
    v_mul_u32_u24 v4, {CSTR}, v4
    v_mad_u32_u24 v4, v2, 12, v4""")
    for j in range(4):
        a(f"    v_lshrrev_b32 v{GR(j)+1}, 20, v{GR(j)}      ; count")
        a(f"    v_and_b32 v{GR(j)}, 0xfffff, v{GR(j)}")
        a(f"    v_cmp_gt_u32 s[{msk(0,j)}:{msk(0,j)+1}], v{GR(j)+1}, v2")
        a(f"    v_cmp_gt_u32 s[{msk(1,j)}:{msk(1,j)+1}], v{GR(j)+1}, v3")
        a(f"    v_mad_u32_u24 v{GR(j)+2}, v{GR(j)}, 12, v4")
    a(f"    s_add_u32 s30, s{S_RB}, 32")
    for j in range(4):
        a(f"    s_andn2_b64 s[{msk(0,j)}:{msk(0,j)+1}], s[{msk(0,j)}:{msk(0,j)+1}], s[{inv(j)}:{inv(j)+1}]")
        a(f"    s_mov_b64 s[{pnd(0,j)}:{pnd(0,j)+1}], s[{msk(0,j)}:{msk(0,j)+1}]")
        a(f"    s_andn2_b64 s[{msk(1,j)}:{msk(1,j)+1}], s[{msk(1,j)}:{msk(1,j)+1}], s[{inv(j)}:{inv(j)+1}]")
        a(f"    s_mov_b64 s[{pnd(1,j)}:{pnd(1,j)+1}], s[{msk(1,j)}:{msk(1,j)+1}]")
        a(f"    s_cbranch_scc0 L_NMORE{j}")
        a(f"    s_mov_b64 exec, s[{msk(1,j)}:{msk(1,j)+1}]")
        a(f"    v_cmp_lt_u32 vcc, s30, v{GR(j)+1}")
        a(f"    s_mov_b64 exec, -1")
        a(f"    s_cmp_eq_u64 vcc, 0")
        a(f"    s_cbranch_scc1 L_NMORE{j}")
        a(f"    v_mov_b32 v5, {L_FLAG}")
        a(f"    v_mov_b32 v6, 1")
        a(f"    ds_write_b32 v5, v6")
        a(f"L_NMORE{j}:")
    if opt.rec == 16:
        a(f"""    s_mov_b32 s33, 0
L_RLOAD:""")
        for h in range(2):
            for j in range(4):
                p = pnd(h, j)
                a(f"    s_cmp_eq_u64 s[{p}:{p+1}], 0")
                a(f"    s_cbranch_scc1 L_NL{h}{j}")
                a(f"    s_mov_b64 exec, s[{p}:{p+1}]")
                off = " offset:256" if h else ""
                a(f"    buffer_load_dwordx4 v[{rec(h,j)}:{rec(h,j)+3}], v{GR(j)+2}, s[{S_REC}:{S_REC+3}], 0 offen{off} {opt.hload}")
                a(f"L_NL{h}{j}:")
        a("    s_waitcnt vmcnt(0)")
        for h in range(2):
            for j in range(4):
                p = pnd(h, j)
                r = rec(h, j)
                a(f"    s_cmp_eq_u64 s[{p}:{p+1}], 0")
                a(f"    s_cbranch_scc1 L_NC{h}{j}")
                a(f"    s_mov_b64 exec, s[{p}:{p+1}]")
                a(f"    v_bitop3_b32 v5, v{r}, v{r+2}, v{r+3} bitop3:0x96")
                a(f"    v_cmp_eq_u32_sdwa s[34:35], v{r+2}, s{S_TAG8} src0_sel:BYTE_3 src1_sel:DWORD")
                a(f"    v_cmp_eq_u32 vcc, s{S_TAG}, v5")
                a(f"    s_nop 0")
                a(f"    s_and_b64 s[34:35], s[34:35], vcc")
                a(f"    s_andn2_b64 s[{p}:{p+1}], s[{p}:{p+1}], s[34:35]")
                a(f"L_NC{h}{j}:")
        a(f"    s_mov_b64 exec, -1")
        a(f"    s_or_b64 s[34:35], s[{pnd(0,0)}:{pnd(0,0)+1}], s[{pnd(0,1)}:{pnd(0,1)+1}]")
        for h in range(2):
            for j in range(4):
                if (h, j) in ((0, 0), (0, 1)): continue
                a(f"    s_or_b64 s[34:35], s[34:35], s[{pnd(h,j)}:{pnd(h,j)+1}]")
        a(f"""    s_cbranch_scc0 L_HAVE
    s_add_u32 s33, s33, 1
    s_cmp_ge_u32 s33, {POLL_LIMIT}
    s_cbranch_scc1 L_END
    s_sleep {opt.sleep}
    s_branch L_RLOAD
L_HAVE:""")
    else:
        for h in range(2):
            for j in range(4):
                p = msk(h, j)
                if h:
                    a(f"    s_cmp_eq_u64 s[{p}:{p+1}], 0")
                    a(f"    s_cbranch_scc1 L_NL{h}{j}")
                a(f"    s_mov_b64 exec, s[{p}:{p+1}]")
                off = " offset:192" if h else ""
                a(f"    s_mov_b32 s31, {j*CSTR}")
                a(f"    buffer_load_dwordx3 v[{rec(h,j)}:{rec(h,j)+2}], v{GR(j)+2}, s[{S_REC}:{S_REC+3}], s31 offen{off} {opt.hload}")
                if h:
                    a(f"L_NL{h}{j}:")
        a("    s_mov_b64 exec, -1")
        a("    s_waitcnt vmcnt(0)")
    stamp(a, 6)
    a(f"""    ; table-row flags of this wave's 16 producers: loaded now, checked before the first gather
    global_load_dwordx2 v[22:23], v{VGF}, s[26:27] sc1""")
    for h in range(2):
        for j in range(4):
            m = msk(h, j)
            if h == 1:
                a(f"    s_cmp_eq_u64 s[{m}:{m+1}], 0")
                a(f"    s_cbranch_scc1 L_NB1R{j}")
            a(f"    s_mov_b64 exec, s[{m}:{m+1}]")
            a(f"    v_and_b32 v{DL+4*h+j}, 0xff, v{rec(h,j)+2}")
            a(f"    ds_add_rtn_u32 v{RANK+4*h+j}, v{DL+4*h+j}, v{VONE} offset:{L_CNT}")
            if h == 1:
                a(f"L_NB1R{j}:")
    a(f"""    s_mov_b64 exec, -1
    v_mov_b32 v6, {L_FLAG}
    v_cmp_gt_u32 vcc, {NPB}, v{VL}
    s_waitcnt lgkmcnt(0)
    s_barrier                               ; #5""")
    stamp(a, 12)
    a(f"""    ds_read_b32 v5, v{VCA} offset:{L_CNT}
    ds_read_b32 v6, v6
    s_waitcnt lgkmcnt(0)
    v_add_u32 v4, 7, v5
    v_lshrrev_b32 v4, 3, v4
    v_max_u32 v4, 1, v4
    v_cndmask_b32 v4, 0, v4, vcc
    v_readfirstlane_b32 s{S_MORE}, v6
    v_mov_b32 v{QEND}, v4""")
    dpp_scan(a, QEND)
    stamp(a, 13)
    a(f"""    v_sub_u32 v{QST}, v{QEND}, v4
    v_readlane_b32 s{S_P}, v{QEND}, 63
    v_lshlrev_b32 v3, 3, v{QST}
    s_mov_b32 s30, {L_SRC}
    s_mov_b32 s31, {L_E}""")
    for j in range(4):
        a(f"    ds_bpermute_b32 v{8+j}, v{DL+j}, v3")
    for j in range(4):
        a(f"    s_cmp_eq_u64 s[{M1+2*j}:{M1+2*j+1}], 0")
        a(f"    s_cbranch_scc1 L_NB1P{j}")
        a(f"    ds_bpermute_b32 v{12+j}, v{DL+4+j}, v3")
        a(f"L_NB1P{j}:")
    a(f"""    ; padding slots: waves 0..4 take 8 nodes each, lane = (node, slot); wave 5 fills the tail
    s_cmp_ge_u32 s3, 5
    s_cbranch_scc1 L_NOPLK
    s_lshl_b32 s32, s3, 3
    v_lshrrev_b32 v16, 3, v{VL}
    v_add_u32 v16, s32, v16
    v_lshlrev_b32 v16, 2, v16               ; 4*node
    v_add_u32 v17, v3, v5
    v_lshlrev_b32 v18, 3, v{QEND}
    ds_bpermute_b32 v17, v16, v17
    ds_bpermute_b32 v18, v16, v18
L_NOPLK:
    s_mul_i32 s{S_TS}, s{S_P}, s3
    s_lshr_b32 s{S_TS}, s{S_TS}, 4
    s_add_u32 s32, s3, 1
    s_mul_i32 s{S_TE}, s{S_P}, s32
    s_lshr_b32 s{S_TE}, s{S_TE}, 4
    v_cmp_ge_u32 vcc, s{S_TS}, v{QEND}
    s_waitcnt lgkmcnt(0)
    s_bcnt1_i32_b64 s{S_N}, vcc""")
    for h in range(2):
        for j in range(4):
            m = msk(h, j)
            r = rec(h, j)
            if h == 1:
                a(f"    s_cmp_eq_u64 s[{m}:{m+1}], 0")
                a(f"    s_cbranch_scc1 L_NB1S{j}")
            a(f"    s_mov_b64 exec, s[{m}:{m+1}]")
            a(f"    v_add_u32 v{8+4*h+j}, v{8+4*h+j}, v{RANK+4*h+j}")
            a(f"    v_bfe_u32 v{r+2}, v{r+2}, 8, 16")
            a(f"    v_lshl_add_u32 v19, v{8+4*h+j}, 2, s30")
            a(f"    v_lshl_add_u32 v21, v{8+4*h+j}, 3, s31")
            a(f"    ds_write_b32 v19, v{r+2}")
            a(f"    ds_write_b64 v21, v[{r}:{r+1}]")
            if h == 1:
                a(f"L_NB1S{j}:")
    stamp(a, 14)
    a(f"""    s_mov_b64 exec, -1
    v_mov_b32 v11, {N}
    v_mov_b32 v12, 0
    v_mov_b32 v13, 0
    s_cmp_gt_u32 s3, 5
    s_cbranch_scc1 L_NOPAD
    v_and_b32 v16, 7, v{VL}
    v_add_u32 v16, v17, v16
    v_cmp_lt_u32 vcc, v16, v18
    s_cmp_lt_u32 s3, 5
    s_cbranch_scc1 L_PADW
    s_lshl_b32 s32, s{S_P}, 3
    v_add_u32 v16, s32, v{VL}
    s_mov_b64 vcc, -1
L_PADW:
    v_lshl_add_u32 v14, v16, 2, s30
    v_lshl_add_u32 v15, v16, 3, s31
    s_mov_b64 exec, vcc
    ds_write_b32 v14, v11
    ds_write_b64 v15, v[12:13]
    s_mov_b64 exec, -1
L_NOPAD:
    v_readlane_b32 s{S_SEGEND}, v{QEND}, s{S_N}
    s_lshl_b32 s32, s{S_TS}, 5
    v_add_u32 v2, s32, v{SRB}
    s_lshl_b32 s32, s{S_TS}, 1
    v_mad_u32_u24 v3, v{EM}, s32, v{EB}
    s_mul_i32 s32, s{S_N}, 272
    v_add_u32 v{TMP}, s32, v{APA}
    s_add_u32 s32, s{S_N}, s3
    s_lshl_b32 s32, s32, 9
    v_add_u32 v{SLA}, s32, v{SLB}
    s_min_u32 s{S_SEGEND}, s{S_SEGEND}, s{S_TE}
    s_sub_u32 s{S_REM}, s{S_SEGEND}, s{S_TS}
    s_sub_u32 s{S_REM}, s{S_REM}, 1""")
    S = lambda k: 8 + 6 * (k % 8)
    Da, Db, T = 56, 60, 64
    NUM, DEN = 68, 72
    PA, PB_, UA, UB, SA, SB = 76, 78, 80, 82, 84, 86
    a(f"""    s_mov_b32 s33, 0
    s_cmp_eq_u32 s3, 15
    s_cselect_b32 s34, 0xfc00fc00, 0
    s_mov_b32 s35, s34
L_GPOLL:
    s_waitcnt vmcnt(0)
    v_cmp_eq_u64 s[36:37], v[22:23], s[{S_TAG}:{S_TAG+1}]
    s_nop 0
    s_or_b64 s[36:37], s[36:37], s[34:35]
    s_cmp_eq_u64 s[36:37], -1
    s_cbranch_scc1 L_GOK
    s_add_u32 s33, s33, 1
    s_cmp_ge_u32 s33, {POLL_LIMIT}
    s_cbranch_scc1 L_END
    s_sleep {opt.sleep}
    global_load_dwordx2 v[22:23], v{VGF}, s[26:27] sc1
    s_branch L_GPOLL
L_GOK:""")
    stamp(a, 15)
    a(f"""    s_waitcnt lgkmcnt(0)
    s_barrier                               ; #6""")
    stamp(a, 7)
    cstamp(a, 10)
    pairs = [IDXA, IDXB, 56, 58, 60, 62]
    for k in range(6):
        a(f"    ds_read_b32 v{pairs[k]}, v2 offset:{16*k}")
    a(f"""    ds_read_b128 v[{AC}:{AC+3}], v{TMP}
    ds_read_b128 v[{ANX}:{ANX+3}], v{TMP} offset:272
    ds_read_b64 v[{A0}:{A0+1}], v3
    ds_read_b64 v[{A1}:{A1+1}], v3 offset:32""")
    for k in range(4):
        a(f"    v_mov_b32 v{56+2*k+1}, v{IDXA+1}")
    for k in range(8):
        a(f"    v_pk_mov_b32 v[{S(k)}:{S(k)+1}], v[{WC}:{WC+1}], v[{WC}:{WC+1}] op_sel:[0,1]")
    for r in range(0, 8, 2):
        a(f"    v_pk_mov_b32 v[{NUM+r}:{NUM+r+1}], 0, 0")
    for k in range(6):
        a(f"    s_waitcnt lgkmcnt({9-k})")
        a(f"    buffer_load_dwordx4 v[{S(k)+2}:{S(k)+5}], v[{pairs[k]}:{pairs[k]+1}], s[{S_G}:{S_G+3}], 0 idxen offen {opt.gload}")
    a(f"""    s_cmp_ge_u32 s3, 5
    s_cbranch_scc1 L_NOSEG
    v_cvt_f32_u32 v76, s{S_P}
    v_rcp_f32 v76, v76
    v_lshlrev_b32 v77, 4, v{QST}
    v_add_u32 v77, 16, v77
    v_cvt_f32_u32 v77, v77
    v_lshlrev_b32 v78, 4, v{QEND}
    v_cvt_f32_u32 v78, v78
    v_add_f32 v77, -0.5, v77
    v_add_f32 v78, -0.5, v78
    v_mul_f32 v77, v77, v76
    v_mul_f32 v78, v78, v76
    v_cvt_u32_f32 v77, v77
    v_cvt_u32_f32 v78, v78
    v_lshrrev_b32 v4, 3, v0                 ; node
    v_sub_u32 v78, v78, v77
    v_add_u32 v78, 1, v78
    v_add_u32 v77, v77, v{VL}
    v_lshl_or_b32 v77, v78, 16, v77
    v_lshlrev_b32 v5, 2, v4
    ds_bpermute_b32 v5, v5, v77
    v_and_b32 v6, 7, v0
    v_lshlrev_b32 v6, 4, v6
    v_mul_u32_u24 v4, 272, v4
    v_lshl_add_u32 v4, v6, 1, v4
    v_add_u32 v4, {L_U}, v4
    s_waitcnt lgkmcnt(0)
    v_lshrrev_b32 v7, 16, v5
    v_and_b32 v5, 0xffff, v5
    v_lshl_add_u32 v5, v5, 9, v6
L_NOSEG:""")
    if opt.prio:
        a(f"    s_setprio 3")
        a(f"    s_sub_u32 s{S_BLK}, s{S_TE}, s{S_TS}")
    a(f"    s_waitcnt lgkmcnt(0)")
    a("L_LOOP:")
    for k in range(0, 8, 2):
        sa, sb = S(k), S(k + 1)
        pa, pb = S(k - 2), S(k - 1)
        a(f"""    s_waitcnt vmcnt({4 if opt.onewait else 5})
    v_mfma_f32_16x16x32_bf16 v[{Da}:{Da+3}], v[{A0}:{A0+3}], v[{sa}:{sa+3}], v[{AC}:{AC+3}]
    ds_read_b32 v{IDXA}, v2 offset:{16*(k+6)}
    ds_read_b32 v{IDXB}, v2 offset:{16*(k+7)}
    v_lshlrev_b32 v{T}, 16, v{sa+4}
    v_lshlrev_b32 v{T+1}, 16, v{sa+5}
    {"s_nop 0" if opt.onewait == 2 else ("" if opt.onewait else "s_waitcnt vmcnt(4)")}
    v_mfma_f32_16x16x32_bf16 v[{Db}:{Db+3}], v[{A1}:{A1+3}], v[{sb}:{sb+3}], v[{AC}:{AC+3}]
    v_lshlrev_b32 v{T+2}, 16, v{sb+4}
    v_lshlrev_b32 v{T+3}, 16, v{sb+5}
    s_sub_u32 s{S_REM}, s{S_REM}, 1
    ds_read_b64 v[{A0}:{A0+1}], v3 offset:{32*(k+2)}
    ds_read_b64 v[{A1}:{A1+1}], v3 offset:{32*(k+3)}""")
        for i in range(4):
            a(f"    v_exp_f32 v{Da+i}, v{Da+i} clamp")
        a(f"""    s_waitcnt lgkmcnt(2)
    buffer_load_dwordx4 v[{pa+2}:{pa+5}], v[{IDXA}:{IDXA+1}], s[{S_G}:{S_G+3}], 0 idxen offen {opt.gload}
    buffer_load_dwordx4 v[{pb+2}:{pb+5}], v[{IDXB}:{IDXB+1}], s[{S_G}:{S_G+3}], 0 idxen offen {opt.gload}""")
        for i in range(4):
            a(f"    v_exp_f32 v{Db+i}, v{Db+i} clamp")
        c = f"s[{S_C60}:{S_C60+1}]"
        a(f"""    v_pk_add_f32 v[{Da}:{Da+1}], v[{Da}:{Da+1}], {c}
    v_pk_add_f32 v[{Da+2}:{Da+3}], v[{Da+2}:{Da+3}], {c}
    v_pk_add_f32 v[{Db}:{Db+1}], v[{Db}:{Db+1}], {c}
    v_pk_add_f32 v[{Db+2}:{Db+3}], v[{Db+2}:{Db+3}], {c}
    v_pk_mul_f32 v[{PA}:{PA+1}], v[{Da}:{Da+1}], v[{Db}:{Db+1}]
    v_pk_mul_f32 v[{PB_}:{PB_+1}], v[{Da+2}:{Da+3}], v[{Db+2}:{Db+3}]
    v_pk_mul_f32 v[{UA}:{UA+1}], v[{T}:{T+1}], v[{Db}:{Db+1}]
    v_rcp_f32 v{PA}, v{PA}
    v_rcp_f32 v{PA+1}, v{PA+1}
    v_pk_mul_f32 v[{UB}:{UB+1}], v[{sa+4}:{sa+5}], v[{Db+2}:{Db+3}]
    v_rcp_f32 v{PB_}, v{PB_}
    v_rcp_f32 v{PB_+1}, v{PB_+1}
    v_pk_fma_f32 v[{UA}:{UA+1}], v[{T+2}:{T+3}], v[{Da}:{Da+1}], v[{UA}:{UA+1}]
    v_pk_fma_f32 v[{UB}:{UB+1}], v[{sb+4}:{sb+5}], v[{Da+2}:{Da+3}], v[{UB}:{UB+1}]
    v_pk_add_f32 v[{SA}:{SA+1}], v[{Da}:{Da+1}], v[{Db}:{Db+1}]
    v_pk_add_f32 v[{SB}:{SB+1}], v[{Da+2}:{Da+3}], v[{Db+2}:{Db+3}]
    v_pk_fma_f32 v[{NUM}:{NUM+1}], v[{PA}:{PA+1}], v[{UA}:{UA+1}], v[{NUM}:{NUM+1}]
    v_pk_fma_f32 v[{NUM+2}:{NUM+3}], v[{PB_}:{PB_+1}], v[{UB}:{UB+1}], v[{NUM+2}:{NUM+3}]
    v_pk_fma_f32 v[{DEN}:{DEN+1}], v[{PA}:{PA+1}], v[{SA}:{SA+1}], v[{DEN}:{DEN+1}]
    v_pk_fma_f32 v[{DEN+2}:{DEN+3}], v[{PB_}:{PB_+1}], v[{SB}:{SB+1}], v[{DEN+2}:{DEN+3}]
    s_waitcnt lgkmcnt(0)
    s_cbranch_scc1 L_SB{k}
L_RB{k}:""")
        if k == 6:
            a(f"    v_add_u32 v2, 128, v2")
            a(f"    v_add_u32 v3, v{INCE}, v3")
            if opt.prio:
                t1, t2, t3 = opt.pth
                a(f"""    s_sub_u32 s{S_BLK}, s{S_BLK}, 4
    s_cmp_gt_i32 s{S_BLK}, {t1}
    s_cbranch_scc1 L_LOOP
    s_setprio 2
    s_cmp_gt_i32 s{S_BLK}, {t2}
    s_cbranch_scc1 L_LOOP
    s_setprio 1
    s_cmp_gt_i32 s{S_BLK}, {t3}
    s_cbranch_scc1 L_LOOP
    s_setprio 0""")
            a(f"    s_branch L_LOOP")
    for k in range(0, 8, 2):
        a(f"L_SB{k}:")
        for r in range(4):
            a(f"    v_permlane32_swap_b32 v{NUM+r}, v{DEN+r}")
        a(f"""    v_pk_add_f32 v[{NUM}:{NUM+1}], v[{NUM}:{NUM+1}], v[{DEN}:{DEN+1}]
    v_pk_add_f32 v[{NUM+2}:{NUM+3}], v[{NUM+2}:{NUM+3}], v[{DEN+2}:{DEN+3}]
    s_add_u32 s{S_N}, s{S_N}, 1
    s_add_u32 s36, s{S_N}, 1
    v_permlane16_swap_b32 v{NUM}, v{NUM+2}
    v_permlane16_swap_b32 v{NUM+1}, v{NUM+3}
    v_readlane_b32 s37, v{QEND}, s{S_N}
    s_mul_i32 s36, s36, 272
    v_pk_add_f32 v[{DEN}:{DEN+1}], v[{NUM}:{NUM+1}], v[{NUM+2}:{NUM+3}]
    v_add_u32 v{TMP}, s36, v{APA}
    s_cmp_eq_u32 s{S_SEGEND}, s{S_TE}
    ds_write_b64 v{SLA}, v[{DEN}:{DEN+1}]
    s_cbranch_scc1 L_DONE
    v_pk_mov_b32 v[{AC}:{AC+1}], v[{ANX}:{ANX+1}], v[{ANX}:{ANX+1}] op_sel:[0,1]
    v_pk_mov_b32 v[{AC+2}:{AC+3}], v[{ANX+2}:{ANX+3}], v[{ANX+2}:{ANX+3}] op_sel:[0,1]
    v_add_u32 v{SLA}, {SLOT_STR}, v{SLA}
    s_min_u32 s37, s37, s{S_TE}
    v_pk_mov_b32 v[{NUM}:{NUM+1}], 0, 0
    v_pk_mov_b32 v[{NUM+2}:{NUM+3}], 0, 0
    ds_read_b128 v[{ANX}:{ANX+3}], v{TMP}
    v_pk_mov_b32 v[{DEN}:{DEN+1}], 0, 0
    v_pk_mov_b32 v[{DEN+2}:{DEN+3}], 0, 0
    s_sub_u32 s{S_REM}, s37, s{S_SEGEND}
    s_sub_u32 s{S_REM}, s{S_REM}, 1
    s_mov_b32 s{S_SEGEND}, s37
    s_branch L_RB{k}""")
    a("L_DONE:")
    if opt.prio:
        a("    s_setprio 0")
    stamp(a, 8)
    cstamp(a, 11)
    a(f"""    s_waitcnt vmcnt(0) lgkmcnt(0)
    s_barrier                               ; #7
    s_cmp_ge_u32 s3, 5
    s_cbranch_scc1 L_MERGED
    ds_read_b128 v[24:27], v5 offset:{L_SLOT}
    ds_read_b128 v[28:31], v5 offset:{L_SLOT+128}
    ds_read_b128 v[32:35], v5 offset:{L_SLOT+256}
    ds_read_b128 v[36:39], v5 offset:{L_SLOT+384}
    ds_read_b128 v[40:43], v4
    ds_read_b128 v[44:47], v4 offset:16
    v_add_u32 v5, {SLOT_STR}, v5
    s_mov_b32 s36, 1
L_MERGE:
    v_cmp_lt_u32 vcc, s36, v7
    s_nop 1
    s_cmp_eq_u64 vcc, 0
    s_cbranch_scc1 L_MERGE_END
    s_mov_b64 exec, vcc
    ds_read_b128 v[8:11], v5 offset:{L_SLOT}
    ds_read_b128 v[12:15], v5 offset:{L_SLOT+128}
    ds_read_b128 v[16:19], v5 offset:{L_SLOT+256}
    ds_read_b128 v[20:23], v5 offset:{L_SLOT+384}
    v_add_u32 v5, {SLOT_STR}, v5
    s_add_u32 s36, s36, 1
    s_waitcnt lgkmcnt(0)""")
    for r in range(8):
        a(f"    v_pk_add_f32 v[{24+2*r}:{25+2*r}], v[{24+2*r}:{25+2*r}], v[{8+2*r}:{9+2*r}]")
    a(f"""    s_mov_b64 exec, -1
    s_branch L_MERGE
L_MERGE_END:
    s_waitcnt lgkmcnt(0)
    s_or_b32 s36, s{S_RB}, s{S_MORE}
    s_cmp_eq_u32 s36, 0
    s_cbranch_scc1 L_MERGED
    s_mul_i32 s36, s2, {320*64}
    s_add_u32 s36, s36, {TOT_OFF}
    v_lshl_add_u32 v48, v0, 6, s36
    s_cmp_eq_u32 s{S_RB}, 0
    s_cbranch_scc1 L_NOPREV""")
    for r in range(4):
        a(f"    global_load_dwordx4 v[{8+4*r}:{11+4*r}], v48, s[26:27] offset:{16*r} sc1")
    a("    s_waitcnt vmcnt(0)")
    for r in range(8):
        a(f"    v_pk_add_f32 v[{24+2*r}:{25+2*r}], v[{24+2*r}:{25+2*r}], v[{8+2*r}:{9+2*r}]")
    a(f"""L_NOPREV:
    s_cmp_eq_u32 s{S_MORE}, 0
    s_cbranch_scc1 L_MERGED""")
    for r in range(4):
        a(f"    global_store_dwordx4 v48, v[{24+4*r}:{27+4*r}], s[26:27] offset:{16*r} sc1")
    a(f"""    s_waitcnt vmcnt(0)
L_MERGED:
    s_cmp_eq_u32 s{S_MORE}, 0
    s_cbranch_scc1 L_EPI
    s_add_u32 s{S_RB}, s{S_RB}, 32
    s_cmp_lg_u32 s3, 0
    s_cbranch_scc1 L_NOCLR
    v_mov_b32 v9, 0
    v_lshlrev_b32 v10, 2, v{VL}
    ds_write_b32 v10, v9 offset:{L_CNT}
    v_mov_b32 v10, {L_FLAG}
    ds_write_b32 v10, v9
L_NOCLR:""")
    gran_addr(a)
    a(f"""    s_lshl_b32 s30, s3, 8
    s_add_u32 s30, s30, {GF_OFF}
    v_lshl_add_u32 v{VGF}, v{VI}, 4, s30
    v_mov_b32 v{VONE}, 1
    v_lshlrev_b32 v{VCA}, 2, v{VL}""")
    for j in range(4):
        a(f"    global_load_dwordx4 v[{GR(j)}:{GR(j)+3}], v2, s[26:27] offset:{128*j} sc1")
    a(f"""    s_waitcnt vmcnt(0) lgkmcnt(0)
    s_barrier
    s_branch L_ROUND
L_EPI:
    s_cmp_ge_u32 s3, 5
    s_cbranch_scc1 L_FIN
    s_mov_b32 s36, {EPS60:#x}               ; 1e-6 * 2^60""")
    nreg = [24 + c // 2 + 4 * (c % 2) for c in range(8)]
    dreg = [x + 8 for x in nreg]
    for c in range(8):
        a(f"    v_add_f32 v{dreg[c]}, s36, v{dreg[c]}")
        a(f"    v_rcp_f32 v{dreg[c]}, v{dreg[c]}")
    for c in range(8):
        xr = XR + c // 2
        if c % 2 == 0:
            a(f"    v_lshlrev_b32 v{8+c}, 16, v{xr}")
        else:
            a(f"    v_and_b32 v{8+c}, 0xffff0000, v{xr}")
    for c in range(8):
        a(f"    v_fma_f32 v{40+c}, v{nreg[c]}, v{dreg[c]}, v{40+c}")
    for c in range(8):
        a(f"    v_cmp_lt_f32 s[{48+2*c}:{49+2*c}], 0, v{40+c}")
        a(f"    v_mul_f32 v{16+c}, 0, v{40+c}")
    for c in range(8):
        a(f"    v_cndmask_b32 v{40+c}, v{16+c}, v{40+c}, s[{48+2*c}:{49+2*c}]")
    for c in range(8):
        a(f"    v_add_f32 v{40+c}, v{8+c}, v{40+c}")
    for c in range(4):
        a(f"    v_cvt_pk_bf16_f32 v{16+c}, v{40+2*c}, v{41+2*c}")
    a(f"""    v_lshlrev_b32 v4, 4, v0
    s_mul_i32 s36, s2, {NPB*128}
    v_add_u32 v4, s36, v4
    global_store_dwordx4 v4, v[16:19], s[22:23] {opt.ostore}
    s_or_b32 s36, s2, s3
    s_cmp_lg_u32 s36, 0
    s_cbranch_scc1 L_FIN
    v_mov_b32 v4, {GEN_OFF}
    v_mov_b32 v6, s{S_TAG}
    v_mov_b32 v7, s{S_TAG+1}
    s_mov_b64 exec, 1
    global_store_dwordx2 v4, v[6:7], s[26:27] sc1
L_FIN:""")
    stamp_flush(a)
    a("""L_END:
    s_endpgm
L_CODE_END:
""")

HEADER = """; GatedGCN edge-featured MPNN layer, one launch, one workgroup per 40 destination nodes.
"""

def main():
    global PROF
    ap = argparse.ArgumentParser()
    ap.add_argument("-o", default="standalone__edge_featured_mpnn_gatedgcn__graph.s")
    ap.add_argument("--store", default="sc1")
    ap.add_argument("--hload", default="sc1")
    ap.add_argument("--gload", default="")
    ap.add_argument("--touch", type=int, default=1)
    ap.add_argument("--stage3", type=int, default=0)
    ap.add_argument("--ipf", type=int, default=0)
    ap.add_argument("--gearly", type=int, default=0)
    ap.add_argument("--otouch", type=int, default=0)
    ap.add_argument("--onewait", type=int, default=0)
    ap.add_argument("--wsbase", type=lambda x: int(x, 0), default=0)
    ap.add_argument("--wlate", type=int, default=0)
    ap.add_argument("--rec", type=int, default=12)
    ap.add_argument("--ostore", default="sc1")
    ap.add_argument("--prio", type=int, default=1)
    ap.add_argument("--pth", type=int, nargs=3, default=[16, 8, 4])
    ap.add_argument("--gs", type=int, default=33152)
    ap.add_argument("--cstr", type=int, default=30848)
    ap.add_argument("--sleep", type=int, default=2)
    ap.add_argument("--prof", action="store_true")
    ap.add_argument("--dbg", action="store_true")
    opt = ap.parse_args()
    PROF = opt.prof or opt.dbg
    global GS, CSTR
    GS = opt.gs
    CSTR = opt.cstr
    assert 32 * GS <= REC_OFF - GRAN_OFF and opt.rec == 12 and REC_OFF + 265 * CSTR <= TOT_OFF
    global DBG
    DBG = opt.dbg
    a = Asm()
    a(HEADER.rstrip())
    a(f"; @launch grid=({NB},1,1) block=(1024,1,1) lds={L_END}")
    a('.amdgcn_target "amdgcn-amd-amdhsa--gfx950"')
    a(".text")
    entry(a, opt)
    phase_a_bin(a, opt)
    phase_a_table(a, opt)
    phase_b(a, opt)
    a(f""".section .rodata,"a"
.p2align 6
.amdhsa_kernel {KNAME}
  .amdhsa_next_free_vgpr 128
  .amdhsa_next_free_sgpr {98 if PROF else 96}
  .amdhsa_accum_offset 128
  .amdhsa_group_segment_fixed_size 0
  .amdhsa_kernarg_size 96
  .amdhsa_user_sgpr_count 2
  .amdhsa_user_sgpr_kernarg_segment_ptr 1
  .amdhsa_system_sgpr_workgroup_id_x 1
  .amdhsa_float_denorm_mode_32 3
  .amdhsa_dx10_clamp 0
.end_amdhsa_kernel""")
    open(opt.o, "w").write(a.text())
    print("wrote", opt.o, "lds", L_END)

if __name__ == "__main__":
    main()
```

```python
import argparse, struct

KNAME = "standalone__edge_featured_mpnn_gatedgcn__graph_kernel"
N, D, E = 10000, 64, 640000
NB, NPB = 250, 40
CH = 2560
GEN_OFF, G_OFF, GF_OFF, GRAN_OFF, REC_OFF, TOT_OFF = 0, 0x1000, 0x274000, 0x280000, 0x3A0000, 0xD80000
CSTR = 31232
GS = 32768
PROF_OFF = 0x1300000
NLOG2E = 0xBFB8AA3B
BIG, NBIG = 0x71800000, 0xF1800000
SHIFT = 60
C60 = (127 - SHIFT) << 23
EPS60 = struct.unpack("<I", struct.pack("<f", 1e-6 * 2.0 ** SHIFT))[0]
FSHIFT = struct.unpack("<I", struct.pack("<f", -float(SHIFT)))[0]
NWV = 16
POLL_LIMIT = 1 << 20
CHN = [0, 2, 1, 3]

SLOT_STR = 512
L_SLOT = 0
L_CNT = L_SLOT + (NPB + NWV) * SLOT_STR
L_ZREG = L_CNT + 256
L_FLAG = L_ZREG + 512
L_GCNT = L_FLAG + 4
L_ZEND = L_FLAG + 16
L_WCB = 29504
L_AP = 30080
L_U = L_AP + 48 * 272
L_SRC = L_U + 48 * 272
NSLOT = 250 * 32 + 320 + 64
L_E = L_SRC + NSLOT * 4
L_END = L_E + NSLOT * 8
A_HIST = L_SRC
A_OFFS = A_HIST + 1024
A_REC = A_OFFS + 1024
A_W = A_REC + CH * 16
WIMG = 64 * 144
A_X = A_W + 4 * WIMG
A_G = A_X + 48 * 144
assert A_G + 48 * 272 <= L_END <= 163840
assert all(x % 16 == 0 for x in (L_WCB, L_AP, L_U, L_SRC, L_E, A_REC, A_W, A_X, A_G))

SLA, TMP, INCE, APA = 88, 89, 90, 91
IDXA, IDXB = 92, 94
AC, A0, A1, ANX = 96, 100, 104, 108
XR = 112
QEND, QST = 116, 117
WC = 118
EB, EM, SRB, SLB = 120, 121, 122, 123
VPROF = 124
VI, VQ, VL = 125, 126, 127
S_TAG = 28
S_REC = 40
S_G = 44
M0, M1 = 48, 56
S_INV = 64
S_RB, S_MORE, S_P, S_TS, S_TE, S_N, S_SEGEND, S_REM = 68, 69, 70, 71, 72, 73, 74, 75
S_BLK, S_TAG8 = 76, 77
S_C60 = 78
P0M, P1M = 80, 88

class Asm:
    def __init__(self): self.l = []
    def __call__(self, s=""):
        self.l.extend(s.split("\n"))
    def text(self): return "\n".join(self.l) + "\n"

PROF = False
def stamp(a, idx):
    if PROF:
        a(f"    s_memrealtime s[96:97]")
        a(f"    s_waitcnt lgkmcnt(0)")
        a(f"    v_writelane_b32 v{VPROF}, s96, {idx}")

def cstamp(a, idx):
    if PROF:
        a(f"    s_memtime s[96:97]")
        a(f"    s_waitcnt lgkmcnt(0)")
        a(f"    v_writelane_b32 v{VPROF}, s96, {idx}")

DBG = False
def stamp_flush(a):
    if not PROF: return
    stamp(a, 9)
    if DBG:
        a(f"""    s_waitcnt vmcnt(0) lgkmcnt(0)
    v_readlane_b32 s30, v{VPROF}, 0
    v_readlane_b32 s31, v{VPROF}, 10
    v_readlane_b32 s32, v{VPROF}, 11
    v_readlane_b32 s33, v{VPROF}, 4
    v_readlane_b32 s34, v{VPROF}, 5
    v_readlane_b32 s35, v{VPROF}, 6
    s_nop 3
    s_not_b32 s30, s30
    s_sub_u32 s32, s32, s31
    s_cmp_lt_u32 s3, 10
    s_cselect_b32 s33, s33, 0
    s_cselect_b32 s34, s34, 0
    s_cselect_b32 s35, s35, 0
    v_writelane_b32 v{VPROF}, s30, 0
    v_writelane_b32 v{VPROF}, s32, 10
    v_writelane_b32 v{VPROF}, s33, 11
    v_writelane_b32 v{VPROF}, s34, 12
    v_writelane_b32 v{VPROF}, s35, 13
    s_mov_b64 exec, 0xffff
    v_lshlrev_b32 v2, 2, v{VL}
    global_atomic_umax v2, v{VPROF}, s[24:25]
    s_waitcnt vmcnt(0)""")
        return
    a(f"""    s_waitcnt vmcnt(0) lgkmcnt(0)
    s_mov_b64 exec, 0xffff
    s_lshl_b32 s30, s2, 4
    s_add_u32 s30, s30, s3
    s_lshl_b32 s30, s30, 6
    s_add_u32 s30, s30, {PROF_OFF}
    v_lshl_add_u32 v2, v{VL}, 2, s30
    global_store_dword v2, v{VPROF}, s[26:27]
    s_waitcnt vmcnt(0)""")

def dpp_scan(a, v):
    for sh in (1, 2, 4, 8):
        a(f"    s_nop 1")
        a(f"    v_add_u32_dpp v{v}, v{v}, v{v} row_shr:{sh} row_mask:0xf bank_mask:0xf bound_ctrl:0")
    a("    s_nop 1")
    a(f"    v_add_u32_dpp v{v}, v{v}, v{v} row_bcast:15 row_mask:0xa bank_mask:0xf")
    a("    s_nop 1")
    a(f"    v_add_u32_dpp v{v}, v{v}, v{v} row_bcast:31 row_mask:0xc bank_mask:0xf")
    a("    s_nop 1")

def entry(a, opt):
    a(f"""
.globl {KNAME}
.p2align 8
.type {KNAME},@function
{KNAME}:
    s_cmp_ge_u32 s2, {NB}
    s_cbranch_scc1 L_END
    s_load_dwordx16 s[4:19], s[0:1], 0
    s_load_dwordx8 s[20:27], s[0:1], 64
    v_lshrrev_b32 v1, 6, v0
    v_and_b32 v{VL}, 63, v0
    v_readfirstlane_b32 s3, v1
    v_lshrrev_b32 v{VQ}, 4, v{VL}
    v_and_b32 v{VI}, 15, v{VL}
    v_lshlrev_b32 v{IDXA+1}, 4, v{VI}
    v_mov_b32 v{IDXB+1}, v{IDXA+1}
    v_and_b32 v2, 3, v{VI}                  ; r
    v_lshrrev_b32 v3, 2, v{VI}              ; e
    v_cmp_eq_u32 vcc, v2, v{VQ}
    v_lshlrev_b32 v4, 3, v3
    v_add_u32 v4, {L_E}, v4
    v_mov_b32 v5, {L_ZREG}
    v_cndmask_b32 v{EB}, v5, v4, vcc
    v_mov_b32 v5, 32
    v_cndmask_b32 v{EM}, 0, v5, vcc
    v_lshlrev_b32 v{INCE}, 3, v{EM}
    v_cmp_eq_u32 vcc, v3, v{VQ}
    v_mov_b32 v5, 0x3f80
    v_lshrrev_b32 v6, 1, v2
    v_lshlrev_b32 v6, 4, v6
    v_lshlrev_b32 v5, v6, v5
    v_cndmask_b32 v5, 0, v5, vcc
    v_and_b32 v6, 1, v2                     ; r%2: 0 -> first register, 1 -> second
    v_cmp_eq_u32 vcc, 0, v6
    v_lshlrev_b32 v{APA}, 4, v{VI}
    v_add_u32 v{APA}, {L_AP}, v{APA}
    v_cndmask_b32 v{A0+2}, 0, v5, vcc
    v_cndmask_b32 v{A0+3}, v5, 0, vcc
    v_mov_b32 v{A1+2}, v{A0+2}
    v_mov_b32 v{A1+3}, v{A0+3}
    v_lshlrev_b32 v{SLB}, 3, v{VL}
    v_lshlrev_b32 v{SRB}, 2, v{VQ}
    v_add_u32 v{SRB}, {L_SRC}, v{SRB}
    s_mov_b32 s{S_RB}, 0
    s_mov_b32 s{S_C60}, {C60:#x}
    s_mov_b32 s{S_C60+1}, {C60:#x}
    s_cmp_eq_u32 s3, 15
    s_cselect_b32 s{S_INV+1}, 0xffff0000, 0
    s_cselect_b32 s{S_INV+3}, -1, 0
    s_mov_b32 s{S_INV}, 0
    s_mov_b32 s{S_INV+2}, 0""")
    if PROF:
        a(f"    v_mov_b32 v{VPROF}, 0")
    stamp(a, 0)
    a(f"""    s_cmp_ge_u32 s3, 10
    s_cbranch_scc1 L_TABLE""")

def gran_addr(a, dst=2):
    a(f"""    s_and_b32 s30, s2, 7
    s_lshl_b32 s30, s30, 5
    s_lshr_b32 s31, s2, 3
    s_or_b32 s31, s30, s31                  ; h
    s_lshr_b32 s30, s31, 3
    s_mul_i32 s30, s30, {GS}
    s_and_b32 s31, s31, 7
    s_lshl_b32 s31, s31, 4
    s_add_u32 s30, s30, s31
    s_lshl_b32 s31, s3, 11
    s_add_u32 s30, s30, s31
    s_add_u32 s30, s30, {GRAN_OFF}
    v_lshl_add_u32 v{dst}, v{VQ}, 9, s30""")

VGA, VGF, VONE, VCA = 96, 97, 98, 99

def late_setup(a, opt):
    a(f"""    s_add_u32 s{S_REC}, s26, {REC_OFF}
    s_addc_u32 s{S_REC+1}, s27, 0
    s_mov_b32 s{S_REC+2}, {NB*CSTR}
    s_mov_b32 s{S_REC+3}, 0x20000
    s_add_u32 s{S_G}, s26, {G_OFF}
    s_addc_u32 s{S_G+1}, s27, 0
    s_or_b32 s{S_G+1}, s{S_G+1}, 0x01000000  ; stride 256
    s_mov_b32 s{S_G+2}, {N+1}
    s_mov_b32 s{S_G+3}, 0x20000""")
    gran_addr(a, VGA)
    a(f"""    s_lshl_b32 s30, s3, 8
    s_add_u32 s30, s30, {GF_OFF}
    v_lshl_add_u32 v{VGF}, v{VI}, 4, s30
    v_mov_b32 v{VONE}, 1
    v_lshlrev_b32 v{VCA}, 2, v{VL}""")

def phase_a_bin(a, opt):
    st = opt.store
    QR = lambda j: 16 + 4 * j
    a(f"""    ; ================= phase A, binning waves (tid < 640)
    s_mul_i32 s30, s2, {CH*4}
    v_lshlrev_b32 v2, 4, v0
    v_add_u32 v3, s30, v2
    s_lshl_b32 s31, s30, 1
    v_lshlrev_b32 v4, 5, v0
    v_add_u32 v4, s31, v4
    s_mul_i32 s32, s2, {NPB*128}
    v_add_u32 v64, s32, v2
    v_mov_b32 v6, 0
    v_lshlrev_b32 v7, 2, v0
    s_waitcnt lgkmcnt(0)""")
    if opt.wsbase:
        a(f"    s_add_u32 s26, s26, {opt.wsbase}")
        a(f"    s_addc_u32 s27, s27, 0")
    stamp(a, 1)
    a(f"""    global_load_dwordx4 v[8:11], v3, s[10:11]
    s_load_dwordx2 s[{S_TAG}:{S_TAG+1}], s[26:27], {GEN_OFF}
    s_cmp_ge_u32 s3, 4
    s_cbranch_scc1 L_NOZH
    ds_write_b32 v7, v6 offset:{A_HIST}
L_NOZH:
    s_cmp_lg_u32 s3, 4
    s_cbranch_scc1 L_NOZC
    v_mov_b32 v32, 0
    v_mov_b32 v33, 0
    v_mov_b32 v34, 0
    v_mov_b32 v35, 0
    v_lshlrev_b32 v36, 4, v{VL}
    v_cmp_gt_u32 vcc, {(L_ZEND-L_CNT)//16}, v{VL}
    s_and_saveexec_b64 s[34:35], vcc
    ds_write_b128 v36, v[32:35] offset:{L_CNT}
    s_mov_b64 exec, s[34:35]
L_NOZC:""")
    late_setup(a, opt)
    a(f"""    ; addresses of the copy-out and of the run table entry (bucket slot h = 64*wave + lane, waves 0..3)
    s_mul_i32 s36, s2, {CSTR}
    s_mov_b32 s38, {A_REC}
    v_lshl_add_u32 v56, v0, 4, s38
    v_mad_u32_u24 v57, v0, {opt.rec}, s36
    v_add_u32 v58, {640*opt.rec}, v57
    v_add_u32 v59, {2*640*opt.rec}, v57
    v_add_u32 v60, {3*640*opt.rec}, v57
    s_and_b32 s37, s3, 3
    s_lshl_b32 s30, s37, 8
    v_lshl_add_u32 v61, v{VL}, 2, s30       ; 4*h
    s_mul_i32 s37, s37, {8*GS}
    s_lshl_b32 s30, s2, 7
    s_add_u32 s37, s37, s30
    s_add_u32 s37, s37, {GRAN_OFF}
    v_lshrrev_b32 v62, 3, v{VL}
    v_mul_u32_u24 v62, {GS}, v62
    v_add_u32 v62, s37, v62
    v_and_b32 v63, 7, v{VL}
    v_lshl_add_u32 v62, v63, 4, v62
    v_lshlrev_b32 v63, 4, v{VL}
    s_mov_b32 s33, 52429
    s_movk_i32 s34, 0xffd8                  ; -40
    s_movk_i32 s37, 0xfc04                  ; -1020
    global_load_dwordx4 v[12:15], v3, s[8:9]
    global_load_dwordx4 v[16:19], v4, s[6:7]
    global_load_dwordx4 v[24:27], v4, s[6:7] offset:16
    s_waitcnt lgkmcnt(0)
    s_add_u32 s{S_TAG}, s{S_TAG}, 1
    s_addc_u32 s{S_TAG+1}, s{S_TAG+1}, 0
    v_mov_b32 v53, s{S_TAG}
    v_mov_b32 v54, s{S_TAG+1}
    v_mov_b32 v55, s{S_TAG}
    s_barrier                               ; #1
    s_waitcnt vmcnt(3)""")
    stamp(a, 2)
    for j in range(4):
        a(f"    v_mul_u32_u24 v{40+j}, s33, v{8+j}")
        a(f"    v_lshrrev_b32 v{32+j}, 21, v{40+j}          ; bucket b")
        a(f"    v_lshrrev_b32 v{40+j}, 24, v{40+j}          ; b / 8")
        a(f"    v_mad_i32_i24 v{8+j}, v{32+j}, s34, v{8+j}")
        a(f"    v_lshlrev_b32 v{32+j}, 7, v{32+j}")
        a(f"    v_mad_i32_i24 v{32+j}, v{40+j}, s37, v{32+j}  ; 4 * ((b % 8) * 32 + b / 8): buckets of one die are adjacent")
        a(f"    ds_add_rtn_u32 v{36+j}, v{32+j}, v{VONE} offset:{A_HIST}")
    for j in range(4):
        a(f"    v_lshlrev_b32 v{8+j}, 2, v{8+j}")
    a(f"""    s_waitcnt lgkmcnt(0)
    s_barrier                               ; #2
    ds_read_b128 v[40:43], v63 offset:{A_HIST}
    s_waitcnt lgkmcnt(0)
    v_add_u32 v44, v40, v41
    v_add_u32 v45, v44, v42
    v_add_u32 v46, v45, v43
    v_mov_b32 v47, v46""")
    dpp_scan(a, 47)
    a(f"""    v_sub_u32 v48, v47, v46
    v_add_u32 v49, v48, v40
    v_add_u32 v50, v48, v44
    v_add_u32 v51, v48, v45
    ds_write_b128 v63, v[48:51] offset:{A_OFFS}
    s_waitcnt vmcnt(0)""")
    for j in range(4):
        a(f"    v_lshl_or_b32 v{12+j}, v{12+j}, 8, v{8+j}")
    a("    v_pk_mov_b32 v[20:21], v[18:19], v[18:19] op_sel:[0,1]")
    a("    v_pk_mov_b32 v[28:29], v[26:27], v[26:27] op_sel:[0,1]")
    for j in range(4):
        a(f"    v_mov_b32 v{QR(j)+2}, v{12+j}")
        if opt.rec == 16:
            a(f"    v_bitop3_b32 v{QR(j)+3}, v{QR(j)}, v{12+j}, s{S_TAG} bitop3:0x96")
    a("    s_waitcnt lgkmcnt(0)")
    for j in range(4):
        a(f"    ds_read_b32 v{44+j}, v{32+j} offset:{A_OFFS}")
    a(f"""    ds_read_b32 v52, v61 offset:{A_OFFS}
    ds_read_b32 v48, v61 offset:{A_HIST}
    s_waitcnt lgkmcnt(2)""")
    for j in range(4):
        a(f"    v_add_u32 v{44+j}, v{44+j}, v{36+j}")
        a(f"    v_lshl_add_u32 v{44+j}, v{44+j}, 4, s38")
        a(f"    ds_write_b128 v{44+j}, v[{QR(j)}:{QR(j)+3}]")
    a(f"""    s_add_u32 s30, s26, {REC_OFF}
    s_addc_u32 s31, s27, 0
    s_waitcnt lgkmcnt(0)
    s_barrier                               ; #3""")
    stamp(a, 3)
    if opt.rec == 16:
        for j in range(4):
            a(f"    ds_read_b128 v[{32+4*j}:{35+4*j}], v56 offset:{j*10240}")
    else:
        for j in range(4):
            a(f"    ds_read_b96 v[{32+4*j}:{34+4*j}], v56 offset:{j*10240}")
    a(f"""    v_lshl_or_b32 v52, v48, 20, v52""")
    for j in range(4):
        a(f"    s_waitcnt lgkmcnt({3-j})")
        if opt.rec == 16:
            a(f"    global_store_dwordx4 v{57+j}, v[{32+4*j}:{35+4*j}], s[30:31] {st}")
        else:
            a(f"    global_store_dwordx3 v{57+j}, v[{32+4*j}:{34+4*j}], s[30:31] {st}")
    a(f"""    s_cmp_ge_u32 s3, 5
    s_cbranch_scc1 L_NOXR
    global_load_dwordx4 v[{XR}:{XR+3}], v64, s[4:5]
""" + (f"    global_load_dword v{TMP}, v64, s[22:23]    ; touches the output page early\n" if opt.otouch else "") + "L_NOXR:")
    if opt.rec == 12:
        a("    s_waitcnt vmcnt(0)")
    a(f"""    s_barrier                               ; #4
    s_cmp_ge_u32 s3, 4
    s_cbranch_scc1 L_PHASEB
    global_store_dwordx4 v62, v[52:55], s[26:27] {st}
    s_branch L_PHASEB""")

def tile_mfma(a, acc0, wreg, xreg):
    for mat in range(2):
        acc = acc0 + 4 * mat
        r0, r1 = wreg + mat * 8, wreg + mat * 8 + 4
        a(f"    v_mfma_f32_16x16x32_bf16 v[{acc}:{acc+3}], v[{r0}:{r0+3}], v[{xreg}:{xreg+3}], 0")
        a(f"    v_mfma_f32_16x16x32_bf16 v[{acc}:{acc+3}], v[{r1}:{r1+3}], v[{xreg+4}:{xreg+7}], v[{acc}:{acc+3}]")

def phase_a_table(a, opt):
    st = opt.store
    wp = [14, 20, 12, 18]
    a(f"""L_TABLE:
    s_sub_u32 s36, s3, 10                   ; u""")
    if opt.ipf:
        a(f"""    ; the table waves are idle here: they pull the kernel's own code into the cache (2 KB per wave)
    s_getpc_b64 s[30:31]
L_PC:
    s_sub_u32 s30, s30, L_PC-{KNAME}
    s_subb_u32 s31, s31, 0
    s_lshl_b32 s32, s36, 11
    v_lshl_add_u32 v80, v{VL}, 4, s32
    v_add_u32 v81, 1024, v80
    s_mov_b32 s33, L_CODE_END-{KNAME}
    v_cmp_gt_u32 vcc, s33, v80
    v_cmp_gt_u32 s[34:35], s33, v81
    s_mov_b64 exec, vcc
    s_cbranch_execz L_NOPF0
    global_load_dword v82, v80, s[30:31]
L_NOPF0:
    s_mov_b64 exec, s[34:35]
    s_cbranch_execz L_NOPF1
    global_load_dword v83, v81, s[30:31]
L_NOPF1:
    s_mov_b64 exec, -1""")
    a(f"""    s_and_b32 s37, s36, 1
    s_add_u32 s38, s37, 6
    v_lshlrev_b32 v2, 4, v{VL}
    s_lshl_b32 s30, s36, 10
    v_add_u32 v3, s30, v2                   ; piece u
    s_lshl_b32 s31, s38, 10
    v_add_u32 v4, s31, v2                   ; piece 6/7
    s_mul_i32 s32, s2, {NPB*128}
    v_add_u32 v5, s32, v3                   ; x offset
    v_lshrrev_b32 v6, 3, v{VL}
    v_mul_u32_u24 v6, 144, v6
    v_and_b32 v7, 7, v{VL}
    v_lshl_add_u32 v6, v7, 4, v6
    s_mul_i32 s33, s36, {8*144}
    s_add_u32 s33, s33, {A_W}
    v_add_u32 v48, s33, v6
    s_mul_i32 s33, s38, {8*144}
    s_add_u32 s33, s33, {A_W}
    v_add_u32 v49, s33, v6
    v_lshrrev_b32 v50, 1, v{VQ}
    v_and_b32 v51, 1, v{VQ}
    v_lshl_or_b32 v50, v51, 1, v50
    v_lshl_add_u32 v50, v{VI}, 2, v50
    v_lshlrev_b32 v50, 1, v50
    s_waitcnt lgkmcnt(0)""")
    if opt.wsbase:
        a(f"    s_add_u32 s26, s26, {opt.wsbase}")
        a(f"    s_addc_u32 s27, s27, 0")
    a(f"""    s_load_dwordx2 s[{S_TAG}:{S_TAG+1}], s[26:27], {GEN_OFF}""")
    if opt.touch:
        a(f"""    ; first access to the workspace pages written later (address translation only; the values are not used)
    v_mul_u32_u24 v45, {64*CSTR}, v{VL}
    v_add_u32 v45, {REC_OFF + 8*CSTR + CH*12 - 64*CSTR}, v45
    v_mov_b32 v46, 0x800
    v_cmp_eq_u32 vcc, 0, v{VL}
    s_nop 1
    v_cndmask_b32 v45, v45, v46, vcc
    s_mov_b64 exec, 0x3f
    global_load_dword v84, v45, s[26:27] sc1
    s_mov_b64 exec, -1""")
        if opt.touch > 1:
            a(f"""    s_mul_i32 s30, s2, {NPB*128}
    v_mov_b32 v46, s30
    s_mov_b64 exec, 1
    global_load_dword v85, v46, s[22:23] sc1
    s_mov_b64 exec, -1""")
    stamp(a, 1)
    late_setup(a, opt)
    if opt.wlate >= 0:
        a("    s_barrier")
    if opt.wlate > 0:
        a("    s_barrier                               ; #2")
    for m in range(4):
        a(f"    global_load_dwordx4 v[{8+8*m}:{11+8*m}], v3, s[{wp[m]}:{wp[m]+1}]")
        a(f"    global_load_dwordx4 v[{12+8*m}:{15+8*m}], v4, s[{wp[m]}:{wp[m]+1}]")
    a(f"""    s_cmp_eq_u32 s36, 5
    s_cbranch_scc1 L_TWC0
    global_load_dwordx4 v[40:43], v5, s[4:5]
    s_branch L_TB
L_TWC0:
    global_load_ushort v40, v50, s[16:17]
    global_load_ushort v41, v50, s[16:17] offset:128
    global_load_ushort v42, v50, s[16:17] offset:256
    global_load_ushort v43, v50, s[16:17] offset:384
L_TB:""")
    if opt.wlate < 0:
        a("    s_waitcnt lgkmcnt(0)")
        a("    s_barrier                               ; #1")
    if opt.wlate <= 0:
        a("    s_barrier                               ; #2")
    if not opt.stage3:
        a("    s_barrier                               ; #3")
    a(f"""    s_cmp_eq_u32 s36, 5
    s_cbranch_scc1 L_TWC
    s_waitcnt vmcnt(0)
    ds_write_b128 v48, v[40:43] offset:{A_X - A_W}
    s_branch L_TST
L_TWC:
    s_mov_b32 s33, {NLOG2E:#x}
    v_lshlrev_b32 v44, 3, v{VL}
    s_waitcnt vmcnt(0)
    v_lshlrev_b32 v40, 16, v40
    v_lshlrev_b32 v41, 16, v41
    v_lshlrev_b32 v42, 16, v42
    v_lshlrev_b32 v43, 16, v43
    v_mul_f32 v40, s33, v40
    v_mul_f32 v41, s33, v41
    v_mul_f32 v42, s33, v42
    v_mul_f32 v43, s33, v43
    v_cvt_pk_bf16_f32 v40, v40, v41
    v_cvt_pk_bf16_f32 v41, v42, v43
    ds_write_b64 v44, v[40:41] offset:{L_WCB}
L_TST:""")
    for m in range(4):
        a(f"    ds_write_b128 v48, v[{8+8*m}:{11+8*m}] offset:{m*WIMG}")
        a(f"    ds_write_b128 v49, v[{12+8*m}:{15+8*m}] offset:{m*WIMG}")
    a(f"""    ; tile job: nt = u/2, mt in {{2*(u%2), 2*(u%2)+1}}
    s_lshr_b32 s30, s36, 1                  ; nt
    s_lshl_b32 s31, s37, 1                  ; mt0
    s_lshl_b32 s32, s30, 4
    v_add_u32 v4, s32, v{VI}                ; node
    v_mul_u32_u24 v5, 144, v4
    v_lshl_add_u32 v5, v{VQ}, 4, v5
    v_add_u32 v5, {A_X}, v5
    v_lshrrev_b32 v6, 2, v{VI}
    v_lshl_add_u32 v6, v{VQ}, 3, v6
    v_mul_u32_u24 v6, 144, v6
    v_and_b32 v7, 3, v{VI}
    v_lshl_add_u32 v6, v7, 3, v6
    s_lshl_b32 s32, s31, 5
    s_add_u32 s32, s32, {A_W}
    v_add_u32 v6, s32, v6
    v_mul_u32_u24 v7, 272, v4
    v_lshl_add_u32 v50, v{VQ}, 4, v7
    s_lshl_b32 s32, s31, 6
    v_add_u32 v50, s32, v50
    v_add_u32 v51, {L_AP}, v50
    v_add_u32 v53, {L_U}, v50
    s_waitcnt lgkmcnt(0)
    s_add_u32 s{S_TAG}, s{S_TAG}, 1
    s_addc_u32 s{S_TAG+1}, s{S_TAG+1}, 0
""")
    if opt.stage3:
        a("    s_barrier                               ; #3")
    else:
        a(f"""    ; the six table waves synchronise among themselves through an LDS counter (staging complete)
    v_mov_b32 v54, {L_GCNT+4}
    v_mov_b32 v55, 1
    s_mov_b64 exec, 1
    ds_add_u32 v54, v55
    s_mov_b64 exec, -1
    s_mov_b32 s33, 0
L_TSYNC:
    ds_read_b32 v55, v54
    s_add_u32 s33, s33, 1
    s_cmp_ge_u32 s33, {POLL_LIMIT}
    s_cbranch_scc1 L_END
    s_waitcnt lgkmcnt(0)
    v_readfirstlane_b32 s30, v55
    s_nop 3
    s_cmp_lt_u32 s30, 6
    s_cbranch_scc1 L_TSYNC
""")
    a(f"""    ds_read_b128 v[8:11], v5
    ds_read_b128 v[12:15], v5 offset:64""")
    def wfrags(first):
        for m in range(2):
            for mat in range(2):
                for ks in range(2):
                    r = 16 + m * 16 + mat * 8 + ks * 4
                    for h in range(2):
                        a(f"    ds_read_b64_tr_b16 v[{r+2*h}:{r+2*h+1}], v6 offset:{(first+mat)*WIMG + ks*4608 + h*576 + m*32}")
    wfrags(0)
    a(f"""    ; table row address of this lane: (40 w + node)*256 + (16 mt0 + 4 g)*4 ; rows >= 40 of the tile are not stored
    s_mul_i32 s31, s2, {NPB*256}
    s_add_u32 s31, s31, {G_OFF}
    v_lshlrev_b32 v55, 8, v4
    v_add_u32 v55, s31, v55
    v_lshl_add_u32 v55, v{VQ}, 4, v55
    s_and_b32 s30, s36, 1
    s_lshl_b32 s30, s30, 7
    v_add_u32 v55, s30, v55
    v_cmp_gt_u32 s[34:35], {NPB}, v4
    s_mov_b32 s32, {NLOG2E:#x}
    s_mov_b32 s33, {BIG:#x}
    v_mov_b32 v54, {NBIG:#x}
    s_waitcnt lgkmcnt(0)""")
    for m in range(2):
        tile_mfma(a, 56 + 8 * m, 16 + 16 * m, 8)
    wfrags(2)
    a("    s_mov_b32 s30, 0x8000")
    for m in range(2):
        accb, accv = 56 + 8 * m, 60 + 8 * m
        o = 72 + 4 * m
        for r in range(4):
            a(f"    v_mul_f32 v{accb+r}, s32, v{accb+r}")
            a(f"    v_med3_f32 v{accb+r}, v{accb+r}, v54, s33")
        a(f"    v_cvt_pk_bf16_f32 v{o}, v{accb}, v{accb+1}")
        a(f"    v_cvt_pk_bf16_f32 v{o+1}, v{accb+2}, v{accb+3}")
        for p in range(2):
            lo, hi = accv + 2 * p, accv + 2 * p + 1
            a(f"    v_cvt_pk_bf16_f32 v80, v{lo}, v{lo}")
            a(f"    v_and_b32 v80, 0xffff, v80")
            a(f"    v_and_b32 v81, 0x7fffffff, v{hi}")
            a(f"    v_and_b32 v{hi}, 0x80000000, v{hi}")
            a(f"    v_sub_u32 v81, v81, v80")
            a(f"    v_add_u32 v81, s30, v81")
            a(f"    v_max_i32 v81, 0, v81")
            a(f"    v_and_b32 v81, 0xffff0000, v81")
            a(f"    v_or3_b32 v{o+2+p}, v81, v80, v{hi}")
    if not opt.gearly:
        a("    s_barrier")
    a(f"""    s_mov_b64 exec, s[34:35]
    global_store_dwordx4 v55, v[72:75], s[26:27] offset:0 {st}
    global_store_dwordx4 v55, v[76:79], s[26:27] offset:64 {st}
    s_mov_b64 exec, -1""")
    a(f"""    ; padding row N of the table (gate saturates, value 0): last workgroup, wave u = 5
    s_cmp_lg_u32 s2, {NB-1}
    s_cbranch_scc1 L_TAU
    s_cmp_lg_u32 s36, 5
    s_cbranch_scc1 L_TAU
    v_mov_b32 v80, 0x71807180
    v_mov_b32 v81, v80
    v_mov_b32 v82, 0
    v_mov_b32 v83, 0
    v_lshlrev_b32 v7, 4, v{VL}
    v_add_u32 v7, {N*256 + G_OFF}, v7
    s_mov_b64 exec, 0xffff
    global_store_dwordx4 v7, v[80:83], s[26:27] {st}
    s_mov_b64 exec, -1
L_TAU:
    s_waitcnt lgkmcnt(0)""")
    for m in range(2):
        tile_mfma(a, 56 + 8 * m, 16 + 16 * m, 8)
    a(f"""    s_mov_b32 s34, {FSHIFT:#x}
    s_nop 6""")
    for m in range(2):
        acca, accu = 56 + 8 * m, 60 + 8 * m
        a(f"    ds_write_b128 v53, v[{accu}:{accu+3}] offset:{m*64}")
        for r in range(4):
            a(f"    v_mul_f32 v{acca+CHN[r]}, s32, v{acca+CHN[r]}")
            a(f"    v_med3_f32 v{acca+CHN[r]}, v{acca+CHN[r]}, v54, s33")
            a(f"    v_add_f32 v{16+r}, s34, v{acca+CHN[r]}")
        a(f"    ds_write_b128 v51, v[16:19] offset:{m*64}")
    if opt.gearly == 2:
        a("    s_barrier                               ; #4")
    a(f"""    ; the table rows of this workgroup are complete: the last table wave publishes the flag
    v_mov_b32 v16, {L_GCNT}
    v_mov_b32 v17, 1
    s_waitcnt vmcnt(0)
    s_mov_b64 exec, 1
    ds_add_rtn_u32 v18, v16, v17
    s_waitcnt lgkmcnt(0)
    v_readfirstlane_b32 s30, v18
    s_mov_b64 exec, -1
    s_cmp_lg_u32 s30, 5
    s_cbranch_scc1 {"L_TB4" if opt.gearly == 1 else "L_PHASEB"}
    s_lshl_b32 s30, s2, 4
    s_add_u32 s30, s30, {GF_OFF}
    v_mov_b32 v16, s30
    v_mov_b32 v18, s{S_TAG}
    v_mov_b32 v19, s{S_TAG+1}
    s_mov_b64 exec, 1
    global_store_dwordx2 v16, v[18:19], s[26:27] {st}
    s_mov_b64 exec, -1""")
    if opt.gearly == 1:
        a("L_TB4:")
        a("    s_barrier                               ; #4")

def phase_b(a, opt):
    GR = lambda j: 8 + 4 * j
    rec = lambda h, j: 24 + 16 * h + 4 * j
    RANK, DL = 56, 64
    msk = lambda h, j: (M0 if h == 0 else M1) + 2 * j
    pnd = lambda h, j: (P0M if h == 0 else P1M) + 2 * j
    inv = lambda j: S_INV + (2 if j >= 2 else 0)
    a("L_PHASEB:")
    stamp(a, 4)
    a(f"""    ; ================= phase B: wait for the run table entries of this bucket
    v_lshlrev_b32 v2, 3, v{VL}
    ds_read_b64 v[{WC}:{WC+1}], v2 offset:{L_WCB}""")
    a(f"""    s_mov_b32 s33, 0
    s_mov_b32 s38, s{S_TAG+1}
    s_mov_b32 s39, s{S_TAG}""")
    for j in range(4):
        a(f"    s_not_b64 s[{pnd(0,j)}:{pnd(0,j)+1}], s[{inv(j)}:{inv(j)+1}]")
    a("L_POLL:")
    for j in range(4):
        p = pnd(0, j)
        a(f"    s_mov_b64 exec, s[{p}:{p+1}]")
        a(f"    s_cbranch_execz L_NP{j}")
        a(f"    global_load_dwordx4 v[{GR(j)}:{GR(j)+3}], v{VGA}, s[26:27] offset:{128*j} sc1")
        a(f"L_NP{j}:")
    a("    s_waitcnt vmcnt(0)")
    for j in range(4):
        p = pnd(0, j)
        a(f"    s_mov_b64 exec, s[{p}:{p+1}]")
        a(f"    v_cmp_eq_u32 vcc, s{S_TAG}, v{GR(j)+1}")
        a(f"    v_cmp_eq_u64 s[34:35], v[{GR(j)+2}:{GR(j)+3}], s[38:39]")
        a(f"    s_nop 0")
        a(f"    s_and_b64 s[34:35], s[34:35], vcc")
        a(f"    s_andn2_b64 s[{p}:{p+1}], s[{p}:{p+1}], s[34:35]")
    a(f"""    s_mov_b64 exec, -1
    s_or_b64 s[34:35], s[{pnd(0,0)}:{pnd(0,0)+1}], s[{pnd(0,1)}:{pnd(0,1)+1}]
    s_or_b64 s[36:37], s[{pnd(0,2)}:{pnd(0,2)+1}], s[{pnd(0,3)}:{pnd(0,3)+1}]
    s_or_b64 s[34:35], s[34:35], s[36:37]
    s_cbranch_scc0 L_READY
    s_add_u32 s33, s33, 1
    s_cmp_ge_u32 s33, {POLL_LIMIT}
    s_cbranch_scc1 L_END
    s_sleep {opt.sleep}
    s_branch L_POLL
L_READY:""")
    stamp(a, 5)
    a(f"""L_ROUND:
    v_add_u32 v2, s{S_RB}, v{VI}
    v_add_u32 v3, 16, v2
    s_lshl_b32 s30, s3, 4
    v_lshl_add_u32 v4, v{VQ}, 2, s30
    v_mul_u32_u24 v4, {CSTR}, v4
    v_mad_u32_u24 v4, v2, 12, v4""")
    for j in range(4):
        a(f"    v_lshrrev_b32 v{GR(j)+1}, 20, v{GR(j)}      ; count")
        a(f"    v_and_b32 v{GR(j)}, 0xfffff, v{GR(j)}")
        a(f"    v_cmp_gt_u32 s[{msk(0,j)}:{msk(0,j)+1}], v{GR(j)+1}, v2")
        a(f"    v_cmp_gt_u32 s[{msk(1,j)}:{msk(1,j)+1}], v{GR(j)+1}, v3")
        a(f"    v_mad_u32_u24 v{GR(j)+2}, v{GR(j)}, 12, v4")
    a(f"    s_add_u32 s30, s{S_RB}, 32")
    for j in range(4):
        a(f"    s_andn2_b64 s[{msk(0,j)}:{msk(0,j)+1}], s[{msk(0,j)}:{msk(0,j)+1}], s[{inv(j)}:{inv(j)+1}]")
        a(f"    s_andn2_b64 s[{msk(1,j)}:{msk(1,j)+1}], s[{msk(1,j)}:{msk(1,j)+1}], s[{inv(j)}:{inv(j)+1}]")
        a(f"    s_cbranch_scc0 L_NMORE{j}")
        a(f"    s_mov_b64 exec, s[{msk(1,j)}:{msk(1,j)+1}]")
        a(f"    v_cmp_lt_u32 vcc, s30, v{GR(j)+1}")
        a(f"    s_mov_b64 exec, -1")
        a(f"    s_cmp_eq_u64 vcc, 0")
        a(f"    s_cbranch_scc1 L_NMORE{j}")
        a(f"    v_mov_b32 v5, {L_FLAG}")
        a(f"    v_mov_b32 v6, 1")
        a(f"    ds_write_b32 v5, v6")
        a(f"L_NMORE{j}:")
    if opt.rec == 16:
        a(f"""    s_mov_b32 s33, 0
L_RLOAD:""")
        for h in range(2):
            for j in range(4):
                p = pnd(h, j)
                a(f"    s_cmp_eq_u64 s[{p}:{p+1}], 0")
                a(f"    s_cbranch_scc1 L_NL{h}{j}")
                a(f"    s_mov_b64 exec, s[{p}:{p+1}]")
                off = " offset:256" if h else ""
                a(f"    buffer_load_dwordx4 v[{rec(h,j)}:{rec(h,j)+3}], v{GR(j)+2}, s[{S_REC}:{S_REC+3}], 0 offen{off} {opt.hload}")
                a(f"L_NL{h}{j}:")
        a("    s_waitcnt vmcnt(0)")
        for h in range(2):
            for j in range(4):
                p = pnd(h, j)
                r = rec(h, j)
                a(f"    s_cmp_eq_u64 s[{p}:{p+1}], 0")
                a(f"    s_cbranch_scc1 L_NC{h}{j}")
                a(f"    s_mov_b64 exec, s[{p}:{p+1}]")
                a(f"    v_bitop3_b32 v5, v{r}, v{r+2}, v{r+3} bitop3:0x96")
                a(f"    v_cmp_eq_u32_sdwa s[34:35], v{r+2}, s{S_TAG8} src0_sel:BYTE_3 src1_sel:DWORD")
                a(f"    v_cmp_eq_u32 vcc, s{S_TAG}, v5")
                a(f"    s_nop 0")
                a(f"    s_and_b64 s[34:35], s[34:35], vcc")
                a(f"    s_andn2_b64 s[{p}:{p+1}], s[{p}:{p+1}], s[34:35]")
                a(f"L_NC{h}{j}:")
        a(f"    s_mov_b64 exec, -1")
        a(f"    s_or_b64 s[34:35], s[{pnd(0,0)}:{pnd(0,0)+1}], s[{pnd(0,1)}:{pnd(0,1)+1}]")
        for h in range(2):
            for j in range(4):
                if (h, j) in ((0, 0), (0, 1)): continue
                a(f"    s_or_b64 s[34:35], s[34:35], s[{pnd(h,j)}:{pnd(h,j)+1}]")
        a(f"""    s_cbranch_scc0 L_HAVE
    s_add_u32 s33, s33, 1
    s_cmp_ge_u32 s33, {POLL_LIMIT}
    s_cbranch_scc1 L_END
    s_sleep {opt.sleep}
    s_branch L_RLOAD
L_HAVE:""")
    else:
        for h in range(2):
            for j in range(4):
                p = msk(h, j)
                if h:
                    a(f"    s_cmp_eq_u64 s[{p}:{p+1}], 0")
                    a(f"    s_cbranch_scc1 L_NL{h}{j}")
                a(f"    s_mov_b64 exec, s[{p}:{p+1}]")
                off = " offset:192" if h else ""
                a(f"    s_mov_b32 s31, {j*CSTR}")
                a(f"    buffer_load_dwordx3 v[{rec(h,j)}:{rec(h,j)+2}], v{GR(j)+2}, s[{S_REC}:{S_REC+3}], s31 offen{off} {opt.hload}")
                if h:
                    a(f"L_NL{h}{j}:")
        a("    s_mov_b64 exec, -1")
        a("    s_waitcnt vmcnt(0)")
    stamp(a, 6)
    a(f"""    ; table-row flags of this wave's 16 producers: loaded now, checked before the first gather
    global_load_dwordx2 v[22:23], v{VGF}, s[26:27] sc1""")
    for h in range(2):
        for j in range(4):
            m = msk(h, j)
            if h == 1:
                a(f"    s_cmp_eq_u64 s[{m}:{m+1}], 0")
                a(f"    s_cbranch_scc1 L_NB1R{j}")
            a(f"    s_mov_b64 exec, s[{m}:{m+1}]")
            a(f"    v_and_b32 v{DL+4*h+j}, 0xff, v{rec(h,j)+2}")
            a(f"    ds_add_rtn_u32 v{RANK+4*h+j}, v{DL+4*h+j}, v{VONE} offset:{L_CNT}")
            if h == 1:
                a(f"L_NB1R{j}:")
    a(f"""    s_mov_b64 exec, -1
    v_mov_b32 v6, {L_FLAG}
    v_cmp_gt_u32 vcc, {NPB}, v{VL}
    s_waitcnt lgkmcnt(0)
    s_barrier                               ; #5""")
    stamp(a, 12)
    a(f"""    ds_read_b32 v5, v{VCA} offset:{L_CNT}
    ds_read_b32 v6, v6
    s_waitcnt lgkmcnt(0)
    v_add_u32 v4, 7, v5
    v_lshrrev_b32 v4, 3, v4
    v_max_u32 v4, 1, v4
    v_cndmask_b32 v4, 0, v4, vcc
    v_readfirstlane_b32 s{S_MORE}, v6
    v_mov_b32 v{QEND}, v4""")
    dpp_scan(a, QEND)
    stamp(a, 13)
    a(f"""    v_sub_u32 v{QST}, v{QEND}, v4
    v_readlane_b32 s{S_P}, v{QEND}, 63
    v_lshlrev_b32 v3, 3, v{QST}
    s_mov_b32 s30, {L_SRC}
    s_mov_b32 s31, {L_E}""")
    for j in range(4):
        a(f"    ds_bpermute_b32 v{8+j}, v{DL+j}, v3")
    for j in range(4):
        a(f"    s_cmp_eq_u64 s[{M1+2*j}:{M1+2*j+1}], 0")
        a(f"    s_cbranch_scc1 L_NB1P{j}")
        a(f"    ds_bpermute_b32 v{12+j}, v{DL+4+j}, v3")
        a(f"L_NB1P{j}:")
    a(f"""    ; padding slots: waves 0..4 take 8 nodes each, lane = (node, slot); wave 5 fills the tail
    s_cmp_ge_u32 s3, 5
    s_cbranch_scc1 L_NOPLK
    s_lshl_b32 s32, s3, 3
    v_lshrrev_b32 v16, 3, v{VL}
    v_add_u32 v16, s32, v16
    v_lshlrev_b32 v16, 2, v16               ; 4*node
    v_add_u32 v17, v3, v5
    v_lshlrev_b32 v18, 3, v{QEND}
    ds_bpermute_b32 v17, v16, v17
    ds_bpermute_b32 v18, v16, v18
L_NOPLK:
    s_mul_i32 s{S_TS}, s{S_P}, s3
    s_lshr_b32 s{S_TS}, s{S_TS}, 4
    s_add_u32 s32, s3, 1
    s_mul_i32 s{S_TE}, s{S_P}, s32
    s_lshr_b32 s{S_TE}, s{S_TE}, 4
    v_cmp_ge_u32 vcc, s{S_TS}, v{QEND}
    s_waitcnt lgkmcnt(0)
    s_bcnt1_i32_b64 s{S_N}, vcc""")
    for h in range(2):
        for j in range(4):
            m = msk(h, j)
            r = rec(h, j)
            if h == 1:
                a(f"    s_cmp_eq_u64 s[{m}:{m+1}], 0")
                a(f"    s_cbranch_scc1 L_NB1S{j}")
            a(f"    s_mov_b64 exec, s[{m}:{m+1}]")
            a(f"    v_add_u32 v{8+4*h+j}, v{8+4*h+j}, v{RANK+4*h+j}")
            a(f"    v_lshrrev_b32 v{r+2}, 8, v{r+2}")
            a(f"    v_lshl_add_u32 v19, v{8+4*h+j}, 2, s30")
            a(f"    v_lshl_add_u32 v21, v{8+4*h+j}, 3, s31")
            a(f"    ds_write_b32 v19, v{r+2}")
            a(f"    ds_write_b64 v21, v[{r}:{r+1}]")
            if h == 1:
                a(f"L_NB1S{j}:")
    stamp(a, 14)
    a(f"""    s_mov_b64 exec, -1
    v_mov_b32 v11, {N}
    v_mov_b32 v12, 0
    v_mov_b32 v13, 0
    s_cmp_gt_u32 s3, 5
    s_cbranch_scc1 L_NOPAD
    v_and_b32 v16, 7, v{VL}
    v_add_u32 v16, v17, v16
    v_cmp_lt_u32 vcc, v16, v18
    s_cmp_lt_u32 s3, 5
    s_cbranch_scc1 L_PADW
    s_lshl_b32 s32, s{S_P}, 3
    v_add_u32 v16, s32, v{VL}
    s_mov_b64 vcc, -1
L_PADW:
    v_lshl_add_u32 v14, v16, 2, s30
    v_lshl_add_u32 v15, v16, 3, s31
    s_mov_b64 exec, vcc
    ds_write_b32 v14, v11
    ds_write_b64 v15, v[12:13]
    s_mov_b64 exec, -1
L_NOPAD:
    v_readlane_b32 s{S_SEGEND}, v{QEND}, s{S_N}
    s_lshl_b32 s32, s{S_TS}, 5
    v_add_u32 v2, s32, v{SRB}
    s_lshl_b32 s32, s{S_TS}, 1
    v_mad_u32_u24 v3, v{EM}, s32, v{EB}
    s_mul_i32 s32, s{S_N}, 272
    v_add_u32 v{TMP}, s32, v{APA}
    s_add_u32 s32, s{S_N}, s3
    s_lshl_b32 s32, s32, 9
    v_add_u32 v{SLA}, s32, v{SLB}
    s_min_u32 s{S_SEGEND}, s{S_SEGEND}, s{S_TE}
    s_sub_u32 s{S_REM}, s{S_SEGEND}, s{S_TS}
    s_sub_u32 s{S_REM}, s{S_REM}, 1""")
    S = lambda k: 8 + 6 * (k % 8)
    Da, Db, T = 56, 60, 64
    NUM, DEN = 68, 72
    PA, PB_, UA, UB, SA, SB = 76, 78, 80, 82, 84, 86
    a(f"""    s_mov_b32 s33, 0
    s_cmp_eq_u32 s3, 15
    s_cselect_b32 s34, 0xfc00fc00, 0
    s_mov_b32 s35, s34
L_GPOLL:
    s_waitcnt vmcnt(0)
    v_cmp_eq_u64 s[36:37], v[22:23], s[{S_TAG}:{S_TAG+1}]
    s_nop 0
    s_or_b64 s[36:37], s[36:37], s[34:35]
    s_cmp_eq_u64 s[36:37], -1
    s_cbranch_scc1 L_GOK
    s_add_u32 s33, s33, 1
    s_cmp_ge_u32 s33, {POLL_LIMIT}
    s_cbranch_scc1 L_END
    s_sleep {opt.sleep}
    global_load_dwordx2 v[22:23], v{VGF}, s[26:27] sc1
    s_branch L_GPOLL
L_GOK:""")
    stamp(a, 15)
    a(f"""    s_waitcnt lgkmcnt(0)
    s_barrier                               ; #6""")
    stamp(a, 7)
    cstamp(a, 10)
    pairs = [IDXA, IDXB, 56, 58, 60, 62]
    for k in range(6):
        a(f"    ds_read_b32 v{pairs[k]}, v2 offset:{16*k}")
    a(f"""    ds_read_b128 v[{AC}:{AC+3}], v{TMP}
    ds_read_b128 v[{ANX}:{ANX+3}], v{TMP} offset:272
    ds_read_b64 v[{A0}:{A0+1}], v3
    ds_read_b64 v[{A1}:{A1+1}], v3 offset:32""")
    for k in range(4):
        a(f"    v_mov_b32 v{56+2*k+1}, v{IDXA+1}")
    for k in range(8):
        a(f"    v_pk_mov_b32 v[{S(k)}:{S(k)+1}], v[{WC}:{WC+1}], v[{WC}:{WC+1}] op_sel:[0,1]")
    for r in range(0, 8, 2):
        a(f"    v_pk_mov_b32 v[{NUM+r}:{NUM+r+1}], 0, 0")
    for k in range(6):
        a(f"    s_waitcnt lgkmcnt({9-k})")
        a(f"    buffer_load_dwordx4 v[{S(k)+2}:{S(k)+5}], v[{pairs[k]}:{pairs[k]+1}], s[{S_G}:{S_G+3}], 0 idxen offen {opt.gload}")
    a(f"""    s_cmp_ge_u32 s3, 5
    s_cbranch_scc1 L_NOSEG
    v_cvt_f32_u32 v76, s{S_P}
    v_rcp_f32 v76, v76
    v_lshlrev_b32 v77, 4, v{QST}
    v_add_u32 v77, 16, v77
    v_cvt_f32_u32 v77, v77
    v_lshlrev_b32 v78, 4, v{QEND}
    v_cvt_f32_u32 v78, v78
    v_add_f32 v77, -0.5, v77
    v_add_f32 v78, -0.5, v78
    v_mul_f32 v77, v77, v76
    v_mul_f32 v78, v78, v76
    v_cvt_u32_f32 v77, v77
    v_cvt_u32_f32 v78, v78
    v_lshrrev_b32 v4, 3, v0                 ; node
    v_sub_u32 v78, v78, v77
    v_add_u32 v78, 1, v78
    v_add_u32 v77, v77, v{VL}
    v_lshl_or_b32 v77, v78, 16, v77
    v_lshlrev_b32 v5, 2, v4
    ds_bpermute_b32 v5, v5, v77
    v_and_b32 v6, 7, v0
    v_lshlrev_b32 v6, 4, v6
    v_mul_u32_u24 v4, 272, v4
    v_lshl_add_u32 v4, v6, 1, v4
    v_add_u32 v4, {L_U}, v4
    s_waitcnt lgkmcnt(0)
    v_lshrrev_b32 v7, 16, v5
    v_and_b32 v5, 0xffff, v5
    v_lshl_add_u32 v5, v5, 9, v6
L_NOSEG:""")
    if opt.prio:
        a(f"    s_setprio 3")
        a(f"    s_sub_u32 s{S_BLK}, s{S_TE}, s{S_TS}")
    a(f"    s_waitcnt lgkmcnt(0)")
    a("L_LOOP:")
    for k in range(0, 8, 2):
        sa, sb = S(k), S(k + 1)
        pa, pb = S(k - 2), S(k - 1)
        a(f"""    s_waitcnt vmcnt({4 if opt.onewait else 5})
    v_mfma_f32_16x16x32_bf16 v[{Da}:{Da+3}], v[{A0}:{A0+3}], v[{sa}:{sa+3}], v[{AC}:{AC+3}]
    ds_read_b32 v{IDXA}, v2 offset:{16*(k+6)}
    ds_read_b32 v{IDXB}, v2 offset:{16*(k+7)}
    v_lshlrev_b32 v{T}, 16, v{sa+4}
    v_lshlrev_b32 v{T+1}, 16, v{sa+5}
    {"s_nop 0" if opt.onewait == 2 else ("" if opt.onewait else "s_waitcnt vmcnt(4)")}
    v_mfma_f32_16x16x32_bf16 v[{Db}:{Db+3}], v[{A1}:{A1+3}], v[{sb}:{sb+3}], v[{AC}:{AC+3}]
    v_lshlrev_b32 v{T+2}, 16, v{sb+4}
    v_lshlrev_b32 v{T+3}, 16, v{sb+5}
    s_sub_u32 s{S_REM}, s{S_REM}, 1
    ds_read_b64 v[{A0}:{A0+1}], v3 offset:{32*(k+2)}
    ds_read_b64 v[{A1}:{A1+1}], v3 offset:{32*(k+3)}""")
        for i in range(4):
            a(f"    v_exp_f32 v{Da+i}, v{Da+i} clamp")
        a(f"""    s_waitcnt lgkmcnt(2)
    buffer_load_dwordx4 v[{pa+2}:{pa+5}], v[{IDXA}:{IDXA+1}], s[{S_G}:{S_G+3}], 0 idxen offen {opt.gload}
    buffer_load_dwordx4 v[{pb+2}:{pb+5}], v[{IDXB}:{IDXB+1}], s[{S_G}:{S_G+3}], 0 idxen offen {opt.gload}""")
        for i in range(4):
            a(f"    v_exp_f32 v{Db+i}, v{Db+i} clamp")
        c = f"s[{S_C60}:{S_C60+1}]"
        a(f"""    v_pk_add_f32 v[{Da}:{Da+1}], v[{Da}:{Da+1}], {c}
    v_pk_add_f32 v[{Da+2}:{Da+3}], v[{Da+2}:{Da+3}], {c}
    v_pk_add_f32 v[{Db}:{Db+1}], v[{Db}:{Db+1}], {c}
    v_pk_add_f32 v[{Db+2}:{Db+3}], v[{Db+2}:{Db+3}], {c}
    v_pk_mul_f32 v[{PA}:{PA+1}], v[{Da}:{Da+1}], v[{Db}:{Db+1}]
    v_pk_mul_f32 v[{PB_}:{PB_+1}], v[{Da+2}:{Da+3}], v[{Db+2}:{Db+3}]
    v_pk_mul_f32 v[{UA}:{UA+1}], v[{T}:{T+1}], v[{Db}:{Db+1}]
    v_rcp_f32 v{PA}, v{PA}
    v_rcp_f32 v{PA+1}, v{PA+1}
    v_pk_mul_f32 v[{UB}:{UB+1}], v[{sa+4}:{sa+5}], v[{Db+2}:{Db+3}]
    v_rcp_f32 v{PB_}, v{PB_}
    v_rcp_f32 v{PB_+1}, v{PB_+1}
    v_pk_fma_f32 v[{UA}:{UA+1}], v[{T+2}:{T+3}], v[{Da}:{Da+1}], v[{UA}:{UA+1}]
    v_pk_fma_f32 v[{UB}:{UB+1}], v[{sb+4}:{sb+5}], v[{Da+2}:{Da+3}], v[{UB}:{UB+1}]
    v_pk_add_f32 v[{SA}:{SA+1}], v[{Da}:{Da+1}], v[{Db}:{Db+1}]
    v_pk_add_f32 v[{SB}:{SB+1}], v[{Da+2}:{Da+3}], v[{Db+2}:{Db+3}]
    v_pk_fma_f32 v[{NUM}:{NUM+1}], v[{PA}:{PA+1}], v[{UA}:{UA+1}], v[{NUM}:{NUM+1}]
    v_pk_fma_f32 v[{NUM+2}:{NUM+3}], v[{PB_}:{PB_+1}], v[{UB}:{UB+1}], v[{NUM+2}:{NUM+3}]
    v_pk_fma_f32 v[{DEN}:{DEN+1}], v[{PA}:{PA+1}], v[{SA}:{SA+1}], v[{DEN}:{DEN+1}]
    v_pk_fma_f32 v[{DEN+2}:{DEN+3}], v[{PB_}:{PB_+1}], v[{SB}:{SB+1}], v[{DEN+2}:{DEN+3}]
    s_waitcnt lgkmcnt(0)
    s_cbranch_scc1 L_SB{k}
L_RB{k}:""")
        if k == 6:
            a(f"    v_add_u32 v2, 128, v2")
            a(f"    v_add_u32 v3, v{INCE}, v3")
            if opt.prio:
                t1, t2, t3 = opt.pth
                a(f"""    s_sub_u32 s{S_BLK}, s{S_BLK}, 4
    s_cmp_gt_i32 s{S_BLK}, {t1}
    s_cbranch_scc1 L_LOOP
    s_setprio 2
    s_cmp_gt_i32 s{S_BLK}, {t2}
    s_cbranch_scc1 L_LOOP
    s_setprio 1
    s_cmp_gt_i32 s{S_BLK}, {t3}
    s_cbranch_scc1 L_LOOP
    s_setprio 0""")
            a(f"    s_branch L_LOOP")
    for k in range(0, 8, 2):
        a(f"L_SB{k}:")
        for r in range(4):
            a(f"    v_permlane32_swap_b32 v{NUM+r}, v{DEN+r}")
        a(f"""    v_pk_add_f32 v[{NUM}:{NUM+1}], v[{NUM}:{NUM+1}], v[{DEN}:{DEN+1}]
    v_pk_add_f32 v[{NUM+2}:{NUM+3}], v[{NUM+2}:{NUM+3}], v[{DEN+2}:{DEN+3}]
    s_add_u32 s{S_N}, s{S_N}, 1
    s_add_u32 s36, s{S_N}, 1
    v_permlane16_swap_b32 v{NUM}, v{NUM+2}
    v_permlane16_swap_b32 v{NUM+1}, v{NUM+3}
    v_readlane_b32 s37, v{QEND}, s{S_N}
    s_mul_i32 s36, s36, 272
    v_pk_add_f32 v[{DEN}:{DEN+1}], v[{NUM}:{NUM+1}], v[{NUM+2}:{NUM+3}]
    v_add_u32 v{TMP}, s36, v{APA}
    s_cmp_eq_u32 s{S_SEGEND}, s{S_TE}
    ds_write_b64 v{SLA}, v[{DEN}:{DEN+1}]
    s_cbranch_scc1 L_DONE
    v_pk_mov_b32 v[{AC}:{AC+1}], v[{ANX}:{ANX+1}], v[{ANX}:{ANX+1}] op_sel:[0,1]
    v_pk_mov_b32 v[{AC+2}:{AC+3}], v[{ANX+2}:{ANX+3}], v[{ANX+2}:{ANX+3}] op_sel:[0,1]
    v_add_u32 v{SLA}, {SLOT_STR}, v{SLA}
    s_min_u32 s37, s37, s{S_TE}
    v_pk_mov_b32 v[{NUM}:{NUM+1}], 0, 0
    v_pk_mov_b32 v[{NUM+2}:{NUM+3}], 0, 0
    ds_read_b128 v[{ANX}:{ANX+3}], v{TMP}
    v_pk_mov_b32 v[{DEN}:{DEN+1}], 0, 0
    v_pk_mov_b32 v[{DEN+2}:{DEN+3}], 0, 0
    s_sub_u32 s{S_REM}, s37, s{S_SEGEND}
    s_sub_u32 s{S_REM}, s{S_REM}, 1
    s_mov_b32 s{S_SEGEND}, s37
    s_branch L_RB{k}""")
    a("L_DONE:")
    if opt.prio:
        a("    s_setprio 0")
    stamp(a, 8)
    cstamp(a, 11)
    a(f"""    s_waitcnt vmcnt(0) lgkmcnt(0)
    s_barrier                               ; #7
    s_cmp_ge_u32 s3, 5
    s_cbranch_scc1 L_MERGED
    ds_read_b128 v[24:27], v5 offset:{L_SLOT}
    ds_read_b128 v[28:31], v5 offset:{L_SLOT+128}
    ds_read_b128 v[32:35], v5 offset:{L_SLOT+256}
    ds_read_b128 v[36:39], v5 offset:{L_SLOT+384}
    ds_read_b128 v[40:43], v4
    ds_read_b128 v[44:47], v4 offset:16
    v_add_u32 v5, {SLOT_STR}, v5
    s_mov_b32 s36, 1
L_MERGE:
    v_cmp_lt_u32 vcc, s36, v7
    s_nop 1
    s_cmp_eq_u64 vcc, 0
    s_cbranch_scc1 L_MERGE_END
    s_mov_b64 exec, vcc
    ds_read_b128 v[8:11], v5 offset:{L_SLOT}
    ds_read_b128 v[12:15], v5 offset:{L_SLOT+128}
    ds_read_b128 v[16:19], v5 offset:{L_SLOT+256}
    ds_read_b128 v[20:23], v5 offset:{L_SLOT+384}
    v_add_u32 v5, {SLOT_STR}, v5
    s_add_u32 s36, s36, 1
    s_waitcnt lgkmcnt(0)""")
    for r in range(8):
        a(f"    v_pk_add_f32 v[{24+2*r}:{25+2*r}], v[{24+2*r}:{25+2*r}], v[{8+2*r}:{9+2*r}]")
    a(f"""    s_mov_b64 exec, -1
    s_branch L_MERGE
L_MERGE_END:
    s_waitcnt lgkmcnt(0)
    s_or_b32 s36, s{S_RB}, s{S_MORE}
    s_cmp_eq_u32 s36, 0
    s_cbranch_scc1 L_MERGED
    s_mul_i32 s36, s2, {320*64}
    s_add_u32 s36, s36, {TOT_OFF}
    v_lshl_add_u32 v48, v0, 6, s36
    s_cmp_eq_u32 s{S_RB}, 0
    s_cbranch_scc1 L_NOPREV""")
    for r in range(4):
        a(f"    global_load_dwordx4 v[{8+4*r}:{11+4*r}], v48, s[26:27] offset:{16*r} sc1")
    a("    s_waitcnt vmcnt(0)")
    for r in range(8):
        a(f"    v_pk_add_f32 v[{24+2*r}:{25+2*r}], v[{24+2*r}:{25+2*r}], v[{8+2*r}:{9+2*r}]")
    a(f"""L_NOPREV:
    s_cmp_eq_u32 s{S_MORE}, 0
    s_cbranch_scc1 L_MERGED""")
    for r in range(4):
        a(f"    global_store_dwordx4 v48, v[{24+4*r}:{27+4*r}], s[26:27] offset:{16*r} sc1")
    a(f"""    s_waitcnt vmcnt(0)
L_MERGED:
    s_cmp_eq_u32 s{S_MORE}, 0
    s_cbranch_scc1 L_EPI
    s_add_u32 s{S_RB}, s{S_RB}, 32
    s_cmp_lg_u32 s3, 0
    s_cbranch_scc1 L_NOCLR
    v_mov_b32 v9, 0
    v_lshlrev_b32 v10, 2, v{VL}
    ds_write_b32 v10, v9 offset:{L_CNT}
    v_mov_b32 v10, {L_FLAG}
    ds_write_b32 v10, v9
L_NOCLR:""")
    gran_addr(a)
    a(f"""    s_lshl_b32 s30, s3, 8
    s_add_u32 s30, s30, {GF_OFF}
    v_lshl_add_u32 v{VGF}, v{VI}, 4, s30
    v_mov_b32 v{VONE}, 1
    v_lshlrev_b32 v{VCA}, 2, v{VL}""")
    for j in range(4):
        a(f"    global_load_dwordx4 v[{GR(j)}:{GR(j)+3}], v2, s[26:27] offset:{128*j} sc1")
    a(f"""    s_waitcnt vmcnt(0) lgkmcnt(0)
    s_barrier
    s_branch L_ROUND
L_EPI:
    s_cmp_ge_u32 s3, 5
    s_cbranch_scc1 L_FIN
    s_mov_b32 s36, {EPS60:#x}               ; 1e-6 * 2^60""")
    nreg = [24 + c // 2 + 4 * (c % 2) for c in range(8)]
    dreg = [x + 8 for x in nreg]
    for c in range(8):
        a(f"    v_add_f32 v{dreg[c]}, s36, v{dreg[c]}")
        a(f"    v_rcp_f32 v{dreg[c]}, v{dreg[c]}")
    for c in range(8):
        xr = XR + c // 2
        if c % 2 == 0:
            a(f"    v_lshlrev_b32 v{8+c}, 16, v{xr}")
        else:
            a(f"    v_and_b32 v{8+c}, 0xffff0000, v{xr}")
    for c in range(8):
        a(f"    v_fma_f32 v{40+c}, v{nreg[c]}, v{dreg[c]}, v{40+c}")
    for c in range(8):
        a(f"    v_cmp_lt_f32 s[{48+2*c}:{49+2*c}], 0, v{40+c}")
        a(f"    v_mul_f32 v{16+c}, 0, v{40+c}")
    for c in range(8):
        a(f"    v_cndmask_b32 v{40+c}, v{16+c}, v{40+c}, s[{48+2*c}:{49+2*c}]")
    for c in range(8):
        a(f"    v_add_f32 v{40+c}, v{8+c}, v{40+c}")
    for c in range(4):
        a(f"    v_cvt_pk_bf16_f32 v{16+c}, v{40+2*c}, v{41+2*c}")
    a(f"""    v_lshlrev_b32 v4, 4, v0
    s_mul_i32 s36, s2, {NPB*128}
    v_add_u32 v4, s36, v4
    global_store_dwordx4 v4, v[16:19], s[22:23] {opt.ostore}
    s_or_b32 s36, s2, s3
    s_cmp_lg_u32 s36, 0
    s_cbranch_scc1 L_FIN
    v_mov_b32 v4, {GEN_OFF}
    v_mov_b32 v6, s{S_TAG}
    v_mov_b32 v7, s{S_TAG+1}
    s_mov_b64 exec, 1
    global_store_dwordx2 v4, v[6:7], s[26:27] sc1
L_FIN:""")
    stamp_flush(a)
    a("""L_END:
    s_endpgm
L_CODE_END:
""")

HEADER = """; GatedGCN edge-featured MPNN layer: one launch, one workgroup per 40 destination nodes.
;
;
;          12-byte records; waves 10..15 build 40 rows of the gather table {-log2(e) x w_b, x w_v} and the
;
"""

def main():
    global PROF
    ap = argparse.ArgumentParser()
    ap.add_argument("-o", default="standalone__edge_featured_mpnn_gatedgcn__graph.s")
    ap.add_argument("--store", default="sc1")
    ap.add_argument("--hload", default="sc1")
    ap.add_argument("--gload", default="")
    ap.add_argument("--touch", type=int, default=0)
    ap.add_argument("--stage3", type=int, default=0)
    ap.add_argument("--ipf", type=int, default=0)
    ap.add_argument("--gearly", type=int, default=0)
    ap.add_argument("--otouch", type=int, default=0)
    ap.add_argument("--onewait", type=int, default=0)
    ap.add_argument("--wsbase", type=lambda x: int(x, 0), default=0)
    ap.add_argument("--wlate", type=int, default=0)
    ap.add_argument("--rec", type=int, default=12)
    ap.add_argument("--ostore", default="sc1")
    ap.add_argument("--prio", type=int, default=1)
    ap.add_argument("--pth", type=int, nargs=3, default=[16, 8, 4])
    ap.add_argument("--gs", type=int, default=33152)
    ap.add_argument("--cstr", type=int, default=30848)
    ap.add_argument("--sleep", type=int, default=2)
    ap.add_argument("--prof", action="store_true")
    ap.add_argument("--dbg", action="store_true")
    opt = ap.parse_args()
    PROF = opt.prof or opt.dbg
    global GS, CSTR
    GS = opt.gs
    CSTR = opt.cstr
    assert 32 * GS <= REC_OFF - GRAN_OFF and opt.rec == 12 and REC_OFF + 265 * CSTR <= TOT_OFF
    global DBG
    DBG = opt.dbg
    a = Asm()
    a(HEADER.rstrip())
    a(f"; @launch grid=({NB},1,1) block=(1024,1,1) lds={L_END}")
    a('.amdgcn_target "amdgcn-amd-amdhsa--gfx950"')
    a(".text")
    entry(a, opt)
    phase_a_bin(a, opt)
    phase_a_table(a, opt)
    phase_b(a, opt)
    a(f""".section .rodata,"a"
.p2align 6
.amdhsa_kernel {KNAME}
  .amdhsa_next_free_vgpr 128
  .amdhsa_next_free_sgpr {98 if PROF else 88}
  .amdhsa_accum_offset 128
  .amdhsa_group_segment_fixed_size 0
  .amdhsa_kernarg_size 96
  .amdhsa_user_sgpr_count 2
  .amdhsa_user_sgpr_kernarg_segment_ptr 1
  .amdhsa_system_sgpr_workgroup_id_x 1
  .amdhsa_float_denorm_mode_32 3
  .amdhsa_dx10_clamp 0
.end_amdhsa_kernel""")
    open(opt.o, "w").write(a.text())
    print("wrote", opt.o, "lds", L_END)

if __name__ == "__main__":
    main()
```

```python
import argparse, struct

KNAME = "standalone__edge_featured_mpnn_gatedgcn__graph_kernel"
N, D, E = 10000, 64, 640000
NB, NPB = 250, 40
CH = 2560
GEN_OFF, G_OFF, GF_OFF, GRAN_OFF, REC_OFF, TOT_OFF = 0, 0x1000, 0x274000, 0x280000, 0x3A0000, 0xD80000
CSTR = 31232
GS = 32768
PROF_OFF = 0x1300000
NLOG2E = 0xBFB8AA3B
BIG, NBIG = 0x71800000, 0xF1800000
SHIFT = 60
C60 = (127 - SHIFT) << 23
EPS60 = struct.unpack("<I", struct.pack("<f", 1e-6 * 2.0 ** SHIFT))[0]
FSHIFT = struct.unpack("<I", struct.pack("<f", -float(SHIFT)))[0]
NWV = 16
POLL_LIMIT = 1 << 20
CHN = [0, 2, 1, 3]

SLOT_STR = 512
L_SLOT = 0
L_CNT = L_SLOT + (NPB + NWV) * SLOT_STR
L_ZREG = L_CNT + 256
L_FLAG = L_ZREG + 512
L_GCNT = L_FLAG + 4
L_ZEND = L_FLAG + 16
L_WCB = 29504
L_AP = 30080
L_U = L_AP + 48 * 272
L_SRC = L_U + 48 * 272
NSLOT = 250 * 32 + 320 + 64
L_E = L_SRC + NSLOT * 4
L_END = L_E + NSLOT * 8
A_HIST = L_SRC
A_OFFS = A_HIST + 1024
A_REC = A_OFFS + 1024
A_W = A_REC + CH * 16
WIMG = 64 * 144
A_X = A_W + 4 * WIMG
A_G = A_X + 48 * 144
assert A_G + 48 * 272 <= L_END <= 163840
assert all(x % 16 == 0 for x in (L_WCB, L_AP, L_U, L_SRC, L_E, A_REC, A_W, A_X, A_G))

SLA, TMP, INCE, APA = 88, 89, 90, 91
IDXA, IDXB = 92, 94
AC, A0, A1, ANX = 96, 100, 104, 108
XR = 112
QEND, QST = 116, 117
WC = 118
EB, EM, SRB, SLB = 120, 121, 122, 123
VPROF = 124
VI, VQ, VL = 125, 126, 127
S_TAG = 28
S_REC = 40
S_G = 44
M0, M1 = 48, 56
S_INV = 64
S_RB, S_MORE, S_P, S_TS, S_TE, S_N, S_SEGEND, S_REM = 68, 69, 70, 71, 72, 73, 74, 75
S_BLK, S_TAG8 = 76, 77
S_C60 = 78
P0M, P1M = 80, 88

class Asm:
    def __init__(self): self.l = []
    def __call__(self, s=""):
        self.l.extend(s.split("\n"))
    def text(self): return "\n".join(self.l) + "\n"

PROF = False
def stamp(a, idx):
    if PROF:
        a(f"    s_memrealtime s[96:97]")
        a(f"    s_waitcnt lgkmcnt(0)")
        a(f"    v_writelane_b32 v{VPROF}, s96, {idx}")

def cstamp(a, idx):
    if PROF:
        a(f"    s_memtime s[96:97]")
        a(f"    s_waitcnt lgkmcnt(0)")
        a(f"    v_writelane_b32 v{VPROF}, s96, {idx}")

DBG = False
def stamp_flush(a):
    if not PROF: return
    stamp(a, 9)
    if DBG:
        a(f"""    s_waitcnt vmcnt(0) lgkmcnt(0)
    v_readlane_b32 s30, v{VPROF}, 0
    v_readlane_b32 s31, v{VPROF}, 10
    v_readlane_b32 s32, v{VPROF}, 11
    v_readlane_b32 s33, v{VPROF}, 4
    v_readlane_b32 s34, v{VPROF}, 5
    v_readlane_b32 s35, v{VPROF}, 6
    s_nop 3
    s_not_b32 s30, s30
    s_sub_u32 s32, s32, s31
    s_cmp_lt_u32 s3, 10
    s_cselect_b32 s33, s33, 0
    s_cselect_b32 s34, s34, 0
    s_cselect_b32 s35, s35, 0
    v_writelane_b32 v{VPROF}, s30, 0
    v_writelane_b32 v{VPROF}, s32, 10
    v_writelane_b32 v{VPROF}, s33, 11
    v_writelane_b32 v{VPROF}, s34, 12
    v_writelane_b32 v{VPROF}, s35, 13
    s_mov_b64 exec, 0xffff
    v_lshlrev_b32 v2, 2, v{VL}
    global_atomic_umax v2, v{VPROF}, s[24:25]
    s_waitcnt vmcnt(0)""")
        return
    a(f"""    s_waitcnt vmcnt(0) lgkmcnt(0)
    s_mov_b64 exec, 0xffff
    s_lshl_b32 s30, s2, 4
    s_add_u32 s30, s30, s3
    s_lshl_b32 s30, s30, 6
    s_add_u32 s30, s30, {PROF_OFF}
    v_lshl_add_u32 v2, v{VL}, 2, s30
    global_store_dword v2, v{VPROF}, s[26:27]
    s_waitcnt vmcnt(0)""")

def dpp_scan(a, v):
    for sh in (1, 2, 4, 8):
        a(f"    s_nop 1")
        a(f"    v_add_u32_dpp v{v}, v{v}, v{v} row_shr:{sh} row_mask:0xf bank_mask:0xf bound_ctrl:0")
    a("    s_nop 1")
    a(f"    v_add_u32_dpp v{v}, v{v}, v{v} row_bcast:15 row_mask:0xa bank_mask:0xf")
    a("    s_nop 1")
    a(f"    v_add_u32_dpp v{v}, v{v}, v{v} row_bcast:31 row_mask:0xc bank_mask:0xf")
    a("    s_nop 1")

def entry(a, opt):
    a(f"""
.globl {KNAME}
.p2align 8
.type {KNAME},@function
{KNAME}:
    s_cmp_ge_u32 s2, {NB}
    s_cbranch_scc1 L_END
    s_load_dwordx16 s[4:19], s[0:1], 0
    s_load_dwordx8 s[20:27], s[0:1], 64
    v_lshrrev_b32 v1, 6, v0
    v_and_b32 v{VL}, 63, v0
    v_readfirstlane_b32 s3, v1
    v_lshrrev_b32 v{VQ}, 4, v{VL}
    v_and_b32 v{VI}, 15, v{VL}
    v_lshlrev_b32 v{IDXA+1}, 4, v{VI}
    v_mov_b32 v{IDXB+1}, v{IDXA+1}
    v_and_b32 v2, 3, v{VI}                  ; r
    v_lshrrev_b32 v3, 2, v{VI}              ; e
    v_cmp_eq_u32 vcc, v2, v{VQ}
    v_lshlrev_b32 v4, 3, v3
    v_add_u32 v4, {L_E}, v4
    v_mov_b32 v5, {L_ZREG}
    v_cndmask_b32 v{EB}, v5, v4, vcc
    v_mov_b32 v5, 32
    v_cndmask_b32 v{EM}, 0, v5, vcc
    v_lshlrev_b32 v{INCE}, 3, v{EM}
    v_cmp_eq_u32 vcc, v3, v{VQ}
    v_mov_b32 v5, 0x3f80
    v_lshrrev_b32 v6, 1, v2
    v_lshlrev_b32 v6, 4, v6
    v_lshlrev_b32 v5, v6, v5
    v_cndmask_b32 v5, 0, v5, vcc
    v_and_b32 v6, 1, v2                     ; r%2: 0 -> first register, 1 -> second
    v_cmp_eq_u32 vcc, 0, v6
    v_lshlrev_b32 v{APA}, 4, v{VI}
    v_add_u32 v{APA}, {L_AP}, v{APA}
    v_cndmask_b32 v{A0+2}, 0, v5, vcc
    v_cndmask_b32 v{A0+3}, v5, 0, vcc
    v_mov_b32 v{A1+2}, v{A0+2}
    v_mov_b32 v{A1+3}, v{A0+3}
    v_lshlrev_b32 v{SLB}, 3, v{VL}
    v_lshlrev_b32 v{SRB}, 2, v{VQ}
    v_add_u32 v{SRB}, {L_SRC}, v{SRB}
    s_mov_b32 s{S_RB}, 0
    s_mov_b32 s{S_C60}, {C60:#x}
    s_mov_b32 s{S_C60+1}, {C60:#x}
    s_cmp_eq_u32 s3, 15
    s_cselect_b32 s{S_INV+1}, 0xffff0000, 0
    s_cselect_b32 s{S_INV+3}, -1, 0
    s_mov_b32 s{S_INV}, 0
    s_mov_b32 s{S_INV+2}, 0""")
    if PROF:
        a(f"    v_mov_b32 v{VPROF}, 0")
    stamp(a, 0)
    a(f"""    s_cmp_ge_u32 s3, 10
    s_cbranch_scc1 L_TABLE""")

def gran_addr(a, dst=2):
    a(f"""    s_and_b32 s30, s2, 7
    s_lshl_b32 s30, s30, 5
    s_lshr_b32 s31, s2, 3
    s_or_b32 s31, s30, s31                  ; h
    s_lshr_b32 s30, s31, 3
    s_mul_i32 s30, s30, {GS}
    s_and_b32 s31, s31, 7
    s_lshl_b32 s31, s31, 4
    s_add_u32 s30, s30, s31
    s_lshl_b32 s31, s3, 11
    s_add_u32 s30, s30, s31
    s_add_u32 s30, s30, {GRAN_OFF}
    v_lshl_add_u32 v{dst}, v{VQ}, 9, s30""")

VGA, VGF, VONE, VCA = 96, 97, 98, 99

def late_setup(a, opt):
    a(f"""    s_add_u32 s{S_REC}, s26, {REC_OFF}
    s_addc_u32 s{S_REC+1}, s27, 0
    s_mov_b32 s{S_REC+2}, {NB*CSTR}
    s_mov_b32 s{S_REC+3}, 0x20000
    s_add_u32 s{S_G}, s26, {G_OFF}
    s_addc_u32 s{S_G+1}, s27, 0
    s_or_b32 s{S_G+1}, s{S_G+1}, 0x01000000  ; stride 256
    s_mov_b32 s{S_G+2}, {N+1}
    s_mov_b32 s{S_G+3}, 0x20000""")
    gran_addr(a, VGA)
    a(f"""    s_lshl_b32 s30, s3, 8
    s_add_u32 s30, s30, {GF_OFF}
    v_lshl_add_u32 v{VGF}, v{VI}, 4, s30
    v_mov_b32 v{VONE}, 1
    v_lshlrev_b32 v{VCA}, 2, v{VL}""")

def phase_a_bin(a, opt):
    st = opt.store
    QR = lambda j: 16 + 4 * j
    a(f"""    ; ================= phase A, binning waves (tid < 640)
    s_mul_i32 s30, s2, {CH*4}
    v_lshlrev_b32 v2, 4, v0
    v_add_u32 v3, s30, v2
    s_lshl_b32 s31, s30, 1
    v_lshlrev_b32 v4, 5, v0
    v_add_u32 v4, s31, v4
    s_mul_i32 s32, s2, {NPB*128}
    v_add_u32 v64, s32, v2
    v_mov_b32 v6, 0
    v_lshlrev_b32 v7, 2, v0
    s_waitcnt lgkmcnt(0)""")
    if opt.wsbase:
        a(f"    s_add_u32 s26, s26, {opt.wsbase}")
        a(f"    s_addc_u32 s27, s27, 0")
    stamp(a, 1)
    a(f"""    global_load_dwordx4 v[8:11], v3, s[10:11]
    s_load_dwordx2 s[{S_TAG}:{S_TAG+1}], s[26:27], {GEN_OFF}
    s_cmp_ge_u32 s3, 4
    s_cbranch_scc1 L_NOZH
    ds_write_b32 v7, v6 offset:{A_HIST}
L_NOZH:
    s_cmp_lg_u32 s3, 4
    s_cbranch_scc1 L_NOZC
    v_mov_b32 v32, 0
    v_mov_b32 v33, 0
    v_mov_b32 v34, 0
    v_mov_b32 v35, 0
    v_lshlrev_b32 v36, 4, v{VL}
    v_cmp_gt_u32 vcc, {(L_ZEND-L_CNT)//16}, v{VL}
    s_and_saveexec_b64 s[34:35], vcc
    ds_write_b128 v36, v[32:35] offset:{L_CNT}
    s_mov_b64 exec, s[34:35]
L_NOZC:""")
    late_setup(a, opt)
    a(f"""    ; addresses of the copy-out and of the run table entry (bucket slot h = 64*wave + lane, waves 0..3)
    s_mul_i32 s36, s2, {CSTR}
    s_mov_b32 s38, {A_REC}
    v_lshl_add_u32 v56, v0, 4, s38
    v_mad_u32_u24 v57, v0, {opt.rec}, s36
    v_add_u32 v58, {640*opt.rec}, v57
    v_add_u32 v59, {2*640*opt.rec}, v57
    v_add_u32 v60, {3*640*opt.rec}, v57
    s_and_b32 s37, s3, 3
    s_lshl_b32 s30, s37, 8
    v_lshl_add_u32 v61, v{VL}, 2, s30       ; 4*h
    s_mul_i32 s37, s37, {8*GS}
    s_lshl_b32 s30, s2, 7
    s_add_u32 s37, s37, s30
    s_add_u32 s37, s37, {GRAN_OFF}
    v_lshrrev_b32 v62, 3, v{VL}
    v_mul_u32_u24 v62, {GS}, v62
    v_add_u32 v62, s37, v62
    v_and_b32 v63, 7, v{VL}
    v_lshl_add_u32 v62, v63, 4, v62
    v_lshlrev_b32 v63, 4, v{VL}
    s_mov_b32 s33, 52429
    s_movk_i32 s34, 0xffd8                  ; -40
    s_movk_i32 s37, 0xfc04                  ; -1020
    global_load_dwordx4 v[12:15], v3, s[8:9]
    global_load_dwordx4 v[16:19], v4, s[6:7]
    global_load_dwordx4 v[24:27], v4, s[6:7] offset:16
    s_waitcnt lgkmcnt(0)
    s_add_u32 s{S_TAG}, s{S_TAG}, 1
    s_addc_u32 s{S_TAG+1}, s{S_TAG+1}, 0
    v_mov_b32 v53, s{S_TAG}
    v_mov_b32 v54, s{S_TAG+1}
    v_mov_b32 v55, s{S_TAG}
    s_barrier                               ; #1
    s_waitcnt vmcnt(3)""")
    stamp(a, 2)
    for j in range(4):
        a(f"    v_mul_u32_u24 v{40+j}, s33, v{8+j}")
        a(f"    v_lshrrev_b32 v{32+j}, 21, v{40+j}          ; bucket b")
        a(f"    v_lshrrev_b32 v{40+j}, 24, v{40+j}          ; b / 8")
        a(f"    v_mad_i32_i24 v{8+j}, v{32+j}, s34, v{8+j}")
        a(f"    v_lshlrev_b32 v{32+j}, 7, v{32+j}")
        a(f"    v_mad_i32_i24 v{32+j}, v{40+j}, s37, v{32+j}  ; 4 * ((b % 8) * 32 + b / 8): buckets of one die are adjacent")
        a(f"    ds_add_rtn_u32 v{36+j}, v{32+j}, v{VONE} offset:{A_HIST}")
    for j in range(4):
        a(f"    v_lshlrev_b32 v{8+j}, 2, v{8+j}")
    a(f"""    s_waitcnt lgkmcnt(0)
    s_barrier                               ; #2
    ds_read_b128 v[40:43], v63 offset:{A_HIST}
    s_waitcnt lgkmcnt(0)
    v_add_u32 v44, v40, v41
    v_add_u32 v45, v44, v42
    v_add_u32 v46, v45, v43
    v_mov_b32 v47, v46""")
    dpp_scan(a, 47)
    a(f"""    v_sub_u32 v48, v47, v46
    v_add_u32 v49, v48, v40
    v_add_u32 v50, v48, v44
    v_add_u32 v51, v48, v45
    ds_write_b128 v63, v[48:51] offset:{A_OFFS}
    s_waitcnt vmcnt(0)""")
    for j in range(4):
        a(f"    v_lshl_or_b32 v{12+j}, v{12+j}, 8, v{8+j}")
    a("    v_pk_mov_b32 v[20:21], v[18:19], v[18:19] op_sel:[0,1]")
    a("    v_pk_mov_b32 v[28:29], v[26:27], v[26:27] op_sel:[0,1]")
    for j in range(4):
        a(f"    v_mov_b32 v{QR(j)+2}, v{12+j}")
        if opt.rec == 16:
            a(f"    v_bitop3_b32 v{QR(j)+3}, v{QR(j)}, v{12+j}, s{S_TAG} bitop3:0x96")
    a("    s_waitcnt lgkmcnt(0)")
    for j in range(4):
        a(f"    ds_read_b32 v{44+j}, v{32+j} offset:{A_OFFS}")
    a(f"""    ds_read_b32 v52, v61 offset:{A_OFFS}
    ds_read_b32 v48, v61 offset:{A_HIST}
    s_waitcnt lgkmcnt(2)""")
    for j in range(4):
        a(f"    v_add_u32 v{44+j}, v{44+j}, v{36+j}")
        a(f"    v_lshl_add_u32 v{44+j}, v{44+j}, 4, s38")
        a(f"    ds_write_b128 v{44+j}, v[{QR(j)}:{QR(j)+3}]")
    a(f"""    s_add_u32 s30, s26, {REC_OFF}
    s_addc_u32 s31, s27, 0
    s_waitcnt lgkmcnt(0)
    s_barrier                               ; #3""")
    stamp(a, 3)
    if opt.rec == 16:
        for j in range(4):
            a(f"    ds_read_b128 v[{32+4*j}:{35+4*j}], v56 offset:{j*10240}")
    else:
        for j in range(4):
            a(f"    ds_read_b96 v[{32+4*j}:{34+4*j}], v56 offset:{j*10240}")
    a(f"""    v_lshl_or_b32 v52, v48, 20, v52""")
    for j in range(4):
        a(f"    s_waitcnt lgkmcnt({3-j})")
        if opt.rec == 16:
            a(f"    global_store_dwordx4 v{57+j}, v[{32+4*j}:{35+4*j}], s[30:31] {st}")
        else:
            a(f"    global_store_dwordx3 v{57+j}, v[{32+4*j}:{34+4*j}], s[30:31] {st}")
    a(f"""    s_cmp_ge_u32 s3, 5
    s_cbranch_scc1 L_NOXR
    global_load_dwordx4 v[{XR}:{XR+3}], v64, s[4:5]
""" + (f"    global_load_dword v{TMP}, v64, s[22:23]    ; touches the output page early\n" if opt.otouch else "") + "L_NOXR:")
    if opt.rec == 12:
        a("    s_waitcnt vmcnt(0)")
    a(f"""    s_barrier                               ; #4
    s_cmp_ge_u32 s3, 4
    s_cbranch_scc1 L_PHASEB
    global_store_dwordx4 v62, v[52:55], s[26:27] {st}
    s_branch L_PHASEB""")

def tile_mfma(a, acc0, wreg, xreg):
    for mat in range(2):
        acc = acc0 + 4 * mat
        r0, r1 = wreg + mat * 8, wreg + mat * 8 + 4
        a(f"    v_mfma_f32_16x16x32_bf16 v[{acc}:{acc+3}], v[{r0}:{r0+3}], v[{xreg}:{xreg+3}], 0")
        a(f"    v_mfma_f32_16x16x32_bf16 v[{acc}:{acc+3}], v[{r1}:{r1+3}], v[{xreg+4}:{xreg+7}], v[{acc}:{acc+3}]")

def phase_a_table(a, opt):
    st = opt.store
    wp = [14, 20, 12, 18]
    a(f"""L_TABLE:
    s_sub_u32 s36, s3, 10                   ; u""")
    if opt.ipf:
        a(f"""    ; the table waves are idle here: they pull the kernel's own code into the cache (2 KB per wave)
    s_getpc_b64 s[30:31]
L_PC:
    s_sub_u32 s30, s30, L_PC-{KNAME}
    s_subb_u32 s31, s31, 0
    s_lshl_b32 s32, s36, 11
    v_lshl_add_u32 v80, v{VL}, 4, s32
    v_add_u32 v81, 1024, v80
    s_mov_b32 s33, L_CODE_END-{KNAME}
    v_cmp_gt_u32 vcc, s33, v80
    v_cmp_gt_u32 s[34:35], s33, v81
    s_mov_b64 exec, vcc
    s_cbranch_execz L_NOPF0
    global_load_dword v82, v80, s[30:31]
L_NOPF0:
    s_mov_b64 exec, s[34:35]
    s_cbranch_execz L_NOPF1
    global_load_dword v83, v81, s[30:31]
L_NOPF1:
    s_mov_b64 exec, -1""")
    a(f"""    s_and_b32 s37, s36, 1
    s_add_u32 s38, s37, 6
    v_lshlrev_b32 v2, 4, v{VL}
    s_lshl_b32 s30, s36, 10
    v_add_u32 v3, s30, v2                   ; piece u
    s_lshl_b32 s31, s38, 10
    v_add_u32 v4, s31, v2                   ; piece 6/7
    s_mul_i32 s32, s2, {NPB*128}
    v_add_u32 v5, s32, v3                   ; x offset
    v_lshrrev_b32 v6, 3, v{VL}
    v_mul_u32_u24 v6, 144, v6
    v_and_b32 v7, 7, v{VL}
    v_lshl_add_u32 v6, v7, 4, v6
    s_mul_i32 s33, s36, {8*144}
    s_add_u32 s33, s33, {A_W}
    v_add_u32 v48, s33, v6
    s_mul_i32 s33, s38, {8*144}
    s_add_u32 s33, s33, {A_W}
    v_add_u32 v49, s33, v6
    v_lshrrev_b32 v50, 1, v{VQ}
    v_and_b32 v51, 1, v{VQ}
    v_lshl_or_b32 v50, v51, 1, v50
    v_lshl_add_u32 v50, v{VI}, 2, v50
    v_lshlrev_b32 v50, 1, v50
    s_waitcnt lgkmcnt(0)""")
    if opt.wsbase:
        a(f"    s_add_u32 s26, s26, {opt.wsbase}")
        a(f"    s_addc_u32 s27, s27, 0")
    a(f"""    s_load_dwordx2 s[{S_TAG}:{S_TAG+1}], s[26:27], {GEN_OFF}""")
    if opt.touch:
        a(f"""    ; first access to the workspace pages written later (address translation only; the values are not used)
    v_mul_u32_u24 v45, {64*CSTR}, v{VL}
    v_add_u32 v45, {REC_OFF + 8*CSTR + CH*12 - 64*CSTR}, v45
    v_mov_b32 v46, 0x800
    v_cmp_eq_u32 vcc, 0, v{VL}
    s_nop 1
    v_cndmask_b32 v45, v45, v46, vcc
    s_mov_b64 exec, 0x3f
    global_load_dword v84, v45, s[26:27] sc1
    s_mov_b64 exec, -1""")
        if opt.touch > 1:
            a(f"""    s_mul_i32 s30, s2, {NPB*128}
    v_mov_b32 v46, s30
    s_mov_b64 exec, 1
    global_load_dword v85, v46, s[22:23] sc1
    s_mov_b64 exec, -1""")
    stamp(a, 1)
    late_setup(a, opt)
    if opt.wlate >= 0:
        a("    s_barrier")
    if opt.wlate > 0:
        a("    s_barrier                               ; #2")
    for m in range(4):
        a(f"    global_load_dwordx4 v[{8+8*m}:{11+8*m}], v3, s[{wp[m]}:{wp[m]+1}]")
        a(f"    global_load_dwordx4 v[{12+8*m}:{15+8*m}], v4, s[{wp[m]}:{wp[m]+1}]")
    a(f"""    s_cmp_eq_u32 s36, 5
    s_cbranch_scc1 L_TWC0
    global_load_dwordx4 v[40:43], v5, s[4:5]
    s_branch L_TB
L_TWC0:
    global_load_ushort v40, v50, s[16:17]
    global_load_ushort v41, v50, s[16:17] offset:128
    global_load_ushort v42, v50, s[16:17] offset:256
    global_load_ushort v43, v50, s[16:17] offset:384
L_TB:""")
    if opt.wlate < 0:
        a("    s_waitcnt lgkmcnt(0)")
        a("    s_barrier                               ; #1")
    if opt.wlate <= 0:
        a("    s_barrier                               ; #2")
    if not opt.stage3:
        a("    s_barrier                               ; #3")
    a(f"""    s_cmp_eq_u32 s36, 5
    s_cbranch_scc1 L_TWC
    s_waitcnt vmcnt(0)
    ds_write_b128 v48, v[40:43] offset:{A_X - A_W}
    s_branch L_TST
L_TWC:
    s_mov_b32 s33, {NLOG2E:#x}
    v_lshlrev_b32 v44, 3, v{VL}
    s_waitcnt vmcnt(0)
    v_lshlrev_b32 v40, 16, v40
    v_lshlrev_b32 v41, 16, v41
    v_lshlrev_b32 v42, 16, v42
    v_lshlrev_b32 v43, 16, v43
    v_mul_f32 v40, s33, v40
    v_mul_f32 v41, s33, v41
    v_mul_f32 v42, s33, v42
    v_mul_f32 v43, s33, v43
    v_cvt_pk_bf16_f32 v40, v40, v41
    v_cvt_pk_bf16_f32 v41, v42, v43
    ds_write_b64 v44, v[40:41] offset:{L_WCB}
L_TST:""")
    for m in range(4):
        a(f"    ds_write_b128 v48, v[{8+8*m}:{11+8*m}] offset:{m*WIMG}")
        a(f"    ds_write_b128 v49, v[{12+8*m}:{15+8*m}] offset:{m*WIMG}")
    a(f"""    ; tile job: nt = u/2, mt in {{2*(u%2), 2*(u%2)+1}}
    s_lshr_b32 s30, s36, 1                  ; nt
    s_lshl_b32 s31, s37, 1                  ; mt0
    s_lshl_b32 s32, s30, 4
    v_add_u32 v4, s32, v{VI}                ; node
    v_mul_u32_u24 v5, 144, v4
    v_lshl_add_u32 v5, v{VQ}, 4, v5
    v_add_u32 v5, {A_X}, v5
    v_lshrrev_b32 v6, 2, v{VI}
    v_lshl_add_u32 v6, v{VQ}, 3, v6
    v_mul_u32_u24 v6, 144, v6
    v_and_b32 v7, 3, v{VI}
    v_lshl_add_u32 v6, v7, 3, v6
    s_lshl_b32 s32, s31, 5
    s_add_u32 s32, s32, {A_W}
    v_add_u32 v6, s32, v6
    v_mul_u32_u24 v7, 272, v4
    v_lshl_add_u32 v50, v{VQ}, 4, v7
    s_lshl_b32 s32, s31, 6
    v_add_u32 v50, s32, v50
    v_add_u32 v51, {L_AP}, v50
    v_add_u32 v53, {L_U}, v50
    s_waitcnt lgkmcnt(0)
    s_add_u32 s{S_TAG}, s{S_TAG}, 1
    s_addc_u32 s{S_TAG+1}, s{S_TAG+1}, 0
""")
    if opt.stage3:
        a("    s_barrier                               ; #3")
    else:
        a(f"""    ; the six table waves synchronise among themselves through an LDS counter (staging complete)
    v_mov_b32 v54, {L_GCNT+4}
    v_mov_b32 v55, 1
    s_mov_b64 exec, 1
    ds_add_u32 v54, v55
    s_mov_b64 exec, -1
    s_mov_b32 s33, 0
L_TSYNC:
    ds_read_b32 v55, v54
    s_add_u32 s33, s33, 1
    s_cmp_ge_u32 s33, {POLL_LIMIT}
    s_cbranch_scc1 L_END
    s_waitcnt lgkmcnt(0)
    v_readfirstlane_b32 s30, v55
    s_nop 3
    s_cmp_lt_u32 s30, 6
    s_cbranch_scc1 L_TSYNC
""")
    a(f"""    ds_read_b128 v[8:11], v5
    ds_read_b128 v[12:15], v5 offset:64""")
    def wfrags(first):
        for m in range(2):
            for mat in range(2):
                for ks in range(2):
                    r = 16 + m * 16 + mat * 8 + ks * 4
                    for h in range(2):
                        a(f"    ds_read_b64_tr_b16 v[{r+2*h}:{r+2*h+1}], v6 offset:{(first+mat)*WIMG + ks*4608 + h*576 + m*32}")
    wfrags(0)
    a(f"""    ; table row address of this lane: (40 w + node)*256 + (16 mt0 + 4 g)*4 ; rows >= 40 of the tile are not stored
    s_mul_i32 s31, s2, {NPB*256}
    s_add_u32 s31, s31, {G_OFF}
    v_lshlrev_b32 v55, 8, v4
    v_add_u32 v55, s31, v55
    v_lshl_add_u32 v55, v{VQ}, 4, v55
    s_and_b32 s30, s36, 1
    s_lshl_b32 s30, s30, 7
    v_add_u32 v55, s30, v55
    v_cmp_gt_u32 s[34:35], {NPB}, v4
    s_mov_b32 s32, {NLOG2E:#x}
    s_mov_b32 s33, {BIG:#x}
    v_mov_b32 v54, {NBIG:#x}
    s_waitcnt lgkmcnt(0)""")
    for m in range(2):
        tile_mfma(a, 56 + 8 * m, 16 + 16 * m, 8)
    wfrags(2)
    a("    s_mov_b32 s30, 0x8000")
    for m in range(2):
        accb, accv = 56 + 8 * m, 60 + 8 * m
        o = 72 + 4 * m
        for r in range(4):
            a(f"    v_mul_f32 v{accb+r}, s32, v{accb+r}")
            a(f"    v_med3_f32 v{accb+r}, v{accb+r}, v54, s33")
        a(f"    v_cvt_pk_bf16_f32 v{o}, v{accb}, v{accb+1}")
        a(f"    v_cvt_pk_bf16_f32 v{o+1}, v{accb+2}, v{accb+3}")
        for p in range(2):
            lo, hi = accv + 2 * p, accv + 2 * p + 1
            a(f"    v_cvt_pk_bf16_f32 v80, v{lo}, v{lo}")
            a(f"    v_and_b32 v80, 0xffff, v80")
            a(f"    v_and_b32 v81, 0x7fffffff, v{hi}")
            a(f"    v_and_b32 v{hi}, 0x80000000, v{hi}")
            a(f"    v_sub_u32 v81, v81, v80")
            a(f"    v_add_u32 v81, s30, v81")
            a(f"    v_max_i32 v81, 0, v81")
            a(f"    v_and_b32 v81, 0xffff0000, v81")
            a(f"    v_or3_b32 v{o+2+p}, v81, v80, v{hi}")
    if not opt.gearly:
        a("    s_barrier")
    a(f"""    s_mov_b64 exec, s[34:35]
    global_store_dwordx4 v55, v[72:75], s[26:27] offset:0 {st}
    global_store_dwordx4 v55, v[76:79], s[26:27] offset:64 {st}
    s_mov_b64 exec, -1""")
    a(f"""    ; padding row N of the table (gate saturates, value 0): last workgroup, wave u = 5
    s_cmp_lg_u32 s2, {NB-1}
    s_cbranch_scc1 L_TAU
    s_cmp_lg_u32 s36, 5
    s_cbranch_scc1 L_TAU
    v_mov_b32 v80, 0x71807180
    v_mov_b32 v81, v80
    v_mov_b32 v82, 0
    v_mov_b32 v83, 0
    v_lshlrev_b32 v7, 4, v{VL}
    v_add_u32 v7, {N*256 + G_OFF}, v7
    s_mov_b64 exec, 0xffff
    global_store_dwordx4 v7, v[80:83], s[26:27] {st}
    s_mov_b64 exec, -1
L_TAU:
    s_waitcnt lgkmcnt(0)""")
    for m in range(2):
        tile_mfma(a, 56 + 8 * m, 16 + 16 * m, 8)
    a(f"""    s_mov_b32 s34, {FSHIFT:#x}
    s_nop 6""")
    for m in range(2):
        acca, accu = 56 + 8 * m, 60 + 8 * m
        a(f"    ds_write_b128 v53, v[{accu}:{accu+3}] offset:{m*64}")
        for r in range(4):
            a(f"    v_mul_f32 v{acca+CHN[r]}, s32, v{acca+CHN[r]}")
            a(f"    v_med3_f32 v{acca+CHN[r]}, v{acca+CHN[r]}, v54, s33")
            a(f"    v_add_f32 v{16+r}, s34, v{acca+CHN[r]}")
        a(f"    ds_write_b128 v51, v[16:19] offset:{m*64}")
    if opt.gearly == 2:
        a("    s_barrier                               ; #4")
    a(f"""    ; the table rows of this workgroup are complete: the last table wave publishes the flag
    v_mov_b32 v16, {L_GCNT}
    v_mov_b32 v17, 1
    s_waitcnt vmcnt(0)
    s_mov_b64 exec, 1
    ds_add_rtn_u32 v18, v16, v17
    s_waitcnt lgkmcnt(0)
    v_readfirstlane_b32 s30, v18
    s_mov_b64 exec, -1
    s_cmp_lg_u32 s30, 5
    s_cbranch_scc1 {"L_TB4" if opt.gearly == 1 else "L_PHASEB"}
    s_lshl_b32 s30, s2, 4
    s_add_u32 s30, s30, {GF_OFF}
    v_mov_b32 v16, s30
    v_mov_b32 v18, s{S_TAG}
    v_mov_b32 v19, s{S_TAG+1}
    s_mov_b64 exec, 1
    global_store_dwordx2 v16, v[18:19], s[26:27] {st}
    s_mov_b64 exec, -1""")
    if opt.gearly == 1:
        a("L_TB4:")
        a("    s_barrier                               ; #4")

def phase_b(a, opt):
    GR = lambda j: 8 + 4 * j
    rec = lambda h, j: 24 + 16 * h + 4 * j
    RANK, DL = 56, 64
    msk = lambda h, j: (M0 if h == 0 else M1) + 2 * j
    pnd = lambda h, j: (P0M if h == 0 else P1M) + 2 * j
    inv = lambda j: S_INV + (2 if j >= 2 else 0)
    a("L_PHASEB:")
    stamp(a, 4)
    a(f"""    ; ================= phase B: wait for the run table entries of this bucket
    v_lshlrev_b32 v2, 3, v{VL}
    ds_read_b64 v[{WC}:{WC+1}], v2 offset:{L_WCB}""")
    a(f"""    s_mov_b32 s33, 0
    s_mov_b32 s38, s{S_TAG+1}
    s_mov_b32 s39, s{S_TAG}""")
    for j in range(4):
        a(f"    s_not_b64 s[{pnd(0,j)}:{pnd(0,j)+1}], s[{inv(j)}:{inv(j)+1}]")
    a("L_POLL:")
    for j in range(4):
        p = pnd(0, j)
        a(f"    s_mov_b64 exec, s[{p}:{p+1}]")
        a(f"    s_cbranch_execz L_NP{j}")
        a(f"    global_load_dwordx4 v[{GR(j)}:{GR(j)+3}], v{VGA}, s[26:27] offset:{128*j} sc1")
        a(f"L_NP{j}:")
    a("    s_waitcnt vmcnt(0)")
    for j in range(4):
        p = pnd(0, j)
        a(f"    s_mov_b64 exec, s[{p}:{p+1}]")
        a(f"    v_cmp_eq_u32 vcc, s{S_TAG}, v{GR(j)+1}")
        a(f"    v_cmp_eq_u64 s[34:35], v[{GR(j)+2}:{GR(j)+3}], s[38:39]")
        a(f"    s_nop 0")
        a(f"    s_and_b64 s[34:35], s[34:35], vcc")
        a(f"    s_andn2_b64 s[{p}:{p+1}], s[{p}:{p+1}], s[34:35]")
    a(f"""    s_mov_b64 exec, -1
    s_or_b64 s[34:35], s[{pnd(0,0)}:{pnd(0,0)+1}], s[{pnd(0,1)}:{pnd(0,1)+1}]
    s_or_b64 s[36:37], s[{pnd(0,2)}:{pnd(0,2)+1}], s[{pnd(0,3)}:{pnd(0,3)+1}]
    s_or_b64 s[34:35], s[34:35], s[36:37]
    s_cbranch_scc0 L_READY
    s_add_u32 s33, s33, 1
    s_cmp_ge_u32 s33, {POLL_LIMIT}
    s_cbranch_scc1 L_END
    s_sleep {opt.sleep}
    s_branch L_POLL
L_READY:""")
    stamp(a, 5)
    a(f"""L_ROUND:
    v_add_u32 v2, s{S_RB}, v{VI}
    v_add_u32 v3, 16, v2
    s_lshl_b32 s30, s3, 4
    v_lshl_add_u32 v4, v{VQ}, 2, s30
    v_mul_u32_u24 v4, {CSTR}, v4
    v_mad_u32_u24 v4, v2, 12, v4""")
    for j in range(4):
        a(f"    v_lshrrev_b32 v{GR(j)+1}, 20, v{GR(j)}      ; count")
        a(f"    v_and_b32 v{GR(j)}, 0xfffff, v{GR(j)}")
        a(f"    v_cmp_gt_u32 s[{msk(0,j)}:{msk(0,j)+1}], v{GR(j)+1}, v2")
        a(f"    v_cmp_gt_u32 s[{msk(1,j)}:{msk(1,j)+1}], v{GR(j)+1}, v3")
        a(f"    v_mad_u32_u24 v{GR(j)+2}, v{GR(j)}, 12, v4")
    a(f"    s_add_u32 s30, s{S_RB}, 32")
    for j in range(4):
        a(f"    s_andn2_b64 s[{msk(0,j)}:{msk(0,j)+1}], s[{msk(0,j)}:{msk(0,j)+1}], s[{inv(j)}:{inv(j)+1}]")
        a(f"    s_andn2_b64 s[{msk(1,j)}:{msk(1,j)+1}], s[{msk(1,j)}:{msk(1,j)+1}], s[{inv(j)}:{inv(j)+1}]")
        a(f"    s_cbranch_scc0 L_NMORE{j}")
        a(f"    s_mov_b64 exec, s[{msk(1,j)}:{msk(1,j)+1}]")
        a(f"    v_cmp_lt_u32 vcc, s30, v{GR(j)+1}")
        a(f"    s_mov_b64 exec, -1")
        a(f"    s_cmp_eq_u64 vcc, 0")
        a(f"    s_cbranch_scc1 L_NMORE{j}")
        a(f"    v_mov_b32 v5, {L_FLAG}")
        a(f"    v_mov_b32 v6, 1")
        a(f"    ds_write_b32 v5, v6")
        a(f"L_NMORE{j}:")
    if opt.rec == 16:
        a(f"""    s_mov_b32 s33, 0
L_RLOAD:""")
        for h in range(2):
            for j in range(4):
                p = pnd(h, j)
                a(f"    s_cmp_eq_u64 s[{p}:{p+1}], 0")
                a(f"    s_cbranch_scc1 L_NL{h}{j}")
                a(f"    s_mov_b64 exec, s[{p}:{p+1}]")
                off = " offset:256" if h else ""
                a(f"    buffer_load_dwordx4 v[{rec(h,j)}:{rec(h,j)+3}], v{GR(j)+2}, s[{S_REC}:{S_REC+3}], 0 offen{off} {opt.hload}")
                a(f"L_NL{h}{j}:")
        a("    s_waitcnt vmcnt(0)")
        for h in range(2):
            for j in range(4):
                p = pnd(h, j)
                r = rec(h, j)
                a(f"    s_cmp_eq_u64 s[{p}:{p+1}], 0")
                a(f"    s_cbranch_scc1 L_NC{h}{j}")
                a(f"    s_mov_b64 exec, s[{p}:{p+1}]")
                a(f"    v_bitop3_b32 v5, v{r}, v{r+2}, v{r+3} bitop3:0x96")
                a(f"    v_cmp_eq_u32_sdwa s[34:35], v{r+2}, s{S_TAG8} src0_sel:BYTE_3 src1_sel:DWORD")
                a(f"    v_cmp_eq_u32 vcc, s{S_TAG}, v5")
                a(f"    s_nop 0")
                a(f"    s_and_b64 s[34:35], s[34:35], vcc")
                a(f"    s_andn2_b64 s[{p}:{p+1}], s[{p}:{p+1}], s[34:35]")
                a(f"L_NC{h}{j}:")
        a(f"    s_mov_b64 exec, -1")
        a(f"    s_or_b64 s[34:35], s[{pnd(0,0)}:{pnd(0,0)+1}], s[{pnd(0,1)}:{pnd(0,1)+1}]")
        for h in range(2):
            for j in range(4):
                if (h, j) in ((0, 0), (0, 1)): continue
                a(f"    s_or_b64 s[34:35], s[34:35], s[{pnd(h,j)}:{pnd(h,j)+1}]")
        a(f"""    s_cbranch_scc0 L_HAVE
    s_add_u32 s33, s33, 1
    s_cmp_ge_u32 s33, {POLL_LIMIT}
    s_cbranch_scc1 L_END
    s_sleep {opt.sleep}
    s_branch L_RLOAD
L_HAVE:""")
    else:
        for h in range(2):
            for j in range(4):
                p = msk(h, j)
                if h:
                    a(f"    s_cmp_eq_u64 s[{p}:{p+1}], 0")
                    a(f"    s_cbranch_scc1 L_NL{h}{j}")
                a(f"    s_mov_b64 exec, s[{p}:{p+1}]")
                off = " offset:192" if h else ""
                a(f"    s_mov_b32 s31, {j*CSTR}")
                a(f"    buffer_load_dwordx3 v[{rec(h,j)}:{rec(h,j)+2}], v{GR(j)+2}, s[{S_REC}:{S_REC+3}], s31 offen{off} {opt.hload}")
                if h:
                    a(f"L_NL{h}{j}:")
        a("    s_mov_b64 exec, -1")
        a("    s_waitcnt vmcnt(0)")
    stamp(a, 6)
    a(f"""    ; table-row flags of this wave's 16 producers: loaded now, checked before the first gather
    global_load_dwordx2 v[22:23], v{VGF}, s[26:27] sc1""")
    for h in range(2):
        for j in range(4):
            m = msk(h, j)
            if h == 1:
                a(f"    s_cmp_eq_u64 s[{m}:{m+1}], 0")
                a(f"    s_cbranch_scc1 L_NB1R{j}")
            a(f"    s_mov_b64 exec, s[{m}:{m+1}]")
            a(f"    v_and_b32 v{DL+4*h+j}, 0xff, v{rec(h,j)+2}")
            a(f"    ds_add_rtn_u32 v{RANK+4*h+j}, v{DL+4*h+j}, v{VONE} offset:{L_CNT}")
            if h == 1:
                a(f"L_NB1R{j}:")
    a(f"""    s_mov_b64 exec, -1
    v_mov_b32 v6, {L_FLAG}
    v_cmp_gt_u32 vcc, {NPB}, v{VL}
    s_waitcnt lgkmcnt(0)
    s_barrier                               ; #5""")
    stamp(a, 12)
    a(f"""    ds_read_b32 v5, v{VCA} offset:{L_CNT}
    ds_read_b32 v6, v6
    s_waitcnt lgkmcnt(0)
    v_add_u32 v4, 7, v5
    v_lshrrev_b32 v4, 3, v4
    v_max_u32 v4, 1, v4
    v_cndmask_b32 v4, 0, v4, vcc
    v_readfirstlane_b32 s{S_MORE}, v6
    v_mov_b32 v{QEND}, v4""")
    dpp_scan(a, QEND)
    stamp(a, 13)
    a(f"""    v_sub_u32 v{QST}, v{QEND}, v4
    v_readlane_b32 s{S_P}, v{QEND}, 63
    v_lshlrev_b32 v3, 3, v{QST}
    s_mov_b32 s30, {L_SRC}
    s_mov_b32 s31, {L_E}""")
    for j in range(4):
        a(f"    ds_bpermute_b32 v{8+j}, v{DL+j}, v3")
    for j in range(4):
        a(f"    s_cmp_eq_u64 s[{M1+2*j}:{M1+2*j+1}], 0")
        a(f"    s_cbranch_scc1 L_NB1P{j}")
        a(f"    ds_bpermute_b32 v{12+j}, v{DL+4+j}, v3")
        a(f"L_NB1P{j}:")
    a(f"""    ; padding slots: waves 0..4 take 8 nodes each, lane = (node, slot); wave 5 fills the tail
    s_cmp_ge_u32 s3, 5
    s_cbranch_scc1 L_NOPLK
    s_lshl_b32 s32, s3, 3
    v_lshrrev_b32 v16, 3, v{VL}
    v_add_u32 v16, s32, v16
    v_lshlrev_b32 v16, 2, v16               ; 4*node
    v_add_u32 v17, v3, v5
    v_lshlrev_b32 v18, 3, v{QEND}
    ds_bpermute_b32 v17, v16, v17
    ds_bpermute_b32 v18, v16, v18
L_NOPLK:
    s_mul_i32 s{S_TS}, s{S_P}, s3
    s_lshr_b32 s{S_TS}, s{S_TS}, 4
    s_add_u32 s32, s3, 1
    s_mul_i32 s{S_TE}, s{S_P}, s32
    s_lshr_b32 s{S_TE}, s{S_TE}, 4
    v_cmp_ge_u32 vcc, s{S_TS}, v{QEND}
    s_waitcnt lgkmcnt(0)
    s_bcnt1_i32_b64 s{S_N}, vcc""")
    for h in range(2):
        for j in range(4):
            m = msk(h, j)
            r = rec(h, j)
            if h == 1:
                a(f"    s_cmp_eq_u64 s[{m}:{m+1}], 0")
                a(f"    s_cbranch_scc1 L_NB1S{j}")
            a(f"    s_mov_b64 exec, s[{m}:{m+1}]")
            a(f"    v_add_u32 v{8+4*h+j}, v{8+4*h+j}, v{RANK+4*h+j}")
            a(f"    v_lshrrev_b32 v{r+2}, 8, v{r+2}")
            a(f"    v_lshl_add_u32 v19, v{8+4*h+j}, 2, s30")
            a(f"    v_lshl_add_u32 v21, v{8+4*h+j}, 3, s31")
            a(f"    ds_write_b32 v19, v{r+2}")
            a(f"    ds_write_b64 v21, v[{r}:{r+1}]")
            if h == 1:
                a(f"L_NB1S{j}:")
    stamp(a, 14)
    a(f"""    s_mov_b64 exec, -1
    v_mov_b32 v11, {N}
    v_mov_b32 v12, 0
    v_mov_b32 v13, 0
    s_cmp_gt_u32 s3, 5
    s_cbranch_scc1 L_NOPAD
    v_and_b32 v16, 7, v{VL}
    v_add_u32 v16, v17, v16
    v_cmp_lt_u32 vcc, v16, v18
    s_cmp_lt_u32 s3, 5
    s_cbranch_scc1 L_PADW
    s_lshl_b32 s32, s{S_P}, 3
    v_add_u32 v16, s32, v{VL}
    s_mov_b64 vcc, -1
L_PADW:
    v_lshl_add_u32 v14, v16, 2, s30
    v_lshl_add_u32 v15, v16, 3, s31
    s_mov_b64 exec, vcc
    ds_write_b32 v14, v11
    ds_write_b64 v15, v[12:13]
    s_mov_b64 exec, -1
L_NOPAD:
    v_readlane_b32 s{S_SEGEND}, v{QEND}, s{S_N}
    s_lshl_b32 s32, s{S_TS}, 5
    v_add_u32 v2, s32, v{SRB}
    s_lshl_b32 s32, s{S_TS}, 1
    v_mad_u32_u24 v3, v{EM}, s32, v{EB}
    s_mul_i32 s32, s{S_N}, 272
    v_add_u32 v{TMP}, s32, v{APA}
    s_add_u32 s32, s{S_N}, s3
    s_lshl_b32 s32, s32, 9
    v_add_u32 v{SLA}, s32, v{SLB}
    s_min_u32 s{S_SEGEND}, s{S_SEGEND}, s{S_TE}
    s_sub_u32 s{S_REM}, s{S_SEGEND}, s{S_TS}
    s_sub_u32 s{S_REM}, s{S_REM}, 1""")
    S = lambda k: 8 + 6 * (k % 8)
    Da, Db, T = 56, 60, 64
    NUM, DEN = 68, 72
    PA, PB_, UA, UB, SA, SB = 76, 78, 80, 82, 84, 86
    a(f"""    s_mov_b32 s33, 0
    s_cmp_eq_u32 s3, 15
    s_cselect_b32 s34, 0xfc00fc00, 0
    s_mov_b32 s35, s34
L_GPOLL:
    s_waitcnt vmcnt(0)
    v_cmp_eq_u64 s[36:37], v[22:23], s[{S_TAG}:{S_TAG+1}]
    s_nop 0
    s_or_b64 s[36:37], s[36:37], s[34:35]
    s_cmp_eq_u64 s[36:37], -1
    s_cbranch_scc1 L_GOK
    s_add_u32 s33, s33, 1
    s_cmp_ge_u32 s33, {POLL_LIMIT}
    s_cbranch_scc1 L_END
    s_sleep {opt.sleep}
    global_load_dwordx2 v[22:23], v{VGF}, s[26:27] sc1
    s_branch L_GPOLL
L_GOK:""")
    stamp(a, 15)
    a(f"""    s_waitcnt lgkmcnt(0)
    s_barrier                               ; #6""")
    stamp(a, 7)
    cstamp(a, 10)
    pairs = [IDXA, IDXB, 56, 58, 60, 62]
    for k in range(6):
        a(f"    ds_read_b32 v{pairs[k]}, v2 offset:{16*k}")
    a(f"""    ds_read_b128 v[{AC}:{AC+3}], v{TMP}
    ds_read_b128 v[{ANX}:{ANX+3}], v{TMP} offset:272
    ds_read_b64 v[{A0}:{A0+1}], v3
    ds_read_b64 v[{A1}:{A1+1}], v3 offset:32""")
    for k in range(4):
        a(f"    v_mov_b32 v{56+2*k+1}, v{IDXA+1}")
    for k in range(8):
        a(f"    v_pk_mov_b32 v[{S(k)}:{S(k)+1}], v[{WC}:{WC+1}], v[{WC}:{WC+1}] op_sel:[0,1]")
    for r in range(0, 8, 2):
        a(f"    v_pk_mov_b32 v[{NUM+r}:{NUM+r+1}], 0, 0")
    for k in range(6):
        a(f"    s_waitcnt lgkmcnt({9-k})")
        a(f"    buffer_load_dwordx4 v[{S(k)+2}:{S(k)+5}], v[{pairs[k]}:{pairs[k]+1}], s[{S_G}:{S_G+3}], 0 idxen offen {opt.gload}")
    a(f"""    s_cmp_ge_u32 s3, 5
    s_cbranch_scc1 L_NOSEG
    v_cvt_f32_u32 v76, s{S_P}
    v_rcp_f32 v76, v76
    v_lshlrev_b32 v77, 4, v{QST}
    v_add_u32 v77, 16, v77
    v_cvt_f32_u32 v77, v77
    v_lshlrev_b32 v78, 4, v{QEND}
    v_cvt_f32_u32 v78, v78
    v_add_f32 v77, -0.5, v77
    v_add_f32 v78, -0.5, v78
    v_mul_f32 v77, v77, v76
    v_mul_f32 v78, v78, v76
    v_cvt_u32_f32 v77, v77
    v_cvt_u32_f32 v78, v78
    v_lshrrev_b32 v4, 3, v0                 ; node
    v_sub_u32 v78, v78, v77
    v_add_u32 v78, 1, v78
    v_add_u32 v77, v77, v{VL}
    v_lshl_or_b32 v77, v78, 16, v77
    v_lshlrev_b32 v5, 2, v4
    ds_bpermute_b32 v5, v5, v77
    v_and_b32 v6, 7, v0
    v_lshlrev_b32 v6, 4, v6
    v_mul_u32_u24 v4, 272, v4
    v_lshl_add_u32 v4, v6, 1, v4
    v_add_u32 v4, {L_U}, v4
    s_waitcnt lgkmcnt(0)
    v_lshrrev_b32 v7, 16, v5
    v_and_b32 v5, 0xffff, v5
    v_lshl_add_u32 v5, v5, 9, v6
L_NOSEG:""")
    if opt.samerow:
        a(f"    v_mov_b32 v4, v{VQ}")
        a(f"    v_mov_b32 v5, v{IDXA+1}")
    if opt.prio:
        a(f"    s_setprio 3")
        a(f"    s_sub_u32 s{S_BLK}, s{S_TE}, s{S_TS}")
    a(f"    s_waitcnt lgkmcnt(0)")
    a("L_LOOP:")
    for k in range(0, 8, 2):
        sa, sb = S(k), S(k + 1)
        pa, pb = S(k - 2), S(k - 1)
        a(f"""    s_waitcnt vmcnt({4 if opt.onewait else 5})
    v_mfma_f32_16x16x32_bf16 v[{Da}:{Da+3}], v[{A0}:{A0+3}], v[{sa}:{sa+3}], v[{AC}:{AC+3}]
    ds_read_b32 v{IDXA}, v2 offset:{16*(k+6)}
    ds_read_b32 v{IDXB}, v2 offset:{16*(k+7)}
    v_lshlrev_b32 v{T}, 16, v{sa+4}
    v_lshlrev_b32 v{T+1}, 16, v{sa+5}
    {"s_nop 0" if opt.onewait == 2 else ("" if opt.onewait else "s_waitcnt vmcnt(4)")}
    v_mfma_f32_16x16x32_bf16 v[{Db}:{Db+3}], v[{A1}:{A1+3}], v[{sb}:{sb+3}], v[{AC}:{AC+3}]
    v_lshlrev_b32 v{T+2}, 16, v{sb+4}
    v_lshlrev_b32 v{T+3}, 16, v{sb+5}
    s_sub_u32 s{S_REM}, s{S_REM}, 1
    ds_read_b64 v[{A0}:{A0+1}], v3 offset:{32*(k+2)}
    ds_read_b64 v[{A1}:{A1+1}], v3 offset:{32*(k+3)}""")
        for i in range(4):
            a(f"    v_exp_f32 v{Da+i}, v{Da+i} clamp")
        a(f"""    s_waitcnt lgkmcnt(2)
    buffer_load_dwordx4 v[{pa+2}:{pa+5}], v[{IDXA if not opt.samerow else 4}:{IDXA+1 if not opt.samerow else 5}], s[{S_G}:{S_G+3}], 0 idxen offen {opt.gload}
    buffer_load_dwordx4 v[{pb+2}:{pb+5}], v[{IDXB if not opt.samerow else 4}:{IDXB+1 if not opt.samerow else 5}], s[{S_G}:{S_G+3}], 0 idxen offen {opt.gload}""")
        for i in range(4):
            a(f"    v_exp_f32 v{Db+i}, v{Db+i} clamp")
        c = f"s[{S_C60}:{S_C60+1}]"
        a(f"""    v_pk_add_f32 v[{Da}:{Da+1}], v[{Da}:{Da+1}], {c}
    v_pk_add_f32 v[{Da+2}:{Da+3}], v[{Da+2}:{Da+3}], {c}
    v_pk_add_f32 v[{Db}:{Db+1}], v[{Db}:{Db+1}], {c}
    v_pk_add_f32 v[{Db+2}:{Db+3}], v[{Db+2}:{Db+3}], {c}
    v_pk_mul_f32 v[{PA}:{PA+1}], v[{Da}:{Da+1}], v[{Db}:{Db+1}]
    v_pk_mul_f32 v[{PB_}:{PB_+1}], v[{Da+2}:{Da+3}], v[{Db+2}:{Db+3}]
    v_pk_mul_f32 v[{UA}:{UA+1}], v[{T}:{T+1}], v[{Db}:{Db+1}]
    v_rcp_f32 v{PA}, v{PA}
    v_rcp_f32 v{PA+1}, v{PA+1}
    v_pk_mul_f32 v[{UB}:{UB+1}], v[{sa+4}:{sa+5}], v[{Db+2}:{Db+3}]
    v_rcp_f32 v{PB_}, v{PB_}
    v_rcp_f32 v{PB_+1}, v{PB_+1}
    v_pk_fma_f32 v[{UA}:{UA+1}], v[{T+2}:{T+3}], v[{Da}:{Da+1}], v[{UA}:{UA+1}]
    v_pk_fma_f32 v[{UB}:{UB+1}], v[{sb+4}:{sb+5}], v[{Da+2}:{Da+3}], v[{UB}:{UB+1}]
    v_pk_add_f32 v[{SA}:{SA+1}], v[{Da}:{Da+1}], v[{Db}:{Db+1}]
    v_pk_add_f32 v[{SB}:{SB+1}], v[{Da+2}:{Da+3}], v[{Db+2}:{Db+3}]
    v_pk_fma_f32 v[{NUM}:{NUM+1}], v[{PA}:{PA+1}], v[{UA}:{UA+1}], v[{NUM}:{NUM+1}]
    v_pk_fma_f32 v[{NUM+2}:{NUM+3}], v[{PB_}:{PB_+1}], v[{UB}:{UB+1}], v[{NUM+2}:{NUM+3}]
    v_pk_fma_f32 v[{DEN}:{DEN+1}], v[{PA}:{PA+1}], v[{SA}:{SA+1}], v[{DEN}:{DEN+1}]
    v_pk_fma_f32 v[{DEN+2}:{DEN+3}], v[{PB_}:{PB_+1}], v[{SB}:{SB+1}], v[{DEN+2}:{DEN+3}]
    s_waitcnt lgkmcnt(0)
    s_cbranch_scc1 L_SB{k}
L_RB{k}:""")
        if k == 6:
            a(f"    v_add_u32 v2, 128, v2")
            a(f"    v_add_u32 v3, v{INCE}, v3")
            if opt.prio:
                t1, t2, t3 = opt.pth
                a(f"""    s_sub_u32 s{S_BLK}, s{S_BLK}, 4
    s_cmp_gt_i32 s{S_BLK}, {t1}
    s_cbranch_scc1 L_LOOP
    s_setprio 2
    s_cmp_gt_i32 s{S_BLK}, {t2}
    s_cbranch_scc1 L_LOOP
    s_setprio 1
    s_cmp_gt_i32 s{S_BLK}, {t3}
    s_cbranch_scc1 L_LOOP
    s_setprio 0""")
            a(f"    s_branch L_LOOP")
    for k in range(0, 8, 2):
        a(f"L_SB{k}:")
        for r in range(4):
            a(f"    v_permlane32_swap_b32 v{NUM+r}, v{DEN+r}")
        a(f"""    v_pk_add_f32 v[{NUM}:{NUM+1}], v[{NUM}:{NUM+1}], v[{DEN}:{DEN+1}]
    v_pk_add_f32 v[{NUM+2}:{NUM+3}], v[{NUM+2}:{NUM+3}], v[{DEN+2}:{DEN+3}]
    s_add_u32 s{S_N}, s{S_N}, 1
    s_add_u32 s36, s{S_N}, 1
    v_permlane16_swap_b32 v{NUM}, v{NUM+2}
    v_permlane16_swap_b32 v{NUM+1}, v{NUM+3}
    v_readlane_b32 s37, v{QEND}, s{S_N}
    s_mul_i32 s36, s36, 272
    v_pk_add_f32 v[{DEN}:{DEN+1}], v[{NUM}:{NUM+1}], v[{NUM+2}:{NUM+3}]
    v_add_u32 v{TMP}, s36, v{APA}
    s_cmp_eq_u32 s{S_SEGEND}, s{S_TE}
    ds_write_b64 v{SLA}, v[{DEN}:{DEN+1}]
    s_cbranch_scc1 L_DONE
    v_pk_mov_b32 v[{AC}:{AC+1}], v[{ANX}:{ANX+1}], v[{ANX}:{ANX+1}] op_sel:[0,1]
    v_pk_mov_b32 v[{AC+2}:{AC+3}], v[{ANX+2}:{ANX+3}], v[{ANX+2}:{ANX+3}] op_sel:[0,1]
    v_add_u32 v{SLA}, {SLOT_STR}, v{SLA}
    s_min_u32 s37, s37, s{S_TE}
    v_pk_mov_b32 v[{NUM}:{NUM+1}], 0, 0
    v_pk_mov_b32 v[{NUM+2}:{NUM+3}], 0, 0
    ds_read_b128 v[{ANX}:{ANX+3}], v{TMP}
    v_pk_mov_b32 v[{DEN}:{DEN+1}], 0, 0
    v_pk_mov_b32 v[{DEN+2}:{DEN+3}], 0, 0
    s_sub_u32 s{S_REM}, s37, s{S_SEGEND}
    s_sub_u32 s{S_REM}, s{S_REM}, 1
    s_mov_b32 s{S_SEGEND}, s37
    s_branch L_RB{k}""")
    a("L_DONE:")
    if opt.samerow:
        a(f"    v_mov_b32 v4, {L_U}")
        a(f"    v_mov_b32 v5, 0")
        a(f"    v_mov_b32 v7, 1")
    if opt.prio:
        a("    s_setprio 0")
    stamp(a, 8)
    cstamp(a, 11)
    a(f"""    s_waitcnt vmcnt(0) lgkmcnt(0)
    s_barrier                               ; #7
    s_cmp_ge_u32 s3, 5
    s_cbranch_scc1 L_MERGED
    ds_read_b128 v[24:27], v5 offset:{L_SLOT}
    ds_read_b128 v[28:31], v5 offset:{L_SLOT+128}
    ds_read_b128 v[32:35], v5 offset:{L_SLOT+256}
    ds_read_b128 v[36:39], v5 offset:{L_SLOT+384}
    ds_read_b128 v[40:43], v4
    ds_read_b128 v[44:47], v4 offset:16
    v_add_u32 v5, {SLOT_STR}, v5
    s_mov_b32 s36, 1
L_MERGE:
    v_cmp_lt_u32 vcc, s36, v7
    s_nop 1
    s_cmp_eq_u64 vcc, 0
    s_cbranch_scc1 L_MERGE_END
    s_mov_b64 exec, vcc
    ds_read_b128 v[8:11], v5 offset:{L_SLOT}
    ds_read_b128 v[12:15], v5 offset:{L_SLOT+128}
    ds_read_b128 v[16:19], v5 offset:{L_SLOT+256}
    ds_read_b128 v[20:23], v5 offset:{L_SLOT+384}
    v_add_u32 v5, {SLOT_STR}, v5
    s_add_u32 s36, s36, 1
    s_waitcnt lgkmcnt(0)""")
    for r in range(8):
        a(f"    v_pk_add_f32 v[{24+2*r}:{25+2*r}], v[{24+2*r}:{25+2*r}], v[{8+2*r}:{9+2*r}]")
    a(f"""    s_mov_b64 exec, -1
    s_branch L_MERGE
L_MERGE_END:
    s_waitcnt lgkmcnt(0)
    s_or_b32 s36, s{S_RB}, s{S_MORE}
    s_cmp_eq_u32 s36, 0
    s_cbranch_scc1 L_MERGED
    s_mul_i32 s36, s2, {320*64}
    s_add_u32 s36, s36, {TOT_OFF}
    v_lshl_add_u32 v48, v0, 6, s36
    s_cmp_eq_u32 s{S_RB}, 0
    s_cbranch_scc1 L_NOPREV""")
    for r in range(4):
        a(f"    global_load_dwordx4 v[{8+4*r}:{11+4*r}], v48, s[26:27] offset:{16*r} sc1")
    a("    s_waitcnt vmcnt(0)")
    for r in range(8):
        a(f"    v_pk_add_f32 v[{24+2*r}:{25+2*r}], v[{24+2*r}:{25+2*r}], v[{8+2*r}:{9+2*r}]")
    a(f"""L_NOPREV:
    s_cmp_eq_u32 s{S_MORE}, 0
    s_cbranch_scc1 L_MERGED""")
    for r in range(4):
        a(f"    global_store_dwordx4 v48, v[{24+4*r}:{27+4*r}], s[26:27] offset:{16*r} sc1")
    a(f"""    s_waitcnt vmcnt(0)
L_MERGED:
    s_cmp_eq_u32 s{S_MORE}, 0
    s_cbranch_scc1 L_EPI
    s_add_u32 s{S_RB}, s{S_RB}, 32
    s_cmp_lg_u32 s3, 0
    s_cbranch_scc1 L_NOCLR
    v_mov_b32 v9, 0
    v_lshlrev_b32 v10, 2, v{VL}
    ds_write_b32 v10, v9 offset:{L_CNT}
    v_mov_b32 v10, {L_FLAG}
    ds_write_b32 v10, v9
L_NOCLR:""")
    gran_addr(a)
    a(f"""    s_lshl_b32 s30, s3, 8
    s_add_u32 s30, s30, {GF_OFF}
    v_lshl_add_u32 v{VGF}, v{VI}, 4, s30
    v_mov_b32 v{VONE}, 1
    v_lshlrev_b32 v{VCA}, 2, v{VL}""")
    for j in range(4):
        a(f"    global_load_dwordx4 v[{GR(j)}:{GR(j)+3}], v2, s[26:27] offset:{128*j} sc1")
    a(f"""    s_waitcnt vmcnt(0) lgkmcnt(0)
    s_barrier
    s_branch L_ROUND
L_EPI:
    s_cmp_ge_u32 s3, 5
    s_cbranch_scc1 L_FIN
    s_mov_b32 s36, {EPS60:#x}               ; 1e-6 * 2^60""")
    nreg = [24 + c // 2 + 4 * (c % 2) for c in range(8)]
    dreg = [x + 8 for x in nreg]
    for c in range(8):
        a(f"    v_add_f32 v{dreg[c]}, s36, v{dreg[c]}")
        a(f"    v_rcp_f32 v{dreg[c]}, v{dreg[c]}")
    for c in range(8):
        xr = XR + c // 2
        if c % 2 == 0:
            a(f"    v_lshlrev_b32 v{8+c}, 16, v{xr}")
        else:
            a(f"    v_and_b32 v{8+c}, 0xffff0000, v{xr}")
    for c in range(8):
        a(f"    v_fma_f32 v{40+c}, v{nreg[c]}, v{dreg[c]}, v{40+c}")
    for c in range(8):
        a(f"    v_cmp_lt_f32 s[{48+2*c}:{49+2*c}], 0, v{40+c}")
        a(f"    v_mul_f32 v{16+c}, 0, v{40+c}")
    for c in range(8):
        a(f"    v_cndmask_b32 v{40+c}, v{16+c}, v{40+c}, s[{48+2*c}:{49+2*c}]")
    for c in range(8):
        a(f"    v_add_f32 v{40+c}, v{8+c}, v{40+c}")
    for c in range(4):
        a(f"    v_cvt_pk_bf16_f32 v{16+c}, v{40+2*c}, v{41+2*c}")
    a(f"""    v_lshlrev_b32 v4, 4, v0
    s_mul_i32 s36, s2, {NPB*128}
    v_add_u32 v4, s36, v4
    global_store_dwordx4 v4, v[16:19], s[22:23] {opt.ostore}
    s_or_b32 s36, s2, s3
    s_cmp_lg_u32 s36, 0
    s_cbranch_scc1 L_FIN
    v_mov_b32 v4, {GEN_OFF}
    v_mov_b32 v6, s{S_TAG}
    v_mov_b32 v7, s{S_TAG+1}
    s_mov_b64 exec, 1
    global_store_dwordx2 v4, v[6:7], s[26:27] sc1
L_FIN:""")
    stamp_flush(a)
    a("""L_END:
    s_endpgm
L_CODE_END:
""")

HEADER = """; GatedGCN edge-featured MPNN layer: one launch, one workgroup per 40 destination nodes.
;
;
;          12-byte records; waves 10..15 build 40 rows of the gather table {-log2(e) x w_b, x w_v} and the
;
"""

def main():
    global PROF
    ap = argparse.ArgumentParser()
    ap.add_argument("-o", default="standalone__edge_featured_mpnn_gatedgcn__graph.s")
    ap.add_argument("--store", default="sc1")
    ap.add_argument("--hload", default="sc1")
    ap.add_argument("--gload", default="")
    ap.add_argument("--touch", type=int, default=0)
    ap.add_argument("--samerow", type=int, default=0)
    ap.add_argument("--stage3", type=int, default=0)
    ap.add_argument("--ipf", type=int, default=0)
    ap.add_argument("--gearly", type=int, default=0)
    ap.add_argument("--otouch", type=int, default=0)
    ap.add_argument("--onewait", type=int, default=0)
    ap.add_argument("--wsbase", type=lambda x: int(x, 0), default=0)
    ap.add_argument("--wlate", type=int, default=0)
    ap.add_argument("--rec", type=int, default=12)
    ap.add_argument("--ostore", default="sc1")
    ap.add_argument("--prio", type=int, default=1)
    ap.add_argument("--pth", type=int, nargs=3, default=[16, 8, 4])
    ap.add_argument("--gs", type=int, default=33152)
    ap.add_argument("--cstr", type=int, default=30848)
    ap.add_argument("--sleep", type=int, default=2)
    ap.add_argument("--prof", action="store_true")
    ap.add_argument("--dbg", action="store_true")
    opt = ap.parse_args()
    PROF = opt.prof or opt.dbg
    global GS, CSTR
    GS = opt.gs
    CSTR = opt.cstr
    assert 32 * GS <= REC_OFF - GRAN_OFF and opt.rec == 12 and REC_OFF + 265 * CSTR <= TOT_OFF
    global DBG
    DBG = opt.dbg
    a = Asm()
    a(HEADER.rstrip())
    a(f"; @launch grid=({NB},1,1) block=(1024,1,1) lds={L_END}")
    a('.amdgcn_target "amdgcn-amd-amdhsa--gfx950"')
    a(".text")
    entry(a, opt)
    phase_a_bin(a, opt)
    phase_a_table(a, opt)
    phase_b(a, opt)
    a(f""".section .rodata,"a"
.p2align 6
.amdhsa_kernel {KNAME}
  .amdhsa_next_free_vgpr 128
  .amdhsa_next_free_sgpr {98 if PROF else 88}
  .amdhsa_accum_offset 128
  .amdhsa_group_segment_fixed_size 0
  .amdhsa_kernarg_size 96
  .amdhsa_user_sgpr_count 2
  .amdhsa_user_sgpr_kernarg_segment_ptr 1
  .amdhsa_system_sgpr_workgroup_id_x 1
  .amdhsa_float_denorm_mode_32 3
  .amdhsa_dx10_clamp 0
.end_amdhsa_kernel""")
    open(opt.o, "w").write(a.text())
    print("wrote", opt.o, "lds", L_END)

if __name__ == "__main__":
    main()
```
